```python
import torch

def _softmax(x, axis=-1):
    return torch.softmax(x, dim=axis)

def _gelu(x):
    return torch.nn.functional.gelu(x, approximate='tanh')

def _silu(x):
    return torch.nn.functional.silu(x)

def _sigmoid(x):
    return torch.sigmoid(x)

def _layernorm(x, axis=-1, eps=1e-05):
    m = x.mean(dim=axis, keepdim=True)
    v = x.var(dim=axis, keepdim=True, unbiased=False)
    return (x - m) / torch.sqrt(v + eps)

def _scatter_add(tgt, idx, src, axis=0):
    return tgt.clone().index_add_(axis, idx, src)

def _segment_sum(src, seg, n):
    out = torch.zeros((n,) + src.shape[1:], dtype=src.dtype)
    return out.index_add_(0, seg, src)

def _pad(x, pw):
    flat = tuple((v for pair in reversed(pw) for v in pair))
    return torch.nn.functional.pad(x, flat)
kernel_name = 'gated_mix__linear_attn_block__mixer_gmlp__prompt'

def setup_inputs():

    _w = lambda a: (lambda t: t.to(torch.bfloat16) if t.is_floating_point() else t)(torch.as_tensor(a))

    def _A_setup():
        B, S, D = (1, 2048, 640)
        return {'x': _w((lambda *s: torch.randn(*s, dtype=torch.bfloat16) * 0.05)(B, S, D)), 'wqkv': _w((lambda *s: torch.randn(*s, dtype=torch.bfloat16) * 1.6)(D, 3 * D)), 'wo': _w((lambda *s: torch.randn(*s, dtype=torch.bfloat16) * 0.2)(D, D))}
    _A_in = _A_setup()

    def _B_setup():
        B, S, D, F = (1, 2048, 640, 1728)
        Fh = F // 2
        return {'x': _w((lambda *s: torch.randn(*s, dtype=torch.bfloat16) * 0.05)(B, S, D)), 'w_in': _w((lambda *s: torch.randn(*s, dtype=torch.bfloat16) * 0.4)(D, 2 * Fh)), 'w_sp': _w(0.01 * (lambda *s: torch.randn(*s, dtype=torch.bfloat16) * 0.4)(S, S)), 'b_sp': _w(1.0 + 0.01 * (lambda *s: torch.randn(*s, dtype=torch.bfloat16) * 0.05)(S)), 'w_out': _w((lambda *s: torch.randn(*s, dtype=torch.bfloat16) * 0.05)(Fh, D))}
    _B_in = _B_setup()
    return {'A_x': _A_in['x'], 'A_wqkv': _A_in['wqkv'], 'A_wo': _A_in['wo'], 'B_x': _B_in['x'], 'B_w_in': _B_in['w_in'], 'B_w_sp': _B_in['w_sp'], 'B_b_sp': _B_in['b_sp'], 'B_w_out': _B_in['w_out'], 'gate_w': _w((lambda *s: torch.randn(*s, dtype=torch.bfloat16) * 0.05)(640) * 16.0)}

def reference(A_x, A_wqkv, A_wo, B_x, B_w_in, B_w_sp, B_b_sp, B_w_out, gate_w):

    def _A_ref(x, wqkv, wo):
        B, S, D = x.shape
        H = 32
        Dh = D // H
        qkv = (lambda x, *d: x.permute(*d))((x @ wqkv).reshape(B, S, 3, H, Dh), 2, 0, 3, 1, 4)
        q, k, v = (qkv[0], qkv[1], qkv[2])
        phi = lambda t: torch.where(t > 0, t + 1, torch.exp(t)) + 1e-06
        pq, pk = (phi(q), phi(k))
        kv = torch.einsum('bhsd,bhse->bhde', pk, v)
        z = torch.einsum('bhsd->bhd', pk)
        num = torch.einsum('bhqd,bhde->bhqe', pq, kv)
        den = torch.einsum('bhqd,bhd->bhq', pq, z)[..., None] + 1e-06
        o = num / den
        return (lambda x, *d: x.permute(*d))(o, 0, 2, 1, 3).reshape(B, S, D) @ wo

    def _B_ref(x, w_in, w_sp, b_sp, w_out):
        B, S, D = x.shape
        F = w_in.shape[-1]
        Fh = F // 2
        z = _gelu(torch.einsum('bsd,df->bsf', x, w_in))
        z1 = z[..., :Fh].clone()
        z2 = _layernorm(z[..., Fh:], axis=-1)
        g = torch.einsum('ts,bsf->btf', w_sp, z2) + b_sp[None, :, None]
        return torch.einsum('bsf,fd->bsd', z1 * g, w_out)
    x = A_x
    g = _sigmoid((x * gate_w).sum(-1, keepdims=True))
    a = _A_ref(x, A_wqkv, A_wo)
    b = _B_ref(x, B_w_in, B_w_sp, B_b_sp, B_w_out)
    return g * a + (1 - g) * b
```

```python
import re

TRANS = ("v_exp_f32", "v_log_f32", "v_rcp_f32", "v_rsq_f32", "v_sqrt_f32", "v_sin_f32", "v_cos_f32")
RMW = ("v_fmac_f32", "v_dot2c_f32_bf16", "v_pk_fmac")
NODST_S = ("s_cmp", "s_waitcnt", "s_barrier", "s_nop", "s_branch", "s_cbranch", "s_setprio", "s_sleep", "s_endpgm", "s_bitcmp")

_reg = re.compile(r"^-?\|?(?:abs\()?([vas])(\d+)\)?\|?$")
_rng = re.compile(r"^-?([vas])\[(\d+):(\d+)\]$")


def regs(tok):
    tok = tok.strip()
    m = _reg.match(tok)
    if m:
        return [(m.group(1), int(m.group(2)))]
    m = _rng.match(tok)
    if m:
        return [(m.group(1), i) for i in range(int(m.group(2)), int(m.group(3)) + 1)]
    if tok == "vcc":
        return [("s", "vcc")]
    if tok == "exec":
        return [("s", "exec")]
    if tok == "m0":
        return [("s", "m0")]
    return []


def R(kind, base, n=1):
    return "%s%d" % (kind, base) if n == 1 else "%s[%d:%d]" % (kind, base, base + n - 1)


def rr(reg, n=1, off=0):
    return R(reg[0], reg[1] + off, n)


class Em:
    def __init__(self):
        self.L = []
        self.pos = 0
        self.cyc = 0
        self.mfma_free = 0
        self.reset_counters()
        self.reset_hazards()
        self.nlabel = 0
        self.cold = []

    def reset_counters(self):
        self.vm_n = 0
        self.vm_done = -1
        self.lg_n = 0
        self.lg_done = -1
        self.pend = {}

    def reset_hazards(self):
        self.valu_w = {}
        self.trans_w = {}
        self.mfma_w = {}
        self.mfma_c = {}
        self.store_r = {}
        self.vsgpr_w = {}
        self.m0_w = -99

    def snapshot(self):
        import copy
        return copy.deepcopy({k: getattr(self, k) for k in (
            "pos", "cyc", "mfma_free", "vm_n", "vm_done", "lg_n", "lg_done", "pend", "valu_w", "trans_w",
            "mfma_w", "mfma_c", "store_r", "vsgpr_w", "m0_w")})

    def restore(self, snap):
        import copy
        for k, v in copy.deepcopy(snap).items():
            setattr(self, k, v)

    def label(self, base="L"):
        self.nlabel += 1
        return "%s_%d" % (base, self.nlabel)

    def raw(self, text):
        self.L.append(text)

    def _put(self, text, states=1, cyc=4):
        self.L.append("    " + text)
        self.pos += states
        self.cyc += cyc

    def nop(self, n):
        while n > 0:
            k = min(n, 16)
            self._put("s_nop %d" % (k - 1), k, 4 * k)
            n -= k

    def wait(self, vm=None, lg=None):
        parts = []
        if vm is not None and vm > self.vm_done:
            n = min(self.vm_n - 1 - vm, 63)
            parts.append("vmcnt(%d)" % n)
            self.vm_done = self.vm_n - 1 - n
        if lg is not None and lg > self.lg_done:
            n = min(self.lg_n - 1 - lg, 15)
            parts.append("lgkmcnt(%d)" % n)
            self.lg_done = self.lg_n - 1 - n
        if parts:
            self._put("s_waitcnt " + " ".join(parts))
            self.pend = {r: p for r, p in self.pend.items()
                         if p[1] > (self.vm_done if p[0] == "vm" else self.lg_done)}

    def wait_all(self, vm=True, lg=True):
        self.wait(self.vm_n - 1 if vm else None, self.lg_n - 1 if lg else None)

    def flush_hazards(self):
        need = 0
        for d, dist in ((self.valu_w, 2), (self.trans_w, 1), (self.store_r, 2), (self.vsgpr_w, 5)):
            for p in d.values():
                need = max(need, dist - (self.pos - p - 1))
        for p, np_, _ in self.mfma_w.values():
            need = max(need, np_ + 4 - (self.pos - p - 1))
        need = max(need, 1 - (self.pos - self.m0_w - 1))
        self.nop(need)
        self.reset_hazards()

    def __call__(self, text):
        for ln in text.split("\n"):
            ln = ln.strip()
            if ln:
                ret = self.I(ln)
        return ret

    def I(self, text):
        op, _, rest = text.partition(" ")
        toks = [t.strip() for t in rest.split(",")] if rest else []
        mods = ""
        ops = []
        stop = False
        for t in toks:
            if stop:
                mods += "," + t
                continue
            first, _, more = t.partition(" ")
            ops.append(first)
            if more:
                mods += " " + more
                stop = True
        rd, wr = [], []
        kind = None
        if op.startswith("v_mfma"):
            kind = "mfma"
            wr = regs(ops[0]); rd = regs(ops[1]) + regs(ops[2]) + regs(ops[3])
        elif op.startswith("v_"):
            kind = "valu"
            wr = regs(ops[0])
            srcs = ops[1:]
            if op.startswith(("v_add_co", "v_sub_co", "v_addc_co")):
                wr = wr + regs(ops[1]); srcs = ops[2:]
            for s in srcs:
                rd += regs(s)
            if op.startswith(RMW) or "_dpp" in op or "_sdwa" in op:
                rd += regs(ops[0])
            if "_swap" in op:
                rd = regs(ops[0]) + regs(ops[1]); wr = list(rd)
        elif op.startswith("ds_"):
            kind = "ds"
            if op.startswith("ds_read"):
                wr = regs(ops[0]); rd = regs(ops[1])
            else:
                for s in ops:
                    rd += regs(s)
        elif op.startswith("buffer_"):
            kind = "vm"
            if op.startswith("buffer_load") and " lds" not in mods:
                wr = regs(ops[0])
                for s in ops[1:]:
                    rd += regs(s)
            else:
                for s in ops:
                    rd += regs(s)
        elif op.startswith("s_"):
            kind = "salu"
            if op.startswith(NODST_S):
                for s in ops:
                    rd += regs(s)
                if op.startswith("s_cbranch_vcc"):
                    rd.append(("s", "vcc"))
            else:
                wr = regs(ops[0])
                for s in ops[1:]:
                    rd += regs(s)
        else:
            raise ValueError(text)

        wvm = wlg = None
        for r in rd + wr:
            p = self.pend.get(r)
            if p:
                if p[0] == "vm":
                    wvm = p[1] if wvm is None else max(wvm, p[1])
                else:
                    wlg = p[1] if wlg is None else max(wlg, p[1])
        self.wait(wvm, wlg)

        need = 0

        def gap(p, dist):
            nonlocal need
            need = max(need, dist - (self.pos - p - 1))

        if kind == "mfma":
            passes = 8 if "32x32" in op else 4
            dset = tuple(regs(ops[0])); cset = tuple(regs(ops[3]))
            for r in rd:
                if r in self.valu_w:
                    gap(self.valu_w[r], 2)
            for r in regs(ops[1]) + regs(ops[2]):
                if r in self.mfma_w:
                    gap(self.mfma_w[r][0], self.mfma_w[r][1] + 4)
            for r in cset + dset:
                if r in self.mfma_w:
                    p, np_, ds = self.mfma_w[r]
                    if not (ds == cset and np_ == passes):
                        gap(p, np_ + 4)
            if ("s", "exec") in self.vsgpr_w:
                gap(self.vsgpr_w[("s", "exec")], 4)
        else:
            if kind in ("valu", "ds", "vm"):
                for r in rd + wr:
                    if r in self.mfma_w:
                        gap(self.mfma_w[r][0], self.mfma_w[r][1] + 4)
                for r in wr:
                    if r in self.mfma_c:
                        gap(self.mfma_c[r][0], self.mfma_c[r][1] - 1)
                    if r in self.store_r:
                        gap(self.store_r[r], 2)
            if kind == "valu":
                for r in rd:
                    if r in self.trans_w:
                        gap(self.trans_w[r], 1)
                    if r in self.vsgpr_w:
                        gap(self.vsgpr_w[r], 2)
                    if r in self.valu_w:
                        if "permlane" in op or "_dpp" in op:
                            gap(self.valu_w[r], 2)
                        elif op.startswith(("v_readfirstlane", "v_readlane")):
                            gap(self.valu_w[r], 1)
            if kind in ("ds", "vm"):
                for r in rd:
                    if r in self.trans_w:
                        gap(self.trans_w[r], 1)
            if kind == "vm":
                for r in rd:
                    if r in self.vsgpr_w:
                        gap(self.vsgpr_w[r], 5)
                if " lds" in mods:
                    gap(self.m0_w, 1)
            if kind == "salu":
                for r in rd:
                    if r in self.vsgpr_w:
                        gap(self.vsgpr_w[r], 2)
        self.nop(need)

        here = self.pos
        ret = None
        if kind == "mfma":
            if self.cyc < self.mfma_free:
                self.cyc = self.mfma_free
            self.mfma_free = self.cyc + 4 * passes
            self._put(text, 1, 8)
            for r in dset:
                self.mfma_w[r] = (here, passes, dset)
                self.valu_w.pop(r, None); self.trans_w.pop(r, None)
            for r in cset:
                self.mfma_c[r] = (here, passes)
        elif kind == "valu":
            tr = op.startswith(TRANS)
            self._put(text, 1, 8 if tr or "permlane" in op else 4)
            for r in wr:
                if r[0] == "s":
                    self.vsgpr_w[r] = here
                else:
                    self.valu_w[r] = here
                    self.mfma_w.pop(r, None)
                    if tr:
                        self.trans_w[r] = here
                    else:
                        self.trans_w.pop(r, None)
        elif kind == "ds":
            c = 6
            if op == "ds_write_b128":
                c = 40
            elif op == "ds_write_b64":
                c = 20
            self._put(text, 1, c)
            ret = self.lg_n
            self.lg_n += 1
            for r in wr:
                self.pend[r] = ("lg", ret)
                self.mfma_w.pop(r, None); self.valu_w.pop(r, None); self.trans_w.pop(r, None)
        elif kind == "vm":
            self._put(text, 1, 10)
            ret = self.vm_n
            self.vm_n += 1
            for r in wr:
                self.pend[r] = ("vm", ret)
                self.mfma_w.pop(r, None); self.valu_w.pop(r, None); self.trans_w.pop(r, None)
            if op.startswith("buffer_store") and op.endswith(("x3", "x4")):
                for r in regs(ops[0]):
                    self.store_r[r] = here
        else:
            st = 1
            if op == "s_nop":
                st = int(ops[0]) + 1
            self._put(text, st, 4 * st)
            for r in wr:
                if r == ("s", "m0"):
                    self.m0_w = here
                self.vsgpr_w.pop(r, None)
        return ret

    def join_state(self, names):
        assert self.lg_done == self.lg_n - 1, "LDS ops must be drained at a join"
        self.flush_hazards()
        after = {k: (None if i <= self.vm_done else self.vm_n - 1 - i) for k, i in names.items()}
        pend = {r: self.vm_n - 1 - p[1] for r, p in self.pend.items()}
        return after, pend, self.cyc

    def merge(self, states):
        depth = 1 + max([0] + [a for st in states for a in list(st[0].values()) + list(st[1].values()) if a is not None])
        self.reset_counters()
        self.reset_hazards()
        self.vm_n = depth
        ids = {}
        for k in states[0][0]:
            a = [st[0][k] for st in states if st[0][k] is not None]
            ids[k] = depth - 1 - min(a) if a else -1
        for st in states:
            for r, a in st[1].items():
                i = depth - 1 - a
                if r not in self.pend or self.pend[r][1] < i:
                    self.pend[r] = ("vm", i)
        self.cyc = max(st[2] for st in states)
        self.mfma_free = 0
        return ids

    def text(self):
        return "\n".join(self.L + self.cold) + "\n"
```

```python
import math
import struct
import sys

from em import Em, R, rr

NAME = "gated_mix__linear_attn_block__mixer_gmlp__prompt"

STATS = 0
F_Z2N = 0x38000
F_Z1 = 0x39C00
F_KV = 0x3BC00
F_U = 0x3C400
F_M = 0x3D400
F_WO = 0x3D600
GATE = 0x40000
ZP = 0x44000
KVP = 0x80000
Z2N = 0x200000
Z1 = 0x600000
AP = 0xA00000
BP = 0x1000000
DIAG = 0x1200000
WS_SIZE = 0x1300000
OOB = 0x80000000

sX, sWQ, sWO, sWIN, sWSP, sBSP, sWOUT, sGW, sOUT, sDBG, sWS, sCODE = [R("s", 8 + 4 * k, 4) for k in range(12)]
sW, sI, sJL, sHALF, sJ, sREG, sW2K = ["s%d" % k for k in range(56, 63)]
sXO, sXB, sXE = "s63", "s64", "s65"
sAO, sAB, sAE = "s66", "s67", "s70"
sKC = "s[68:69]"
sBO, sBB, sBE = "s71", "s72", "s73"
sSPIN = "s74"
sT0, sT1, sT2, sT3 = "s75", "s76", "s77", "s3"
sROW = ["s78", "s79", "s80", "s81"]
sCH = ["s%d" % k for k in range(82, 90)]
sBCH = ["s%d" % k for k in range(90, 98)]
sG, sROT = "s98", "s99"
sMASK = "s[100:101]"
sP, sC = "s4", "s5"
sSO = "s6"
sFL = "s7"

vLANE = "v0"
vXD = [8, 9, 10, 11]
vXR = [12, 13, 14, 15]
vWDI = [16, 17]
vWDQ = [18, 19]
vWS = [[20, 21], [22, 23]]
vWB = [24, 25, 26, 27, 28]
vL16, vL16B, vL4 = 29, 30, 31
vAD = [32, 33, 34, 35]
vT = list(range(36, 48))
Z2ACC = 48
ACCB = 80
WRING = 160
NR = 8
ASLOT = [("a", 160 + 16 * k) for k in range(6)] + [("v", 192 + 16 * k) for k in range(4)]
REGION = 40960
WOFF = 16384

NQ_D, NQ_R = 14, 10
SPIN_MAX = 1 << 17


def f32(x):
    return "0x%08x" % struct.unpack("<I", struct.pack("<f", x))[0]


LOG2E = 1.4426950408889634
GK1 = -2.0 * math.sqrt(2.0 / math.pi) * LOG2E
GK2 = GK1 * 0.044715


class Job:
    def __init__(self, pre, emit, n=1):
        self.pre, self.emit, self.n = pre, emit, n


class K(Em):
    def __init__(self, opt):
        super().__init__()
        self.opt = opt
        self.q1 = []
        self.q2 = []
        self.qd = []
        self.qv = []
        self.tok = 0.0
        self.tok_t = 0
        self.pace = opt.get("pace", 66)
        self.ev = {}
        self.nstamp = 0
        self.wring = WRING
        self.lat = opt.get("lat1", 1000)

    def tokens(self):
        self.tok = min(8.0, self.tok + (self.cyc - self.tok_t) / self.pace)
        self.tok_t = self.cyc
        return self.tok

    def bg_vm(self, force=False, maxn=2):
        done = 0
        while done < maxn:
            if not force and self.tokens() < 1.0:
                break
            q = None
            if self.q1 and self.q1[0].pre():
                q = self.q1
            elif self.q2 and self.q2[0].pre():
                q = self.q2
            if q is None:
                break
            j = q.pop(0)
            j.emit()
            self.tok = max(-8.0, self.tok - j.n)
            done += j.n
        return done

    def bg_ds(self):
        if self.qd and self.qd[0].pre():
            self.qd.pop(0).emit()
            return True
        return False

    def tick(self):
        if not self.bg_vm():
            self.bg_ds()

    def V(self, text):
        for ln in text.split("\n"):
            if ln.strip():
                self(ln)
                self.tick()

    def drain(self, cond):
        guard = 0
        while not cond():
            if self.bg_ds() or self.bg_vm(force=True):
                guard = 0
                continue
            self.cyc += 200
            guard += 1
            assert guard < 100, "background queues stuck"

    def stamp(self, k):
        if self.opt.get("diag"):
            self.wait_all(vm=False)
            self.raw("    s_memrealtime s[0:1]\n    s_waitcnt lgkmcnt(0)\n    v_writelane_b32 v7, s0, %d" % k)
            self.pos += 3

    def check(self, loads, test):
        slow, back = self.label("Lslow"), self.label("Lback")
        self(test)
        self("s_cbranch_vccnz " + slow)
        self.raw(back + ":")
        c = self.cold
        c.append(slow + ":")
        c.append("    s_add_u32 %s, %s, 1\n    s_cmp_ge_u32 %s, %d\n    s_cbranch_scc1 L_end" % (sSPIN, sSPIN, sSPIN, SPIN_MAX))
        c.append("\n".join("    " + l for l in loads.split("\n")))
        c.append("    s_waitcnt vmcnt(0)")
        c.append("\n".join("    " + l for l in test.split("\n")))
        c.append("    s_nop 4\n    s_cbranch_vccnz %s\n    s_branch %s" % (slow, back))

    def flag(self, after_id, soff):
        self.wait(vm=after_id)
        self("s_mov_b64 exec, 1")
        i = self("buffer_store_dword v%d, off, %s, %s sc1" % (vL4, sWS, soff))
        self("s_mov_b64 exec, -1")
        return i

    def prologue(self):
        e = self
        e("s_cmp_ge_u32 s2, 256")
        e("s_cbranch_scc1 L_end")
        order = [(8, 0), (20, 32), (12, 8), (48, 88), (44, 80), (24, 40), (16, 16), (28, 48), (32, 56), (36, 64), (40, 72)]
        for sreg, off in order:
            e.raw("    s_load_dwordx2 s[%d:%d], s[0:1], %d" % (sreg, sreg + 1, off))
        e.raw("    s_getpc_b64 s[52:53]")
        e.raw("L_pc:")
        sizes = {8: 2621440, 12: 2457600, 16: 819200, 20: 2211840, 24: 8388608, 28: 4096, 32: 1105920, 36: 1280,
                 40: 2621440, 44: 256, 48: WS_SIZE}
        e("v_lshrrev_b32 v1, 6, v0\nv_and_b32 v0, 63, v0")
        e("s_and_b32 %s, s2, 7\ns_lshr_b32 %s, s2, 3" % (sT0, sT1))
        e("v_readfirstlane_b32 %s, v1" % sW)
        e("s_mov_b32 s54, L_code_end-L_pc\ns_mov_b32 s55, 0x20000")
        e("s_and_b32 %s, %s, 1" % (sHALF, sT0))
        e("s_lshr_b32 %s, %s, 1" % (sT0, sT0))
        e("s_and_b32 %s, %s, 3\ns_lshl_b32 %s, %s, 2\ns_add_u32 %s, %s, %s\ns_lshl_b32 %s, %s, 13" % (sT2, sT1, sT2, sT2, sT2, sT2, sW, sT2, sT2))
        e("v_lshlrev_b32 v2, 7, v0")
        if self.opt.get("codepf", 1):
            e("buffer_load_dword v6, v2, %s, %s offen" % (sCODE, sT2))
            self.pend.clear()
        e("s_and_b32 %s, %s, 3\ns_lshl2_add_u32 %s, %s, %s" % (sT2, sT1, sI, sT0, sT2))
        e("s_lshr_b32 %s, %s, 2" % (sJL, sT1))
        e("s_mul_i32 %s, %s, 7\ns_add_u32 %s, %s, %s" % (sJ, sHALF, sJ, sJ, sJL))
        e("s_and_b32 %s, %s, 7\ns_lshl3_add_u32 %s, %s, %s" % (sP, sT1, sP, sT0, sP))
        e("s_lshr_b32 %s, %s, 3\ns_lshl2_add_u32 %s, %s, %s" % (sC, sT1, sC, sHALF, sC))
        if self.opt.get("rot", 1):
            e("s_mul_i32 %s, %s, 5\ns_lshr_b32 %s, %s, 1" % (sT2, sT2, sT2, sT2))
            e("s_mul_i32 %s, %s, 5\ns_lshr_b32 %s, %s, 2\ns_add_u32 %s, %s, %s" % (sROT, sJL, sROT, sROT, sROT, sROT, sT2))
            e("s_cmp_ge_u32 %s, 10\ns_cselect_b32 %s, 10, 0\ns_sub_u32 %s, %s, %s" % (sROT, sT2, sROT, sROT, sT2))
        else:
            e("s_mov_b32 %s, 0" % sROT)
        e("s_mul_i32 %s, %s, %d\ns_lshl_b32 %s, %s, 11" % (sREG, sW, REGION, sW2K, sW))
        e("s_lshl2_add_u32 %s, %s, %s\ns_mul_i32 %s, %s, %d" % (sXB, sI, sW, sXB, sXB, 32 * 1280))
        e("s_add_u32 %s, %s, 1280\ns_lshl_b32 %s, %s, 7\ns_add_u32 %s, %s, %s" % (sXE, sXB, sXO, sROT, sXO, sXO, sXB))
        for sreg in (8, 20, 12, 48, 44):
            e("s_mov_b32 s%d, %d\ns_mov_b32 s%d, 0x20000" % (sreg + 2, sizes[sreg], sreg + 3))
        e("v_lshrrev_b32 v1, 3, v0\nv_and_b32 v2, 7, v0\nv_lshrrev_b32 v3, 4, v0")
        e("v_xor_b32 v4, v2, v3\nv_lshlrev_b32 v4, 4, v4\nv_xor_b32 v5, 64, v4")
        e("v_mul_u32_u24 v%d, 1280, v1" % vT[0])
        for r in range(4):
            e("v_add_u32 v%d, v%d, v%d" % (vXD[r], vT[0], 4 + (r & 1)))
            if r:
                e("v_add_u32 v%d, %d, v%d" % (vXD[r], r * (8 * 1280 - 1024), vXD[r]))
        e("v_and_b32 v%d, 1, v3\nv_lshlrev_b32 v%d, 2, v%d\nv_xor_b32 v%d, v2, v%d\nv_lshlrev_b32 v%d, 4, v%d"
          % (vT[1], vT[1], vT[1], vT[1], vT[1], vT[1], vT[1]))
        e("s_lshl_b32 %s, %s, 4\nv_add_u32 v%d, %s, v1" % (sT0, sW, vT[2], sT0))
        for regs_, stride in ((vWDI, 3456), (vWDQ, 3840)):
            e("v_mul_u32_u24 v%d, %d, v%d\nv_add_u32 v%d, v%d, v%d" % (regs_[0], stride, vT[2], regs_[0], regs_[0], vT[1]))
            e("v_add_u32 v%d, %d, v%d" % (regs_[1], 8 * stride - 1024, regs_[0]))
        self.sizes = sizes
        e.raw("    s_waitcnt lgkmcnt(0)")
        e.pos += 1

    def late_setup(self):
        e = self
        for sreg in (24, 16, 28, 32, 36, 40):
            e("s_mov_b32 s%d, %d\ns_mov_b32 s%d, 0x20000" % (sreg + 2, self.sizes[sreg], sreg + 3))
        e("s_mov_b32 s68, %s\ns_mov_b32 s69, %s\ns_mov_b32 %s, 0" % (f32(GK1), f32(GK2), sSPIN))
        e("v_lshlrev_b32 v%d, 4, v0\nv_add_u32 v%d, 0x1000, v%d\nv_lshlrev_b32 v%d, 2, v0" % (vL16, vL16B, vL16, vL4))
        if self.opt.get("diag"):
            e("v_mov_b32 v7, 0")
        e("v_lshlrev_b32 v%d, 12, v1" % vT[0])
        for r in range(4):
            e("v_add_u32 v%d, v%d, v%d" % (vAD[r], vT[0], 4 + (r & 1)))
            if r:
                e("v_add_u32 v%d, %d, v%d" % (vAD[r], r * (8 * 4096 - 1024), vAD[r]))
        e("v_and_b32 v1, 31, v0\nv_lshrrev_b32 v2, 5, v0\nv_bfe_u32 v4, v0, 1, 3\nv_xor_b32 v4, v4, v2")
        e("v_lshlrev_b32 v4, 4, v4\nv_lshl_add_u32 v4, v1, 7, v4")
        for ks in range(4):
            e("v_xor_b32 v%d, %d, v4\nv_add_u32 v%d, %s, v%d" % (vXR[ks], ks * 32, vXR[ks], sREG, vXR[ks]))
        e("v_bfe_u32 v5, v0, 2, 2\nv_lshl_add_u32 v5, v2, 3, v5\nv_lshlrev_b32 v5, 7, v5\nv_add_u32 v5, %d, v5" % WOFF)
        e("v_bfe_u32 v4, v0, 3, 1\nv_lshlrev_b32 v4, 6, v4")
        e("v_and_b32 v1, 3, v0\nv_lshlrev_b32 v1, 3, v1\nv_bfe_u32 v3, v0, 4, 1")
        e("v_lshl_add_u32 v%d, v3, 5, v1\nv_xor_b32 v%d, v%d, v4" % (vT[0], vT[0], vT[0]))
        e("v_add_u32 v%d, v%d, v5\nv_xor_b32 v%d, 64, v%d" % (vWS[0][0], vT[0], vWS[0][1], vWS[0][0]))
        e("v_add_u32 v%d, %d, v%d\nv_add_u32 v%d, %d, v%d" % (vWS[1][0], 2 * REGION, vWS[0][0], vWS[1][1], 2 * REGION, vWS[0][1]))

    def stream_init(self, o, b, en, base_text, stride):
        self(base_text)
        self("s_add_u32 %s, %s, %d\ns_mul_i32 %s, %s, %d\ns_add_u32 %s, %s, %s" % (en, b, 640 * stride, o, sROT, 64 * stride, o, o, b))

    def advance(self, o, b, en, step):
        self("s_add_u32 %s, %s, %d\ns_cmp_eq_u32 %s, %s\ns_cselect_b32 %s, %s, %s" % (o, o, step, o, en, o, b, o))

    def job_x(self, tag, s):
        ids = self.ev.setdefault(("dma", tag, s), [])

        def mk(half):
            def emit():
                self("s_add_u32 m0, %s, %d" % (sREG, (s % 4) * 4096))
                for r in (2 * half, 2 * half + 1):
                    ids.append(self("buffer_load_dwordx4 v%d, %s, %s offen offset:%d lds" % (vXD[r], sX, sXO, r * 1024)))
                if half:
                    self.advance(sXO, sXB, sXE, 128)
            return emit
        pre = (lambda: True) if s < 4 else (lambda: self.ev.get(("free", tag, s - 4)))
        return [Job(pre, mk(0), 2), Job(pre, mk(1), 2)]

    def job_w(self, tag, s, ring, slot, lo, srd, vd, stream, stride, last, prev):
        ids = self.ev.setdefault(("dma", tag, s), [])

        def emit():
            self("s_add_u32 m0, %s, %d" % (sW2K, WOFF + ring * REGION + slot * 8192 - lo))
            for t in range(2):
                ids.append(self("buffer_load_dwordx4 v%d, %s, %s offen offset:%d lds" % (vd[t], srd, stream[0], t * 1024 + lo)))
            if last:
                self.advance(stream[0], stream[1], stream[2], 64 * stride)
        pre = (lambda: True) if prev is None else (lambda: self.ev.get(("free",) + prev))
        return Job(pre, emit, 2)

    def w_jobs(self, tag, lines, slotf, srd, vd, stream, stride, occ, withx):
        for s in range(10):
            if withx:
                self.q1 += self.job_x(tag, s)
            for k, lo in enumerate(lines):
                ring, slot = slotf(s, k)
                self.q1.append(self.job_w(tag, s, ring, slot, lo, srd, vd, stream, stride, k == len(lines) - 1, occ.get((ring, slot))))
                occ[(ring, slot)] = (tag, s)
            self.ev[("ndma", tag, s)] = 2 * len(lines) + (4 if withx else 0)

    def p1_pass(self, tag, blocks, withx, paced, hooks=None, prev_tag=None):
        e = self
        nb = len(blocks)
        per = 4 * nb
        F = 10 * per
        hooks = hooks or {}
        rd_id = {}
        st = dict(next=0, opened=-1)

        def open_stage(s):
            e.drain(lambda: len(e.ev[("dma", tag, s)]) == e.ev[("ndma", tag, s)])
            e.wait(vm=max(e.ev[("dma", tag, s)]), lg=e.lg_n - 1)
            e("s_barrier")
            st["opened"] = s
            if s:
                e.ev[("free", tag, s - 1)] = True
            elif prev_tag:
                e.ev[("free", prev_tag, 9)] = True
            if withx:
                for ks in range(4):
                    e("ds_read_b128 %s, v%d offset:%d" % (R("a", (s * 4 + ks) * 4, 4), vXR[ks], (s % 4) * 4096))

        def read_pair():
            for _ in range(2):
                f = st["next"]
                s, rem = divmod(f, per)
                ks, b = divmod(rem, nb)
                rd_id[f] = blocks[b][0](s, ks, e.wring + 4 * (f % NR))
                st["next"] += 1

        open_stage(0)
        for _ in range(3):
            read_pair()
        for f in range(F):
            s, rem = divmod(f, per)
            ks, b = divmod(rem, nb)
            if f in hooks:
                hooks[f]()
            if f % 2 == 0:
                e.wait(lg=rd_id[f + 1])
            acc = R("v", blocks[b][1], 16)
            wf = R("v", e.wring + 4 * (f % NR), 4)
            xf = R("a", (s * 4 + ks) * 4, 4)
            c = "0" if (s == 0 and ks == 0) else acc
            if blocks[b][2] == 2:
                e("v_mfma_f32_32x32x16_bf16 %s, %s, %s, %s" % (acc, wf, xf, c))
            else:
                e("v_mfma_f32_32x32x16_bf16 %s, %s, %s, %s" % (acc, xf, wf, c))
            nx = st["next"]
            if nx < F and nx <= f + 6:
                if nx // per > st["opened"]:
                    open_stage(nx // per)
                else:
                    read_pair()
            else:
                if not e.bg_vm(force=not paced, maxn=2):
                    e.bg_ds()

    def rd_static(self, slotf, k, hf):
        def read(s, ks, dst):
            ring, slot = slotf(s, k)
            for t in range(2):
                i = self("ds_read_b64_tr_b16 %s, v%d offset:%d" % (R("v", dst + 2 * t, 2), vWS[ring >> 1][hf],
                                                                  (ring & 1) * REGION + slot * 8192 + ks * 2048 + t * 512))
            return i
        return read

    def rd_dyn(self, b):
        def read(s, ks, dst):
            for t in range(2):
                i = self("ds_read_b64_tr_b16 %s, v%d offset:%d" % (R("v", dst + 2 * t, 2), vWB[b], (s % 3) * 8192 + ks * 2048 + t * 512))
            return i
        return read

    def dyn_addr(self, b, colexpr, ringexpr=None):
        e = self
        e.V(colexpr)
        e.V("v_lshrrev_b32 v%d, 6, v%d" % (vT[2], vT[0]))
        if ringexpr:
            e.V(ringexpr)
        e.V("v_and_b32 v%d, 63, v%d\nv_lshl_add_u32 v%d, v%d, 1, v1\nv_xor_b32 v%d, v%d, v4" % (vT[0], vT[0], vT[0], vT[0], vT[0], vT[0]))
        e.V("v_mul_u32_u24 v%d, %d, v%d\nv_add3_u32 v%d, v%d, v%d, v5" % (vT[2], REGION, vT[2], vWB[b], vT[2], vT[0]))

    def gelu(self, regs_, tmp, emit):
        for b0 in range(0, len(regs_), 8):
            ps = [(regs_[b0 + k], tmp + k) for k in range(0, min(8, len(regs_) - b0), 2)]
            for x, t in ps:
                emit("v_pk_mul_f32 %s, %s, %s" % (R("v", t, 2), R("v", x, 2), R("v", x, 2)))
            for x, t in ps:
                emit("v_pk_fma_f32 %s, %s, %s, %s op_sel:[0,1,0] op_sel_hi:[1,1,0]" % (R("v", t, 2), R("v", t, 2), sKC, sKC))
            for x, t in ps:
                emit("v_pk_mul_f32 %s, %s, %s" % (R("v", t, 2), R("v", t, 2), R("v", x, 2)))
            for x, t in ps:
                emit("v_exp_f32 v%d, v%d\nv_exp_f32 v%d, v%d" % (t, t, t + 1, t + 1))
            for x, t in ps:
                emit("v_pk_add_f32 %s, %s, 1.0 op_sel_hi:[1,0]" % (R("v", t, 2), R("v", t, 2)))
            for x, t in ps:
                emit("v_rcp_f32 v%d, v%d\nv_rcp_f32 v%d, v%d" % (t, t, t + 1, t + 1))
            for x, t in ps:
                emit("v_pk_mul_f32 %s, %s, %s" % (R("v", x, 2), R("v", t, 2), R("v", x, 2)))

    def phi(self, base, n, tmp, kreg):
        for b0 in range(0, n, 8):
            ps = [(base + b0 + k, tmp + k) for k in range(0, 8, 2)]
            for x, t in ps:
                self.V("v_pk_mul_f32 %s, %s, %s op_sel_hi:[1,0]" % (R("v", t, 2), R("v", x, 2), R("s", kreg, 2)))
            for x, t in ps:
                self.V("v_exp_f32_e64 v%d, v%d clamp\nv_exp_f32_e64 v%d, v%d clamp" % (t, t, t + 1, t + 1))
            for x, t in ps:
                self.V("v_max_f32 v%d, s%d, v%d\nv_max_f32 v%d, s%d, v%d" % (x, kreg + 1, x, x + 1, kreg + 1, x + 1))
            for x, t in ps:
                self.V("v_pk_add_f32 %s, %s, %s" % (R("v", x, 2), R("v", x, 2), R("v", t, 2)))

    def pack(self, src, n, dst):
        for k in range(n // 2):
            self.V("v_cvt_pk_bf16_f32 v%d, v%d, v%d" % (dst + k, src + 2 * k, src + 2 * k + 1))

    def z2_stats(self):
        e = self
        ld = "buffer_load_dword v%d, off, %s, 0 sc1" % (vT[11], sDBG)
        e(ld)
        e.gelu(list(range(Z2ACC, Z2ACC + 32)), ACCB, e.V)
        S = [ACCB + 8, ACCB + 10]
        Q = [ACCB + 12, ACCB + 14]
        for b in range(2):
            z = Z2ACC + 16 * b
            e.V("v_pk_add_f32 %s, %s, %s" % (R("v", S[b], 2), R("v", z, 2), R("v", z + 2, 2)))
            e.V("v_pk_mul_f32 %s, %s, %s" % (R("v", Q[b], 2), R("v", z, 2), R("v", z, 2)))
            for k in range(1, 8):
                if k > 1:
                    e.V("v_pk_add_f32 %s, %s, %s" % (R("v", S[b], 2), R("v", S[b], 2), R("v", z + 2 * k, 2)))
                e.V("v_pk_fma_f32 %s, %s, %s, %s" % (R("v", Q[b], 2), R("v", z + 2 * k, 2), R("v", z + 2 * k, 2), R("v", Q[b], 2)))
        e("s_cmp_eq_u32 %s, 0\ns_cselect_b32 %s, 0, 1.0" % (sJ, sT0))
        for a in (S, Q):
            e("v_add_f32 v%d, v%d, v%d\nv_add_f32 v%d, v%d, v%d" % (a[0], a[0], a[0] + 1, a[1], a[1], a[1] + 1))
            e("v_fmac_f32 v%d, %s, v%d" % (a[1], sT0, a[0]))
        e("s_lshl2_add_u32 %s, %s, %s\ns_mul_i32 %s, %s, %d" % (sT1, sI, sW, sFL, sT1, 14 * 256))
        e("s_lshl_b32 %s, %s, 8\ns_add_u32 %s, %s, %s" % (sT1, sJ, sT1, sT1, sFL))
        e("v_permlane32_swap_b32 v%d, v%d" % (S[1], Q[1]))
        e("v_add_f32 v%d, v%d, v%d" % (S[1], S[1], Q[1]))
        e.check(ld, "v_cmp_ne_u32 vcc, 32, v%d" % vT[11])
        e("buffer_store_dword v%d, v%d, %s, %s offen sc1" % (S[1], vL4, sWS, sT1))

    def z2_poll(self):
        T = 192
        self.stat_ld = "\n".join("buffer_load_dword v%d, v%d, %s, %s offen offset:%d sc1" % (T + k, vL4, sWS, sFL, k * 256) for k in range(14))
        self(self.stat_ld)
        self.tok -= 4

    def z2_norm(self):
        e = self
        T = 192
        m = T + 14
        test = "v_max3_u32 v%d, v%d, v%d, v%d\n" % (m, T, T + 1, T + 2)
        for k in range(3, 13, 2):
            test += "v_max3_u32 v%d, v%d, v%d, v%d\n" % (m, m, T + k, T + k + 1)
        test += "v_max_u32 v%d, v%d, v%d\nv_cmp_eq_u32 vcc, -1, v%d" % (m, m, T + 13, m)
        e.check(e.stat_ld, test)
        for k in range(2, 14, 2):
            e.V("v_pk_add_f32 %s, %s, %s" % (R("v", T, 2), R("v", T, 2), R("v", T + k, 2)))
        e("v_add_f32 v%d, v%d, v%d\nv_mul_f32 v%d, %s, v%d\nv_mov_b32 v%d, v%d" % (T, T, T + 1, T, f32(1.0 / 864), T, T + 1, T))
        a = T + 4
        e("v_bfe_u32 v%d, v0, 1, 1\nv_bfe_u32 v%d, v0, 2, 2\nv_and_b32 v%d, 1, v0" % (a, a + 1, a + 2))
        e("v_permlane32_swap_b32 v%d, v%d" % (T, T + 1))
        e("v_lshl_or_b32 v%d, v%d, 1, v%d\nv_lshl_or_b32 v%d, v%d, 3, v%d" % (a + 1, a + 1, a + 2, a, a, a + 1))
        e("v_fma_f32 v%d, -v%d, v%d, v%d\nv_max_f32 v%d, 0, v%d\nv_add_f32 v%d, %s, v%d" % (T + 1, T, T, T + 1, T + 1, T + 1, T + 1, f32(1e-5), T + 1))
        e("v_rsq_f32 v%d, v%d" % (T + 2, T + 1))
        e("v_lshrrev_b32 v%d, 5, v0\nv_xor_b32 v%d, v%d, v%d\nv_lshlrev_b32 v%d, 3, v%d" % (a + 1, a, a, a + 1, a, a))
        e("v_mul_f32_e64 v%d, -v%d, v%d" % (T + 3, T, T + 2))
        e("v_and_b32 v%d, 31, v0\nv_lshl_add_u32 v%d, v%d, 7, v%d" % (a + 2, a, a + 2, a))
        e("s_add_u32 %s, %s, %d" % (sT0, sREG, 3 * 4096))
        P = T + 16
        for k in range(16):
            e.V("v_pk_fma_f32 %s, %s, %s, %s op_sel:[0,0,1] op_sel_hi:[1,0,1]" % (R("v", Z2ACC + 2 * k, 2), R("v", Z2ACC + 2 * k, 2), R("v", T + 2, 2), R("v", T + 2, 2)))
        e.pack(Z2ACC, 32, P)
        for q in range(8):
            e("v_xad_u32 v%d, v%d, %d, %s" % (a + 3 + (q & 1), a, q * 16, sT0) if q <= 4 else
              "v_xor_b32 v%d, %d, v%d\nv_add_u32 v%d, %s, v%d" % (a + 3 + (q & 1), q * 16, a, a + 3 + (q & 1), sT0, a + 3 + (q & 1)))
            e("ds_write_b64 v%d, %s" % (a + 3 + (q & 1), R("v", P + 2 * q, 2)))
        b = a + 5
        e("v_bfe_u32 v%d, v0, 3, 1\nv_lshlrev_b32 v%d, 3, v%d\nv_lshl_or_b32 v%d, v%d, 2, v%d" % (b, b, b, b, a + 1, b))
        e("v_bfe_u32 v%d, v0, 2, 1\nv_or_b32 v%d, v%d, v%d" % (b + 1, b, b, b + 1))
        e("v_bfe_u32 v%d, v0, 4, 1\nv_and_b32 v%d, 3, v0\nv_lshl_or_b32 v%d, v%d, 2, v%d" % (b + 1, b + 2, b + 1, b + 1, b + 2))
        e("v_xor_b32 v%d, v%d, v%d\nv_lshlrev_b32 v%d, 3, v%d" % (b, b, b + 1, b, b))
        e("v_bfe_u32 v%d, v0, 2, 2\nv_lshl_add_u32 v%d, v%d, 3, v%d\nv_lshl_add_u32 v%d, v%d, 7, v%d" % (b + 1, b + 1, a + 1, b + 1, b, b + 1, b))
        Fr = T + 32
        for blk in range(2):
            for t in range(2):
                r_ = b + 1 + 2 * blk + t
                e("v_xor_b32 v%d, %d, v%d\nv_add_u32 v%d, %s, v%d" % (r_, blk * 64 + t * 16, b, r_, sT0, r_))
        for ks in range(2):
            for blk in range(2):
                for t in range(2):
                    last = e("ds_read_b64_tr_b16 %s, v%d offset:%d" % (R("v", Fr + 8 * ks + 4 * blk + 2 * t, 2), b + 1 + 2 * blk + t, ks * 2048 + t * 512))
        e("s_lshl2_add_u32 %s, %s, %s\ns_lshl_b32 %s, %s, 12\ns_lshl_b32 %s, %s, 18" % (sT0, sI, sW, sT0, sT0, sT1, sJ))
        e("s_add_u32 %s, %s, %s\ns_add_u32 %s, %s, %d" % (sT0, sT0, sT1, sT0, sT0, Z2N))
        for k in range(4):
            self.z2n_st = e("buffer_store_dwordx4 %s, v%d, %s, %s offen offset:%d sc1" % (R("v", Fr + 4 * k, 4), vL16, sWS, sT0, k * 1024))
        e.tok -= 4
        e.ev["norm_done"] = True

    def z2_flag(self):
        e = self
        e("s_lshr_b32 %s, %s, 2\ns_lshl2_add_u32 %s, %s, %s\ns_lshl_b32 %s, %s, 7" % (sT0, sI, sT0, sJ, sT0, sT0, sT0))
        e("s_and_b32 %s, %s, 3\ns_lshl2_add_u32 %s, %s, %s\ns_lshl2_add_u32 %s, %s, %s" % (sT1, sI, sT1, sT1, sW, sT0, sT1, sT0))
        e("s_add_u32 %s, %s, %d" % (sT0, sT0, F_Z2N))
        e.flag(e.z2n_st, sT0)

    @staticmethod
    def q_order():
        o = [(cs, b) for cs in range(6) for b in range(4)]
        o += [(cs, b) for b in range(4) for cs in (6, 7)]
        return o

    def a_tables(self):
        e = self
        e.V("s_lshl_b32 %s, %s, 19\ns_lshl_b32 %s, %s, 10\ns_add_u32 %s, %s, %s" % (sT0, sI, sT1, sW, sT0, sT0, sT1))
        for b in range(4):
            e.V("s_add_u32 %s, %s, %d\ns_and_b32 %s, %s, 3\ns_lshl_b32 %s, %s, 17\ns_add_u32 %s, %s, %s"
                % (sT1, sW, b + 1, sT1, sT1, sT1, sT1, sROW[b], sT1, sT0))
        e.V("s_lshl_b32 %s, %s, 18\ns_lshl_b32 %s, %s, 16\ns_add_u32 %s, %s, %s\ns_add_u32 %s, %s, %d"
            % (sT0, sJ, sT1, sW, sT0, sT0, sT1, sT0, sT0, Z2N))
        for cs in range(8):
            if self.opt.get("rot", 1):
                e.V("s_add_u32 %s, %s, %d\ns_and_b32 %s, %s, 7" % (sT1, sJL, cs, sT1, sT1))
            else:
                e.V("s_mov_b32 %s, %d" % (sT1, cs))
            e.V("s_lshl_b32 %s, %s, 7\ns_lshl_b32 %s, %s, 13\ns_add_u32 %s, %s, %s" % (sCH[cs], sT1, sT1, sT1, sBCH[cs], sT1, sT0))

    @staticmethod
    def a_lslot(q):
        return q % 4 if q < 14 else [4, 5, 6, 7, 8, 9, 2, 3, 0, 1][(q - 14) % 10]

    def a_prev(self, q):
        prev = [p for p in range(q) if self.a_lslot(p) == self.a_lslot(q)]
        return prev[-1] if prev else None

    def a_jobs(self, q0, q1, r0, r1, queue):
        e = self
        order = self.q_order()
        for q in range(q0, q1):
            cs, b = order[q]
            ids = e.ev.setdefault(("adma", q), [])
            pv = self.a_prev(q)

            def pre(q=q, pv=pv):
                if pv is None:
                    return e.ev.get("xfree") and (q != 3 or e.ev.get("norm_done"))
                rd = e.ev.get(("ard", pv))
                return rd is not None and (rd[0] <= e.lg_done or e.cyc - rd[1] >= 160)

            def mk(half, q=q, cs=cs, b=b, ids=ids, pv=pv):
                def emit():
                    if pv is not None:
                        e.wait(lg=e.ev[("ard", pv)][0])
                    e("s_add_u32 m0, %s, %d" % (sREG, self.a_lslot(q) * 4096))
                    e("s_add_u32 %s, %s, %s" % (sSO, sROW[b], sCH[cs]))
                    for r in (2 * half, 2 * half + 1):
                        ids.append(e("buffer_load_dwordx4 v%d, %s, %s offen offset:%d lds" % (vAD[r], sWSP, sSO, r * 1024)))
                    e.ev[("adma_t", q)] = e.cyc
                return emit
            for half in range(2):
                j = Job(pre, mk(half), 2)
                j.need = 8 * q - 10
                queue.append(j)
        for q in range(r0, r1):
            def pre(q=q):
                ids = e.ev.get(("adma", q), [])
                if len(ids) < 4:
                    return False
                if q >= 10 and not e.ev.get(("aused", q - 10)):
                    return False
                if 6 <= q < 10 and not e.ev.get("norm_done"):
                    return False
                return max(ids) <= e.vm_done or e.cyc - e.ev[("adma_t", q)] >= e.lat

            def mk(half, q=q):
                def emit():
                    e.wait(vm=max(e.ev[("adma", q)]))
                    for ks in (2 * half, 2 * half + 1):
                        i = e("ds_read_b128 %s, v%d offset:%d" % (rr(ASLOT[q % 10], 4, 4 * ks), vXR[ks], self.a_lslot(q) * 4096))
                    if half:
                        e.ev[("ard", q)] = (i, e.cyc)
                return emit
            e.qd.append(Job(pre, mk(0)))
            e.qd.append(Job(pre, mk(1)))

    def p1_finish(self, last):
        e = self
        e.stamp(5)
        e.p2_entry_loads()
        e.drain(lambda: not e.q1 and not e.q2 and not e.qd)
        e.wait_all(vm=False)
        names = {("adma", q): max(e.ev[("adma", q)]) for q in range(NQ_R, NQ_D)}
        names["last"] = last
        return e.join_state(names)

    def pass_a(self, queue_b, setup):
        e = self
        e.stream_init(sAO, sAB, sAE, "s_add_u32 %s, %s, 13\ns_lshl_b32 %s, %s, 7" % (sAB, sJ, sAB, sAB), 3456)
        self.occ = {}
        slotf = lambda s, k: (s % 4, 2)
        e.w_jobs("A", [0], slotf, sWIN, vWDI, (sAO, sAB, sAE), 3456, self.occ, True)
        e.bg_vm(force=True, maxn=18)
        e.late_setup()
        e.stamp(0)
        e.bg_vm(force=True, maxn=6)
        queue_b()
        e.a_tables()
        setup()
        e.p1_pass("A", [(e.rd_static(slotf, 0, 0), Z2ACC, 2), (e.rd_static(slotf, 0, 1), Z2ACC + 16, 2)], True, False)
        e.stamp(1)

    def second_pass(self, blocks):
        e = self
        e.tok, e.tok_t = 0.0, e.cyc
        e.wait_all(vm=False)
        e.ev["xfree"] = True
        e.a_jobs(0, NQ_D, 0, NQ_R, e.q2)
        e.z2_stats()
        e.stamp(2)
        per = 4 * len(blocks)
        o = e.opt
        n = 10 * per
        f_poll = min(o.get("f_poll", 50), n - 50) & ~1
        f_norm = min(o.get("f_norm", 70), n - 30) & ~1
        f_flag = min(o.get("f_flag", 120), n - 2) & ~1

        def norm():
            e.z2_norm()
            e.stamp(3)
        e.p1_pass("B", blocks, False, True, {f_poll: e.z2_poll, f_norm: norm, f_flag: e.z2_flag}, prev_tag="A")
        e.stamp(4)

    def role_a(self):
        e = self

        def queue_b():
            e("s_lshl2_add_u32 %s, %s, %s" % (sG, sHALF, sJL))
            e.stream_init(sBO, sBB, sBE, "s_mul_i32 %s, %s, 5\ns_lshr_b32 %s, %s, 2\ns_lshl_b32 %s, %s, 7\ns_add_u32 %s, %s, 1280"
                          % (sBB, sG, sBB, sBB, sBB, sBB, sBB, sBB), 3840)
            e.w_jobs("B", [0, 128, 1280, 1408], lambda s, k: (k, s % 3), sWQ, vWDQ, (sBO, sBB, sBE), 3840, self.occ, False)

        def setup():
            e.V("s_lshl_b32 %s, %s, 4\ns_and_b32 %s, %s, 63" % (sT2, sG, sT2, sT2))
            for b in range(5):
                if b == 2:
                    e.dyn_addr(b, "v_lshlrev_b32 v%d, 6, v3\nv_sub_u32 v%d, 64, v%d\nv_add_u32 v%d, %s, v%d" % (vT[0], vT[0], vT[0], vT[0], sT2, vT[0]),
                               "v_lshl_add_u32 v%d, v3, 1, v%d" % (vT[2], vT[2]))
                else:
                    u0 = 2 * b - (5 if b > 2 else 0)
                    e.dyn_addr(b, "v_lshl_add_u32 v%d, v3, 4, %s\nv_add_u32 v%d, %d, v%d" % (vT[0], sT2, vT[0], 16 * u0, vT[0]),
                               "v_add_u32 v%d, 2, v%d" % (vT[2], vT[2]) if b > 2 else None)
        e.pass_a(queue_b, setup)
        e.second_pass([(e.rd_dyn(b), ACCB + 16 * b, 1) for b in range(5)])
        e("s_mov_b32 s100, %s\ns_mov_b32 s101, %s" % (f32(LOG2E), f32(1e-6)))
        tmp = WRING
        P = Z2ACC
        e.wait_all(vm=False)
        e("s_barrier")
        e.V("v_add_u32 v%d, %s, v%d" % (vT[0], sREG, vL16))
        ones = WRING + 8
        for k in range(4):
            e.V("v_mov_b32 v%d, 0x3f803f80" % (ones + k))
        for st in range(2):
            e("ds_write_b128 v%d, %s offset:%d" % (vT[0], R("v", ones, 4), WOFF + (10 + st) * 1024))
        for n_, b in enumerate((3, 4, 0, 1, 2)):
            if b < 2:
                e.phi(ACCB + 16 * b, 16, tmp, 100)
            elif b == 2:
                saved = (e.q1, e.q2, e.qd)
                e.q1, e.q2, e.qd = [], [], []
                e("s_mov_b32 exec_lo, 0xffff\ns_mov_b32 exec_hi, 0xffff")
                e.phi(ACCB + 32, 16, tmp, 100)
                e("s_mov_b64 exec, -1")
                e.q1, e.q2, e.qd = saved
            d = P + 8 * (n_ % 4)
            e.pack(ACCB + 16 * b, 16, d)
            for st in range(2):
                e("ds_write_b128 v%d, %s offset:%d" % (vT[0], R("v", d + 4 * st, 4), WOFF + (2 * b + st) * 1024))
        sA = [sT0, sT1]
        sB = [sT2, sT3]
        e("s_add_u32 %s, %s, 2\ns_add_u32 %s, %s, 3\ns_min_u32 %s, %s, 5" % (sA[0], sW, sA[1], sW, sA[1], sA[1]))
        e("s_cmp_eq_u32 %s, 3\ns_cselect_b32 %s, 0, %s\ns_cselect_b32 %s, 1, %s" % (sW, sB[0], sW, sB[1], sW))
        AD = vT[1:5]
        for k, s_ in enumerate((sA[0], sB[0], sA[1], sB[1])):
            e("v_mov_b32 v%d, %s\nv_lshl_add_u32 v%d, v%d, 11, v%d" % (AD[k], s_, AD[k], AD[k], vL16))
        e.wait_all(vm=False)
        e("s_barrier")
        RES = [ACCB, ACCB + 16]

        def reads(step):
            w_, st = divmod(step, 2)
            if step == 4:
                for k in range(4):
                    e("v_add_u32 v%d, %d, v%d" % (AD[k], 2 * REGION, AD[k]))
            for k in range(4):
                e("ds_read_b128 %s, v%d offset:%d" % (R("a", step * 16 + 4 * k, 4), AD[k], WOFF + (w_ & 1) * REGION + st * 1024))
        reads(0); reads(1); reads(2)
        addr = []
        KO = [ACCB + 32, ACCB + 44]
        for jb in range(2):
            o_ = KO[jb]
            t = ["v_and_b32 v%d, 31, v0" % o_,
                 "v_mov_b32 v%d, %s" % (o_ + 1, sB[jb]),
                 "v_lshl_add_u32 v%d, v%d, 5, v%d" % (o_, o_ + 1, o_),
                 "v_mul_u32_u24 v%d, 0xccd, v%d" % (o_ + 1, o_),
                 "v_lshrrev_b32 v%d, 16, v%d" % (o_ + 1, o_ + 1),
                 "v_mul_u32_u24 v%d, 20, v%d" % (o_ + 2, o_ + 1),
                 "v_sub_u32 v%d, v%d, v%d" % (o_ + 3, o_, o_ + 2),
                 "v_mul_u32_u24 v%d, 80, v%d" % (o_ + 3, o_ + 3),
                 "v_lshl_add_u32 v%d, v%d, 15, v%d" % (o_ + 3, o_ + 1, o_ + 3),
                 "v_lshrrev_b32 v%d, 5, v0" % (o_ + 4),
                 "v_mov_b32 v%d, %s" % (o_ + 5, sA[jb]),
                 "v_lshlrev_b32 v%d, 5, v%d" % (o_ + 5, o_ + 5),
                 "v_lshl_add_u32 v%d, v%d, 2, v%d" % (o_ + 5, o_ + 4, o_ + 5),
                 "v_subrev_u32 v%d, 0x50, v%d" % (o_ + 5, o_ + 5),
                 "v_sub_u32 v%d, v%d, v%d" % (o_ + 5, o_ + 5, o_ + 2),
                 "v_cmp_gt_u32 vcc, 0x50, v%d" % o_,
                 "v_mov_b32 v%d, 0x%x" % (o_ + 11, OOB),
                 "v_cndmask_b32 v%d, v%d, v%d, vcc" % (o_ + 3, o_ + 11, o_ + 3)]
            for jq in range(4):
                t += ["v_add_u32 v%d, %d, v%d" % (o_ + 2, 8 * jq, o_ + 5),
                      "v_cmp_gt_u32 vcc, 20, v%d" % (o_ + 2),
                      "v_lshl_add_u32 v%d, v%d, 2, v%d" % (o_ + 2, o_ + 2, o_ + 3),
                      "v_cndmask_b32 v%d, v%d, v%d, vcc" % (o_ + 6 + jq, o_ + 11, o_ + 2)]
            t += ["v_lshl_add_u32 v%d, v%d, 7, v%d" % (o_ + 2, o_ + 4, o_),
                  "s_cmp_eq_u32 %s, 5" % sA[jb],
                  "s_cselect_b32 %s, 0x50, 0" % sSO,
                  "v_cmp_gt_u32 vcc, %s, v%d" % (sSO, o_ + 2),
                  "v_lshlrev_b32 v%d, 2, v%d" % (o_ + 2, o_),
                  "v_cndmask_b32 v%d, v%d, v%d, vcc" % (o_ + 10, o_ + 11, o_ + 2)]
            addr += t
        for step in range(8):
            for jb in range(2):
                base = step * 16 + 8 * jb
                acc = R("v", RES[jb], 16)
                e("v_mfma_f32_32x32x16_bf16 %s, %s, %s, %s" % (acc, R("a", base, 4), R("a", base + 4, 4), "0" if step == 0 else acc))
                if jb == 0 and step + 3 < 8:
                    reads(step + 3)
                else:
                    for _ in range(7):
                        if addr:
                            e(addr.pop(0))
        while addr:
            e(addr.pop(0))
        e("s_lshl_b32 %s, %s, 17\ns_lshl_b32 %s, %s, 11\ns_add_u32 %s, %s, %s\ns_add_u32 %s, %s, %d" % (sT0, sG, sT1, sI, sT0, sT0, sT1, sT0, sT0, KVP))
        e("s_mul_i32 %s, %s, 2560\ns_mul_i32 %s, %s, 320\ns_add_u32 %s, %s, %s\ns_add_u32 %s, %s, %d" % (sT1, sI, sT2, sG, sT1, sT1, sT2, sT1, sT1, ZP))
        for jb in range(2):
            for jq in range(4):
                e("buffer_store_dwordx4 %s, v%d, %s, %s offen sc1" % (R("v", RES[jb] + 4 * jq, 4), KO[jb] + 6 + jq, sWS, sT0))
            last = e("buffer_store_dword v%d, v%d, %s, %s offen sc1" % (RES[jb], KO[jb] + 10, sWS, sT1))
        e("s_lshl4_add_u32 %s, %s, %s\ns_lshl2_add_u32 %s, %s, %s\ns_lshl2_add_u32 %s, %s, %s" % (sFL, sHALF, sI, sFL, sFL, sJL, sFL, sFL, sW))
        e("s_lshl_b32 %s, %s, 2\ns_add_u32 %s, %s, %d" % (sFL, sFL, sFL, sFL, F_KV))
        return last

    def z1_store(self, nblk, first_text):
        e = self
        e("s_lshl2_add_u32 %s, %s, %s\ns_mul_i32 %s, %s, 28" % (sT0, sI, sW, sT0, sT0))
        e(first_text)
        e("s_add_u32 %s, %s, %s\ns_lshl_b32 %s, %s, 11\ns_add_u32 %s, %s, %d" % (sT0, sT0, sT1, sT0, sT0, sT0, sT0, Z1))
        for b in range(nblk):
            d = Z2ACC + 8 * (b % 4)
            e.pack(ACCB + 16 * b, 16, d)
            if b == 4:
                e("s_add_u32 %s, %s, 8192" % (sT0, sT0))
            for p in range(2):
                o_ = (b % 4) * 2048 + p * 1024
                last = e("buffer_store_dwordx4 %s, v%d, %s, %s offen offset:%d sc1" % (R("v", d + 4 * p, 4), vL16B if o_ >= 4096 else vL16, sWS, sT0, o_ % 4096))
            e.tok -= 2
        return last

    def z1_flag_addr(self):
        self("s_lshl2_add_u32 %s, %s, %s\ns_lshl_b32 %s, %s, 5\ns_add_u32 %s, %s, %s" % (sFL, sI, sW, sFL, sFL, sFL, sFL, sG))
        self("s_lshl_b32 %s, %s, 2\ns_add_u32 %s, %s, %d" % (sFL, sFL, sFL, sFL, F_Z1))

    def role_b(self):
        e = self

        def queue_b():
            e("s_mul_i32 %s, %s, 3\ns_add_u32 %s, %s, %s\ns_sub_u32 %s, %s, 4" % (sG, sHALF, sG, sG, sJL, sG, sG))
            e.stream_init(sBO, sBB, sBE, "s_mul_i32 %s, %s, 5\ns_lshr_b32 %s, %s, 1\ns_lshl_b32 %s, %s, 7" % (sBB, sG, sBB, sBB, sBB, sBB), 3456)
            e.w_jobs("B", [0, 128, 256], lambda s, k: (k, s % 3), sWIN, vWDI, (sBO, sBB, sBE), 3456, self.occ, False)

        def setup():
            e.V("s_and_b32 %s, %s, 1\ns_lshl_b32 %s, %s, 5" % (sT2, sG, sT2, sT2))
            for b in range(5):
                e.dyn_addr(b, "v_lshl_add_u32 v%d, v3, 4, %s\nv_add_u32 v%d, %d, v%d" % (vT[0], sT2, vT[0], 32 * b, vT[0]))
        e.pass_a(queue_b, setup)
        e.second_pass([(e.rd_dyn(b), ACCB + 16 * b, 2) for b in range(5)])
        last = e.z1_store(5, "s_mul_i32 %s, %s, 5\ns_add_u32 %s, %s, 1" % (sT1, sG, sT1, sT1))
        e.z1_flag_addr()
        return last

    def seg320(self, regs_):
        e = self
        e.V("s_mul_i32 %s, %s, 320" % (sT2, sW))
        for k, r_ in enumerate(regs_):
            e.V("v_add_u32 v%d, %d, v0\nv_mul_u32_u24 v%d, 0xccd, v%d\nv_lshrrev_b32 v%d, 16, v%d" % (vT[0], 64 * k, vT[1], vT[0], vT[1], vT[1]))
            e.V("v_mul_u32_u24 v%d, %d, v%d\nv_lshl_add_u32 v%d, v%d, 4, v%d\nv_add_u32 v%d, %s, v%d"
                % (vT[1], 1280 - 320, vT[1], r_, vT[0], vT[1], r_, sT2, r_))

    @staticmethod
    def unit_col(U):
        c, t = divmod(U, 5)
        return (80 * c + (32 * (t >> 1) + 4 * (t & 1) if t < 4 else 64), 8 if t < 4 else 4)

    def role_l(self):
        e = self
        slotf = lambda s, k: (k, s % 3)
        GWL = WOFF + 3 * REGION

        def queue_b():
            e("s_mov_b32 %s, 5" % sG)
            e.stream_init(sBO, sBB, sBE, "s_mov_b32 %s, %d" % (sBB, 12 * 128), 3456)
            e("s_lshl_b32 %s, %s, 7" % (sT0, sROT))
            ids = e.ev.setdefault(("dma", "B", 0), [])
            for t in range(2):
                e("v_add_u32 v%d, %s, v%d" % (vT[0], sT0, vL16))
                if t:
                    e("v_add_u32 v%d, 0x400, v%d" % (vT[0], vT[0]))
                e("v_subrev_u32 v%d, 0x500, v%d\nv_min_u32 v%d, v%d, v%d" % (vT[1], vT[0], vT[0], vT[0], vT[1]))
                e("s_mov_b32 m0, %d" % (GWL + t * 1024))
                ids.append(e("buffer_load_dwordx4 v%d, %s, 0 offen lds" % (vT[0], sGW)))
            e.w_jobs("B", [0, 128], slotf, sWIN, vWDI, (sBO, sBB, sBE), 3456, self.occ, False)
            e.ev[("ndma", "B", 0)] += 2

        def setup():
            e.V("v_lshrrev_b32 v%d, 5, v0\nv_lshlrev_b32 v%d, 4, v%d\nv_add_u32 v%d, %d, v%d" % (vWB[0], vWB[0], vWB[0], vWB[0], GWL, vWB[0]))

        def rd_gate(s, ks, dst):
            return e("ds_read_b128 %s, v%d offset:%d" % (R("v", dst, 4), vWB[0], s * 128 + ks * 32))
        e.pass_a(queue_b, setup)
        e.second_pass([(e.rd_static(slotf, 0, 1), ACCB, 2), (e.rd_static(slotf, 1, 0), ACCB + 16, 2), (rd_gate, ACCB + 32, 2)])
        e.wait_all(vm=False)
        e("s_barrier")
        SG = [ACCB + 48 + k for k in range(5)]
        e.seg320(SG)
        dm = []
        for kb in range(2):
            e("s_add_u32 %s, %s, %d\ns_mul_i32 %s, %s, %d" % (sT0, sI, 16 * kb, sT0, sT0, 32 * 1280))
            for pc in range(10):
                if pc == 5:
                    e("s_add_u32 %s, %s, %d" % (sT0, sT0, 16 * 1280))
                e("s_add_u32 m0, %s, %d" % (sREG, WOFF + kb * 10240 + pc * 1024))
                i = e("buffer_load_dwordx4 v%d, %s, %s offen lds" % (SG[pc % 5], sWOUT, sT0))
            dm.append(i)
            e.tok -= 10
        g = ACCB + 32
        e.V("v_mul_f32 v%d, %s, v%d\nv_exp_f32 v%d, v%d\nv_add_f32 v%d, 1.0, v%d\nv_rcp_f32 v%d, v%d" % (g, f32(-LOG2E), g, g, g, g, g, g, g))
        e("s_lshl2_add_u32 %s, %s, %s\ns_lshl_b32 %s, %s, 7\ns_add_u32 %s, %s, %d" % (sT0, sI, sW, sT0, sT0, sT0, sT0, GATE))
        e("v_and_b32 v%d, 0x7c, v%d" % (vT[0], vL4))
        e("buffer_store_dword v%d, v%d, %s, %s offen sc1" % (g, vT[0], sWS, sT0))
        last = e.z1_store(2, "s_mov_b32 %s, 26" % sT1)
        e.z1_flag_addr()
        a = vT[2]
        e.V("v_lshrrev_b32 v%d, 5, v0\nv_bfe_u32 v%d, v0, 2, 3\nv_lshl_add_u32 v%d, v%d, 4, v%d" % (a, a + 1, a, a, a + 1))
        e.V("v_mul_u32_u24 v%d, 320, v%d\nv_add_u32 v%d, %s, v%d\nv_and_b32 v%d, 3, v0" % (a, a, a, sREG, a, a + 2))
        e.V("v_lshl_add_u32 v%d, v%d, 3, v%d\nv_lshl_add_u32 v%d, v%d, 4, v%d" % (a + 1, a + 2, a, a, a + 2, a))
        e("s_cmp_lt_u32 %s, 11\ns_cselect_b32 %s, 0, 0x%x" % (sI, sT1, OOB))
        e.V("v_add_u32 v%d, %s, v%d" % (a + 3, sT1, vL16))
        e.flag(last, sFL)
        for kb in range(2):
            e.wait(vm=dm[kb])
            for U in range(10):
                col, step = self.unit_col(U)
                for sub in range(2):
                    e("ds_read_b64_tr_b16 %s, v%d offset:%d" % (R("a", 40 * kb + 4 * U + 2 * sub, 2), a if step == 8 else a + 1,
                                                                WOFF + kb * 10240 + sub * 8 * 320 + col * 2))
            for U in range(10):
                c, t = divmod(U, 5)
                if t in (0, 4):
                    e("s_lshl1_add_u32 %s, %s, %d\ns_mul_i32 %s, %s, 48\ns_add_u32 %s, %s, %s" % (sT0, sW, c, sT0, sT0, sT0, sT0, sI))
                    e("s_mul_i32 %s, %s, 5120\ns_add_u32 %s, %s, %d" % (sT0, sT0, sT0, sT0, BP + (20 + 16 * kb) * 5120 + t * 1024))
                last = e("buffer_store_dwordx4 %s, v%d, %s, %s offen offset:%d sc1" % (R("a", 40 * kb + 4 * U, 4), a + 3 if kb else vL16, sWS, sT0, (t % 4) * 1024))
                e.tick()
            e.tok -= 10
        e("s_lshl_b32 %s, %s, 5\ns_add_u32 %s, %s, %s\ns_lshl_b32 %s, %s, 2\ns_add_u32 %s, %s, %d" % (sFL, sW, sFL, sFL, sI, sFL, sFL, sFL, sFL, F_WO))
        return last

    def ap_voff(self, dst):
        self.V("v_bfe_u32 v%d, v0, 4, 1\nv_mul_u32_u24 v%d, 0xc000, v%d\nv_and_b32 v%d, 15, v0" % (dst, dst, dst, vT[0]))
        self.V("v_lshl_add_u32 v%d, v%d, 4, v%d\nv_lshrrev_b32 v%d, 5, v0\nv_lshl_add_u32 v%d, v%d, 8, v%d" % (dst, vT[0], dst, vT[0], dst, vT[0], dst))

    def role_h(self):
        e = self
        e.wring = 208
        Q = 48
        e("v_lshlrev_b32 v%d, 4, v0" % vL16)
        for k in range(4):
            e("v_mov_b32 v%d, -1" % (240 + k))
        e("s_lshl1_add_u32 %s, %s, %s\ns_lshl2_add_u32 %s, %s, %s\ns_lshl_b32 %s, %s, 11" % (sT0, sI, sHALF, sT0, sT0, sW, sT0, sT0))
        for k in range(2):
            e("buffer_store_dwordx4 v[240:243], v%d, %s, %s offen offset:%d sc1" % (vL16, sWS, sT0, k * 1024))
        e.stream_init(sAO, sAB, sAE, "s_mul_i32 %s, %s, 640" % (sAB, sHALF), 3840)
        occ = {}
        PS = [(3, 0), (3, 1), (3, 2), (0, 2), (1, 2), (2, 2), (0, 1), (1, 1)]
        sl1 = lambda s, k: PS[(s % 4) * 2 + k]
        sl2 = lambda s, k: (k, s % 3)
        e.w_jobs("A", [0, 128], sl1, sWQ, vWDQ, (sAO, sAB, sAE), 3840, occ, True)
        e.bg_vm(force=True, maxn=16)
        e.late_setup()
        e.stamp(0)
        e.bg_vm(force=True, maxn=16)
        e.stream_init(sBO, sBB, sBE, "s_mov_b32 %s, %s" % (sBB, sAB), 3840)
        e.w_jobs("B", [256, 384, 512], sl2, sWQ, vWDQ, (sBO, sBB, sBE), 3840, occ, False)

        def arrive():
            e("v_mov_b32 v244, 1\ns_lshl_b32 %s, %s, 12\ns_mov_b64 exec, 1" % (sT0, sW))
            e("buffer_atomic_add v244, off, %s, %s sc1" % (sDBG, sT0))
            e("s_mov_b64 exec, -1")
        e.p1_pass("A", [(e.rd_static(sl1, b >> 1, b & 1), Q + 16 * b, 2) for b in range(4)], True, False, {0: arrive})
        e.stamp(1)
        e.p1_pass("B", [(e.rd_static(sl2, b >> 1, b & 1), Q + 64 + 16 * b, 2) for b in range(6)], False, False, prev_tag="A")
        e.stamp(4)
        ld0 = "buffer_load_dword v%d, off, %s, 0 sc1" % (vT[11], sDBG)
        e(ld0)
        e.wait_all(vm=False)
        e("s_barrier")
        SG = [16, 17, 18, 19, 20]
        e.seg320(SG)
        e("s_lshl4_add_u32 %s, %s, %s\ns_mul_i32 %s, %s, %d" % (sG, sHALF, sI, sT0, sG, 20 * 1280))
        for pc in range(7):
            if pc == 5:
                e("s_add_u32 %s, %s, %d" % (sT0, sT0, 16 * 1280))
            e("s_add_u32 m0, %s, %d" % (sREG, WOFF + pc * 1024))
            if pc == 6:
                e("s_mov_b64 exec, 0xffff")
            wo_id = e("buffer_load_dwordx4 v%d, %s, %s offen lds" % (SG[pc % 5], sWO, sT0))
        e("s_mov_b64 exec, -1")
        e("s_mov_b32 s100, %s\ns_mov_b32 s101, %s" % (f32(LOG2E), f32(1e-6)))
        e.phi(Q, 128, 240, 100)
        e.check(ld0, "v_cmp_ne_u32 vcc, 32, v%d" % vT[11])
        e("s_lshl_b32 %s, %s, 10\ns_add_u32 %s, %s, %d" % (sT0, sHALF, sT0, sT0, F_KV))
        e("s_lshl2_add_u32 %s, %s, %s\ns_lshl_b32 %s, %s, 7\ns_add_u32 %s, %s, %d" % (sT2, sI, sW, sT2, sT2, sT1, sT2, F_Z1 + 20))
        ld1 = "buffer_load_dwordx4 v[208:211], v%d, %s, %s offen sc1\nbuffer_load_dword v212, off, %s, %s sc1" % (vL16, sWS, sT0, sWS, sT1)
        e(ld1)
        e.phi(Q + 128, 32, 240, 100)
        e.stamp(5)
        e.check(ld1, "v_max3_u32 v213, v208, v209, v210\nv_max3_u32 v213, v213, v211, v212\nv_cmp_eq_u32 vcc, -1, v213")
        e.stamp(6)
        e("v_cmp_gt_u32 vcc, 36, v0\nv_mov_b32 v%d, 0x%x\nv_cndmask_b32 v%d, v%d, v%d, vcc" % (vT[1], OOB, vT[0], vT[1], vL16))
        e("s_lshl_b32 %s, %s, 15\ns_lshl_b32 %s, %s, 13\ns_add_u32 %s, %s, %s\ns_add_u32 %s, %s, %d" % (sT0, sG, sT1, sW, sT0, sT0, sT1, sT0, sT0, KVP))
        for r in range(4):
            if r == 2:
                e("s_add_u32 %s, %s, 4096" % (sT0, sT0))
            e("buffer_load_dwordx4 %s, v%d, %s, %s offen offset:%d sc1" % (R("v", 208 + 8 * r, 4), vL16, sWS, sT0, (r & 1) * 2048))
            e("buffer_load_dwordx4 %s, v%d, %s, %s offen offset:%d sc1" % (R("v", 212 + 8 * r, 4), vT[0], sWS, sT0, (r & 1) * 2048 + 1024))
        e("s_mul_i32 %s, %s, %d\ns_mul_i32 %s, %s, 1280\ns_add_u32 %s, %s, %s\ns_add_u32 %s, %s, %d" % (sT0, sW, 4 * 2560, sT1, sHALF, sT0, sT0, sT1, sT0, sT0, ZP))
        for r in range(4):
            e("buffer_load_dwordx4 %s, v%d, %s, %s offen sc1" % (R("v", 240 + 4 * r, 4), vL16, sWS, sT0))
            e("buffer_load_dword v%d, v%d, %s, %s offen offset:1024 sc1" % (32 + r, vL4, sWS, sT0))
            if r < 3:
                e("s_add_u32 %s, %s, 2560" % (sT0, sT0))
        vG = vT[10]
        e("s_add_u32 %s, %s, %d\nv_and_b32 v%d, 0x7c, v%d" % (sT2, sT2, GATE, vT[2], vL4))
        e("buffer_load_dword v%d, v%d, %s, %s offen sc1" % (vG, vT[2], sWS, sT2))
        a16, a4 = vT[3], vT[4]
        e("v_add_u32 v%d, %s, v%d\nv_add_u32 v%d, %s, v%d" % (a16, sREG, vL16, a4, sREG, vL4))
        for r in range(1, 4):
            for k in range(0, 8, 2):
                e("v_pk_add_f32 %s, %s, %s" % (R("v", 208 + k, 2), R("v", 208 + k, 2), R("v", 208 + 8 * r + k, 2)))
        e("ds_write_b128 v%d, v[208:211]\nds_write_b128 v%d, v[212:215] offset:1024" % (a16, a16))
        for r in range(1, 4):
            for k in range(0, 4, 2):
                e("v_pk_add_f32 %s, %s, %s" % (R("v", 240 + k, 2), R("v", 240 + k, 2), R("v", 240 + 4 * r + k, 2)))
            e("v_add_f32 v32, v32, v%d" % (32 + r))
        e("ds_write_b128 v%d, v[240:243] offset:2048\nds_write_b32 v%d, v32 offset:3072" % (a16, a4))
        ka = [21, 22]
        e("v_and_b32 v%d, 31, v0\nv_min_u32 v%d, 19, v%d\nv_mul_u32_u24 v%d, 80, v%d" % (vT[0], vT[0], vT[0], 23, vT[0]))
        e("v_lshrrev_b32 v24, 5, v0\nv_lshl_add_u32 v%d, v24, 5, v23\nv_add_u32 v%d, %d, v%d" % (ka[0], ka[1], 2 * REGION, ka[0]))
        e("v_add_u32 v25, %d, v23\nv_add_u32 v26, %d, v%d\nv_add_u32 v27, %d, v%d" % (2 * REGION, 2 * REGION, vL16, 2 * REGION, vL4))
        e.wait_all(vm=False)
        e("s_barrier")
        for r in range(4):
            e("ds_read_b128 %s, v%d offset:%d" % (R("v", 240 + 4 * r, 4), 26 if r >= 2 else vL16, (r & 1) * REGION + 2048))
            e("ds_read_b32 v%d, v%d offset:%d" % (32 + r, 27 if r >= 2 else vL4, (r & 1) * REGION + 3072))
        for r in range(4):
            for k in range(2):
                e("ds_read_b128 %s, v%d offset:%d" % (R("v", 208 + 8 * r + 4 * k, 4), ka[r >> 1], (r & 1) * REGION + 16 * k))
        for r in range(1, 4):
            for k in range(0, 4, 2):
                e("v_pk_add_f32 %s, %s, %s" % (R("v", 240 + k, 2), R("v", 240 + k, 2), R("v", 240 + 4 * r + k, 2)))
            e("v_add_f32 v32, v32, v%d" % (32 + r))
        e("ds_write_b128 v%d, v[240:243] offset:4096\nds_write_b32 v%d, v32 offset:5120" % (a16, a4))
        for r in range(4):
            e("ds_read_b128 %s, v%d offset:%d" % (R("v", 240 + 4 * r, 4), 25 if r >= 2 else 23, (r & 1) * REGION + 64))
        for r in range(1, 4):
            for k in range(0, 8, 2):
                e("v_pk_add_f32 %s, %s, %s" % (R("v", 208 + k, 2), R("v", 208 + k, 2), R("v", 208 + 8 * r + k, 2)))
        for r in range(1, 4):
            for k in range(0, 4, 2):
                e("v_pk_add_f32 %s, %s, %s" % (R("v", 240 + k, 2), R("v", 240 + k, 2), R("v", 240 + 4 * r + k, 2)))
        KA = 244
        e.pack(208, 8, KA)
        e.pack(240, 4, KA + 4)
        e("v_cmp_gt_u32 vcc, 32, v0\nv_mov_b32 v%d, 0\nv_mov_b32 v%d, 0" % (KA + 6, KA + 7))
        e("v_cndmask_b32 v%d, 0, v%d, vcc\nv_cndmask_b32 v%d, 0, v%d, vcc" % (KA + 4, KA + 4, KA + 5, KA + 5))
        e("v_bfe_u32 v16, v0, 2, 2\nv_mul_u32_u24 v16, 320, v16\nv_add_u32 v16, %s, v16\nv_mul_u32_u24 v17, %d, v24" % (sREG, 8 * 320))
        e("v_and_b32 v18, 3, v0\nv_bfe_u32 v19, v0, 4, 1\nv_cmp_eq_u32 %s, 1, v19" % sMASK)
        e.wait(vm=wo_id)
        for bb in range(5):
            (c0, s0), (c1, s1) = self.unit_col(2 * bb), self.unit_col(2 * bb + 1)
            e("v_mul_u32_u24 v20, %d, v18\nv_add_u32 v20, %d, v20\nv_mul_u32_u24 v21, %d, v18\nv_add_u32 v21, %d, v21" % (2 * s0, 2 * c0, 2 * s1, 2 * c1))
            e("v_cndmask_b32_e64 v20, v20, v21, %s\nv_add_u32 v20, v20, v16\nv_add_u32 v21, v20, v17" % sMASK)
            for t in range(2):
                e("ds_read_b64_tr_b16 %s, v21 offset:%d" % (R("a", 8 * bb + 2 * t, 2), WOFF + t * 4 * 320))
            for t in range(2):
                e("ds_read_b64_tr_b16 %s, v20 offset:%d" % (R("a", 8 * bb + 4 + 2 * t, 2), WOFF + 16 * 320))
        KP = [16, 17, 18]
        e("s_mul_i32 %s, %s, 5" % (sT0, sG))
        e("v_and_b32 v20, 15, v0\nv_lshlrev_b32 v20, 4, v20\nv_mov_b32 v25, 0x%x" % OOB)
        for jq in range(3):
            e("v_add_u32 v21, %s, v24\nv_add_u32 v21, %d, v21" % (sT0, 2 * jq))
            e("v_lshrrev_b32 v22, 3, v21\nv_mul_u32_u24 v22, 5120, v22\nv_add_u32 v22, v22, v20")
            e("v_bfe_u32 v23, v21, 2, 1\nv_lshl_add_u32 v22, v23, 9, v22\nv_and_b32 v23, 1, v21\nv_lshl_add_u32 v22, v23, 8, v22")
            e("v_bfe_u32 v23, v21, 1, 1\nv_lshl_add_u32 v%d, v23, 3, v22" % KP[jq])
        e("v_cndmask_b32 v%d, v25, v%d, vcc" % (KP[2], KP[2]))
        e("v_lshlrev_b32 v20, 10, v19\nv_mul_u32_u24 v21, %d, v19" % (48 * 5120 - 4096))
        for jq in range(3):
            e("v_add_u32 v%d, v%d, v21\nv_add_u32 v%d, v%d, v20" % (22 + jq + (1 if jq == 2 else 0), KP[jq], KP[jq], KP[jq]))
        KPX = [22, 23, 25]
        e("s_mul_i32 %s, %s, %d\ns_add_u32 %s, %s, %d" % (sT0, sW, 2 * 48 * 5120, sT0, sT0, BP))

        def mm(bb):
            d = R("v", 208 + 16 * (bb & 1), 16)
            e("v_mfma_f32_32x32x16_bf16 %s, %s, %s, 0" % (d, R("v", KA, 4), R("a", 8 * bb, 4)))
            e("v_mfma_f32_32x32x16_bf16 %s, %s, %s, %s" % (d, R("v", KA + 4, 4), R("a", 8 * bb + 4, 4), d))
        mm(0)
        for bb in range(5):
            if bb < 4:
                mm(bb + 1)
            pk = 32 + 6 * 0
            c, t = divmod(2 * bb, 5)
            e("s_add_u32 %s, %s, %d" % (sT1, sT0, c * 48 * 5120 + t * 1024))
            for jq in range(3):
                src = 208 + 16 * (bb & 1) + 4 * jq
                dst = (252, 254, 32)[jq]
                e.pack(src, 4, dst)
                m_last = e("buffer_store_dwordx2 %s, v%d, %s, %s offen sc1" % (R("v", dst, 2), (KPX if bb == 2 else KP)[jq], sWS, sT1))
        e.stamp(7)
        vz = 16
        e("v_lshl_add_u32 v%d, v24, 4, %s" % (vz, sREG))
        e.ap_voff(17)
        e("s_lshl2_add_u32 %s, %s, %s\ns_mul_i32 %s, %s, %d\ns_mul_i32 %s, %s, 10240" % (sT0, sI, sW, sT0, sT0, 2 * 49152, sT1, sHALF))
        e("s_add_u32 %s, %s, %s\ns_add_u32 %s, %s, %d" % (sT0, sT0, sT1, sT0, sT0, AP))
        ZB = [208, 228]

        def zread(pr):
            for k in range(5):
                e("ds_read_b128 %s, v%d offset:%d" % (R("v", ZB[pr & 1] + 4 * k, 4), vz, 4096 + (5 * pr + k) * 32))
        zread(0)
        A_, B_, M_ = 18, 20, 22
        done = 0
        for pr in range(8):
            if pr < 7:
                zread(pr + 1)
            for k in range(5):
                acc = (A_, A_, M_, B_, B_)[k]
                x = Q + 4 * (5 * pr + k)
                z = ZB[pr & 1] + 4 * k
                if k in (0, 2, 3):
                    e("v_pk_mul_f32 %s, %s, %s" % (R("v", acc, 2), R("v", x, 2), R("v", z, 2)))
                else:
                    e("v_pk_fma_f32 %s, %s, %s, %s" % (R("v", acc, 2), R("v", x, 2), R("v", z, 2), R("v", acc, 2)))
                e("v_pk_fma_f32 %s, %s, %s, %s" % (R("v", acc, 2), R("v", x + 2, 2), R("v", z + 2, 2), R("v", acc, 2)))
            e("v_add_f32 v%d, v%d, v%d\nv_add_f32 v%d, v%d, v%d\nv_add_f32 v%d, v%d, v%d" % (A_, A_, A_ + 1, B_, B_, B_ + 1, M_, M_, M_ + 1))
            e("v_add_f32 v%d, %s, v%d" % (M_, f32(1e-6), M_))
            e("v_permlane32_swap_b32 v%d, v%d" % (A_, B_))
            e("v_add_f32 v%d, v%d, v%d\nv_add_f32 v%d, v%d, v%d" % (A_, A_, B_, M_, M_, A_))
            e("v_rcp_f32 v%d, v%d\nv_mul_f32 v%d, v%d, v%d" % (M_, M_, M_, M_, vG))
            e("v_mov_b32 v%d, v%d\nv_mov_b32 v%d, v%d" % (A_, M_, B_, M_))
            x = Q + 4 * (5 * pr + 2)
            for o_ in (0, 2):
                e("v_pk_mul_f32 %s, %s, %s op_sel_hi:[1,0]" % (R("v", x + o_, 2), R("v", x + o_, 2), R("v", M_, 2)))
            e("v_permlane32_swap_b32 v%d, v%d" % (A_, B_))
            for k in (0, 1, 3, 4):
                x = Q + 4 * (5 * pr + k)
                for o_ in (0, 2):
                    e("v_pk_mul_f32 %s, %s, %s op_sel_hi:[1,0]" % (R("v", x + o_, 2), R("v", x + o_, 2), R("v", A_ if k < 2 else B_, 2)))
            while 2 * (done + 1) <= 5 * (pr + 1):
                b, p = divmod(done, 2)
                d = 248 + 4 * (done & 1)
                e.pack(Q + 8 * done, 8, d)
                if done and done % 8 == 0:
                    e("s_add_u32 %s, %s, 4096" % (sT0, sT0))
                last = e("buffer_store_dwordx4 %s, v17, %s, %s offen offset:%d sc1" % (R("v", d, 4), sWS, sT0, (b % 4) * 1024 + p * 512))
                done += 1
            if pr == 4:
                e("s_lshl_b32 %s, %s, 5\ns_add_u32 %s, %s, %s\ns_lshl_b32 %s, %s, 2\ns_add_u32 %s, %s, %d" % (sT1, sW, sT1, sT1, sG, sT1, sT1, sT1, sT1, F_M))
                e.flag(m_last, sT1)
        e("s_lshr_b32 %s, %s, 1\ns_lshl1_add_u32 %s, %s, %s\ns_lshl_b32 %s, %s, 5" % (sT0, sW, sT0, sI, sT0, sT0, sT0))
        e("s_and_b32 %s, %s, 1\ns_lshl1_add_u32 %s, %s, %s\ns_add_u32 %s, %s, %s" % (sT1, sW, sT1, sHALF, sT1, sT0, sT0, sT1))
        e("s_lshl_b32 %s, %s, 2\ns_add_u32 %s, %s, %d" % (sT0, sT0, sT0, sT0, F_U + 28 * 4))
        e.flag(last, sT0)
        e.stamp(8)
        e.wait_all(vm=False)
        e("s_barrier")
        e("s_mov_b32 %s, 0x%x" % (sFL, OOB))
        if e.opt.get("stop", 9) <= 2:
            return None
        e.p3_setup()
        e.p3_poll1()
        e.p3_check1()
        e.p3_jobs()
        while e.ev["n3"] < N3:
            e.q1.pop(0).emit()
        e.q1 = []
        return e.join_state({"last": -1})

    def p2_entry_loads(self):
        e = self
        e("s_lshl2_add_u32 %s, %s, %s\ns_lshl_b32 %s, %s, 7\ns_add_u32 %s, %s, %d" % (sAO, sJ, sW, sAO, sAO, sAO, sAO, F_Z2N))
        e("v_min_u32 v%d, 15, v0\nv_lshlrev_b32 v%d, 2, v%d" % (vT[8], vT[8], vT[8]))
        e("s_lshl2_add_u32 %s, %s, %s\ns_lshl_b32 %s, %s, 6" % (sT0, sI, sW, sT0, sT0))
        e("v_and_b32 v%d, 31, v0\nv_lshlrev_b32 v%d, 1, v%d" % (vT[7], vT[7], vT[7]))
        e("buffer_load_ushort v%d, v%d, %s, %s offen" % (vT[10], vT[7], sBSP, sT0))
        self.z2n_poll = "buffer_load_dword v%d, v%d, %s, %s offen sc1" % (vT[9], vT[8], sWS, sAO)
        e(self.z2n_poll)

    def phase2(self, ids):
        e = self
        o = e.opt
        e.ev = {"xfree": True, "norm_done": True}
        for q in range(NQ_D):
            e.ev[("adma", q)] = [ids.get(("adma", q), -1)] * 4
            e.ev[("adma_t", q)] = e.cyc
        for q in range(NQ_R):
            e.ev[("ard", q)] = (-1, 0)
        e.lat = o.get("lat2", 1400)
        e.pace = o.get("pace2", 55)
        BS = [("a", 96), ("a", 128), ("v", 160)]
        ACC = [("a", 0), ("a", 32), ("a", 64), ("v", Z2ACC)]
        TT, RAW = 80, 112
        order = self.q_order()
        e("s_barrier")
        qa = []
        e.a_jobs(NQ_D, 32, NQ_R, 32, qa)
        cur = dict(f=-1)
        qb = []
        bid = {}
        for cs in range(8):
            for ks in range(4):
                def pre(cs=cs, ks=ks):
                    return cs < 3 or cur["f"] >= 32 * (cs - 3) + 25 + 2 * ks

                def emit(cs=cs, ks=ks):
                    for fb in range(2):
                        k = 2 * ks + fb
                        bid[(cs, ks)] = e("buffer_load_dwordx4 %s, v%d, %s, %s offen offset:%d sc1"
                                          % (rr(BS[cs % 3], 4, 4 * k), vL16B if k >= 4 else vL16, sWS, sBCH[cs], (k % 4) * 1024))
                j = Job(pre, emit, 2)
                j.need = (32 * cs if cs < 7 else 200) + 2 * ks
                qb.append(j)

        def issue(force=False):
            if not force and e.tokens() < 1.0:
                return False
            cand = [q for q in (qa, qb) if q and q[0].pre()]
            if not cand:
                if not qa and not qb and e.q1 and e.q1[0].pre() and e.ev["n3"] < N3:
                    cand = [e.q1]
                else:
                    return False
            q = min(cand, key=lambda q: q[0].need)
            j = q.pop(0)
            j.emit()
            e.tok = max(-8.0, e.tok - j.n)
            return True

        for _ in range(o.get("a_first", 2)):
            qa.pop(0).emit()
        e.check(e.z2n_poll, "v_cmp_eq_u32 vcc, -1, v%d" % vT[9])
        e.stamp(6)
        for _ in range(6):
            issue(True)
        e.tok, e.tok_t = 0.0, e.cyc
        e("v_lshlrev_b32 v%d, 16, v%d" % (vT[10], vT[10]))
        for k in range(32):
            e("v_mov_b32 v%d, v%d" % (Z2ACC + k, vT[10]))
        vG, vK = vT[6], vT[5]

        def z1_poll():
            e("s_lshl2_add_u32 %s, %s, %s\ns_lshl_b32 %s, %s, 7\ns_add_u32 %s, %s, %d" % (sAB, sI, sW, sAE, sAB, sAO, sAE, F_Z1))
            e("v_min_u32 v%d, 5, v0\nv_lshlrev_b32 v%d, 2, v%d" % (vT[8], vT[8], vT[8]))
            self.z1_ld = "buffer_load_dword v%d, v%d, %s, %s offen sc1" % (vT[9], vT[8], sWS, sAO)
            e(self.z1_ld)

        def z1_load():
            e.check(self.z1_ld, "v_cmp_eq_u32 vcc, -1, v%d" % vT[9])
            e("s_mul_i32 %s, %s, 14\ns_add_u32 %s, %s, %s\ns_lshl_b32 %s, %s, 12\ns_add_u32 %s, %s, %d" % (sAB, sAB, sAB, sAB, sJ, sAB, sAB, sAB, sAB, Z1))
            e("s_add_u32 %s, %s, %d\nv_and_b32 v%d, 0x7c, v%d" % (sAE, sAE, GATE, vT[8], vL4))
            e("buffer_load_dword v%d, v%d, %s, %s offen sc1" % (vG, vT[8], sWS, sAE))
            for k in range(4):
                e("buffer_load_dwordx4 %s, v%d, %s, %s offen offset:%d sc1" % (R("v", RAW + 4 * k, 4), vL16, sWS, sAB, k * 1024))
            e.tok -= 4

        def z1_act():
            v = e.qv
            v.append("v_sub_f32 v%d, 1.0, v%d" % (vG, vG))
            v.append("v_mov_b32 v%d, %s" % (vK, f32(GK2)))
            for g0 in range(0, 32, 4):
                xs = [(TT + g0 + k, 128 + k) for k in range(4)]
                for k in range(0, 4, 2):
                    v.append("v_lshlrev_b32 v%d, 16, v%d" % (TT + g0 + k, RAW + (g0 + k) // 2))
                    v.append("v_and_b32 v%d, 0xffff0000, v%d" % (TT + g0 + k + 1, RAW + (g0 + k) // 2))
                for fmt in ("v_mul_f32 v{t}, v{x}, v{x}", "v_fmaak_f32 v{t}, v%d, v{t}, %s" % (vK, f32(GK1)), "v_mul_f32 v{t}, v{t}, v{x}",
                            "v_exp_f32 v{t}, v{t}", "v_mul_f32 v{x}, v{x}, v%d" % vG, "v_add_f32 v{t}, 1.0, v{t}", "v_rcp_f32 v{t}, v{t}",
                            "v_mul_f32 v{x}, v{x}, v{t}"):
                    for x, t in xs:
                        v.append(fmt.format(x=x, t=t))

        RA = vT[1:4]

        def tail_setup():
            e("v_add_u32 v%d, %s, v%d" % (vT[4], sREG, vL16))
            for b in range(3):
                e("s_add_u32 %s, %s, %d\ns_and_b32 %s, %s, 3\ns_mul_i32 %s, %s, %d" % (sT0, sW, 3 - b, sT0, sT0, sT0, sT0, REGION))
                e("v_add_u32 v%d, %s, v%d" % (RA[b], sT0, vL16))

        def p3_go():
            e.p3_check1()
            e.p3_jobs()

        hooks = {o.get("f_rflag", 24): lambda: e.flag(ids["last"], sFL), 56: z1_poll, 80: z1_load, 110: z1_act, 190: tail_setup}
        if o.get("stop", 9) > 2:
            hooks.update({180: e.p3_setup, 196: e.p3_poll1, 216: p3_go})
        e.ev["n3"] = 0
        wr = []
        for f in range(256):
            q, rem = divmod(f, 8)
            ks, fb = divmod(rem, 2)
            cs, b = order[q]
            if f in hooks:
                hooks[f]()
            while (cs, ks) not in bid:
                assert issue(True)
            guard = 0
            while ("ard", q) not in e.ev:
                if not (e.bg_ds() or issue(True)):
                    e.cyc += 200
                    guard += 1
                    assert guard < 50
            if fb == 0:
                e.wait(vm=bid[(cs, ks)])
            acc = rr(ACC[b], 16, 16 * fb)
            c = "0" if (cs == 0 and ks == 0 and b < 3) else acc
            e("v_mfma_f32_32x32x16_bf16 %s, %s, %s, %s" % (acc, rr(BS[cs % 3], 4, 4 * (2 * ks + fb)), rr(ASLOT[q % 10], 4, 4 * ks), c))
            cur["f"] = f
            e.ev["f"] = f
            if rem == 7:
                e.ev[("aused", q)] = True
                if cs == 7 and b < 3:
                    wr += [(f + 3 + 2 * k if k < 4 else f + 3 + 2 * k - 3, b, k) for k in range(8)]
            t0 = e.cyc
            if wr and wr[0][0] <= f:
                _, b_, k = wr.pop(0)
                e("ds_write_b128 v%d, %s offset:%d" % (vT[4], rr(ACC[b_], 4, 4 * k), WOFF + b_ * 8192 + k * 1024))
                if k == 7:
                    e.ev[("accfree", b_)] = True
            elif not e.bg_ds():
                issue()
            while e.qv and e.cyc - t0 <= 12:
                e(e.qv.pop(0))
        while wr:
            _, b_, k = wr.pop(0)
            e("ds_write_b128 v%d, %s offset:%d" % (vT[4], rr(ACC[b_], 4, 4 * k), WOFF + b_ * 8192 + k * 1024))
        e.ev[("accfree", 2)] = True
        e.ev["f"] = 999
        while e.qv:
            e(e.qv.pop(0))
        e.stamp(7)
        e.wait_all(vm=False)
        e("s_barrier")
        rd = [(b, k) for k in range(8) for b in range(3)]
        NTMP = 12

        def rd_issue(n):
            b, k = rd[n]
            e("ds_read_b128 %s, v%d offset:%d" % (R("v", RAW + 4 * (n % NTMP), 4), RA[b], WOFF + b * 8192 + k * 1024))
        for n in range(NTMP):
            rd_issue(n)
        vU, vU0 = vT[7], vT[8]
        saved, e.q1 = e.q1, []
        e.ap_voff(vU)
        e.q1 = saved
        e("s_cmp_eq_u32 %s, 0\ns_cselect_b32 %s, 0x%x, 0\nv_add_u32 v%d, %s, v%d" % (sJ, sT1, OOB, vU0, sT1, vU))
        e("s_lshl2_add_u32 %s, %s, %s\ns_mul_i32 %s, %s, %d\ns_lshl_b32 %s, %s, 11" % (sT0, sI, sW, sT0, sT0, 2 * 49152, sT1, sJ))
        e("s_add_u32 %s, %s, %s\ns_add_u32 %s, %s, %d" % (sT0, sT0, sT1, sT0, sT0, AP + 19 * 1024))
        for k in range(8):
            g = Z2ACC + 4 * k
            for b in range(3):
                n = 3 * k + b
                t = RAW + 4 * (n % NTMP)
                for o_ in (0, 2):
                    e("v_pk_add_f32 %s, %s, %s" % (R("v", g + o_, 2), R("v", g + o_, 2), R("v", t + o_, 2)))
            for n in range(3 * k + NTMP, min(24, 3 * k + NTMP + 3)):
                rd_issue(n)
            for o_ in (0, 2):
                e("v_pk_mul_f32 %s, %s, %s" % (R("v", g + o_, 2), R("v", g + o_, 2), R("v", TT + 4 * k + o_, 2)))
            for o_ in (0, 2):
                e("v_cvt_pk_bf16_f32 v%d, v%d, v%d" % (TT + 2 * k + o_ // 2, g + o_, g + o_ + 1))
            if k & 1:
                blk, p = divmod(k >> 1, 2)
                last = e("buffer_store_dwordx4 %s, v%d, %s, %s offen offset:%d sc1" % (R("v", TT + 2 * k - 2, 4), vU if blk else vU0, sWS, sT0, blk * 1024 + p * 512))
        e("s_lshr_b32 %s, %s, 1\ns_lshl1_add_u32 %s, %s, %s\ns_lshl_b32 %s, %s, 5" % (sT0, sW, sT0, sI, sT0, sT0, sT0))
        e("s_and_b32 %s, %s, 1\ns_lshl1_add_u32 %s, %s, %s\ns_add_u32 %s, %s, %s" % (sT1, sW, sT1, sJ, sT1, sT0, sT0, sT1))
        e("s_lshl_b32 %s, %s, 2\ns_add_u32 %s, %s, %d" % (sT0, sT0, sFL, sT0, F_U))
        e.stamp(8)
        if o.get("stop", 9) <= 2:
            return None
        while e.ev["n3"] < N3:
            e.q1.pop(0).emit()
        e.q1 = []
        return e.join_state({"last": last})

    J7R = [("v", 160 + 4 * k) for k in range(8)] + [(ASLOT[s][0], ASLOT[s][1] + 4 * k) for s in (2, 3, 4, 5, 6, 7, 8, 9, 0, 1) for k in range(4)]
    J7FREE = [191] * 8 + [8 * q + 7 for q in range(22, 32) for _ in range(4)]
    sRU = ["s63", "s64", "s65", "s71"]
    sB3, sF3 = "s72", "s73"
    vP1, vP2, vZ = 16, 17, 18

    def p3_setup(self):
        e = self
        for b in range(4):
            e("s_add_u32 %s, %s, %d\ns_and_b32 %s, %s, 3\ns_lshl2_add_u32 %s, %s, %s" % (sT0, sW, b + 1, sT0, sT0, sT0, sP, sT0))
            e("s_mul_i32 %s, %s, 48\ns_mul_i32 %s, %s, 5\ns_add_u32 %s, %s, %s" % (sT0, sT0, sT1, sW, sT0, sT0, sT1))
            e("s_lshl_b32 %s, %s, 10\ns_add_u32 %s, %s, %d" % (sT0, sT0, e.sRU[b], sT0, AP))
        e("s_mul_i32 %s, %s, 48\ns_add_u32 %s, %s, %s\ns_mul_i32 %s, %s, 5120\ns_add_u32 %s, %s, %d" % (sT0, sC, sT0, sT0, sT1, sT0, sT0, e.sB3, sT0, BP))
        e("s_lshr_b32 %s, %s, 1\ns_lshl_b32 %s, %s, 7" % (sT0, sC, sT0, sT0))
        e("s_add_u32 %s, %s, %d\nv_add_u32 v%d, %s, v%d" % (sT1, sT0, F_WO, e.vP1, sT1, vL4))
        e("s_lshl_b32 %s, %s, 5\ns_add_u32 %s, %s, %s\ns_add_u32 %s, %s, %d" % (sT1, sW, sT0, sT0, sT1, sT0, sT0, F_M - 64))
        e("v_add_u32 v%d, %s, v%d\nv_cmp_gt_u32 vcc, 16, v0\nv_cndmask_b32 v%d, v%d, v%d, vcc" % (e.vP2, sT0, vL4, e.vP1, e.vP2, e.vP1))
        e("s_lshl_b32 %s, %s, 7\ns_add_u32 %s, %s, %d" % (e.sF3, sP, e.sF3, e.sF3, F_U))
        e("s_lshr_b32 %s, %s, 1\ns_lshl3_add_u32 %s, %s, %s\ns_add_u32 %s, %s, 112" % (sT0, sW, sT0, sT0, e.sF3, sT0, sT0))
        e("v_and_b32 v%d, 4, v%d\nv_add_u32 v%d, %s, v%d" % (e.vP2, vL4, e.vP2, sT0, e.vP2))
        e("v_cmp_gt_u32 vcc, 24, v0\nv_cndmask_b32 v%d, v%d, v%d, vcc" % (e.vP1, e.vP2, e.vP1))
        e("s_mul_i32 %s, %s, 7\ns_add_u32 %s, %s, 1\ns_and_b32 %s, %s, 0xfe" % (sT0, sW, sT0, sT0, sT0, sT0))
        e("v_and_b32 v%d, 7, v0\nv_add_u32 v%d, %s, v%d\nv_min_u32 v%d, 27, v%d\nv_lshlrev_b32 v%d, 2, v%d"
          % (e.vP2, e.vP2, sT0, e.vP2, e.vP2, e.vP2, e.vP2, e.vP2))
        e("s_cmp_eq_u32 %s, 3\ns_cselect_b32 %s, 0x%x, 0\nv_add_u32 v%d, %s, v%d" % (sW, sT0, OOB, e.vZ, sT0, vL16))

    def p3_poll1(self):
        self.p3_ld1 = "buffer_load_dword v19, v%d, %s, 0 offen sc1" % (self.vP1, sWS)
        self(self.p3_ld1)

    def p3_check1(self):
        self.check(self.p3_ld1, "v_cmp_eq_u32 vcc, -1, v19")

    def p3_jobs(self, start=0):
        e = self
        e.ev.setdefault("f", 999)
        e.ev["n3"] = start
        jobs = []
        for kl in range(5):
            for t in range(5):
                jobs.append(("B", e.J7R[9 * kl + t], e.J7FREE[9 * kl + t], 5 * kl + t))
            for b in range(4):
                jobs.append(("A", e.J7R[9 * kl + 5 + b], e.J7FREE[9 * kl + 5 + b], (b, kl)))
        for n in range(35):
            jobs.append(("W", ("a", 4 * n), 998, n))
        for kind, reg, free, x in jobs[start:]:
            def emit(kind=kind, reg=reg, x=x):
                if kind == "A":
                    b, kl = x
                    e("buffer_load_dwordx4 %s, v%d, %s, %s offen offset:%d sc1" % (rr(reg, 4), vL16B if kl >= 4 else vL16, sWS, e.sRU[b], (kl % 4) * 1024))
                elif kind == "B":
                    if x and x % 8 == 0:
                        e("s_add_u32 %s, %s, 8192" % (e.sB3, e.sB3))
                    e("buffer_load_dwordx4 %s, v%d, %s, %s offen offset:%d sc1" % (rr(reg, 4), vL16B if x % 8 >= 4 else vL16, sWS, e.sB3, (x % 4) * 1024))
                else:
                    if x == 0:
                        e("s_mul_i32 %s, %s, %d\ns_add_u32 %s, %s, %s\ns_add_u32 %s, %s, %d" % (sSO, sW, 2 * 5120, e.sB3, e.sB3, sSO, e.sB3, e.sB3, 20 * 5120 - 3 * 8192))
                    elif x % 4 == 0:
                        e("s_add_u32 %s, %s, 4096" % (e.sB3, e.sB3))
                    e("buffer_load_dwordx4 %s, v%d, %s, %s offen offset:%d sc1" % (rr(reg, 4), e.vZ if x >= 30 else vL16, sWS, e.sB3, (x % 4) * 1024))
                e.ev["n3"] += 1
            j = Job(lambda free=free: e.ev["f"] >= free, emit, 1)
            j.need = 1000
            e.q1.append(j)

    def phase3(self, ids):
        e = self
        o = e.opt
        e.ev = {}
        e.p3_jobs(N3)
        ACC = 80
        ahead = o.get("ahead3", 14)
        vW = 20
        RA = [21, 22, 23]

        def top_up(n):
            while e.q1 and e.ev["n3"] < n:
                e.q1.pop(0).emit()
        top_up(N3 + o.get("burst3", 6))
        ld2 = "buffer_load_dword v19, v%d, %s, %s offen sc1" % (e.vP2, sWS, e.sF3)
        for kl in range(5):
            if kl == 2:
                e.flag(ids["last"], sFL)
            for b in range(4):
                for t in range(5):
                    top_up(9 * kl + 9)
                    acc = R("v", ACC + 20 * b + 4 * t, 4)
                    e("v_mfma_f32_16x16x32_bf16 %s, %s, %s, %s" % (acc, rr(e.J7R[9 * kl + t], 4), rr(e.J7R[9 * kl + 5 + b], 4), "0" if kl == 0 else acc))
                    if e.q1 and e.ev["n3"] < 9 * kl + 9 + ahead:
                        e.q1.pop(0).emit()
        e.stamp(9)
        top_up(80 - o.get("poll3", 8))
        e(ld2)
        top_up(80)
        for b in range(4):
            e("s_lshl_b32 %s, %s, 11\ns_add_u32 %s, %s, %s\ns_add_u32 %s, %s, %d" % (sT0, sW, e.sRU[b], e.sRU[b], sT0, e.sRU[b], e.sRU[b], 20 * 1024))
        e("v_add_u32 v%d, %s, v%d\nv_add_u32 v%d, 0x1000, v%d" % (vW, sREG, vL16, e.vZ, e.vZ))
        for b in range(3):
            e("s_add_u32 %s, %s, %d\ns_and_b32 %s, %s, 3\ns_mul_i32 %s, %s, %d" % (sT0, sW, 3 - b, sT0, sT0, sT0, sT0, REGION))
            e("v_add_u32 v%d, %s, v%d" % (RA[b], sT0, vL16))
        vO, vO2 = 24, 25
        e("v_and_b32 v%d, 15, v0\nv_mul_u32_u24 v%d, 1280, v%d\nv_lshrrev_b32 v26, 4, v0" % (vO, vO, vO))
        e("v_lshl_add_u32 v%d, v26, 3, v%d\nv_lshl_add_u32 v%d, v26, 4, v%d" % (vO2, vO, vO, vO))
        e("s_lshl2_add_u32 %s, %s, %s\ns_mul_i32 %s, %s, %d\ns_mul_i32 %s, %s, 160\ns_add_u32 %s, %s, %s" % (sT2, sP, sW, sT2, sT2, 16 * 1280, sT1, sC, sT2, sT2, sT1))
        e.check(ld2, "v_cmp_eq_u32 vcc, -1, v19")
        e.stamp(10)
        ul = [(b, kl) for b in range(4) for kl in range(7)]
        nu = 0

        def uload():
            nonlocal nu
            b, kl = ul[nu]
            v = e.vZ if kl == 6 else (vL16B if kl >= 4 else vL16)
            e("buffer_load_dwordx4 %s, v%d, %s, %s offen offset:%d sc1" % (rr(e.J7R[nu], 4), v, sWS, e.sRU[b], (kl % 4) * 1024))
            nu += 1
        for _ in range(o.get("burstu", 14)):
            uload()
        wr = []
        n = 0
        for b in range(4):
            for kl in range(7):
                for t in range(5):
                    acc = R("v", ACC + 20 * b + 4 * t, 4)
                    e("v_mfma_f32_16x16x32_bf16 %s, %s, %s, %s" % (acc, R("a", 4 * (5 * kl + t), 4), rr(e.J7R[7 * b + kl], 4), acc))
                    n += 1
                    if t == 0 and nu < 28:
                        uload()
                    elif wr and wr[0][0] <= n:
                        _, b_, t_ = wr.pop(0)
                        e("ds_write_b128 v%d, %s offset:%d" % (vW, R("v", ACC + 20 * b_ + 4 * t_, 4), b_ * 5120 + t_ * 1024))
            if b < 3:
                wr += [(n + 6 + 4 * t, b, t) for t in range(5)]
        assert not wr and nu == 28
        e.stamp(11)
        e.wait_all(vm=False)
        e("s_barrier")
        T = 192
        for t in range(5):
            for b in range(3):
                e("ds_read_b128 %s, v%d offset:%d" % (R("v", T + 12 * t + 4 * b, 4), RA[b], b * 5120 + t * 1024))
        OWN = ACC + 60
        P = 48
        for t in range(5):
            for b in range(3):
                for o_ in (0, 2):
                    e("v_pk_add_f32 %s, %s, %s" % (R("v", OWN + 4 * t + o_, 2), R("v", OWN + 4 * t + o_, 2), R("v", T + 12 * t + 4 * b + o_, 2)))
            for o_ in (0, 2):
                e("v_cvt_pk_bf16_f32 v%d, v%d, v%d" % (P + 2 * t + o_ // 2, OWN + 4 * t + o_, OWN + 4 * t + o_ + 1))
            sc = o.get("outsc", "")
            if t in (1, 3):
                e("buffer_store_dwordx4 %s, v%d, %s, %s offen offset:%d %s" % (R("v", P + 2 * t - 2, 4), vO, sOUT, sT2, 32 * (t - 1), sc))
            elif t == 4:
                e("buffer_store_dwordx2 %s, v%d, %s, %s offen offset:128 %s" % (R("v", P + 8, 2), vO2, sOUT, sT2, sc))

    def finish(self):
        e = self
        if e.opt.get("diag"):
            e.wait_all()
            e.stamp(12)
            e("s_lshl2_add_u32 %s, s2, %s\ns_lshl_b32 %s, %s, 8\ns_add_u32 %s, %s, %d" % (sT0, sW, sT0, sT0, sT0, sT0, DIAG))
            e("s_nop 4")
            e("buffer_store_dword v7, v%d, %s, %s offen" % (vL4, sWS, sT0))

    def build(self):
        e = self
        stop = e.opt.get("stop", 9)
        e.prologue()
        e("s_cmp_eq_u32 %s, 7\ns_cbranch_scc1 L_role_h" % sJL)
        e("s_cmp_eq_u32 %s, 13\ns_cbranch_scc1 L_role_l" % sJ)
        e("s_cmp_ge_u32 %s, 4\ns_cbranch_scc1 L_role_b" % sJL)
        snap = e.snapshot()
        main, e.L = e.L, []
        parts = {}
        states = []
        for name, fn in (("a", e.role_a), ("b", e.role_b), ("l", e.role_l)):
            e.restore(snap)
            e.ev, e.q1, e.q2, e.qd, e.qv = {}, [], [], [], []
            e.tok, e.tok_t = 0.0, e.cyc
            last = fn()
            states.append(e.p1_finish(last))
            parts[name], e.L = e.L, []
        e.restore(snap)
        e.ev, e.q1, e.q2, e.qd, e.qv = {}, [], [], [], []
        sth = e.role_h()
        if sth is None:
            e.finish()
            e("s_endpgm")
        parts["h"], e.L = e.L, []
        ids = e.merge(states)
        e.q1, e.q2, e.qd, e.qv = [], [], [], []
        e.raw("L_p2:")
        if stop <= 1:
            e.flag(ids["last"], sFL)
        else:
            st2 = e.phase2(ids)
            if st2 is not None:
                ids = e.merge([st2, sth])
                e.raw("L_p3:")
                e.phase3(ids)
        e.finish()
        rest, e.L = e.L, []
        e.L = main + parts["a"] + rest + ["L_end:", "    s_endpgm"]
        e.L += ["L_role_b:"] + parts["b"] + ["    s_branch L_p2"]
        e.L += ["L_role_l:"] + parts["l"] + ["    s_branch L_p2"]
        e.L += ["L_role_h:"] + parts["h"]
        if sth is not None:
            e.L += ["    s_branch L_p3"]
        return e.text() + "L_code_end:\n    s_endpgm\n"


N3 = 18


def generate(opt):
    head = open("cdna_kernels/%s.s.ref" % NAME).read().split("; Override launch")[0] if opt.get("head", 1) else ""
    body = K(opt).build()
    return (head + "; @launch grid=(256,1,1) block=(256,1,1) lds=163840\n"
            '.amdgcn_target "amdgcn-amd-amdhsa--gfx950"\n.text\n.globl %s_kernel\n.p2align 8\n.type %s_kernel,@function\n%s_kernel:\n' % (NAME, NAME, NAME)
            + body +
            '.section .rodata,"a"\n.p2align 6\n.amdhsa_kernel %s_kernel\n'
            "  .amdhsa_next_free_vgpr 512\n  .amdhsa_next_free_sgpr 102\n  .amdhsa_accum_offset 256\n"
            "  .amdhsa_group_segment_fixed_size 0\n  .amdhsa_kernarg_size 96\n  .amdhsa_user_sgpr_count 2\n"
            "  .amdhsa_user_sgpr_kernarg_segment_ptr 1\n  .amdhsa_system_sgpr_workgroup_id_x 1\n.end_amdhsa_kernel\n" % NAME)


if __name__ == "__main__":
    out = sys.argv[1]
    opt = {}
    for a in sys.argv[2:]:
        k, v = a.split("=")
        opt[k] = int(v) if v.lstrip("-").isdigit() else v
    open(out, "w").write(generate(opt))
```

```python
import math
import struct
import sys

from em import Em, R, rr

NAME = "gated_mix__linear_attn_block__mixer_gmlp__prompt"

STATS = 0
F_Z2N = 0x38000
F_Z1 = 0x54000
F_KV = 0x64000
F_U = 0x74000
F_M = 0x94000
F_WO = 0x98000
GATE = 0xA0000
ZP = 0xA4000
KVP = 0x100000
Z2N = 0x200000
Z1 = 0x600000
AP = 0xA00000
BP = 0x1000000
DIAG = 0x1200000
WS_SIZE = 0x1300000
OOB = 0x80000000

sX, sWQ, sWO, sWIN, sWSP, sBSP, sWOUT, sGW, sOUT, sDBG, sWS, sCODE = [R("s", 8 + 4 * k, 4) for k in range(12)]
sW, sI, sJL, sHALF, sJ, sREG, sW2K = ["s%d" % k for k in range(56, 63)]
sXO, sXB, sXE = "s63", "s64", "s65"
sAO, sAB, sAE = "s66", "s67", "s70"
sKC = "s[68:69]"
sBO, sBB, sBE = "s71", "s72", "s73"
sSPIN = "s74"
sT0, sT1, sT2, sT3 = "s75", "s76", "s77", "s3"
sROW = ["s78", "s79", "s80", "s81"]
sCH = ["s%d" % k for k in range(82, 90)]
sBCH = ["s%d" % k for k in range(90, 98)]
sG, sROT = "s98", "s99"
sMASK = "s[100:101]"
sP, sC = "s4", "s5"
sSO = "s6"
sFL = "s7"

vLANE = "v0"
vXD = [8, 9, 10, 11]
vXR = [12, 13, 14, 15]
vWDI = [16, 17]
vWDQ = [18, 19]
vWS = [[20, 21], [22, 23]]
vWB = [24, 25, 26, 27, 28]
vL16, vL16B, vL4 = 29, 30, 31
vL128 = 2
vAD = [32, 33, 34, 35]
vT = list(range(36, 48))
Z2ACC = 48
ACCB = 80
WRING = 160
NR = 8
ASLOT = [("a", 160 + 16 * k) for k in range(6)] + [("v", 192 + 16 * k) for k in range(4)]
REGION = 40960
WOFF = 16384

NQ_D, NQ_R = 14, 10
SPIN_MAX = 1 << 17


def f32(x):
    return "0x%08x" % struct.unpack("<I", struct.pack("<f", x))[0]


LOG2E = 1.4426950408889634
GK1 = -2.0 * math.sqrt(2.0 / math.pi) * LOG2E
GK2 = GK1 * 0.044715


class Job:
    def __init__(self, pre, emit, n=1):
        self.pre, self.emit, self.n = pre, emit, n


class K(Em):
    def __init__(self, opt):
        super().__init__()
        self.opt = opt
        self.q1 = []
        self.q2 = []
        self.qd = []
        self.qv = []
        self.tok = 0.0
        self.tok_t = 0
        self.pace = opt.get("pace", 66)
        self.ev = {}
        self.nstamp = 0
        self.wring = WRING
        self.lat = opt.get("lat1", 1000)

    def tokens(self):
        self.tok = min(8.0, self.tok + (self.cyc - self.tok_t) / self.pace)
        self.tok_t = self.cyc
        return self.tok

    def bg_vm(self, force=False, maxn=2):
        done = 0
        while done < maxn:
            if not force and self.tokens() < 1.0:
                break
            q = None
            if self.q1 and self.q1[0].pre():
                q = self.q1
            elif self.q2 and self.q2[0].pre():
                q = self.q2
            if q is None:
                break
            j = q.pop(0)
            j.emit()
            self.tok = max(-8.0, self.tok - j.n)
            done += j.n
        return done

    def bg_ds(self):
        if self.qd and self.qd[0].pre():
            self.qd.pop(0).emit()
            return True
        return False

    def tick(self):
        if not self.bg_vm():
            self.bg_ds()

    def V(self, text):
        for ln in text.split("\n"):
            if ln.strip():
                self(ln)
                self.tick()

    def drain(self, cond):
        guard = 0
        while not cond():
            if self.bg_ds() or self.bg_vm(force=True):
                guard = 0
                continue
            self.cyc += 200
            guard += 1
            assert guard < 100, "background queues stuck"

    def stamp(self, k):
        sel = self.opt.get("stamps")
        if self.opt.get("diag") and (sel is None or k == 12 or str(k) in str(sel).split(".")):
            self.wait_all(vm=False)
            self.raw("    %s s[0:1]\n" % ("s_memtime" if self.opt["diag"] == 2 else "s_memrealtime") + "    s_waitcnt lgkmcnt(0)\n    v_writelane_b32 v7, s0, %d" % k)
            self.pos += 3

    def check(self, loads, test):
        slow, back = self.label("Lslow"), self.label("Lback")
        self(test)
        self("s_cbranch_vccnz " + slow)
        self.raw(back + ":")
        c = self.cold
        c.append(slow + ":")
        c.append("    s_add_u32 %s, %s, 1\n    s_cmp_ge_u32 %s, %d\n    s_cbranch_scc1 L_end" % (sSPIN, sSPIN, sSPIN, SPIN_MAX))
        c.append("\n".join("    " + l for l in loads.split("\n")))
        c.append("    s_waitcnt vmcnt(0)")
        c.append("\n".join("    " + l for l in test.split("\n")))
        c.append("    s_nop 4\n    s_cbranch_vccnz %s\n    s_branch %s" % (slow, back))

    def flag(self, after_id, soff):
        self.wait(vm=after_id)
        self("s_mov_b64 exec, 1")
        i = self("buffer_store_dword v%d, off, %s, %s sc1" % (vL4, sWS, soff))
        self("s_mov_b64 exec, -1")
        return i

    def prologue(self):
        e = self
        e("s_cmp_ge_u32 s2, 256")
        e("s_cbranch_scc1 L_end")
        order = [(8, 0), (20, 32), (12, 8), (48, 88), (44, 80), (24, 40), (16, 16), (28, 48), (32, 56), (36, 64), (40, 72)]
        for sreg, off in order:
            e.raw("    s_load_dwordx2 s[%d:%d], s[0:1], %d" % (sreg, sreg + 1, off))
        if self.opt.get("diag"):
            e.raw("    %s s[100:101]" % ("s_memtime" if self.opt["diag"] == 2 else "s_memrealtime"))
        e.raw("    s_getpc_b64 s[52:53]")
        e.raw("L_pc:")
        sizes = {8: 2621440, 12: 2457600, 16: 819200, 20: 2211840, 24: 8388608, 28: 4096, 32: 1105920, 36: 1280,
                 40: 2621440, 44: 256, 48: WS_SIZE}
        e("v_lshrrev_b32 v1, 6, v0\nv_and_b32 v0, 63, v0")
        e("s_and_b32 %s, s2, 7\ns_lshr_b32 %s, s2, 3" % (sT0, sT1))
        e("v_readfirstlane_b32 %s, v1" % sW)
        e("s_mov_b32 s54, L_code_end-L_pc\ns_mov_b32 s55, 0x20000")
        e("s_and_b32 %s, %s, 1" % (sHALF, sT0))
        e("s_lshr_b32 %s, %s, 1" % (sT0, sT0))
        e("s_and_b32 %s, %s, 3\ns_lshl_b32 %s, %s, 2\ns_add_u32 %s, %s, %s\ns_lshl_b32 %s, %s, 13" % (sT2, sT1, sT2, sT2, sT2, sT2, sW, sT2, sT2))
        e("v_lshlrev_b32 v2, 7, v0")
        if self.opt.get("codepf", 1):
            e("buffer_load_dword v6, v2, %s, %s offen" % (sCODE, sT2))
            self.pend.clear()
        e("s_and_b32 %s, %s, 3\ns_lshl2_add_u32 %s, %s, %s" % (sT2, sT1, sI, sT0, sT2))
        e("s_lshr_b32 %s, %s, 2" % (sJL, sT1))
        e("s_mul_i32 %s, %s, 7\ns_add_u32 %s, %s, %s" % (sJ, sHALF, sJ, sJ, sJL))
        e("s_and_b32 %s, %s, 7\ns_lshl3_add_u32 %s, %s, %s" % (sP, sT1, sP, sT0, sP))
        e("s_lshr_b32 %s, %s, 3\ns_lshl2_add_u32 %s, %s, %s" % (sC, sT1, sC, sHALF, sC))
        if self.opt.get("rot", 1):
            e("s_mul_i32 %s, %s, 5\ns_lshr_b32 %s, %s, 1" % (sT2, sT2, sT2, sT2))
            e("s_mul_i32 %s, %s, 5\ns_lshr_b32 %s, %s, 2\ns_add_u32 %s, %s, %s" % (sROT, sJL, sROT, sROT, sROT, sROT, sT2))
            e("s_cmp_ge_u32 %s, 10\ns_cselect_b32 %s, 10, 0\ns_sub_u32 %s, %s, %s" % (sROT, sT2, sROT, sROT, sT2))
        else:
            e("s_mov_b32 %s, 0" % sROT)
        e("s_mul_i32 %s, %s, %d\ns_lshl_b32 %s, %s, 11" % (sREG, sW, REGION, sW2K, sW))
        e("s_lshl2_add_u32 %s, %s, %s\ns_mul_i32 %s, %s, %d" % (sXB, sI, sW, sXB, sXB, 32 * 1280))
        e("s_add_u32 %s, %s, 1280\ns_lshl_b32 %s, %s, 7\ns_add_u32 %s, %s, %s" % (sXE, sXB, sXO, sROT, sXO, sXO, sXB))
        for sreg in (8, 20, 12, 48, 44):
            e("s_mov_b32 s%d, %d\ns_mov_b32 s%d, 0x20000" % (sreg + 2, sizes[sreg], sreg + 3))
        e("v_lshrrev_b32 v1, 3, v0\nv_and_b32 v2, 7, v0\nv_lshrrev_b32 v3, 4, v0")
        e("v_xor_b32 v4, v2, v3\nv_lshlrev_b32 v4, 4, v4\nv_xor_b32 v5, 64, v4")
        e("v_mul_u32_u24 v%d, 1280, v1" % vT[0])
        for r in range(4):
            e("v_add_u32 v%d, v%d, v%d" % (vXD[r], vT[0], 4 + (r & 1)))
            if r:
                e("v_add_u32 v%d, %d, v%d" % (vXD[r], r * (8 * 1280 - 1024), vXD[r]))
        e("v_and_b32 v%d, 1, v3\nv_lshlrev_b32 v%d, 2, v%d\nv_xor_b32 v%d, v2, v%d\nv_lshlrev_b32 v%d, 4, v%d"
          % (vT[1], vT[1], vT[1], vT[1], vT[1], vT[1], vT[1]))
        e("s_lshl_b32 %s, %s, 4\nv_add_u32 v%d, %s, v1" % (sT0, sW, vT[2], sT0))
        for regs_, stride in ((vWDI, 3456), (vWDQ, 3840)):
            e("v_mul_u32_u24 v%d, %d, v%d\nv_add_u32 v%d, v%d, v%d" % (regs_[0], stride, vT[2], regs_[0], regs_[0], vT[1]))
            e("v_add_u32 v%d, %d, v%d" % (regs_[1], 8 * stride - 1024, regs_[0]))
        self.sizes = sizes
        e.raw("    s_waitcnt lgkmcnt(0)")
        e.pos += 1

    def late_setup(self):
        e = self
        for sreg in (24, 16, 28, 32, 36, 40):
            e("s_mov_b32 s%d, %d\ns_mov_b32 s%d, 0x20000" % (sreg + 2, self.sizes[sreg], sreg + 3))
        e("s_mov_b32 s68, %s\ns_mov_b32 s69, %s\ns_mov_b32 %s, 0" % (f32(GK1), f32(GK2), sSPIN))
        e("v_lshlrev_b32 v%d, 4, v0\nv_add_u32 v%d, 0x1000, v%d\nv_lshlrev_b32 v%d, 2, v0" % (vL16, vL16B, vL16, vL4))
        if self.opt.get("diag"):
            e("v_mov_b32 v7, 0")
            e.raw("    s_nop 1\n    v_writelane_b32 v7, s100, 13")
        e("v_lshlrev_b32 v%d, 12, v1" % vT[0])
        for r in range(4):
            e("v_add_u32 v%d, v%d, v%d" % (vAD[r], vT[0], 4 + (r & 1)))
            if r:
                e("v_add_u32 v%d, %d, v%d" % (vAD[r], r * (8 * 4096 - 1024), vAD[r]))
        e("v_and_b32 v1, 31, v0\nv_lshrrev_b32 v2, 5, v0\nv_bfe_u32 v4, v0, 1, 3\nv_xor_b32 v4, v4, v2")
        e("v_lshlrev_b32 v4, 4, v4\nv_lshl_add_u32 v4, v1, 7, v4")
        for ks in range(4):
            e("v_xor_b32 v%d, %d, v4\nv_add_u32 v%d, %s, v%d" % (vXR[ks], ks * 32, vXR[ks], sREG, vXR[ks]))
        e("v_bfe_u32 v5, v0, 2, 2\nv_lshl_add_u32 v5, v2, 3, v5\nv_lshlrev_b32 v5, 7, v5\nv_add_u32 v5, %d, v5" % WOFF)
        e("v_bfe_u32 v4, v0, 3, 1\nv_lshlrev_b32 v4, 6, v4")
        e("v_and_b32 v1, 3, v0\nv_lshlrev_b32 v1, 3, v1\nv_bfe_u32 v3, v0, 4, 1")
        e("v_lshl_add_u32 v%d, v3, 5, v1\nv_xor_b32 v%d, v%d, v4" % (vT[0], vT[0], vT[0]))
        e("v_add_u32 v%d, v%d, v5\nv_xor_b32 v%d, 64, v%d" % (vWS[0][0], vT[0], vWS[0][1], vWS[0][0]))
        e("v_add_u32 v%d, %d, v%d\nv_add_u32 v%d, %d, v%d" % (vWS[1][0], 2 * REGION, vWS[0][0], vWS[1][1], 2 * REGION, vWS[0][1]))
        e("v_lshlrev_b32 v%d, 7, v0" % vL128)

    def stream_init(self, o, b, en, base_text, stride):
        self(base_text)
        self("s_add_u32 %s, %s, %d\ns_mul_i32 %s, %s, %d\ns_add_u32 %s, %s, %s" % (en, b, 640 * stride, o, sROT, 64 * stride, o, o, b))

    def advance(self, o, b, en, step):
        self("s_add_u32 %s, %s, %d\ns_cmp_eq_u32 %s, %s\ns_cselect_b32 %s, %s, %s" % (o, o, step, o, en, o, b, o))

    def job_x(self, tag, s):
        ids = self.ev.setdefault(("dma", tag, s), [])

        def mk(half):
            def emit():
                self("s_add_u32 m0, %s, %d" % (sREG, (s % 4) * 4096))
                for r in (2 * half, 2 * half + 1):
                    ids.append(self("buffer_load_dwordx4 v%d, %s, %s offen offset:%d lds" % (vXD[r], sX, sXO, r * 1024)))
                if half:
                    self.advance(sXO, sXB, sXE, 128)
            return emit
        pre = (lambda: True) if s < 4 else (lambda: self.ev.get(("free", tag, s - 4)))
        return [Job(pre, mk(0), 2), Job(pre, mk(1), 2)]

    def job_w(self, tag, s, ring, slot, lo, srd, vd, stream, stride, last, prev):
        ids = self.ev.setdefault(("dma", tag, s), [])

        def emit():
            self("s_add_u32 m0, %s, %d" % (sW2K, WOFF + ring * REGION + slot * 8192 - lo))
            for t in range(2):
                ids.append(self("buffer_load_dwordx4 v%d, %s, %s offen offset:%d lds" % (vd[t], srd, stream[0], t * 1024 + lo)))
            if last:
                self.advance(stream[0], stream[1], stream[2], 64 * stride)
        pre = (lambda: True) if prev is None else (lambda: self.ev.get(("free",) + prev))
        return Job(pre, emit, 2)

    def w_jobs(self, tag, lines, slotf, srd, vd, stream, stride, occ, withx):
        for s in range(10):
            if withx:
                self.q1 += self.job_x(tag, s)
            for k, lo in enumerate(lines):
                ring, slot = slotf(s, k)
                self.q1.append(self.job_w(tag, s, ring, slot, lo, srd, vd, stream, stride, k == len(lines) - 1, occ.get((ring, slot))))
                occ[(ring, slot)] = (tag, s)
            self.ev[("ndma", tag, s)] = 2 * len(lines) + (4 if withx else 0)

    def p1_pass(self, tag, blocks, withx, paced, hooks=None, prev_tag=None):
        e = self
        nb = len(blocks)
        per = 4 * nb
        F = 10 * per
        hooks = hooks or {}
        rd_id = {}
        st = dict(next=0, opened=-1)

        def open_stage(s):
            e.drain(lambda: len(e.ev[("dma", tag, s)]) == e.ev[("ndma", tag, s)])
            e.wait(vm=max(e.ev[("dma", tag, s)]), lg=e.lg_n - 1)
            e("s_barrier")
            st["opened"] = s
            if s:
                e.ev[("free", tag, s - 1)] = True
            elif prev_tag:
                e.ev[("free", prev_tag, 9)] = True
            if withx:
                for ks in range(4):
                    e("ds_read_b128 %s, v%d offset:%d" % (R("a", (s * 4 + ks) * 4, 4), vXR[ks], (s % 4) * 4096))

        def read_pair():
            for _ in range(2):
                f = st["next"]
                s, rem = divmod(f, per)
                ks, b = divmod(rem, nb)
                rd_id[f] = blocks[b][0](s, ks, e.wring + 4 * (f % NR))
                st["next"] += 1

        open_stage(0)
        for _ in range(3):
            read_pair()
        for f in range(F):
            s, rem = divmod(f, per)
            ks, b = divmod(rem, nb)
            if f in hooks:
                hooks[f]()
            if f % 2 == 0:
                e.wait(lg=rd_id[f + 1])
            acc = R("v", blocks[b][1], 16)
            wf = R("v", e.wring + 4 * (f % NR), 4)
            xf = R("a", (s * 4 + ks) * 4, 4)
            c = "0" if (s == 0 and ks == 0) else acc
            if blocks[b][2] == 2:
                e("v_mfma_f32_32x32x16_bf16 %s, %s, %s, %s" % (acc, wf, xf, c))
            else:
                e("v_mfma_f32_32x32x16_bf16 %s, %s, %s, %s" % (acc, xf, wf, c))
            nx = st["next"]
            if nx < F and nx <= f + 6:
                if nx // per > st["opened"]:
                    open_stage(nx // per)
                else:
                    read_pair()
            else:
                if not e.bg_vm(force=not paced, maxn=2):
                    e.bg_ds()

    def rd_static(self, slotf, k, hf):
        def read(s, ks, dst):
            ring, slot = slotf(s, k)
            for t in range(2):
                i = self("ds_read_b64_tr_b16 %s, v%d offset:%d" % (R("v", dst + 2 * t, 2), vWS[ring >> 1][hf],
                                                                  (ring & 1) * REGION + slot * 8192 + ks * 2048 + t * 512))
            return i
        return read

    def rd_dyn(self, b):
        def read(s, ks, dst):
            for t in range(2):
                i = self("ds_read_b64_tr_b16 %s, v%d offset:%d" % (R("v", dst + 2 * t, 2), vWB[b], (s % 3) * 8192 + ks * 2048 + t * 512))
            return i
        return read

    def dyn_addr(self, b, colexpr, ringexpr=None):
        e = self
        e.V(colexpr)
        e.V("v_lshrrev_b32 v%d, 6, v%d" % (vT[2], vT[0]))
        if ringexpr:
            e.V(ringexpr)
        e.V("v_and_b32 v%d, 63, v%d\nv_lshl_add_u32 v%d, v%d, 1, v1\nv_xor_b32 v%d, v%d, v4" % (vT[0], vT[0], vT[0], vT[0], vT[0], vT[0]))
        e.V("v_mul_u32_u24 v%d, %d, v%d\nv_add3_u32 v%d, v%d, v%d, v5" % (vT[2], REGION, vT[2], vWB[b], vT[2], vT[0]))

    def gelu(self, regs_, tmp, emit):
        for b0 in range(0, len(regs_), 8):
            ps = [(regs_[b0 + k], tmp + k) for k in range(0, min(8, len(regs_) - b0), 2)]
            for x, t in ps:
                emit("v_pk_mul_f32 %s, %s, %s" % (R("v", t, 2), R("v", x, 2), R("v", x, 2)))
            for x, t in ps:
                emit("v_pk_fma_f32 %s, %s, %s, %s op_sel:[0,1,0] op_sel_hi:[1,1,0]" % (R("v", t, 2), R("v", t, 2), sKC, sKC))
            for x, t in ps:
                emit("v_pk_mul_f32 %s, %s, %s" % (R("v", t, 2), R("v", t, 2), R("v", x, 2)))
            for x, t in ps:
                emit("v_exp_f32 v%d, v%d\nv_exp_f32 v%d, v%d" % (t, t, t + 1, t + 1))
            for x, t in ps:
                emit("v_pk_add_f32 %s, %s, 1.0 op_sel_hi:[1,0]" % (R("v", t, 2), R("v", t, 2)))
            for x, t in ps:
                emit("v_rcp_f32 v%d, v%d\nv_rcp_f32 v%d, v%d" % (t, t, t + 1, t + 1))
            for x, t in ps:
                emit("v_pk_mul_f32 %s, %s, %s" % (R("v", x, 2), R("v", t, 2), R("v", x, 2)))

    def phi(self, base, n, tmp, kreg):
        for b0 in range(0, n, 8):
            ps = [(base + b0 + k, tmp + k) for k in range(0, 8, 2)]
            for x, t in ps:
                self.V("v_pk_mul_f32 %s, %s, %s op_sel_hi:[1,0]" % (R("v", t, 2), R("v", x, 2), R("s", kreg, 2)))
            for x, t in ps:
                self.V("v_exp_f32_e64 v%d, v%d clamp\nv_exp_f32_e64 v%d, v%d clamp" % (t, t, t + 1, t + 1))
            for x, t in ps:
                self.V("v_max_f32 v%d, s%d, v%d\nv_max_f32 v%d, s%d, v%d" % (x, kreg + 1, x, x + 1, kreg + 1, x + 1))
            for x, t in ps:
                self.V("v_pk_add_f32 %s, %s, %s" % (R("v", x, 2), R("v", x, 2), R("v", t, 2)))

    def pack(self, src, n, dst):
        for k in range(n // 2):
            self.V("v_cvt_pk_bf16_f32 v%d, v%d, v%d" % (dst + k, src + 2 * k, src + 2 * k + 1))

    def z2_stats(self):
        e = self
        ld = "buffer_load_dword v%d, off, %s, 0 sc1" % (vT[11], sDBG)
        e(ld)
        e.gelu(list(range(Z2ACC, Z2ACC + 32)), ACCB, e.V)
        S = [ACCB + 8, ACCB + 10]
        Q = [ACCB + 12, ACCB + 14]
        for b in range(2):
            z = Z2ACC + 16 * b
            e.V("v_pk_add_f32 %s, %s, %s" % (R("v", S[b], 2), R("v", z, 2), R("v", z + 2, 2)))
            e.V("v_pk_mul_f32 %s, %s, %s" % (R("v", Q[b], 2), R("v", z, 2), R("v", z, 2)))
            for k in range(1, 8):
                if k > 1:
                    e.V("v_pk_add_f32 %s, %s, %s" % (R("v", S[b], 2), R("v", S[b], 2), R("v", z + 2 * k, 2)))
                e.V("v_pk_fma_f32 %s, %s, %s, %s" % (R("v", Q[b], 2), R("v", z + 2 * k, 2), R("v", z + 2 * k, 2), R("v", Q[b], 2)))
        e("s_cmp_eq_u32 %s, 0\ns_cselect_b32 %s, 0, 1.0" % (sJ, sT0))
        for a in (S, Q):
            e("v_add_f32 v%d, v%d, v%d\nv_add_f32 v%d, v%d, v%d" % (a[0], a[0], a[0] + 1, a[1], a[1], a[1] + 1))
            e("v_fmac_f32 v%d, %s, v%d" % (a[1], sT0, a[0]))
        e("s_lshl2_add_u32 %s, %s, %s\ns_mul_i32 %s, %s, %d" % (sT1, sI, sW, sFL, sT1, 14 * 256))
        e("s_lshl_b32 %s, %s, 8\ns_add_u32 %s, %s, %s" % (sT1, sJ, sT1, sT1, sFL))
        e("v_permlane32_swap_b32 v%d, v%d" % (S[1], Q[1]))
        e("v_add_f32 v%d, v%d, v%d" % (S[1], S[1], Q[1]))
        e.check(ld, "v_cmp_gt_u32 vcc, 32, v%d" % vT[11])
        e("buffer_store_dword v%d, v%d, %s, %s offen sc1" % (S[1], vL4, sWS, sT1))

    def z2_poll(self):
        T = 192
        self.stat_ld = "\n".join("buffer_load_dword v%d, v%d, %s, %s offen offset:%d sc1" % (T + k, vL4, sWS, sFL, k * 256) for k in range(14))
        self(self.stat_ld)
        self.tok -= 4

    def z2_norm(self):
        e = self
        T = 192
        m = T + 14
        test = "v_max3_u32 v%d, v%d, v%d, v%d\n" % (m, T, T + 1, T + 2)
        for k in range(3, 13, 2):
            test += "v_max3_u32 v%d, v%d, v%d, v%d\n" % (m, m, T + k, T + k + 1)
        test += "v_max_u32 v%d, v%d, v%d\nv_cmp_eq_u32 vcc, -1, v%d" % (m, m, T + 13, m)
        e.check(e.stat_ld, test)
        for k in range(2, 14, 2):
            e.V("v_pk_add_f32 %s, %s, %s" % (R("v", T, 2), R("v", T, 2), R("v", T + k, 2)))
        e("v_add_f32 v%d, v%d, v%d\nv_mul_f32 v%d, %s, v%d\nv_mov_b32 v%d, v%d" % (T, T, T + 1, T, f32(1.0 / 864), T, T + 1, T))
        a = T + 4
        e("v_bfe_u32 v%d, v0, 1, 1\nv_bfe_u32 v%d, v0, 2, 2\nv_and_b32 v%d, 1, v0" % (a, a + 1, a + 2))
        e("v_permlane32_swap_b32 v%d, v%d" % (T, T + 1))
        e("v_lshl_or_b32 v%d, v%d, 1, v%d\nv_lshl_or_b32 v%d, v%d, 3, v%d" % (a + 1, a + 1, a + 2, a, a, a + 1))
        e("v_fma_f32 v%d, -v%d, v%d, v%d\nv_max_f32 v%d, 0, v%d\nv_add_f32 v%d, %s, v%d" % (T + 1, T, T, T + 1, T + 1, T + 1, T + 1, f32(1e-5), T + 1))
        e("v_rsq_f32 v%d, v%d" % (T + 2, T + 1))
        e("v_lshrrev_b32 v%d, 5, v0\nv_xor_b32 v%d, v%d, v%d\nv_lshlrev_b32 v%d, 3, v%d" % (a + 1, a, a, a + 1, a, a))
        e("v_mul_f32_e64 v%d, -v%d, v%d" % (T + 3, T, T + 2))
        e("v_and_b32 v%d, 31, v0\nv_lshl_add_u32 v%d, v%d, 7, v%d" % (a + 2, a, a + 2, a))
        e("s_add_u32 %s, %s, %d" % (sT0, sREG, 3 * 4096))
        P = T + 16
        for k in range(16):
            e.V("v_pk_fma_f32 %s, %s, %s, %s op_sel:[0,0,1] op_sel_hi:[1,0,1]" % (R("v", Z2ACC + 2 * k, 2), R("v", Z2ACC + 2 * k, 2), R("v", T + 2, 2), R("v", T + 2, 2)))
        e.pack(Z2ACC, 32, P)
        for q in range(8):
            e("v_xad_u32 v%d, v%d, %d, %s" % (a + 3 + (q & 1), a, q * 16, sT0) if q <= 4 else
              "v_xor_b32 v%d, %d, v%d\nv_add_u32 v%d, %s, v%d" % (a + 3 + (q & 1), q * 16, a, a + 3 + (q & 1), sT0, a + 3 + (q & 1)))
            e("ds_write_b64 v%d, %s" % (a + 3 + (q & 1), R("v", P + 2 * q, 2)))
        b = a + 5
        e("v_bfe_u32 v%d, v0, 3, 1\nv_lshlrev_b32 v%d, 3, v%d\nv_lshl_or_b32 v%d, v%d, 2, v%d" % (b, b, b, b, a + 1, b))
        e("v_bfe_u32 v%d, v0, 2, 1\nv_or_b32 v%d, v%d, v%d" % (b + 1, b, b, b + 1))
        e("v_bfe_u32 v%d, v0, 4, 1\nv_and_b32 v%d, 3, v0\nv_lshl_or_b32 v%d, v%d, 2, v%d" % (b + 1, b + 2, b + 1, b + 1, b + 2))
        e("v_xor_b32 v%d, v%d, v%d\nv_lshlrev_b32 v%d, 3, v%d" % (b, b, b + 1, b, b))
        e("v_bfe_u32 v%d, v0, 2, 2\nv_lshl_add_u32 v%d, v%d, 3, v%d\nv_lshl_add_u32 v%d, v%d, 7, v%d" % (b + 1, b + 1, a + 1, b + 1, b, b + 1, b))
        Fr = T + 32
        for blk in range(2):
            for t in range(2):
                r_ = b + 1 + 2 * blk + t
                e("v_xor_b32 v%d, %d, v%d\nv_add_u32 v%d, %s, v%d" % (r_, blk * 64 + t * 16, b, r_, sT0, r_))
        for ks in range(2):
            for blk in range(2):
                for t in range(2):
                    last = e("ds_read_b64_tr_b16 %s, v%d offset:%d" % (R("v", Fr + 8 * ks + 4 * blk + 2 * t, 2), b + 1 + 2 * blk + t, ks * 2048 + t * 512))
        e("s_lshl2_add_u32 %s, %s, %s\ns_lshl_b32 %s, %s, 12\ns_lshl_b32 %s, %s, 18" % (sT0, sI, sW, sT0, sT0, sT1, sJ))
        e("s_add_u32 %s, %s, %s\ns_add_u32 %s, %s, %d" % (sT0, sT0, sT1, sT0, sT0, Z2N))
        for k in range(4):
            self.z2n_st = e("buffer_store_dwordx4 %s, v%d, %s, %s offen offset:%d sc1" % (R("v", Fr + 4 * k, 4), vL16, sWS, sT0, k * 1024))
        e.tok -= 4
        e.ev["norm_done"] = True

    def z2_flag(self):
        e = self
        e("s_lshl4_add_u32 %s, %s, %s\ns_lshl2_add_u32 %s, %s, %s\ns_lshl_b32 %s, %s, 7" % (sT0, sJ, sI, sT0, sT0, sW, sT0, sT0))
        e("s_add_u32 %s, %s, %d" % (sT0, sT0, F_Z2N))
        e.flag(e.z2n_st, sT0)

    @staticmethod
    def q_order():
        o = [(cs, b) for cs in range(6) for b in range(4)]
        o += [(cs, b) for b in range(4) for cs in (6, 7)]
        return o

    def a_tables(self):
        e = self
        e.V("s_lshl_b32 %s, %s, 19\ns_lshl_b32 %s, %s, 10\ns_add_u32 %s, %s, %s" % (sT0, sI, sT1, sW, sT0, sT0, sT1))
        for b in range(4):
            e.V("s_add_u32 %s, %s, %d\ns_and_b32 %s, %s, 3\ns_lshl_b32 %s, %s, 17\ns_add_u32 %s, %s, %s"
                % (sT1, sW, b + 1, sT1, sT1, sT1, sT1, sROW[b], sT1, sT0))
        e.V("s_lshl_b32 %s, %s, 18\ns_lshl_b32 %s, %s, 16\ns_add_u32 %s, %s, %s\ns_add_u32 %s, %s, %d"
            % (sT0, sJ, sT1, sW, sT0, sT0, sT1, sT0, sT0, Z2N))
        for cs in range(8):
            if self.opt.get("rot", 1):
                e.V("s_add_u32 %s, %s, %d\ns_and_b32 %s, %s, 7" % (sT1, sJL, cs, sT1, sT1))
            else:
                e.V("s_mov_b32 %s, %d" % (sT1, cs))
            e.V("s_lshl_b32 %s, %s, 7\ns_lshl_b32 %s, %s, 13\ns_add_u32 %s, %s, %s" % (sCH[cs], sT1, sT1, sT1, sBCH[cs], sT1, sT0))

    @staticmethod
    def a_lslot(q):
        return q % 4 if q < 14 else [4, 5, 6, 7, 8, 9, 2, 3, 0, 1][(q - 14) % 10]

    def a_prev(self, q):
        prev = [p for p in range(q) if self.a_lslot(p) == self.a_lslot(q)]
        return prev[-1] if prev else None

    def a_jobs(self, q0, q1, r0, r1, queue):
        e = self
        order = self.q_order()
        for q in range(q0, q1):
            cs, b = order[q]
            ids = e.ev.setdefault(("adma", q), [])
            pv = self.a_prev(q)

            def pre(q=q, pv=pv):
                if pv is None:
                    return e.ev.get("xfree") and (q != 3 or e.ev.get("norm_done"))
                rd = e.ev.get(("ard", pv))
                return rd is not None and (rd[0] <= e.lg_done or e.cyc - rd[1] >= 160)

            def mk(half, q=q, cs=cs, b=b, ids=ids, pv=pv):
                def emit():
                    if pv is not None:
                        e.wait(lg=e.ev[("ard", pv)][0])
                    e("s_add_u32 m0, %s, %d" % (sREG, self.a_lslot(q) * 4096))
                    e("s_add_u32 %s, %s, %s" % (sSO, sROW[b], sCH[cs]))
                    for r in (2 * half, 2 * half + 1):
                        ids.append(e("buffer_load_dwordx4 v%d, %s, %s offen offset:%d lds" % (vAD[r], sWSP, sSO, r * 1024)))
                    e.ev[("adma_t", q)] = e.cyc
                return emit
            for half in range(2):
                j = Job(pre, mk(half), 2)
                j.need = 8 * q - 10
                queue.append(j)
        for q in range(r0, r1):
            def pre(q=q):
                ids = e.ev.get(("adma", q), [])
                if len(ids) < 4:
                    return False
                if q >= 10 and not e.ev.get(("aused", q - 10)):
                    return False
                if 6 <= q < 10 and not e.ev.get("norm_done"):
                    return False
                return max(ids) <= e.vm_done or e.cyc - e.ev[("adma_t", q)] >= e.lat

            def mk(half, q=q):
                def emit():
                    e.wait(vm=max(e.ev[("adma", q)]))
                    for ks in (2 * half, 2 * half + 1):
                        i = e("ds_read_b128 %s, v%d offset:%d" % (rr(ASLOT[q % 10], 4, 4 * ks), vXR[ks], self.a_lslot(q) * 4096))
                    if half:
                        e.ev[("ard", q)] = (i, e.cyc)
                return emit
            e.qd.append(Job(pre, mk(0)))
            e.qd.append(Job(pre, mk(1)))

    def p1_finish(self, last):
        e = self
        e.stamp(5)
        e.p2_entry_loads()
        e.drain(lambda: not e.q1 and not e.q2 and not e.qd)
        e.wait_all(vm=False)
        names = {("adma", q): max(e.ev[("adma", q)]) for q in range(NQ_R, NQ_D)}
        names["last"] = last
        return e.join_state(names)

    def pass_a(self, queue_b, setup):
        e = self
        e.stream_init(sAO, sAB, sAE, "s_add_u32 %s, %s, 13\ns_lshl_b32 %s, %s, 7" % (sAB, sJ, sAB, sAB), 3456)
        self.occ = {}
        slotf = lambda s, k: (s % 4, 2)
        e.w_jobs("A", [0], slotf, sWIN, vWDI, (sAO, sAB, sAE), 3456, self.occ, True)
        e.bg_vm(force=True, maxn=18)
        e.late_setup()
        e.stamp(0)
        e.bg_vm(force=True, maxn=6)
        queue_b()
        e.a_tables()
        setup()
        e.p1_pass("A", [(e.rd_static(slotf, 0, 0), Z2ACC, 2), (e.rd_static(slotf, 0, 1), Z2ACC + 16, 2)], True, False)
        e.stamp(1)

    def second_pass(self, blocks):
        e = self
        e.tok, e.tok_t = 0.0, e.cyc
        e.wait_all(vm=False)
        e.ev["xfree"] = True
        e.a_jobs(0, NQ_D, 0, NQ_R, e.q2)
        e.z2_stats()
        e.stamp(2)
        per = 4 * len(blocks)
        o = e.opt
        n = 10 * per
        f_poll = min(o.get("f_poll", 50), n - 50) & ~1
        f_norm = min(o.get("f_norm", 70), n - 30) & ~1
        f_flag = min(o.get("f_flag", 120), n - 2) & ~1

        def norm():
            e.z2_norm()
            e.stamp(3)
        e.p1_pass("B", blocks, False, True, {f_poll: e.z2_poll, f_norm: norm, f_flag: e.z2_flag}, prev_tag="A")
        e.stamp(4)

    def role_a(self):
        e = self

        def queue_b():
            e("s_lshl2_add_u32 %s, %s, %s" % (sG, sHALF, sJL))
            e.stream_init(sBO, sBB, sBE, "s_mul_i32 %s, %s, 5\ns_lshr_b32 %s, %s, 2\ns_lshl_b32 %s, %s, 7\ns_add_u32 %s, %s, 1280"
                          % (sBB, sG, sBB, sBB, sBB, sBB, sBB, sBB), 3840)
            e.w_jobs("B", [0, 128, 1280, 1408], lambda s, k: (k, s % 3), sWQ, vWDQ, (sBO, sBB, sBE), 3840, self.occ, False)

        def setup():
            e.V("s_lshl_b32 %s, %s, 4\ns_and_b32 %s, %s, 63" % (sT2, sG, sT2, sT2))
            for b in range(5):
                if b == 2:
                    e.dyn_addr(b, "v_lshlrev_b32 v%d, 6, v3\nv_sub_u32 v%d, 64, v%d\nv_add_u32 v%d, %s, v%d" % (vT[0], vT[0], vT[0], vT[0], sT2, vT[0]),
                               "v_lshl_add_u32 v%d, v3, 1, v%d" % (vT[2], vT[2]))
                else:
                    u0 = 2 * b - (5 if b > 2 else 0)
                    e.dyn_addr(b, "v_lshl_add_u32 v%d, v3, 4, %s\nv_add_u32 v%d, %d, v%d" % (vT[0], sT2, vT[0], 16 * u0, vT[0]),
                               "v_add_u32 v%d, 2, v%d" % (vT[2], vT[2]) if b > 2 else None)
        e.pass_a(queue_b, setup)
        e.second_pass([(e.rd_dyn(b), ACCB + 16 * b, 1) for b in range(5)])
        e("s_mov_b32 s100, %s\ns_mov_b32 s101, %s" % (f32(LOG2E), f32(1e-6)))
        tmp = WRING
        P = Z2ACC
        e.wait_all(vm=False)
        e("s_barrier")
        e.V("v_add_u32 v%d, %s, v%d" % (vT[0], sREG, vL16))
        ones = WRING + 8
        for k in range(4):
            e.V("v_mov_b32 v%d, 0x3f803f80" % (ones + k))
        for st in range(2):
            e("ds_write_b128 v%d, %s offset:%d" % (vT[0], R("v", ones, 4), WOFF + (10 + st) * 1024))
        for n_, b in enumerate((3, 4, 0, 1, 2)):
            if b < 2:
                e.phi(ACCB + 16 * b, 16, tmp, 100)
            elif b == 2:
                saved = (e.q1, e.q2, e.qd)
                e.q1, e.q2, e.qd = [], [], []
                e("s_mov_b32 exec_lo, 0xffff\ns_mov_b32 exec_hi, 0xffff")
                e.phi(ACCB + 32, 16, tmp, 100)
                e("s_mov_b64 exec, -1")
                e.q1, e.q2, e.qd = saved
            d = P + 8 * (n_ % 4)
            e.pack(ACCB + 16 * b, 16, d)
            for st in range(2):
                e("ds_write_b128 v%d, %s offset:%d" % (vT[0], R("v", d + 4 * st, 4), WOFF + (2 * b + st) * 1024))
        sA = [sT0, sT1]
        sB = [sT2, sT3]
        e("s_add_u32 %s, %s, 2\ns_add_u32 %s, %s, 3\ns_min_u32 %s, %s, 5" % (sA[0], sW, sA[1], sW, sA[1], sA[1]))
        e("s_cmp_eq_u32 %s, 3\ns_cselect_b32 %s, 0, %s\ns_cselect_b32 %s, 1, %s" % (sW, sB[0], sW, sB[1], sW))
        AD = vT[1:5]
        for k, s_ in enumerate((sA[0], sB[0], sA[1], sB[1])):
            e("v_mov_b32 v%d, %s\nv_lshl_add_u32 v%d, v%d, 11, v%d" % (AD[k], s_, AD[k], AD[k], vL16))
        e.wait_all(vm=False)
        e("s_barrier")
        RES = [ACCB, ACCB + 16]

        def reads(step):
            w_, st = divmod(step, 2)
            if step == 4:
                for k in range(4):
                    e("v_add_u32 v%d, %d, v%d" % (AD[k], 2 * REGION, AD[k]))
            for k in range(4):
                e("ds_read_b128 %s, v%d offset:%d" % (R("a", step * 16 + 4 * k, 4), AD[k], WOFF + (w_ & 1) * REGION + st * 1024))
        reads(0); reads(1); reads(2)
        addr = []
        KO = [ACCB + 32, ACCB + 44]
        for jb in range(2):
            o_ = KO[jb]
            t = ["v_and_b32 v%d, 31, v0" % o_,
                 "v_mov_b32 v%d, %s" % (o_ + 1, sB[jb]),
                 "v_lshl_add_u32 v%d, v%d, 5, v%d" % (o_, o_ + 1, o_),
                 "v_mul_u32_u24 v%d, 0xccd, v%d" % (o_ + 1, o_),
                 "v_lshrrev_b32 v%d, 16, v%d" % (o_ + 1, o_ + 1),
                 "v_mul_u32_u24 v%d, 20, v%d" % (o_ + 2, o_ + 1),
                 "v_sub_u32 v%d, v%d, v%d" % (o_ + 3, o_, o_ + 2),
                 "v_mul_u32_u24 v%d, 80, v%d" % (o_ + 3, o_ + 3),
                 "v_lshl_add_u32 v%d, v%d, 15, v%d" % (o_ + 3, o_ + 1, o_ + 3),
                 "v_lshrrev_b32 v%d, 5, v0" % (o_ + 4),
                 "v_mov_b32 v%d, %s" % (o_ + 5, sA[jb]),
                 "v_lshlrev_b32 v%d, 5, v%d" % (o_ + 5, o_ + 5),
                 "v_lshl_add_u32 v%d, v%d, 2, v%d" % (o_ + 5, o_ + 4, o_ + 5),
                 "v_subrev_u32 v%d, 0x50, v%d" % (o_ + 5, o_ + 5),
                 "v_sub_u32 v%d, v%d, v%d" % (o_ + 5, o_ + 5, o_ + 2),
                 "v_cmp_gt_u32 vcc, 0x50, v%d" % o_,
                 "v_mov_b32 v%d, 0x%x" % (o_ + 11, OOB),
                 "v_cndmask_b32 v%d, v%d, v%d, vcc" % (o_ + 3, o_ + 11, o_ + 3)]
            for jq in range(4):
                t += ["v_add_u32 v%d, %d, v%d" % (o_ + 2, 8 * jq, o_ + 5),
                      "v_cmp_gt_u32 vcc, 20, v%d" % (o_ + 2),
                      "v_lshl_add_u32 v%d, v%d, 2, v%d" % (o_ + 2, o_ + 2, o_ + 3),
                      "v_cndmask_b32 v%d, v%d, v%d, vcc" % (o_ + 6 + jq, o_ + 11, o_ + 2)]
            t += ["v_lshl_add_u32 v%d, v%d, 7, v%d" % (o_ + 2, o_ + 4, o_),
                  "s_cmp_eq_u32 %s, 5" % sA[jb],
                  "s_cselect_b32 %s, 0x50, 0" % sSO,
                  "v_cmp_gt_u32 vcc, %s, v%d" % (sSO, o_ + 2),
                  "v_lshlrev_b32 v%d, 2, v%d" % (o_ + 2, o_),
                  "v_cndmask_b32 v%d, v%d, v%d, vcc" % (o_ + 10, o_ + 11, o_ + 2)]
            addr += t
        for step in range(8):
            for jb in range(2):
                base = step * 16 + 8 * jb
                acc = R("v", RES[jb], 16)
                e("v_mfma_f32_32x32x16_bf16 %s, %s, %s, %s" % (acc, R("a", base, 4), R("a", base + 4, 4), "0" if step == 0 else acc))
                if jb == 0 and step + 3 < 8:
                    reads(step + 3)
                else:
                    for _ in range(7):
                        if addr:
                            e(addr.pop(0))
        while addr:
            e(addr.pop(0))
        e("s_lshl_b32 %s, %s, 17\ns_lshl_b32 %s, %s, 11\ns_add_u32 %s, %s, %s\ns_add_u32 %s, %s, %d" % (sT0, sG, sT1, sI, sT0, sT0, sT1, sT0, sT0, KVP))
        e("s_mul_i32 %s, %s, 2560\ns_mul_i32 %s, %s, 320\ns_add_u32 %s, %s, %s\ns_add_u32 %s, %s, %d" % (sT1, sI, sT2, sG, sT1, sT1, sT2, sT1, sT1, ZP))
        for jb in range(2):
            for jq in range(4):
                e("buffer_store_dwordx4 %s, v%d, %s, %s offen sc1" % (R("v", RES[jb] + 4 * jq, 4), KO[jb] + 6 + jq, sWS, sT0))
            last = e("buffer_store_dword v%d, v%d, %s, %s offen sc1" % (RES[jb], KO[jb] + 10, sWS, sT1))
        e("s_lshl4_add_u32 %s, %s, %s\ns_lshl2_add_u32 %s, %s, %s\ns_lshl2_add_u32 %s, %s, %s" % (sFL, sHALF, sI, sFL, sFL, sJL, sFL, sFL, sW))
        e("s_lshl_b32 %s, %s, 7\ns_add_u32 %s, %s, %d" % (sFL, sFL, sFL, sFL, F_KV))
        return last

    def z1_store(self, nblk, first_text):
        e = self
        e("s_lshl2_add_u32 %s, %s, %s\ns_mul_i32 %s, %s, 28" % (sT0, sI, sW, sT0, sT0))
        e(first_text)
        e("s_add_u32 %s, %s, %s\ns_lshl_b32 %s, %s, 11\ns_add_u32 %s, %s, %d" % (sT0, sT0, sT1, sT0, sT0, sT0, sT0, Z1))
        for b in range(nblk):
            d = Z2ACC + 8 * (b % 4)
            e.pack(ACCB + 16 * b, 16, d)
            if b == 4:
                e("s_add_u32 %s, %s, 8192" % (sT0, sT0))
            for p in range(2):
                o_ = (b % 4) * 2048 + p * 1024
                last = e("buffer_store_dwordx4 %s, v%d, %s, %s offen offset:%d sc1" % (R("v", d + 4 * p, 4), vL16B if o_ >= 4096 else vL16, sWS, sT0, o_ % 4096))
            e.tok -= 2
        return last

    def z1_flag_addr(self):
        self("s_lshl2_add_u32 %s, %s, %s\ns_lshl3_add_u32 %s, %s, %s" % (sFL, sI, sW, sFL, sFL, sG))
        self("s_lshl_b32 %s, %s, 7\ns_add_u32 %s, %s, %d" % (sFL, sFL, sFL, sFL, F_Z1))

    def role_b(self):
        e = self

        def queue_b():
            e("s_mul_i32 %s, %s, 3\ns_add_u32 %s, %s, %s\ns_sub_u32 %s, %s, 4" % (sG, sHALF, sG, sG, sJL, sG, sG))
            e.stream_init(sBO, sBB, sBE, "s_mul_i32 %s, %s, 5\ns_lshr_b32 %s, %s, 1\ns_lshl_b32 %s, %s, 7" % (sBB, sG, sBB, sBB, sBB, sBB), 3456)
            e.w_jobs("B", [0, 128, 256], lambda s, k: (k, s % 3), sWIN, vWDI, (sBO, sBB, sBE), 3456, self.occ, False)

        def setup():
            e.V("s_and_b32 %s, %s, 1\ns_lshl_b32 %s, %s, 5" % (sT2, sG, sT2, sT2))
            for b in range(5):
                e.dyn_addr(b, "v_lshl_add_u32 v%d, v3, 4, %s\nv_add_u32 v%d, %d, v%d" % (vT[0], sT2, vT[0], 32 * b, vT[0]))
        e.pass_a(queue_b, setup)
        e.second_pass([(e.rd_dyn(b), ACCB + 16 * b, 2) for b in range(5)])
        last = e.z1_store(5, "s_mul_i32 %s, %s, 5\ns_add_u32 %s, %s, 1" % (sT1, sG, sT1, sT1))
        e.z1_flag_addr()
        return last

    def seg320(self, regs_):
        e = self
        e.V("s_mul_i32 %s, %s, 320" % (sT2, sW))
        for k, r_ in enumerate(regs_):
            e.V("v_add_u32 v%d, %d, v0\nv_mul_u32_u24 v%d, 0xccd, v%d\nv_lshrrev_b32 v%d, 16, v%d" % (vT[0], 64 * k, vT[1], vT[0], vT[1], vT[1]))
            e.V("v_mul_u32_u24 v%d, %d, v%d\nv_lshl_add_u32 v%d, v%d, 4, v%d\nv_add_u32 v%d, %s, v%d"
                % (vT[1], 1280 - 320, vT[1], r_, vT[0], vT[1], r_, sT2, r_))

    @staticmethod
    def unit_col(U):
        c, t = divmod(U, 5)
        return (80 * c + (32 * (t >> 1) + 4 * (t & 1) if t < 4 else 64), 8 if t < 4 else 4)

    def role_l(self):
        e = self
        slotf = lambda s, k: (k, s % 3)
        GWL = WOFF + 3 * REGION

        def queue_b():
            e("s_mov_b32 %s, 5" % sG)
            e.stream_init(sBO, sBB, sBE, "s_mov_b32 %s, %d" % (sBB, 12 * 128), 3456)
            e("s_lshl_b32 %s, %s, 7" % (sT0, sROT))
            ids = e.ev.setdefault(("dma", "B", 0), [])
            for t in range(2):
                e("v_add_u32 v%d, %s, v%d" % (vT[0], sT0, vL16))
                if t:
                    e("v_add_u32 v%d, 0x400, v%d" % (vT[0], vT[0]))
                e("v_subrev_u32 v%d, 0x500, v%d\nv_min_u32 v%d, v%d, v%d" % (vT[1], vT[0], vT[0], vT[0], vT[1]))
                e("s_mov_b32 m0, %d" % (GWL + t * 1024))
                ids.append(e("buffer_load_dwordx4 v%d, %s, 0 offen lds" % (vT[0], sGW)))
            e.w_jobs("B", [0, 128], slotf, sWIN, vWDI, (sBO, sBB, sBE), 3456, self.occ, False)
            e.ev[("ndma", "B", 0)] += 2

        def setup():
            e.V("v_lshrrev_b32 v%d, 5, v0\nv_lshlrev_b32 v%d, 4, v%d\nv_add_u32 v%d, %d, v%d" % (vWB[0], vWB[0], vWB[0], vWB[0], GWL, vWB[0]))

        def rd_gate(s, ks, dst):
            return e("ds_read_b128 %s, v%d offset:%d" % (R("v", dst, 4), vWB[0], s * 128 + ks * 32))
        e.pass_a(queue_b, setup)
        e.second_pass([(e.rd_static(slotf, 0, 1), ACCB, 2), (e.rd_static(slotf, 1, 0), ACCB + 16, 2), (rd_gate, ACCB + 32, 2)])
        e.wait_all(vm=False)
        e("s_barrier")
        SG = [ACCB + 48 + k for k in range(5)]
        e.seg320(SG)
        dm = []
        for kb in range(2):
            e("s_add_u32 %s, %s, %d\ns_mul_i32 %s, %s, %d" % (sT0, sI, 16 * kb, sT0, sT0, 32 * 1280))
            for pc in range(10):
                if pc == 5:
                    e("s_add_u32 %s, %s, %d" % (sT0, sT0, 16 * 1280))
                e("s_add_u32 m0, %s, %d" % (sREG, WOFF + kb * 10240 + pc * 1024))
                i = e("buffer_load_dwordx4 v%d, %s, %s offen lds" % (SG[pc % 5], sWOUT, sT0))
            dm.append(i)
            e.tok -= 10
        g = ACCB + 32
        e.V("v_mul_f32 v%d, %s, v%d\nv_exp_f32 v%d, v%d\nv_add_f32 v%d, 1.0, v%d\nv_rcp_f32 v%d, v%d" % (g, f32(-LOG2E), g, g, g, g, g, g, g))
        e("s_lshl2_add_u32 %s, %s, %s\ns_lshl_b32 %s, %s, 7\ns_add_u32 %s, %s, %d" % (sT0, sI, sW, sT0, sT0, sT0, sT0, GATE))
        e("v_and_b32 v%d, 0x7c, v%d" % (vT[0], vL4))
        e("buffer_store_dword v%d, v%d, %s, %s offen sc1" % (g, vT[0], sWS, sT0))
        last = e.z1_store(2, "s_mov_b32 %s, 26" % sT1)
        e.z1_flag_addr()
        a = vT[2]
        e.V("v_lshrrev_b32 v%d, 5, v0\nv_bfe_u32 v%d, v0, 2, 3\nv_lshl_add_u32 v%d, v%d, 4, v%d" % (a, a + 1, a, a, a + 1))
        e.V("v_mul_u32_u24 v%d, 320, v%d\nv_add_u32 v%d, %s, v%d\nv_and_b32 v%d, 3, v0" % (a, a, a, sREG, a, a + 2))
        e.V("v_lshl_add_u32 v%d, v%d, 3, v%d\nv_lshl_add_u32 v%d, v%d, 4, v%d" % (a + 1, a + 2, a, a, a + 2, a))
        e("s_cmp_lt_u32 %s, 11\ns_cselect_b32 %s, 0, 0x%x" % (sI, sT1, OOB))
        e.V("v_add_u32 v%d, %s, v%d" % (a + 3, sT1, vL16))
        e.flag(last, sFL)
        for kb in range(2):
            e.wait(vm=dm[kb])
            for U in range(10):
                col, step = self.unit_col(U)
                for sub in range(2):
                    e("ds_read_b64_tr_b16 %s, v%d offset:%d" % (R("a", 40 * kb + 4 * U + 2 * sub, 2), a if step == 8 else a + 1,
                                                                WOFF + kb * 10240 + sub * 8 * 320 + col * 2))
            for U in range(10):
                c, t = divmod(U, 5)
                if t in (0, 4):
                    e("s_lshl1_add_u32 %s, %s, %d\ns_mul_i32 %s, %s, 48\ns_add_u32 %s, %s, %s" % (sT0, sW, c, sT0, sT0, sT0, sT0, sI))
                    e("s_mul_i32 %s, %s, 5120\ns_add_u32 %s, %s, %d" % (sT0, sT0, sT0, sT0, BP + (20 + 16 * kb) * 5120 + t * 1024))
                last = e("buffer_store_dwordx4 %s, v%d, %s, %s offen offset:%d sc1" % (R("a", 40 * kb + 4 * U, 4), a + 3 if kb else vL16, sWS, sT0, (t % 4) * 1024))
                e.tick()
            e.tok -= 10
        e("s_lshl_b32 %s, %s, 5\ns_add_u32 %s, %s, %s\ns_lshl_b32 %s, %s, 7\ns_add_u32 %s, %s, %d" % (sFL, sW, sFL, sFL, sI, sFL, sFL, sFL, sFL, F_WO))
        return last

    def ap_voff(self, dst):
        self.V("v_bfe_u32 v%d, v0, 4, 1\nv_mul_u32_u24 v%d, 0xc000, v%d\nv_and_b32 v%d, 15, v0" % (dst, dst, dst, vT[0]))
        self.V("v_lshl_add_u32 v%d, v%d, 4, v%d\nv_lshrrev_b32 v%d, 5, v0\nv_lshl_add_u32 v%d, v%d, 8, v%d" % (dst, vT[0], dst, vT[0], dst, vT[0], dst))

    def role_h(self):
        e = self
        e.wring = 208
        Q = 48
        e("v_lshlrev_b32 v%d, 4, v0" % vL16)
        for k in range(4):
            e("v_mov_b32 v%d, -1" % (240 + k))
        e("s_lshl1_add_u32 %s, %s, %s\ns_lshl2_add_u32 %s, %s, %s\ns_mul_i32 %s, %s, 5120" % (sT0, sI, sHALF, sT0, sT0, sW, sT0, sT0))
        for k in range(5):
            if k == 4:
                e("s_add_u32 %s, %s, 4096" % (sT0, sT0))
            e("buffer_store_dwordx4 v[240:243], v%d, %s, %s offen offset:%d sc1" % (vL16, sWS, sT0, (k % 4) * 1024))
        e.stream_init(sAO, sAB, sAE, "s_mul_i32 %s, %s, 640" % (sAB, sHALF), 3840)
        occ = {}
        PS = [(3, 0), (3, 1), (3, 2), (0, 2), (1, 2), (2, 2), (0, 1), (1, 1)]
        sl1 = lambda s, k: PS[(s % 4) * 2 + k]
        sl2 = lambda s, k: (k, s % 3)
        e.w_jobs("A", [0, 128], sl1, sWQ, vWDQ, (sAO, sAB, sAE), 3840, occ, True)
        e.bg_vm(force=True, maxn=16)
        e.late_setup()
        e.stamp(0)
        e.bg_vm(force=True, maxn=16)
        e.stream_init(sBO, sBB, sBE, "s_mov_b32 %s, %s" % (sBB, sAB), 3840)
        e.w_jobs("B", [256, 384, 512], sl2, sWQ, vWDQ, (sBO, sBB, sBE), 3840, occ, False)

        def arrive():
            e("v_mov_b32 v244, 1\ns_lshl_b32 %s, %s, 12\ns_mov_b64 exec, 1" % (sT0, sW))
            e("buffer_atomic_add v244, off, %s, %s sc1" % (sDBG, sT0))
            e("s_mov_b64 exec, -1")
        e.p1_pass("A", [(e.rd_static(sl1, b >> 1, b & 1), Q + 16 * b, 2) for b in range(4)], True, False, {0: arrive})
        e.stamp(1)
        e.p1_pass("B", [(e.rd_static(sl2, b >> 1, b & 1), Q + 64 + 16 * b, 2) for b in range(6)], False, False, prev_tag="A")
        e.stamp(4)
        ld0 = "buffer_load_dword v%d, off, %s, 0 sc1" % (vT[11], sDBG)
        e(ld0)
        e.wait_all(vm=False)
        e("s_barrier")
        SG = [16, 17, 18, 19, 20]
        e.seg320(SG)
        e("s_lshl4_add_u32 %s, %s, %s\ns_mul_i32 %s, %s, %d" % (sG, sHALF, sI, sT0, sG, 20 * 1280))
        for pc in range(7):
            if pc == 5:
                e("s_add_u32 %s, %s, %d" % (sT0, sT0, 16 * 1280))
            e("s_add_u32 m0, %s, %d" % (sREG, WOFF + pc * 1024))
            if pc == 6:
                e("s_mov_b64 exec, 0xffff")
            wo_id = e("buffer_load_dwordx4 v%d, %s, %s offen lds" % (SG[pc % 5], sWO, sT0))
        e("s_mov_b64 exec, -1")
        e("s_mov_b32 s100, %s\ns_mov_b32 s101, %s" % (f32(LOG2E), f32(1e-6)))
        e.phi(Q, 128, 240, 100)
        e.check(ld0, "v_cmp_gt_u32 vcc, 32, v%d" % vT[11])
        e("s_lshl2_add_u32 %s, %s, %s\ns_lshl_b32 %s, %s, 13\ns_add_u32 %s, %s, %d" % (sT0, sHALF, sW, sT0, sT0, sT0, sT0, F_KV))
        e("s_lshl2_add_u32 %s, %s, %s\ns_lshl_b32 %s, %s, 7\ns_lshl_b32 %s, %s, 3\ns_add_u32 %s, %s, %d" % (sT2, sI, sW, sT2, sT2, sT1, sT2, sT1, sT1, F_Z1 + 5 * 128))
        ld1 = "buffer_load_dword v208, v%d, %s, %s offen sc1\nbuffer_load_dword v209, off, %s, %s sc1" % (vL128, sWS, sT0, sWS, sT1)
        e(ld1)
        e.phi(Q + 128, 32, 240, 100)
        e.stamp(5)
        e.check(ld1, "v_max_u32 v213, v208, v209\nv_cmp_eq_u32 vcc, -1, v213")
        e.stamp(6)
        e("v_cmp_gt_u32 vcc, 36, v0\nv_mov_b32 v%d, 0x%x\nv_cndmask_b32 v%d, v%d, v%d, vcc" % (vT[1], OOB, vT[0], vT[1], vL16))
        e("s_lshl_b32 %s, %s, 15\ns_lshl_b32 %s, %s, 13\ns_add_u32 %s, %s, %s\ns_add_u32 %s, %s, %d" % (sT0, sG, sT1, sW, sT0, sT0, sT1, sT0, sT0, KVP))
        for r in range(4):
            if r == 2:
                e("s_add_u32 %s, %s, 4096" % (sT0, sT0))
            e("buffer_load_dwordx4 %s, v%d, %s, %s offen offset:%d sc1" % (R("v", 208 + 8 * r, 4), vL16, sWS, sT0, (r & 1) * 2048))
            e("buffer_load_dwordx4 %s, v%d, %s, %s offen offset:%d sc1" % (R("v", 212 + 8 * r, 4), vT[0], sWS, sT0, (r & 1) * 2048 + 1024))
        e("s_mul_i32 %s, %s, %d\ns_mul_i32 %s, %s, 1280\ns_add_u32 %s, %s, %s\ns_add_u32 %s, %s, %d" % (sT0, sW, 4 * 2560, sT1, sHALF, sT0, sT0, sT1, sT0, sT0, ZP))
        for r in range(4):
            e("buffer_load_dwordx4 %s, v%d, %s, %s offen sc1" % (R("v", 240 + 4 * r, 4), vL16, sWS, sT0))
            e("buffer_load_dword v%d, v%d, %s, %s offen offset:1024 sc1" % (32 + r, vL4, sWS, sT0))
            if r < 3:
                e("s_add_u32 %s, %s, 2560" % (sT0, sT0))
        vG = vT[10]
        e("s_add_u32 %s, %s, %d\nv_and_b32 v%d, 0x7c, v%d" % (sT2, sT2, GATE, vT[2], vL4))
        e("buffer_load_dword v%d, v%d, %s, %s offen sc1" % (vG, vT[2], sWS, sT2))
        a16, a4 = vT[3], vT[4]
        e("v_add_u32 v%d, %s, v%d\nv_add_u32 v%d, %s, v%d" % (a16, sREG, vL16, a4, sREG, vL4))
        for r in range(1, 4):
            for k in range(0, 8, 2):
                e("v_pk_add_f32 %s, %s, %s" % (R("v", 208 + k, 2), R("v", 208 + k, 2), R("v", 208 + 8 * r + k, 2)))
        e("ds_write_b128 v%d, v[208:211]\nds_write_b128 v%d, v[212:215] offset:1024" % (a16, a16))
        for r in range(1, 4):
            for k in range(0, 4, 2):
                e("v_pk_add_f32 %s, %s, %s" % (R("v", 240 + k, 2), R("v", 240 + k, 2), R("v", 240 + 4 * r + k, 2)))
            e("v_add_f32 v32, v32, v%d" % (32 + r))
        e("ds_write_b128 v%d, v[240:243] offset:2048\nds_write_b32 v%d, v32 offset:3072" % (a16, a4))
        ka = [21, 22]
        e("v_and_b32 v%d, 31, v0\nv_min_u32 v%d, 19, v%d\nv_mul_u32_u24 v%d, 80, v%d" % (vT[0], vT[0], vT[0], 23, vT[0]))
        e("v_lshrrev_b32 v24, 5, v0\nv_lshl_add_u32 v%d, v24, 5, v23\nv_add_u32 v%d, %d, v%d" % (ka[0], ka[1], 2 * REGION, ka[0]))
        e("v_add_u32 v25, %d, v23\nv_add_u32 v26, %d, v%d\nv_add_u32 v27, %d, v%d" % (2 * REGION, 2 * REGION, vL16, 2 * REGION, vL4))
        e.wait_all(vm=False)
        e("s_barrier")
        for r in range(4):
            e("ds_read_b128 %s, v%d offset:%d" % (R("v", 240 + 4 * r, 4), 26 if r >= 2 else vL16, (r & 1) * REGION + 2048))
            e("ds_read_b32 v%d, v%d offset:%d" % (32 + r, 27 if r >= 2 else vL4, (r & 1) * REGION + 3072))
        for r in range(4):
            for k in range(2):
                e("ds_read_b128 %s, v%d offset:%d" % (R("v", 208 + 8 * r + 4 * k, 4), ka[r >> 1], (r & 1) * REGION + 16 * k))
        for r in range(1, 4):
            for k in range(0, 4, 2):
                e("v_pk_add_f32 %s, %s, %s" % (R("v", 240 + k, 2), R("v", 240 + k, 2), R("v", 240 + 4 * r + k, 2)))
            e("v_add_f32 v32, v32, v%d" % (32 + r))
        e("ds_write_b128 v%d, v[240:243] offset:4096\nds_write_b32 v%d, v32 offset:5120" % (a16, a4))
        for r in range(4):
            e("ds_read_b128 %s, v%d offset:%d" % (R("v", 240 + 4 * r, 4), 25 if r >= 2 else 23, (r & 1) * REGION + 64))
        for r in range(1, 4):
            for k in range(0, 8, 2):
                e("v_pk_add_f32 %s, %s, %s" % (R("v", 208 + k, 2), R("v", 208 + k, 2), R("v", 208 + 8 * r + k, 2)))
        for r in range(1, 4):
            for k in range(0, 4, 2):
                e("v_pk_add_f32 %s, %s, %s" % (R("v", 240 + k, 2), R("v", 240 + k, 2), R("v", 240 + 4 * r + k, 2)))
        KA = 244
        e.pack(208, 8, KA)
        e.pack(240, 4, KA + 4)
        e("v_cmp_gt_u32 vcc, 32, v0\nv_mov_b32 v%d, 0\nv_mov_b32 v%d, 0" % (KA + 6, KA + 7))
        e("v_cndmask_b32 v%d, 0, v%d, vcc\nv_cndmask_b32 v%d, 0, v%d, vcc" % (KA + 4, KA + 4, KA + 5, KA + 5))
        e("v_bfe_u32 v16, v0, 2, 2\nv_mul_u32_u24 v16, 320, v16\nv_add_u32 v16, %s, v16\nv_mul_u32_u24 v17, %d, v24" % (sREG, 8 * 320))
        e("v_and_b32 v18, 3, v0\nv_bfe_u32 v19, v0, 4, 1\nv_cmp_eq_u32 %s, 1, v19" % sMASK)
        e.wait(vm=wo_id)
        for bb in range(5):
            (c0, s0), (c1, s1) = self.unit_col(2 * bb), self.unit_col(2 * bb + 1)
            e("v_mul_u32_u24 v20, %d, v18\nv_add_u32 v20, %d, v20\nv_mul_u32_u24 v21, %d, v18\nv_add_u32 v21, %d, v21" % (2 * s0, 2 * c0, 2 * s1, 2 * c1))
            e("v_cndmask_b32_e64 v20, v20, v21, %s\nv_add_u32 v20, v20, v16\nv_add_u32 v21, v20, v17" % sMASK)
            for t in range(2):
                e("ds_read_b64_tr_b16 %s, v21 offset:%d" % (R("a", 8 * bb + 2 * t, 2), WOFF + t * 4 * 320))
            for t in range(2):
                e("ds_read_b64_tr_b16 %s, v20 offset:%d" % (R("a", 8 * bb + 4 + 2 * t, 2), WOFF + 16 * 320))
        KP = [16, 17, 18]
        e("s_mul_i32 %s, %s, 5" % (sT0, sG))
        e("v_and_b32 v20, 15, v0\nv_lshlrev_b32 v20, 4, v20\nv_mov_b32 v25, 0x%x" % OOB)
        for jq in range(3):
            e("v_add_u32 v21, %s, v24\nv_add_u32 v21, %d, v21" % (sT0, 2 * jq))
            e("v_lshrrev_b32 v22, 3, v21\nv_mul_u32_u24 v22, 5120, v22\nv_add_u32 v22, v22, v20")
            e("v_bfe_u32 v23, v21, 2, 1\nv_lshl_add_u32 v22, v23, 9, v22\nv_and_b32 v23, 1, v21\nv_lshl_add_u32 v22, v23, 8, v22")
            e("v_bfe_u32 v23, v21, 1, 1\nv_lshl_add_u32 v%d, v23, 3, v22" % KP[jq])
        e("v_cndmask_b32 v%d, v25, v%d, vcc" % (KP[2], KP[2]))
        e("v_lshlrev_b32 v20, 10, v19\nv_mul_u32_u24 v21, %d, v19" % (48 * 5120 - 4096))
        for jq in range(3):
            e("v_add_u32 v%d, v%d, v21\nv_add_u32 v%d, v%d, v20" % (22 + jq + (1 if jq == 2 else 0), KP[jq], KP[jq], KP[jq]))
        KPX = [22, 23, 25]
        e("s_mul_i32 %s, %s, %d\ns_add_u32 %s, %s, %d" % (sT0, sW, 2 * 48 * 5120, sT0, sT0, BP))

        def mm(bb):
            d = R("v", 208 + 16 * (bb & 1), 16)
            e("v_mfma_f32_32x32x16_bf16 %s, %s, %s, 0" % (d, R("v", KA, 4), R("a", 8 * bb, 4)))
            e("v_mfma_f32_32x32x16_bf16 %s, %s, %s, %s" % (d, R("v", KA + 4, 4), R("a", 8 * bb + 4, 4), d))
        mm(0)
        for bb in range(5):
            if bb < 4:
                mm(bb + 1)
            pk = 32 + 6 * 0
            c, t = divmod(2 * bb, 5)
            e("s_add_u32 %s, %s, %d" % (sT1, sT0, c * 48 * 5120 + t * 1024))
            for jq in range(3):
                src = 208 + 16 * (bb & 1) + 4 * jq
                dst = (252, 254, 32)[jq]
                e.pack(src, 4, dst)
                m_last = e("buffer_store_dwordx2 %s, v%d, %s, %s offen sc1" % (R("v", dst, 2), (KPX if bb == 2 else KP)[jq], sWS, sT1))
        e.stamp(7)
        vz = 16
        e("v_lshl_add_u32 v%d, v24, 4, %s" % (vz, sREG))
        e.ap_voff(17)
        e("s_lshl2_add_u32 %s, %s, %s\ns_mul_i32 %s, %s, %d\ns_mul_i32 %s, %s, 10240" % (sT0, sI, sW, sT0, sT0, 2 * 49152, sT1, sHALF))
        e("s_add_u32 %s, %s, %s\ns_add_u32 %s, %s, %d" % (sT0, sT0, sT1, sT0, sT0, AP))
        ZB = [208, 228]

        def zread(pr):
            for k in range(5):
                e("ds_read_b128 %s, v%d offset:%d" % (R("v", ZB[pr & 1] + 4 * k, 4), vz, 4096 + (5 * pr + k) * 32))
        zread(0)
        A_, B_, M_ = 18, 20, 22
        done = 0
        for pr in range(8):
            if pr < 7:
                zread(pr + 1)
            for k in range(5):
                acc = (A_, A_, M_, B_, B_)[k]
                x = Q + 4 * (5 * pr + k)
                z = ZB[pr & 1] + 4 * k
                if k in (0, 2, 3):
                    e("v_pk_mul_f32 %s, %s, %s" % (R("v", acc, 2), R("v", x, 2), R("v", z, 2)))
                else:
                    e("v_pk_fma_f32 %s, %s, %s, %s" % (R("v", acc, 2), R("v", x, 2), R("v", z, 2), R("v", acc, 2)))
                e("v_pk_fma_f32 %s, %s, %s, %s" % (R("v", acc, 2), R("v", x + 2, 2), R("v", z + 2, 2), R("v", acc, 2)))
            e("v_add_f32 v%d, v%d, v%d\nv_add_f32 v%d, v%d, v%d\nv_add_f32 v%d, v%d, v%d" % (A_, A_, A_ + 1, B_, B_, B_ + 1, M_, M_, M_ + 1))
            e("v_add_f32 v%d, %s, v%d" % (M_, f32(1e-6), M_))
            e("v_permlane32_swap_b32 v%d, v%d" % (A_, B_))
            e("v_add_f32 v%d, v%d, v%d\nv_add_f32 v%d, v%d, v%d" % (A_, A_, B_, M_, M_, A_))
            e("v_rcp_f32 v%d, v%d\nv_mul_f32 v%d, v%d, v%d" % (M_, M_, M_, M_, vG))
            e("v_mov_b32 v%d, v%d\nv_mov_b32 v%d, v%d" % (A_, M_, B_, M_))
            x = Q + 4 * (5 * pr + 2)
            for o_ in (0, 2):
                e("v_pk_mul_f32 %s, %s, %s op_sel_hi:[1,0]" % (R("v", x + o_, 2), R("v", x + o_, 2), R("v", M_, 2)))
            e("v_permlane32_swap_b32 v%d, v%d" % (A_, B_))
            for k in (0, 1, 3, 4):
                x = Q + 4 * (5 * pr + k)
                for o_ in (0, 2):
                    e("v_pk_mul_f32 %s, %s, %s op_sel_hi:[1,0]" % (R("v", x + o_, 2), R("v", x + o_, 2), R("v", A_ if k < 2 else B_, 2)))
            while 2 * (done + 1) <= 5 * (pr + 1):
                b, p = divmod(done, 2)
                d = 248 + 4 * (done & 1)
                e.pack(Q + 8 * done, 8, d)
                if done and done % 8 == 0:
                    e("s_add_u32 %s, %s, 4096" % (sT0, sT0))
                last = e("buffer_store_dwordx4 %s, v17, %s, %s offen offset:%d sc1" % (R("v", d, 4), sWS, sT0, (b % 4) * 1024 + p * 512))
                done += 1
            if pr == 4:
                e("s_lshl_b32 %s, %s, 5\ns_add_u32 %s, %s, %s\ns_lshl_b32 %s, %s, 7\ns_add_u32 %s, %s, %d" % (sT1, sW, sT1, sT1, sG, sT1, sT1, sT1, sT1, F_M))
                e.flag(m_last, sT1)
        e("s_lshr_b32 %s, %s, 1\ns_lshl1_add_u32 %s, %s, %s\ns_lshl_b32 %s, %s, 5" % (sT0, sW, sT0, sI, sT0, sT0, sT0))
        e("s_and_b32 %s, %s, 1\ns_lshl1_add_u32 %s, %s, %s\ns_add_u32 %s, %s, %s" % (sT1, sW, sT1, sHALF, sT1, sT0, sT0, sT1))
        e("s_lshl_b32 %s, %s, 7\ns_add_u32 %s, %s, %d" % (sT0, sT0, sT0, sT0, F_U + 28 * 128))
        e.flag(last, sT0)
        e.stamp(8)
        e.wait_all(vm=False)
        e("s_barrier")
        e("s_mov_b32 %s, 0x%x" % (sFL, OOB))
        if e.opt.get("stop", 9) <= 2:
            return None
        e.p3_setup()
        e.p3_poll1()
        e.p3_check1()
        e.p3_jobs()
        while e.ev["n3"] < N3:
            e.q1.pop(0).emit()
        e.q1 = []
        return e.join_state({"last": -1})

    def p2_entry_loads(self):
        e = self
        e("s_lshl2_add_u32 %s, %s, %s\ns_lshl_b32 %s, %s, 11\ns_add_u32 %s, %s, %d" % (sAO, sJ, sW, sAO, sAO, sAO, sAO, F_Z2N))
        e("v_min_u32 v%d, %d, v%d" % (vT[8], 15 * 128, vL128))
        e("s_lshl2_add_u32 %s, %s, %s\ns_lshl_b32 %s, %s, 6" % (sT0, sI, sW, sT0, sT0))
        e("v_and_b32 v%d, 31, v0\nv_lshlrev_b32 v%d, 1, v%d" % (vT[7], vT[7], vT[7]))
        e("buffer_load_ushort v%d, v%d, %s, %s offen" % (vT[10], vT[7], sBSP, sT0))
        self.z2n_poll = "buffer_load_dword v%d, v%d, %s, %s offen sc1" % (vT[9], vT[8], sWS, sAO)
        e(self.z2n_poll)

    def phase2(self, ids):
        e = self
        o = e.opt
        e.ev = {"xfree": True, "norm_done": True}
        for q in range(NQ_D):
            e.ev[("adma", q)] = [ids.get(("adma", q), -1)] * 4
            e.ev[("adma_t", q)] = e.cyc
        for q in range(NQ_R):
            e.ev[("ard", q)] = (-1, 0)
        e.lat = o.get("lat2", 1400)
        e.pace = o.get("pace2", 55)
        BS = [("a", 96), ("a", 128), ("v", 160)]
        ACC = [("a", 0), ("a", 32), ("a", 64), ("v", Z2ACC)]
        TT, RAW = 80, 112
        order = self.q_order()
        e("s_barrier")
        qa = []
        e.a_jobs(NQ_D, 32, NQ_R, 32, qa)
        cur = dict(f=-1)
        qb = []
        bid = {}
        for cs in range(8):
            for ks in range(4):
                def pre(cs=cs, ks=ks):
                    return cs < 3 or cur["f"] >= 32 * (cs - 3) + 25 + 2 * ks

                def emit(cs=cs, ks=ks):
                    for fb in range(2):
                        k = 2 * ks + fb
                        bid[(cs, ks)] = e("buffer_load_dwordx4 %s, v%d, %s, %s offen offset:%d sc1"
                                          % (rr(BS[cs % 3], 4, 4 * k), vL16B if k >= 4 else vL16, sWS, sBCH[cs], (k % 4) * 1024))
                j = Job(pre, emit, 2)
                j.need = (32 * cs if cs < 7 else 200) + 2 * ks
                qb.append(j)

        def issue(force=False):
            if not force and e.tokens() < 1.0:
                return False
            cand = [q for q in (qa, qb) if q and q[0].pre()]
            if not cand:
                if not qa and not qb and e.q1 and e.q1[0].pre() and e.ev["n3"] < N3:
                    cand = [e.q1]
                else:
                    return False
            q = min(cand, key=lambda q: q[0].need)
            j = q.pop(0)
            j.emit()
            e.tok = max(-8.0, e.tok - j.n)
            return True

        for _ in range(o.get("a_first", 2)):
            qa.pop(0).emit()
        e.check(e.z2n_poll, "v_cmp_eq_u32 vcc, -1, v%d" % vT[9])
        e.stamp(6)
        for _ in range(6):
            issue(True)
        e.tok, e.tok_t = 0.0, e.cyc
        e("v_lshlrev_b32 v%d, 16, v%d" % (vT[10], vT[10]))
        for k in range(32):
            e("v_mov_b32 v%d, v%d" % (Z2ACC + k, vT[10]))
        vG, vK = vT[6], vT[5]

        def z1_poll():
            e("s_lshl2_add_u32 %s, %s, %s\ns_lshl_b32 %s, %s, 7\ns_lshl_b32 %s, %s, 10\ns_add_u32 %s, %s, %d" % (sAB, sI, sW, sAE, sAB, sAO, sAB, sAO, sAO, F_Z1))
            e("v_min_u32 v%d, %d, v%d" % (vT[8], 5 * 128, vL128))
            self.z1_ld = "buffer_load_dword v%d, v%d, %s, %s offen sc1" % (vT[9], vT[8], sWS, sAO)
            e(self.z1_ld)

        def z1_load():
            e.check(self.z1_ld, "v_cmp_eq_u32 vcc, -1, v%d" % vT[9])
            e("s_mul_i32 %s, %s, 14\ns_add_u32 %s, %s, %s\ns_lshl_b32 %s, %s, 12\ns_add_u32 %s, %s, %d" % (sAB, sAB, sAB, sAB, sJ, sAB, sAB, sAB, sAB, Z1))
            e("s_add_u32 %s, %s, %d\nv_and_b32 v%d, 0x7c, v%d" % (sAE, sAE, GATE, vT[8], vL4))
            e("buffer_load_dword v%d, v%d, %s, %s offen sc1" % (vG, vT[8], sWS, sAE))
            for k in range(4):
                e("buffer_load_dwordx4 %s, v%d, %s, %s offen offset:%d sc1" % (R("v", RAW + 4 * k, 4), vL16, sWS, sAB, k * 1024))
            e.tok -= 4

        def z1_act():
            v = e.qv
            v.append("v_sub_f32 v%d, 1.0, v%d" % (vG, vG))
            v.append("v_mov_b32 v%d, %s" % (vK, f32(GK2)))
            for g0 in range(0, 32, 4):
                xs = [(TT + g0 + k, 128 + k) for k in range(4)]
                for k in range(0, 4, 2):
                    v.append("v_lshlrev_b32 v%d, 16, v%d" % (TT + g0 + k, RAW + (g0 + k) // 2))
                    v.append("v_and_b32 v%d, 0xffff0000, v%d" % (TT + g0 + k + 1, RAW + (g0 + k) // 2))
                for fmt in ("v_mul_f32 v{t}, v{x}, v{x}", "v_fmaak_f32 v{t}, v%d, v{t}, %s" % (vK, f32(GK1)), "v_mul_f32 v{t}, v{t}, v{x}",
                            "v_exp_f32 v{t}, v{t}", "v_mul_f32 v{x}, v{x}, v%d" % vG, "v_add_f32 v{t}, 1.0, v{t}", "v_rcp_f32 v{t}, v{t}",
                            "v_mul_f32 v{x}, v{x}, v{t}"):
                    for x, t in xs:
                        v.append(fmt.format(x=x, t=t))

        RA = vT[1:4]

        def tail_setup():
            e("v_add_u32 v%d, %s, v%d" % (vT[4], sREG, vL16))
            for b in range(3):
                e("s_add_u32 %s, %s, %d\ns_and_b32 %s, %s, 3\ns_mul_i32 %s, %s, %d" % (sT0, sW, 3 - b, sT0, sT0, sT0, sT0, REGION))
                e("v_add_u32 v%d, %s, v%d" % (RA[b], sT0, vL16))

        def p3_go():
            e.p3_check1()
            e.p3_jobs()

        hooks = {o.get("f_rflag", 24): lambda: e.flag(ids["last"], sFL), 56: z1_poll, 80: z1_load, 110: z1_act, 190: tail_setup}
        if o.get("stop", 9) > 2:
            hooks.update({180: e.p3_setup, 196: e.p3_poll1, 216: p3_go})
        e.ev["n3"] = 0
        wr = []
        for f in range(256):
            q, rem = divmod(f, 8)
            ks, fb = divmod(rem, 2)
            cs, b = order[q]
            if f in hooks:
                hooks[f]()
            while (cs, ks) not in bid:
                assert issue(True)
            guard = 0
            while ("ard", q) not in e.ev:
                if not (e.bg_ds() or issue(True)):
                    e.cyc += 200
                    guard += 1
                    assert guard < 50
            if fb == 0:
                e.wait(vm=bid[(cs, ks)])
            acc = rr(ACC[b], 16, 16 * fb)
            c = "0" if (cs == 0 and ks == 0 and b < 3) else acc
            e("v_mfma_f32_32x32x16_bf16 %s, %s, %s, %s" % (acc, rr(BS[cs % 3], 4, 4 * (2 * ks + fb)), rr(ASLOT[q % 10], 4, 4 * ks), c))
            cur["f"] = f
            e.ev["f"] = f
            if rem == 7:
                e.ev[("aused", q)] = True
                if cs == 7 and b < 3:
                    wr += [(f + 3 + 2 * k if k < 4 else f + 3 + 2 * k - 3, b, k) for k in range(8)]
            t0 = e.cyc
            if wr and wr[0][0] <= f:
                _, b_, k = wr.pop(0)
                e("ds_write_b128 v%d, %s offset:%d" % (vT[4], rr(ACC[b_], 4, 4 * k), WOFF + b_ * 8192 + k * 1024))
                if k == 7:
                    e.ev[("accfree", b_)] = True
            elif not e.bg_ds():
                issue()
            while e.qv and e.cyc - t0 <= 12:
                e(e.qv.pop(0))
        while wr:
            _, b_, k = wr.pop(0)
            e("ds_write_b128 v%d, %s offset:%d" % (vT[4], rr(ACC[b_], 4, 4 * k), WOFF + b_ * 8192 + k * 1024))
        e.ev[("accfree", 2)] = True
        e.ev["f"] = 999
        while e.qv:
            e(e.qv.pop(0))
        e.stamp(7)
        e.wait_all(vm=False)
        e("s_barrier")
        rd = [(b, k) for k in range(8) for b in range(3)]
        NTMP = 12

        def rd_issue(n):
            b, k = rd[n]
            e("ds_read_b128 %s, v%d offset:%d" % (R("v", RAW + 4 * (n % NTMP), 4), RA[b], WOFF + b * 8192 + k * 1024))
        for n in range(NTMP):
            rd_issue(n)
        vU, vU0 = vT[7], vT[8]
        saved, e.q1 = e.q1, []
        e.ap_voff(vU)
        e.q1 = saved
        e("s_cmp_eq_u32 %s, 0\ns_cselect_b32 %s, 0x%x, 0\nv_add_u32 v%d, %s, v%d" % (sJ, sT1, OOB, vU0, sT1, vU))
        e("s_lshl2_add_u32 %s, %s, %s\ns_mul_i32 %s, %s, %d\ns_lshl_b32 %s, %s, 11" % (sT0, sI, sW, sT0, sT0, 2 * 49152, sT1, sJ))
        e("s_add_u32 %s, %s, %s\ns_add_u32 %s, %s, %d" % (sT0, sT0, sT1, sT0, sT0, AP + 19 * 1024))
        for k in range(8):
            g = Z2ACC + 4 * k
            for b in range(3):
                n = 3 * k + b
                t = RAW + 4 * (n % NTMP)
                for o_ in (0, 2):
                    e("v_pk_add_f32 %s, %s, %s" % (R("v", g + o_, 2), R("v", g + o_, 2), R("v", t + o_, 2)))
            for n in range(3 * k + NTMP, min(24, 3 * k + NTMP + 3)):
                rd_issue(n)
            for o_ in (0, 2):
                e("v_pk_mul_f32 %s, %s, %s" % (R("v", g + o_, 2), R("v", g + o_, 2), R("v", TT + 4 * k + o_, 2)))
            for o_ in (0, 2):
                e("v_cvt_pk_bf16_f32 v%d, v%d, v%d" % (TT + 2 * k + o_ // 2, g + o_, g + o_ + 1))
            if k & 1:
                blk, p = divmod(k >> 1, 2)
                last = e("buffer_store_dwordx4 %s, v%d, %s, %s offen offset:%d sc1" % (R("v", TT + 2 * k - 2, 4), vU if blk else vU0, sWS, sT0, blk * 1024 + p * 512))
        e("s_lshr_b32 %s, %s, 1\ns_lshl1_add_u32 %s, %s, %s\ns_lshl_b32 %s, %s, 5" % (sT0, sW, sT0, sI, sT0, sT0, sT0))
        e("s_and_b32 %s, %s, 1\ns_lshl1_add_u32 %s, %s, %s\ns_add_u32 %s, %s, %s" % (sT1, sW, sT1, sJ, sT1, sT0, sT0, sT1))
        e("s_lshl_b32 %s, %s, 7\ns_add_u32 %s, %s, %d" % (sT0, sT0, sFL, sT0, F_U))
        e.stamp(8)
        if o.get("stop", 9) <= 2:
            return None
        while e.ev["n3"] < N3:
            e.q1.pop(0).emit()
        e.q1 = []
        return e.join_state({"last": last})

    J7R = [("v", 160 + 4 * k) for k in range(8)] + [(ASLOT[s][0], ASLOT[s][1] + 4 * k) for s in (2, 3, 4, 5, 6, 7, 8, 9, 0, 1) for k in range(4)]
    J7FREE = [191] * 8 + [8 * q + 7 for q in range(22, 32) for _ in range(4)]
    sRU = ["s63", "s64", "s65", "s71"]
    sB3, sF3 = "s72", "s73"
    vP1, vP2, vZ = 16, 17, 18

    def p3_setup(self):
        e = self
        for b in range(4):
            e("s_add_u32 %s, %s, %d\ns_and_b32 %s, %s, 3\ns_lshl2_add_u32 %s, %s, %s" % (sT0, sW, b + 1, sT0, sT0, sT0, sP, sT0))
            e("s_mul_i32 %s, %s, 48\ns_mul_i32 %s, %s, 5\ns_add_u32 %s, %s, %s" % (sT0, sT0, sT1, sW, sT0, sT0, sT1))
            e("s_lshl_b32 %s, %s, 10\ns_add_u32 %s, %s, %d" % (sT0, sT0, e.sRU[b], sT0, AP))
        e("s_mul_i32 %s, %s, 48\ns_add_u32 %s, %s, %s\ns_mul_i32 %s, %s, 5120\ns_add_u32 %s, %s, %d" % (sT0, sC, sT0, sT0, sT1, sT0, sT0, e.sB3, sT0, BP))
        e("s_lshr_b32 %s, %s, 1\ns_lshl_b32 %s, %s, 12" % (sT0, sC, sT0, sT0))
        e("s_add_u32 %s, %s, %d\nv_add_u32 v%d, %s, v%d" % (sT1, sT0, F_WO, e.vP1, sT1, vL128))
        e("s_lshl_b32 %s, %s, 10\ns_add_u32 %s, %s, %s\ns_add_u32 %s, %s, %d" % (sT1, sW, sT0, sT0, sT1, sT0, sT0, F_M - 16 * 128))
        e("v_add_u32 v%d, %s, v%d\nv_cmp_gt_u32 vcc, 16, v0\nv_cndmask_b32 v%d, v%d, v%d, vcc" % (e.vP2, sT0, vL128, e.vP1, e.vP2, e.vP1))
        e("s_lshl_b32 %s, %s, 12\ns_add_u32 %s, %s, %d" % (e.sF3, sP, e.sF3, e.sF3, F_U))
        e("s_lshr_b32 %s, %s, 1\ns_lshl_b32 %s, %s, 8\ns_add_u32 %s, %s, %s\ns_add_u32 %s, %s, %d" % (sT0, sW, sT0, sT0, sT0, sT0, e.sF3, sT0, sT0, 28 * 128))
        e("v_and_b32 v%d, 0x80, v%d\nv_add_u32 v%d, %s, v%d" % (e.vP2, vL128, e.vP2, sT0, e.vP2))
        e("v_cmp_gt_u32 vcc, 24, v0\nv_cndmask_b32 v%d, v%d, v%d, vcc" % (e.vP1, e.vP2, e.vP1))
        e("s_mul_i32 %s, %s, 7\ns_add_u32 %s, %s, 1\ns_and_b32 %s, %s, 0xfe" % (sT0, sW, sT0, sT0, sT0, sT0))
        e("v_and_b32 v%d, 7, v0\nv_add_u32 v%d, %s, v%d\nv_min_u32 v%d, 27, v%d\nv_lshlrev_b32 v%d, 7, v%d"
          % (e.vP2, e.vP2, sT0, e.vP2, e.vP2, e.vP2, e.vP2, e.vP2))
        e("s_cmp_eq_u32 %s, 3\ns_cselect_b32 %s, 0x%x, 0\nv_add_u32 v%d, %s, v%d" % (sW, sT0, OOB, e.vZ, sT0, vL16))

    def p3_poll1(self):
        self.p3_ld1 = "buffer_load_dword v19, v%d, %s, 0 offen sc1" % (self.vP1, sWS)
        self(self.p3_ld1)

    def p3_check1(self):
        self.check(self.p3_ld1, "v_cmp_eq_u32 vcc, -1, v19")

    def p3_jobs(self, start=0):
        e = self
        e.ev.setdefault("f", 999)
        e.ev["n3"] = start
        jobs = []
        for kl in range(5):
            for t in range(5):
                jobs.append(("B", e.J7R[9 * kl + t], e.J7FREE[9 * kl + t], 5 * kl + t))
            for b in range(4):
                jobs.append(("A", e.J7R[9 * kl + 5 + b], e.J7FREE[9 * kl + 5 + b], (b, kl)))
        for n in range(35):
            jobs.append(("W", ("a", 4 * n), 998, n))
        for kind, reg, free, x in jobs[start:]:
            def emit(kind=kind, reg=reg, x=x):
                if kind == "A":
                    b, kl = x
                    e("buffer_load_dwordx4 %s, v%d, %s, %s offen offset:%d sc1" % (rr(reg, 4), vL16B if kl >= 4 else vL16, sWS, e.sRU[b], (kl % 4) * 1024))
                elif kind == "B":
                    if x and x % 8 == 0:
                        e("s_add_u32 %s, %s, 8192" % (e.sB3, e.sB3))
                    e("buffer_load_dwordx4 %s, v%d, %s, %s offen offset:%d sc1" % (rr(reg, 4), vL16B if x % 8 >= 4 else vL16, sWS, e.sB3, (x % 4) * 1024))
                else:
                    if x == 0:
                        e("s_mul_i32 %s, %s, %d\ns_add_u32 %s, %s, %s\ns_add_u32 %s, %s, %d" % (sSO, sW, 2 * 5120, e.sB3, e.sB3, sSO, e.sB3, e.sB3, 20 * 5120 - 3 * 8192))
                    elif x % 4 == 0:
                        e("s_add_u32 %s, %s, 4096" % (e.sB3, e.sB3))
                    e("buffer_load_dwordx4 %s, v%d, %s, %s offen offset:%d sc1" % (rr(reg, 4), e.vZ if x >= 30 else vL16, sWS, e.sB3, (x % 4) * 1024))
                e.ev["n3"] += 1
            j = Job(lambda free=free: e.ev["f"] >= free, emit, 1)
            j.need = 1000
            e.q1.append(j)

    def phase3(self, ids):
        e = self
        o = e.opt
        e.ev = {}
        e.p3_jobs(N3)
        ACC = 80
        ahead = o.get("ahead3", 14)
        vW = 20
        RA = [21, 22, 23]

        def top_up(n):
            while e.q1 and e.ev["n3"] < n:
                e.q1.pop(0).emit()
        top_up(N3 + o.get("burst3", 6))
        ld2 = "buffer_load_dword v19, v%d, %s, %s offen sc1" % (e.vP2, sWS, e.sF3)
        for kl in range(5):
            if kl == 2:
                e.flag(ids["last"], sFL)
            for b in range(4):
                for t in range(5):
                    top_up(9 * kl + 9)
                    acc = R("v", ACC + 20 * b + 4 * t, 4)
                    e("v_mfma_f32_16x16x32_bf16 %s, %s, %s, %s" % (acc, rr(e.J7R[9 * kl + t], 4), rr(e.J7R[9 * kl + 5 + b], 4), "0" if kl == 0 else acc))
                    if e.q1 and e.ev["n3"] < 9 * kl + 9 + ahead:
                        e.q1.pop(0).emit()
        e.stamp(9)
        top_up(80 - o.get("poll3", 8))
        e(ld2)
        top_up(80)
        for b in range(4):
            e("s_lshl_b32 %s, %s, 11\ns_add_u32 %s, %s, %s\ns_add_u32 %s, %s, %d" % (sT0, sW, e.sRU[b], e.sRU[b], sT0, e.sRU[b], e.sRU[b], 20 * 1024))
        e("v_add_u32 v%d, %s, v%d\nv_add_u32 v%d, 0x1000, v%d" % (vW, sREG, vL16, e.vZ, e.vZ))
        for b in range(3):
            e("s_add_u32 %s, %s, %d\ns_and_b32 %s, %s, 3\ns_mul_i32 %s, %s, %d" % (sT0, sW, 3 - b, sT0, sT0, sT0, sT0, REGION))
            e("v_add_u32 v%d, %s, v%d" % (RA[b], sT0, vL16))
        vO, vO2 = 24, 25
        e("v_and_b32 v%d, 15, v0\nv_mul_u32_u24 v%d, 1280, v%d\nv_lshrrev_b32 v26, 4, v0" % (vO, vO, vO))
        e("v_lshl_add_u32 v%d, v26, 3, v%d\nv_lshl_add_u32 v%d, v26, 4, v%d" % (vO2, vO, vO, vO))
        e("s_lshl2_add_u32 %s, %s, %s\ns_mul_i32 %s, %s, %d\ns_mul_i32 %s, %s, 160\ns_add_u32 %s, %s, %s" % (sT2, sP, sW, sT2, sT2, 16 * 1280, sT1, sC, sT2, sT2, sT1))
        e.check(ld2, "v_cmp_eq_u32 vcc, -1, v19")
        e.stamp(10)
        ul = [(b, kl) for b in range(4) for kl in range(7)]
        nu = 0

        def uload():
            nonlocal nu
            b, kl = ul[nu]
            v = e.vZ if kl == 6 else (vL16B if kl >= 4 else vL16)
            e("buffer_load_dwordx4 %s, v%d, %s, %s offen offset:%d sc1" % (rr(e.J7R[nu], 4), v, sWS, e.sRU[b], (kl % 4) * 1024))
            nu += 1
        for _ in range(o.get("burstu", 14)):
            uload()
        wr = []
        n = 0
        for b in range(4):
            for kl in range(7):
                for t in range(5):
                    acc = R("v", ACC + 20 * b + 4 * t, 4)
                    e("v_mfma_f32_16x16x32_bf16 %s, %s, %s, %s" % (acc, R("a", 4 * (5 * kl + t), 4), rr(e.J7R[7 * b + kl], 4), acc))
                    n += 1
                    if t == 0 and nu < 28:
                        uload()
                    elif wr and wr[0][0] <= n:
                        _, b_, t_ = wr.pop(0)
                        e("ds_write_b128 v%d, %s offset:%d" % (vW, R("v", ACC + 20 * b_ + 4 * t_, 4), b_ * 5120 + t_ * 1024))
            if b < 3:
                wr += [(n + 6 + 4 * t, b, t) for t in range(5)]
        assert not wr and nu == 28
        e.stamp(11)
        e.wait_all(vm=False)
        e("s_barrier")
        T = 192
        for t in range(5):
            for b in range(3):
                e("ds_read_b128 %s, v%d offset:%d" % (R("v", T + 12 * t + 4 * b, 4), RA[b], b * 5120 + t * 1024))
        OWN = ACC + 60
        P = 48
        for t in range(5):
            for b in range(3):
                for o_ in (0, 2):
                    e("v_pk_add_f32 %s, %s, %s" % (R("v", OWN + 4 * t + o_, 2), R("v", OWN + 4 * t + o_, 2), R("v", T + 12 * t + 4 * b + o_, 2)))
            for o_ in (0, 2):
                e("v_cvt_pk_bf16_f32 v%d, v%d, v%d" % (P + 2 * t + o_ // 2, OWN + 4 * t + o_, OWN + 4 * t + o_ + 1))
            sc = o.get("outsc", "")
            if t in (1, 3):
                e("buffer_store_dwordx4 %s, v%d, %s, %s offen offset:%d %s" % (R("v", P + 2 * t - 2, 4), vO, sOUT, sT2, 32 * (t - 1), sc))
            elif t == 4:
                e("buffer_store_dwordx2 %s, v%d, %s, %s offen offset:128 %s" % (R("v", P + 8, 2), vO2, sOUT, sT2, sc))

    def finish(self):
        e = self
        if e.opt.get("diag"):
            e.wait_all()
            e.stamp(12)
            e("s_lshl2_add_u32 %s, s2, %s\ns_lshl_b32 %s, %s, 8\ns_add_u32 %s, %s, %d" % (sT0, sW, sT0, sT0, sT0, sT0, DIAG))
            e("s_nop 4")
            e("buffer_store_dword v7, v%d, %s, %s offen" % (vL4, sWS, sT0))

    def build(self):
        e = self
        stop = e.opt.get("stop", 9)
        e.prologue()
        e("s_cmp_eq_u32 %s, 7\ns_cbranch_scc1 L_role_h" % sJL)
        e("s_cmp_eq_u32 %s, 13\ns_cbranch_scc1 L_role_l" % sJ)
        e("s_cmp_ge_u32 %s, 4\ns_cbranch_scc1 L_role_b" % sJL)
        snap = e.snapshot()
        main, e.L = e.L, []
        parts = {}
        states = []
        for name, fn in (("a", e.role_a), ("b", e.role_b), ("l", e.role_l)):
            e.restore(snap)
            e.ev, e.q1, e.q2, e.qd, e.qv = {}, [], [], [], []
            e.tok, e.tok_t = 0.0, e.cyc
            last = fn()
            states.append(e.p1_finish(last))
            parts[name], e.L = e.L, []
        e.restore(snap)
        e.ev, e.q1, e.q2, e.qd, e.qv = {}, [], [], [], []
        sth = e.role_h()
        if sth is None:
            e.finish()
            e("s_endpgm")
        parts["h"], e.L = e.L, []
        ids = e.merge(states)
        e.q1, e.q2, e.qd, e.qv = [], [], [], []
        e.raw("L_p2:")
        if stop <= 1:
            e.flag(ids["last"], sFL)
        else:
            st2 = e.phase2(ids)
            if st2 is not None:
                ids = e.merge([st2, sth])
                e.raw("L_p3:")
                e.phase3(ids)
        e.finish()
        rest, e.L = e.L, []
        e.L = main + parts["a"] + rest + ["L_end:", "    s_endpgm"]
        e.L += ["L_role_b:"] + parts["b"] + ["    s_branch L_p2"]
        e.L += ["L_role_l:"] + parts["l"] + ["    s_branch L_p2"]
        e.L += ["L_role_h:"] + parts["h"]
        if sth is not None:
            e.L += ["    s_branch L_p3"]
        return e.text() + "L_code_end:\n    s_endpgm\n"


N3 = 18


def generate(opt):
    head = open("cdna_kernels/%s.s.ref" % NAME).read().split("; Override launch")[0] if opt.get("head", 1) else ""
    body = K(opt).build()
    return (head + "; @launch grid=(256,1,1) block=(256,1,1) lds=163840\n"
            '.amdgcn_target "amdgcn-amd-amdhsa--gfx950"\n.text\n.globl %s_kernel\n.p2align 8\n.type %s_kernel,@function\n%s_kernel:\n' % (NAME, NAME, NAME)
            + body +
            '.section .rodata,"a"\n.p2align 6\n.amdhsa_kernel %s_kernel\n'
            "  .amdhsa_next_free_vgpr 512\n  .amdhsa_next_free_sgpr 102\n  .amdhsa_accum_offset 256\n"
            "  .amdhsa_group_segment_fixed_size 0\n  .amdhsa_kernarg_size 96\n  .amdhsa_user_sgpr_count 2\n"
            "  .amdhsa_user_sgpr_kernarg_segment_ptr 1\n  .amdhsa_system_sgpr_workgroup_id_x 1\n.end_amdhsa_kernel\n" % NAME)


if __name__ == "__main__":
    out = sys.argv[1]
    opt = {}
    for a in sys.argv[2:]:
        k, v = a.split("=")
        opt[k] = int(v) if v.lstrip("-").isdigit() else v
    open(out, "w").write(generate(opt))
```

```python
import math
import struct
import sys

from em import Em, R, rr

NAME = "gated_mix__linear_attn_block__mixer_gmlp__prompt"

STATS = 0
F_Z2N = 0x38000
F_Z1 = 0x54000
F_KV = 0x64000
F_U = 0x74000
F_M = 0x94000
F_WO = 0x98000
GATE = 0xA0000
ZP = 0xA4000
KVP = 0x100000
Z2N = 0x200000
Z1 = 0x600000
AP = 0xA00000
BP = 0x1000000
DIAG = 0x1200000
WS_SIZE = 0x1300000
OOB = 0x80000000

sX, sWQ, sWO, sWIN, sWSP, sBSP, sWOUT, sGW, sOUT, sDBG, sWS, sCODE = [R("s", 8 + 4 * k, 4) for k in range(12)]
sW, sI, sJL, sHALF, sJ, sREG, sW2K = ["s%d" % k for k in range(56, 63)]
sXO, sXB, sXE = "s63", "s64", "s65"
sAO, sAB, sAE = "s66", "s67", "s70"
sKC = "s[68:69]"
sBO, sBB, sBE = "s71", "s72", "s73"
sSPIN = "s74"
sT0, sT1, sT2, sT3 = "s75", "s76", "s77", "s3"
sROW = ["s78", "s79", "s80", "s81"]
sCH = ["s%d" % k for k in range(82, 90)]
sBCH = ["s%d" % k for k in range(90, 98)]
sG, sROT = "s98", "s99"
sMASK = "s[100:101]"
sP, sC = "s4", "s5"
sSO = "s6"
sFL = "s7"

vLANE = "v0"
vXD = [8, 9, 10, 11]
vXR = [12, 13, 14, 15]
vWDI = [16, 17]
vWDQ = [18, 19]
vWS = [[20, 21], [22, 23]]
vWB = [24, 25, 26, 27, 28]
vL16, vL16B, vL4 = 29, 30, 31
vL128 = 2
vAD = [32, 33, 34, 35]
vT = list(range(36, 48))
Z2ACC = 48
ACCB = 80
WRING = 160
NR = 8
ASLOT = [("a", 160 + 16 * k) for k in range(6)] + [("v", 192 + 16 * k) for k in range(4)]
REGION = 40960
WOFF = 16384

NQ_D, NQ_R = 14, 10
SPIN_MAX = 1 << 17


def f32(x):
    return "0x%08x" % struct.unpack("<I", struct.pack("<f", x))[0]


LOG2E = 1.4426950408889634
GK1 = -2.0 * math.sqrt(2.0 / math.pi) * LOG2E
GK2 = GK1 * 0.044715


class Job:
    def __init__(self, pre, emit, n=1):
        self.pre, self.emit, self.n = pre, emit, n


class K(Em):
    def __init__(self, opt):
        super().__init__()
        self.opt = opt
        self.q1 = []
        self.q2 = []
        self.qd = []
        self.qv = []
        self.tok = 0.0
        self.tok_t = 0
        self.pace = opt.get("pace", 66)
        self.ev = {}
        self.nstamp = 0
        self.wring = WRING
        self.lat = opt.get("lat1", 1000)

    def tokens(self):
        self.tok = min(8.0, self.tok + (self.cyc - self.tok_t) / self.pace)
        self.tok_t = self.cyc
        return self.tok

    def bg_vm(self, force=False, maxn=2):
        done = 0
        while done < maxn:
            if not force and self.tokens() < 1.0:
                break
            q = None
            if self.q1 and self.q1[0].pre():
                q = self.q1
            elif self.q2 and self.q2[0].pre():
                q = self.q2
            if q is None:
                break
            j = q.pop(0)
            j.emit()
            self.tok = max(-8.0, self.tok - j.n)
            done += j.n
        return done

    def bg_ds(self):
        if self.qd and self.qd[0].pre():
            self.qd.pop(0).emit()
            return True
        return False

    def tick(self):
        if not self.bg_vm():
            self.bg_ds()

    def V(self, text):
        for ln in text.split("\n"):
            if ln.strip():
                self(ln)
                self.tick()

    def drain(self, cond):
        guard = 0
        while not cond():
            if self.bg_ds() or self.bg_vm(force=True):
                guard = 0
                continue
            self.cyc += 200
            guard += 1
            assert guard < 100, "background queues stuck"

    def stamp(self, k):
        sel = self.opt.get("stamps")
        if self.opt.get("diag") and (sel is None or k == 12 or str(k) in str(sel).split(".")):
            self.wait_all(vm=False)
            self.raw("    %s s[0:1]\n" % ("s_memtime" if self.opt["diag"] == 2 else "s_memrealtime") + "    s_waitcnt lgkmcnt(0)\n    v_writelane_b32 v7, s0, %d" % k)
            self.pos += 3

    def check(self, loads, test):
        slow, back = self.label("Lslow"), self.label("Lback")
        self(test)
        self("s_cbranch_vccnz " + slow)
        self.raw(back + ":")
        c = self.cold
        c.append(slow + ":")
        c.append("    s_add_u32 %s, %s, 1\n    s_cmp_ge_u32 %s, %d\n    s_cbranch_scc1 L_end" % (sSPIN, sSPIN, sSPIN, SPIN_MAX))
        c.append("\n".join("    " + l for l in loads.split("\n")))
        c.append("    s_waitcnt vmcnt(0)")
        c.append("\n".join("    " + l for l in test.split("\n")))
        c.append("    s_nop 4\n    s_cbranch_vccnz %s\n    s_branch %s" % (slow, back))

    def flag(self, after_id, soff):
        self.wait(vm=after_id)
        self("s_mov_b64 exec, 1")
        i = self("buffer_store_dword v%d, off, %s, %s sc1" % (vL4, sWS, soff))
        self("s_mov_b64 exec, -1")
        return i

    def prologue(self):
        e = self
        e("s_cmp_ge_u32 s2, 256")
        e("s_cbranch_scc1 L_end")
        order = [(8, 0), (20, 32), (12, 8), (48, 88), (44, 80), (24, 40), (16, 16), (28, 48), (32, 56), (36, 64), (40, 72)]
        for sreg, off in order:
            e.raw("    s_load_dwordx2 s[%d:%d], s[0:1], %d" % (sreg, sreg + 1, off))
        if self.opt.get("diag"):
            e.raw("    %s s[100:101]" % ("s_memtime" if self.opt["diag"] == 2 else "s_memrealtime"))
        e.raw("    s_getpc_b64 s[52:53]")
        e.raw("L_pc:")
        sizes = {8: 2621440, 12: 2457600, 16: 819200, 20: 2211840, 24: 8388608, 28: 4096, 32: 1105920, 36: 1280,
                 40: 2621440, 44: 256, 48: WS_SIZE}
        e("v_lshrrev_b32 v1, 6, v0\nv_and_b32 v0, 63, v0")
        e("s_and_b32 %s, s2, 7\ns_lshr_b32 %s, s2, 3" % (sT0, sT1))
        e("v_readfirstlane_b32 %s, v1" % sW)
        e("s_mov_b32 s54, L_code_end-L_pc\ns_mov_b32 s55, 0x20000")
        e("s_and_b32 %s, %s, 1" % (sHALF, sT0))
        e("s_lshr_b32 %s, %s, 1" % (sT0, sT0))
        e("s_and_b32 %s, %s, 3\ns_lshl_b32 %s, %s, 2\ns_add_u32 %s, %s, %s\ns_lshl_b32 %s, %s, 13" % (sT2, sT1, sT2, sT2, sT2, sT2, sW, sT2, sT2))
        e("v_lshlrev_b32 v2, 7, v0")
        if self.opt.get("codepf", 1):
            e("buffer_load_dword v6, v2, %s, %s offen" % (sCODE, sT2))
            self.pend.clear()
        e("s_and_b32 %s, %s, 3\ns_lshl2_add_u32 %s, %s, %s" % (sT2, sT1, sI, sT0, sT2))
        e("s_lshr_b32 %s, %s, 2" % (sJL, sT1))
        e("s_mul_i32 %s, %s, 7\ns_add_u32 %s, %s, %s" % (sJ, sHALF, sJ, sJ, sJL))
        e("s_and_b32 %s, %s, 7\ns_lshl3_add_u32 %s, %s, %s" % (sP, sT1, sP, sT0, sP))
        e("s_lshr_b32 %s, %s, 3\ns_lshl2_add_u32 %s, %s, %s" % (sC, sT1, sC, sHALF, sC))
        if self.opt.get("rot", 1):
            e("s_mul_i32 %s, %s, 5\ns_lshr_b32 %s, %s, 1" % (sT2, sT2, sT2, sT2))
            e("s_mul_i32 %s, %s, 5\ns_lshr_b32 %s, %s, 2\ns_add_u32 %s, %s, %s" % (sROT, sJL, sROT, sROT, sROT, sROT, sT2))
            e("s_cmp_ge_u32 %s, 10\ns_cselect_b32 %s, 10, 0\ns_sub_u32 %s, %s, %s" % (sROT, sT2, sROT, sROT, sT2))
        else:
            e("s_mov_b32 %s, 0" % sROT)
        e("s_mul_i32 %s, %s, %d\ns_lshl_b32 %s, %s, 11" % (sREG, sW, REGION, sW2K, sW))
        e("s_lshl2_add_u32 %s, %s, %s\ns_mul_i32 %s, %s, %d" % (sXB, sI, sW, sXB, sXB, 32 * 1280))
        e("s_add_u32 %s, %s, 1280\ns_lshl_b32 %s, %s, 7\ns_add_u32 %s, %s, %s" % (sXE, sXB, sXO, sROT, sXO, sXO, sXB))
        for sreg in (8, 20, 12, 48, 44):
            e("s_mov_b32 s%d, %d\ns_mov_b32 s%d, 0x20000" % (sreg + 2, sizes[sreg], sreg + 3))
        e("v_lshrrev_b32 v1, 3, v0\nv_and_b32 v2, 7, v0\nv_lshrrev_b32 v3, 4, v0")
        e("v_xor_b32 v4, v2, v3\nv_lshlrev_b32 v4, 4, v4\nv_xor_b32 v5, 64, v4")
        e("v_mul_u32_u24 v%d, 1280, v1" % vT[0])
        for r in range(4):
            e("v_add_u32 v%d, v%d, v%d" % (vXD[r], vT[0], 4 + (r & 1)))
            if r:
                e("v_add_u32 v%d, %d, v%d" % (vXD[r], r * (8 * 1280 - 1024), vXD[r]))
        e("v_and_b32 v%d, 1, v3\nv_lshlrev_b32 v%d, 2, v%d\nv_xor_b32 v%d, v2, v%d\nv_lshlrev_b32 v%d, 4, v%d"
          % (vT[1], vT[1], vT[1], vT[1], vT[1], vT[1], vT[1]))
        e("s_lshl_b32 %s, %s, 4\nv_add_u32 v%d, %s, v1" % (sT0, sW, vT[2], sT0))
        for regs_, stride in ((vWDI, 3456), (vWDQ, 3840)):
            e("v_mul_u32_u24 v%d, %d, v%d\nv_add_u32 v%d, v%d, v%d" % (regs_[0], stride, vT[2], regs_[0], regs_[0], vT[1]))
            e("v_add_u32 v%d, %d, v%d" % (regs_[1], 8 * stride - 1024, regs_[0]))
        self.sizes = sizes
        e.raw("    s_waitcnt lgkmcnt(0)")
        e.pos += 1

    def late_setup(self):
        e = self
        for sreg in (24, 16, 28, 32, 36, 40):
            e("s_mov_b32 s%d, %d\ns_mov_b32 s%d, 0x20000" % (sreg + 2, self.sizes[sreg], sreg + 3))
        e("s_mov_b32 s68, %s\ns_mov_b32 s69, %s\ns_mov_b32 %s, 0" % (f32(GK1), f32(GK2), sSPIN))
        e("v_lshlrev_b32 v%d, 4, v0\nv_add_u32 v%d, 0x1000, v%d\nv_lshlrev_b32 v%d, 2, v0" % (vL16, vL16B, vL16, vL4))
        if self.opt.get("diag"):
            e("v_mov_b32 v7, 0")
            e.raw("    s_nop 1\n    v_writelane_b32 v7, s100, 13")
        e("v_lshlrev_b32 v%d, 12, v1" % vT[0])
        for r in range(4):
            e("v_add_u32 v%d, v%d, v%d" % (vAD[r], vT[0], 4 + (r & 1)))
            if r:
                e("v_add_u32 v%d, %d, v%d" % (vAD[r], r * (8 * 4096 - 1024), vAD[r]))
        e("v_and_b32 v1, 31, v0\nv_lshrrev_b32 v2, 5, v0\nv_bfe_u32 v4, v0, 1, 3\nv_xor_b32 v4, v4, v2")
        e("v_lshlrev_b32 v4, 4, v4\nv_lshl_add_u32 v4, v1, 7, v4")
        for ks in range(4):
            e("v_xor_b32 v%d, %d, v4\nv_add_u32 v%d, %s, v%d" % (vXR[ks], ks * 32, vXR[ks], sREG, vXR[ks]))
        e("v_bfe_u32 v5, v0, 2, 2\nv_lshl_add_u32 v5, v2, 3, v5\nv_lshlrev_b32 v5, 7, v5\nv_add_u32 v5, %d, v5" % WOFF)
        e("v_bfe_u32 v4, v0, 3, 1\nv_lshlrev_b32 v4, 6, v4")
        e("v_and_b32 v1, 3, v0\nv_lshlrev_b32 v1, 3, v1\nv_bfe_u32 v3, v0, 4, 1")
        e("v_lshl_add_u32 v%d, v3, 5, v1\nv_xor_b32 v%d, v%d, v4" % (vT[0], vT[0], vT[0]))
        e("v_add_u32 v%d, v%d, v5\nv_xor_b32 v%d, 64, v%d" % (vWS[0][0], vT[0], vWS[0][1], vWS[0][0]))
        e("v_add_u32 v%d, %d, v%d\nv_add_u32 v%d, %d, v%d" % (vWS[1][0], 2 * REGION, vWS[0][0], vWS[1][1], 2 * REGION, vWS[0][1]))
        e("v_lshlrev_b32 v%d, 7, v0" % vL128)

    def stream_init(self, o, b, en, base_text, stride):
        self(base_text)
        self("s_add_u32 %s, %s, %d\ns_mul_i32 %s, %s, %d\ns_add_u32 %s, %s, %s" % (en, b, 640 * stride, o, sROT, 64 * stride, o, o, b))

    def advance(self, o, b, en, step):
        self("s_add_u32 %s, %s, %d\ns_cmp_eq_u32 %s, %s\ns_cselect_b32 %s, %s, %s" % (o, o, step, o, en, o, b, o))

    def job_x(self, tag, s):
        ids = self.ev.setdefault(("dma", tag, s), [])

        def mk(half):
            def emit():
                self("s_add_u32 m0, %s, %d" % (sREG, (s % 4) * 4096))
                for r in (2 * half, 2 * half + 1):
                    ids.append(self("buffer_load_dwordx4 v%d, %s, %s offen offset:%d lds" % (vXD[r], sX, sXO, r * 1024)))
                if half:
                    self.advance(sXO, sXB, sXE, 128)
            return emit
        pre = (lambda: True) if s < 4 else (lambda: self.ev.get(("free", tag, s - 4)))
        return [Job(pre, mk(0), 2), Job(pre, mk(1), 2)]

    def job_w(self, tag, s, ring, slot, lo, srd, vd, stream, stride, last, prev):
        ids = self.ev.setdefault(("dma", tag, s), [])

        def emit():
            self("s_add_u32 m0, %s, %d" % (sW2K, WOFF + ring * REGION + slot * 8192 - lo))
            for t in range(2):
                ids.append(self("buffer_load_dwordx4 v%d, %s, %s offen offset:%d lds" % (vd[t], srd, stream[0], t * 1024 + lo)))
            if last:
                self.advance(stream[0], stream[1], stream[2], 64 * stride)
        pre = (lambda: True) if prev is None else (lambda: self.ev.get(("free",) + prev))
        return Job(pre, emit, 2)

    def w_jobs(self, tag, lines, slotf, srd, vd, stream, stride, occ, withx):
        for s in range(10):
            if withx:
                self.q1 += self.job_x(tag, s)
            for k, lo in enumerate(lines):
                ring, slot = slotf(s, k)
                self.q1.append(self.job_w(tag, s, ring, slot, lo, srd, vd, stream, stride, k == len(lines) - 1, occ.get((ring, slot))))
                occ[(ring, slot)] = (tag, s)
            self.ev[("ndma", tag, s)] = 2 * len(lines) + (4 if withx else 0)

    def p1_pass(self, tag, blocks, withx, paced, hooks=None, prev_tag=None):
        e = self
        nb = len(blocks)
        per = 4 * nb
        F = 10 * per
        hooks = hooks or {}
        rd_id = {}
        st = dict(next=0, opened=-1)

        def open_stage(s):
            e.drain(lambda: len(e.ev[("dma", tag, s)]) == e.ev[("ndma", tag, s)])
            e.wait(vm=max(e.ev[("dma", tag, s)]), lg=e.lg_n - 1)
            e("s_barrier")
            st["opened"] = s
            if s:
                e.ev[("free", tag, s - 1)] = True
            elif prev_tag:
                e.ev[("free", prev_tag, 9)] = True
            if withx:
                for ks in range(4):
                    e("ds_read_b128 %s, v%d offset:%d" % (R("a", (s * 4 + ks) * 4, 4), vXR[ks], (s % 4) * 4096))

        def read_pair():
            for _ in range(2):
                f = st["next"]
                s, rem = divmod(f, per)
                ks, b = divmod(rem, nb)
                rd_id[f] = blocks[b][0](s, ks, e.wring + 4 * (f % NR))
                st["next"] += 1

        open_stage(0)
        for _ in range(3):
            read_pair()
        for f in range(F):
            s, rem = divmod(f, per)
            ks, b = divmod(rem, nb)
            if f in hooks:
                hooks[f]()
            if f % 2 == 0:
                e.wait(lg=rd_id[f + 1])
            acc = R("v", blocks[b][1], 16)
            wf = R("v", e.wring + 4 * (f % NR), 4)
            xf = R("a", (s * 4 + ks) * 4, 4)
            c = "0" if (s == 0 and ks == 0) else acc
            if blocks[b][2] == 2:
                e("v_mfma_f32_32x32x16_bf16 %s, %s, %s, %s" % (acc, wf, xf, c))
            else:
                e("v_mfma_f32_32x32x16_bf16 %s, %s, %s, %s" % (acc, xf, wf, c))
            nx = st["next"]
            if nx < F and nx <= f + 6:
                if nx // per > st["opened"]:
                    open_stage(nx // per)
                else:
                    read_pair()
            else:
                if not e.bg_vm(force=not paced, maxn=2):
                    e.bg_ds()

    def rd_static(self, slotf, k, hf):
        def read(s, ks, dst):
            ring, slot = slotf(s, k)
            for t in range(2):
                i = self("ds_read_b64_tr_b16 %s, v%d offset:%d" % (R("v", dst + 2 * t, 2), vWS[ring >> 1][hf],
                                                                  (ring & 1) * REGION + slot * 8192 + ks * 2048 + t * 512))
            return i
        return read

    def rd_dyn(self, b):
        def read(s, ks, dst):
            for t in range(2):
                i = self("ds_read_b64_tr_b16 %s, v%d offset:%d" % (R("v", dst + 2 * t, 2), vWB[b], (s % 3) * 8192 + ks * 2048 + t * 512))
            return i
        return read

    def dyn_addr(self, b, colexpr, ringexpr=None):
        e = self
        e.V(colexpr)
        e.V("v_lshrrev_b32 v%d, 6, v%d" % (vT[2], vT[0]))
        if ringexpr:
            e.V(ringexpr)
        e.V("v_and_b32 v%d, 63, v%d\nv_lshl_add_u32 v%d, v%d, 1, v1\nv_xor_b32 v%d, v%d, v4" % (vT[0], vT[0], vT[0], vT[0], vT[0], vT[0]))
        e.V("v_mul_u32_u24 v%d, %d, v%d\nv_add3_u32 v%d, v%d, v%d, v5" % (vT[2], REGION, vT[2], vWB[b], vT[2], vT[0]))

    def gelu(self, regs_, tmp, emit):
        for b0 in range(0, len(regs_), 8):
            ps = [(regs_[b0 + k], tmp + k) for k in range(0, min(8, len(regs_) - b0), 2)]
            for x, t in ps:
                emit("v_pk_mul_f32 %s, %s, %s" % (R("v", t, 2), R("v", x, 2), R("v", x, 2)))
            for x, t in ps:
                emit("v_pk_fma_f32 %s, %s, %s, %s op_sel:[0,1,0] op_sel_hi:[1,1,0]" % (R("v", t, 2), R("v", t, 2), sKC, sKC))
            for x, t in ps:
                emit("v_pk_mul_f32 %s, %s, %s" % (R("v", t, 2), R("v", t, 2), R("v", x, 2)))
            for x, t in ps:
                emit("v_exp_f32 v%d, v%d\nv_exp_f32 v%d, v%d" % (t, t, t + 1, t + 1))
            for x, t in ps:
                emit("v_pk_add_f32 %s, %s, 1.0 op_sel_hi:[1,0]" % (R("v", t, 2), R("v", t, 2)))
            for x, t in ps:
                emit("v_rcp_f32 v%d, v%d\nv_rcp_f32 v%d, v%d" % (t, t, t + 1, t + 1))
            for x, t in ps:
                emit("v_pk_mul_f32 %s, %s, %s" % (R("v", x, 2), R("v", t, 2), R("v", x, 2)))

    def phi(self, base, n, tmp, kreg):
        for b0 in range(0, n, 8):
            ps = [(base + b0 + k, tmp + k) for k in range(0, 8, 2)]
            for x, t in ps:
                self.V("v_pk_mul_f32 %s, %s, %s op_sel_hi:[1,0]" % (R("v", t, 2), R("v", x, 2), R("s", kreg, 2)))
            for x, t in ps:
                self.V("v_exp_f32_e64 v%d, v%d clamp\nv_exp_f32_e64 v%d, v%d clamp" % (t, t, t + 1, t + 1))
            for x, t in ps:
                self.V("v_max_f32 v%d, s%d, v%d\nv_max_f32 v%d, s%d, v%d" % (x, kreg + 1, x, x + 1, kreg + 1, x + 1))
            for x, t in ps:
                self.V("v_pk_add_f32 %s, %s, %s" % (R("v", x, 2), R("v", x, 2), R("v", t, 2)))

    def pack(self, src, n, dst):
        for k in range(n // 2):
            self.V("v_cvt_pk_bf16_f32 v%d, v%d, v%d" % (dst + k, src + 2 * k, src + 2 * k + 1))

    def z2_stats(self):
        e = self
        ld = "buffer_load_dword v%d, off, %s, 0 sc1" % (vT[11], sDBG)
        e(ld)
        e.gelu(list(range(Z2ACC, Z2ACC + 32)), ACCB, e.V)
        S = [ACCB + 8, ACCB + 10]
        Q = [ACCB + 12, ACCB + 14]
        for b in range(2):
            z = Z2ACC + 16 * b
            e.V("v_pk_add_f32 %s, %s, %s" % (R("v", S[b], 2), R("v", z, 2), R("v", z + 2, 2)))
            e.V("v_pk_mul_f32 %s, %s, %s" % (R("v", Q[b], 2), R("v", z, 2), R("v", z, 2)))
            for k in range(1, 8):
                if k > 1:
                    e.V("v_pk_add_f32 %s, %s, %s" % (R("v", S[b], 2), R("v", S[b], 2), R("v", z + 2 * k, 2)))
                e.V("v_pk_fma_f32 %s, %s, %s, %s" % (R("v", Q[b], 2), R("v", z + 2 * k, 2), R("v", z + 2 * k, 2), R("v", Q[b], 2)))
        e("s_cmp_eq_u32 %s, 0\ns_cselect_b32 %s, 0, 1.0" % (sJ, sT0))
        for a in (S, Q):
            e("v_add_f32 v%d, v%d, v%d\nv_add_f32 v%d, v%d, v%d" % (a[0], a[0], a[0] + 1, a[1], a[1], a[1] + 1))
            e("v_fmac_f32 v%d, %s, v%d" % (a[1], sT0, a[0]))
        e("s_lshl2_add_u32 %s, %s, %s\ns_mul_i32 %s, %s, %d" % (sT1, sI, sW, sFL, sT1, 14 * 256))
        e("s_lshl_b32 %s, %s, 8\ns_add_u32 %s, %s, %s" % (sT1, sJ, sT1, sT1, sFL))
        e("v_permlane32_swap_b32 v%d, v%d" % (S[1], Q[1]))
        e("v_add_f32 v%d, v%d, v%d" % (S[1], S[1], Q[1]))
        e.check(ld, "v_cmp_gt_u32 vcc, 32, v%d" % vT[11])
        e("buffer_store_dword v%d, v%d, %s, %s offen sc1" % (S[1], vL4, sWS, sT1))

    def z2_poll(self):
        T = 192
        self.stat_ld = "\n".join("buffer_load_dword v%d, v%d, %s, %s offen offset:%d sc1" % (T + k, vL4, sWS, sFL, k * 256) for k in range(14))
        self(self.stat_ld)
        self.tok -= 4

    def z2_norm(self):
        e = self
        T = 192
        m = T + 14
        test = "v_max3_u32 v%d, v%d, v%d, v%d\n" % (m, T, T + 1, T + 2)
        for k in range(3, 13, 2):
            test += "v_max3_u32 v%d, v%d, v%d, v%d\n" % (m, m, T + k, T + k + 1)
        test += "v_max_u32 v%d, v%d, v%d\nv_cmp_eq_u32 vcc, -1, v%d" % (m, m, T + 13, m)
        e.check(e.stat_ld, test)
        for k in range(2, 14, 2):
            e.V("v_pk_add_f32 %s, %s, %s" % (R("v", T, 2), R("v", T, 2), R("v", T + k, 2)))
        e("v_add_f32 v%d, v%d, v%d\nv_mul_f32 v%d, %s, v%d\nv_mov_b32 v%d, v%d" % (T, T, T + 1, T, f32(1.0 / 864), T, T + 1, T))
        a = T + 4
        e("v_bfe_u32 v%d, v0, 1, 1\nv_bfe_u32 v%d, v0, 2, 2\nv_and_b32 v%d, 1, v0" % (a, a + 1, a + 2))
        e("v_permlane32_swap_b32 v%d, v%d" % (T, T + 1))
        e("v_lshl_or_b32 v%d, v%d, 1, v%d\nv_lshl_or_b32 v%d, v%d, 3, v%d" % (a + 1, a + 1, a + 2, a, a, a + 1))
        e("v_fma_f32 v%d, -v%d, v%d, v%d\nv_max_f32 v%d, 0, v%d\nv_add_f32 v%d, %s, v%d" % (T + 1, T, T, T + 1, T + 1, T + 1, T + 1, f32(1e-5), T + 1))
        e("v_rsq_f32 v%d, v%d" % (T + 2, T + 1))
        e("v_lshrrev_b32 v%d, 5, v0\nv_xor_b32 v%d, v%d, v%d\nv_lshlrev_b32 v%d, 3, v%d" % (a + 1, a, a, a + 1, a, a))
        e("v_mul_f32_e64 v%d, -v%d, v%d" % (T + 3, T, T + 2))
        e("v_and_b32 v%d, 31, v0\nv_lshl_add_u32 v%d, v%d, 7, v%d" % (a + 2, a, a + 2, a))
        e("s_add_u32 %s, %s, %d" % (sT0, sREG, 3 * 4096))
        P = T + 16
        for k in range(16):
            e.V("v_pk_fma_f32 %s, %s, %s, %s op_sel:[0,0,1] op_sel_hi:[1,0,1]" % (R("v", Z2ACC + 2 * k, 2), R("v", Z2ACC + 2 * k, 2), R("v", T + 2, 2), R("v", T + 2, 2)))
        e.pack(Z2ACC, 32, P)
        for q in range(8):
            e("v_xad_u32 v%d, v%d, %d, %s" % (a + 3 + (q & 1), a, q * 16, sT0) if q <= 4 else
              "v_xor_b32 v%d, %d, v%d\nv_add_u32 v%d, %s, v%d" % (a + 3 + (q & 1), q * 16, a, a + 3 + (q & 1), sT0, a + 3 + (q & 1)))
            e("ds_write_b64 v%d, %s" % (a + 3 + (q & 1), R("v", P + 2 * q, 2)))
        b = a + 5
        e("v_bfe_u32 v%d, v0, 3, 1\nv_lshlrev_b32 v%d, 3, v%d\nv_lshl_or_b32 v%d, v%d, 2, v%d" % (b, b, b, b, a + 1, b))
        e("v_bfe_u32 v%d, v0, 2, 1\nv_or_b32 v%d, v%d, v%d" % (b + 1, b, b, b + 1))
        e("v_bfe_u32 v%d, v0, 4, 1\nv_and_b32 v%d, 3, v0\nv_lshl_or_b32 v%d, v%d, 2, v%d" % (b + 1, b + 2, b + 1, b + 1, b + 2))
        e("v_xor_b32 v%d, v%d, v%d\nv_lshlrev_b32 v%d, 3, v%d" % (b, b, b + 1, b, b))
        e("v_bfe_u32 v%d, v0, 2, 2\nv_lshl_add_u32 v%d, v%d, 3, v%d\nv_lshl_add_u32 v%d, v%d, 7, v%d" % (b + 1, b + 1, a + 1, b + 1, b, b + 1, b))
        Fr = T + 32
        for blk in range(2):
            for t in range(2):
                r_ = b + 1 + 2 * blk + t
                e("v_xor_b32 v%d, %d, v%d\nv_add_u32 v%d, %s, v%d" % (r_, blk * 64 + t * 16, b, r_, sT0, r_))
        for ks in range(2):
            for blk in range(2):
                for t in range(2):
                    last = e("ds_read_b64_tr_b16 %s, v%d offset:%d" % (R("v", Fr + 8 * ks + 4 * blk + 2 * t, 2), b + 1 + 2 * blk + t, ks * 2048 + t * 512))
        e("s_lshl2_add_u32 %s, %s, %s\ns_lshl_b32 %s, %s, 12\ns_lshl_b32 %s, %s, 18" % (sT0, sI, sW, sT0, sT0, sT1, sJ))
        e("s_add_u32 %s, %s, %s\ns_add_u32 %s, %s, %d" % (sT0, sT0, sT1, sT0, sT0, Z2N))
        for k in range(4):
            self.z2n_st = e("buffer_store_dwordx4 %s, v%d, %s, %s offen offset:%d sc1" % (R("v", Fr + 4 * k, 4), vL16, sWS, sT0, k * 1024))
        e.tok -= 4
        e.ev["norm_done"] = True

    def z2_flag(self):
        e = self
        e("s_lshl4_add_u32 %s, %s, %s\ns_lshl2_add_u32 %s, %s, %s\ns_lshl_b32 %s, %s, 7" % (sT0, sJ, sI, sT0, sT0, sW, sT0, sT0))
        e("s_add_u32 %s, %s, %d" % (sT0, sT0, F_Z2N))
        e.flag(e.z2n_st, sT0)

    @staticmethod
    def q_order():
        o = [(cs, b) for cs in range(6) for b in range(4)]
        o += [(cs, b) for b in range(4) for cs in (6, 7)]
        return o

    def a_tables(self):
        e = self
        e.V("s_lshl_b32 %s, %s, 19\ns_lshl_b32 %s, %s, 10\ns_add_u32 %s, %s, %s" % (sT0, sI, sT1, sW, sT0, sT0, sT1))
        for b in range(4):
            e.V("s_add_u32 %s, %s, %d\ns_and_b32 %s, %s, 3\ns_lshl_b32 %s, %s, 17\ns_add_u32 %s, %s, %s"
                % (sT1, sW, b + 1, sT1, sT1, sT1, sT1, sROW[b], sT1, sT0))
        e.V("s_lshl_b32 %s, %s, 18\ns_lshl_b32 %s, %s, 16\ns_add_u32 %s, %s, %s\ns_add_u32 %s, %s, %d"
            % (sT0, sJ, sT1, sW, sT0, sT0, sT1, sT0, sT0, Z2N))
        for cs in range(8):
            if self.opt.get("rot", 1):
                e.V("s_add_u32 %s, %s, %d\ns_and_b32 %s, %s, 7" % (sT1, sJL, cs, sT1, sT1))
            else:
                e.V("s_mov_b32 %s, %d" % (sT1, cs))
            e.V("s_lshl_b32 %s, %s, 7\ns_lshl_b32 %s, %s, 13\ns_add_u32 %s, %s, %s" % (sCH[cs], sT1, sT1, sT1, sBCH[cs], sT1, sT0))

    @staticmethod
    def a_lslot(q):
        return q % 4 if q < 14 else [4, 5, 6, 7, 8, 9, 2, 3, 0, 1][(q - 14) % 10]

    def a_prev(self, q):
        prev = [p for p in range(q) if self.a_lslot(p) == self.a_lslot(q)]
        return prev[-1] if prev else None

    def a_jobs(self, q0, q1, r0, r1, queue):
        e = self
        order = self.q_order()
        for q in range(q0, q1):
            cs, b = order[q]
            ids = e.ev.setdefault(("adma", q), [])
            pv = self.a_prev(q)

            def pre(q=q, pv=pv):
                if pv is None:
                    return e.ev.get("xfree") and (q != 3 or e.ev.get("norm_done"))
                rd = e.ev.get(("ard", pv))
                return rd is not None and (rd[0] <= e.lg_done or e.cyc - rd[1] >= 160)

            def mk(half, q=q, cs=cs, b=b, ids=ids, pv=pv):
                def emit():
                    if pv is not None:
                        e.wait(lg=e.ev[("ard", pv)][0])
                    e("s_add_u32 m0, %s, %d" % (sREG, self.a_lslot(q) * 4096))
                    e("s_add_u32 %s, %s, %s" % (sSO, sROW[b], sCH[cs]))
                    for r in (2 * half, 2 * half + 1):
                        ids.append(e("buffer_load_dwordx4 v%d, %s, %s offen offset:%d lds" % (vAD[r], sWSP, sSO, r * 1024)))
                    e.ev[("adma_t", q)] = e.cyc
                return emit
            for half in range(2):
                j = Job(pre, mk(half), 2)
                j.need = 8 * q - 10
                queue.append(j)
        for q in range(r0, r1):
            def pre(q=q):
                ids = e.ev.get(("adma", q), [])
                if len(ids) < 4:
                    return False
                if q >= 10 and not e.ev.get(("aused", q - 10)):
                    return False
                if 6 <= q < 10 and not e.ev.get("norm_done"):
                    return False
                return max(ids) <= e.vm_done or e.cyc - e.ev[("adma_t", q)] >= e.lat

            def mk(half, q=q):
                def emit():
                    e.wait(vm=max(e.ev[("adma", q)]))
                    for ks in (2 * half, 2 * half + 1):
                        i = e("ds_read_b128 %s, v%d offset:%d" % (rr(ASLOT[q % 10], 4, 4 * ks), vXR[ks], self.a_lslot(q) * 4096))
                    if half:
                        e.ev[("ard", q)] = (i, e.cyc)
                return emit
            e.qd.append(Job(pre, mk(0)))
            e.qd.append(Job(pre, mk(1)))

    def p1_finish(self, last):
        e = self
        e.stamp(5)
        e.p2_entry_loads()
        e.drain(lambda: not e.q1 and not e.q2 and not e.qd)
        e.wait_all(vm=False)
        names = {("adma", q): max(e.ev[("adma", q)]) for q in range(NQ_R, NQ_D)}
        names["last"] = last
        return e.join_state(names)

    def pass_a(self, queue_b, setup):
        e = self
        e.stream_init(sAO, sAB, sAE, "s_add_u32 %s, %s, 13\ns_lshl_b32 %s, %s, 7" % (sAB, sJ, sAB, sAB), 3456)
        self.occ = {}
        slotf = lambda s, k: (s % 4, 2)
        e.w_jobs("A", [0], slotf, sWIN, vWDI, (sAO, sAB, sAE), 3456, self.occ, True)
        e.bg_vm(force=True, maxn=18)
        e.late_setup()
        e.stamp(0)
        e.bg_vm(force=True, maxn=6)
        queue_b()
        e.a_tables()
        setup()
        e.p1_pass("A", [(e.rd_static(slotf, 0, 0), Z2ACC, 2), (e.rd_static(slotf, 0, 1), Z2ACC + 16, 2)], True, False)
        e.stamp(1)

    def second_pass(self, blocks):
        e = self
        e.tok, e.tok_t = 0.0, e.cyc
        e.wait_all(vm=False)
        e.ev["xfree"] = True
        e.a_jobs(0, NQ_D, 0, NQ_R, e.q2)
        e.z2_stats()
        e.stamp(2)
        per = 4 * len(blocks)
        o = e.opt
        n = 10 * per
        f_poll = min(o.get("f_poll", 50), n - 50) & ~1
        f_norm = min(o.get("f_norm", 70), n - 30) & ~1
        f_flag = min(o.get("f_flag", 120), n - 2) & ~1

        def norm():
            e.z2_norm()
            e.stamp(3)
        e.p1_pass("B", blocks, False, True, {f_poll: e.z2_poll, f_norm: norm, f_flag: e.z2_flag}, prev_tag="A")
        e.stamp(4)

    def role_a(self):
        e = self

        def queue_b():
            e("s_lshl2_add_u32 %s, %s, %s" % (sG, sHALF, sJL))
            e.stream_init(sBO, sBB, sBE, "s_mul_i32 %s, %s, 5\ns_lshr_b32 %s, %s, 2\ns_lshl_b32 %s, %s, 7\ns_add_u32 %s, %s, 1280"
                          % (sBB, sG, sBB, sBB, sBB, sBB, sBB, sBB), 3840)
            e.w_jobs("B", [0, 128, 1280, 1408], lambda s, k: (k, s % 3), sWQ, vWDQ, (sBO, sBB, sBE), 3840, self.occ, False)

        def setup():
            e.V("s_lshl_b32 %s, %s, 4\ns_and_b32 %s, %s, 63" % (sT2, sG, sT2, sT2))
            for b in range(5):
                if b == 2:
                    e.dyn_addr(b, "v_lshlrev_b32 v%d, 6, v3\nv_sub_u32 v%d, 64, v%d\nv_add_u32 v%d, %s, v%d" % (vT[0], vT[0], vT[0], vT[0], sT2, vT[0]),
                               "v_lshl_add_u32 v%d, v3, 1, v%d" % (vT[2], vT[2]))
                else:
                    u0 = 2 * b - (5 if b > 2 else 0)
                    e.dyn_addr(b, "v_lshl_add_u32 v%d, v3, 4, %s\nv_add_u32 v%d, %d, v%d" % (vT[0], sT2, vT[0], 16 * u0, vT[0]),
                               "v_add_u32 v%d, 2, v%d" % (vT[2], vT[2]) if b > 2 else None)
        e.pass_a(queue_b, setup)
        e.second_pass([(e.rd_dyn(b), ACCB + 16 * b, 1) for b in range(5)])
        e("s_mov_b32 s100, %s\ns_mov_b32 s101, %s" % (f32(LOG2E), f32(1e-6)))
        tmp = WRING
        P = Z2ACC
        e.wait_all(vm=False)
        e("s_barrier")
        e.V("v_add_u32 v%d, %s, v%d" % (vT[0], sREG, vL16))
        ones = WRING + 8
        for k in range(4):
            e.V("v_mov_b32 v%d, 0x3f803f80" % (ones + k))
        for st in range(2):
            e("ds_write_b128 v%d, %s offset:%d" % (vT[0], R("v", ones, 4), WOFF + (10 + st) * 1024))
        for n_, b in enumerate((3, 4, 0, 1, 2)):
            if b < 2:
                e.phi(ACCB + 16 * b, 16, tmp, 100)
            elif b == 2:
                saved = (e.q1, e.q2, e.qd)
                e.q1, e.q2, e.qd = [], [], []
                e("s_mov_b32 exec_lo, 0xffff\ns_mov_b32 exec_hi, 0xffff")
                e.phi(ACCB + 32, 16, tmp, 100)
                e("s_mov_b64 exec, -1")
                e.q1, e.q2, e.qd = saved
            d = P + 8 * (n_ % 4)
            e.pack(ACCB + 16 * b, 16, d)
            for st in range(2):
                e("ds_write_b128 v%d, %s offset:%d" % (vT[0], R("v", d + 4 * st, 4), WOFF + (2 * b + st) * 1024))
        sA = [sT0, sT1]
        sB = [sT2, sT3]
        e("s_add_u32 %s, %s, 2\ns_add_u32 %s, %s, 3\ns_min_u32 %s, %s, 5" % (sA[0], sW, sA[1], sW, sA[1], sA[1]))
        e("s_cmp_eq_u32 %s, 3\ns_cselect_b32 %s, 0, %s\ns_cselect_b32 %s, 1, %s" % (sW, sB[0], sW, sB[1], sW))
        AD = vT[1:5]
        for k, s_ in enumerate((sA[0], sB[0], sA[1], sB[1])):
            e("v_mov_b32 v%d, %s\nv_lshl_add_u32 v%d, v%d, 11, v%d" % (AD[k], s_, AD[k], AD[k], vL16))
        e.wait_all(vm=False)
        e("s_barrier")
        RES = [ACCB, ACCB + 16]

        def reads(step):
            w_, st = divmod(step, 2)
            if step == 4:
                for k in range(4):
                    e("v_add_u32 v%d, %d, v%d" % (AD[k], 2 * REGION, AD[k]))
            for k in range(4):
                e("ds_read_b128 %s, v%d offset:%d" % (R("a", step * 16 + 4 * k, 4), AD[k], WOFF + (w_ & 1) * REGION + st * 1024))
        reads(0); reads(1); reads(2)
        addr = []
        KO = [ACCB + 32, ACCB + 44]
        for jb in range(2):
            o_ = KO[jb]
            t = ["v_and_b32 v%d, 31, v0" % o_,
                 "v_mov_b32 v%d, %s" % (o_ + 1, sB[jb]),
                 "v_lshl_add_u32 v%d, v%d, 5, v%d" % (o_, o_ + 1, o_),
                 "v_mul_u32_u24 v%d, 0xccd, v%d" % (o_ + 1, o_),
                 "v_lshrrev_b32 v%d, 16, v%d" % (o_ + 1, o_ + 1),
                 "v_mul_u32_u24 v%d, 20, v%d" % (o_ + 2, o_ + 1),
                 "v_sub_u32 v%d, v%d, v%d" % (o_ + 3, o_, o_ + 2),
                 "v_mul_u32_u24 v%d, 80, v%d" % (o_ + 3, o_ + 3),
                 "v_lshl_add_u32 v%d, v%d, 15, v%d" % (o_ + 3, o_ + 1, o_ + 3),
                 "v_lshrrev_b32 v%d, 5, v0" % (o_ + 4),
                 "v_mov_b32 v%d, %s" % (o_ + 5, sA[jb]),
                 "v_lshlrev_b32 v%d, 5, v%d" % (o_ + 5, o_ + 5),
                 "v_lshl_add_u32 v%d, v%d, 2, v%d" % (o_ + 5, o_ + 4, o_ + 5),
                 "v_subrev_u32 v%d, 0x50, v%d" % (o_ + 5, o_ + 5),
                 "v_sub_u32 v%d, v%d, v%d" % (o_ + 5, o_ + 5, o_ + 2),
                 "v_cmp_gt_u32 vcc, 0x50, v%d" % o_,
                 "v_mov_b32 v%d, 0x%x" % (o_ + 11, OOB),
                 "v_cndmask_b32 v%d, v%d, v%d, vcc" % (o_ + 3, o_ + 11, o_ + 3)]
            for jq in range(4):
                t += ["v_add_u32 v%d, %d, v%d" % (o_ + 2, 8 * jq, o_ + 5),
                      "v_cmp_gt_u32 vcc, 20, v%d" % (o_ + 2),
                      "v_lshl_add_u32 v%d, v%d, 2, v%d" % (o_ + 2, o_ + 2, o_ + 3),
                      "v_cndmask_b32 v%d, v%d, v%d, vcc" % (o_ + 6 + jq, o_ + 11, o_ + 2)]
            t += ["v_lshl_add_u32 v%d, v%d, 7, v%d" % (o_ + 2, o_ + 4, o_),
                  "s_cmp_eq_u32 %s, 5" % sA[jb],
                  "s_cselect_b32 %s, 0x50, 0" % sSO,
                  "v_cmp_gt_u32 vcc, %s, v%d" % (sSO, o_ + 2),
                  "v_lshlrev_b32 v%d, 2, v%d" % (o_ + 2, o_),
                  "v_cndmask_b32 v%d, v%d, v%d, vcc" % (o_ + 10, o_ + 11, o_ + 2)]
            addr += t
        for step in range(8):
            for jb in range(2):
                base = step * 16 + 8 * jb
                acc = R("v", RES[jb], 16)
                e("v_mfma_f32_32x32x16_bf16 %s, %s, %s, %s" % (acc, R("a", base, 4), R("a", base + 4, 4), "0" if step == 0 else acc))
                if jb == 0 and step + 3 < 8:
                    reads(step + 3)
                else:
                    for _ in range(7):
                        if addr:
                            e(addr.pop(0))
        while addr:
            e(addr.pop(0))
        e("s_lshl_b32 %s, %s, 17\ns_lshl_b32 %s, %s, 11\ns_add_u32 %s, %s, %s\ns_add_u32 %s, %s, %d" % (sT0, sG, sT1, sI, sT0, sT0, sT1, sT0, sT0, KVP))
        e("s_mul_i32 %s, %s, 2560\ns_mul_i32 %s, %s, 320\ns_add_u32 %s, %s, %s\ns_add_u32 %s, %s, %d" % (sT1, sI, sT2, sG, sT1, sT1, sT2, sT1, sT1, ZP))
        for jb in range(2):
            for jq in range(4):
                e("buffer_store_dwordx4 %s, v%d, %s, %s offen sc1" % (R("v", RES[jb] + 4 * jq, 4), KO[jb] + 6 + jq, sWS, sT0))
            last = e("buffer_store_dword v%d, v%d, %s, %s offen sc1" % (RES[jb], KO[jb] + 10, sWS, sT1))
        e("s_lshl4_add_u32 %s, %s, %s\ns_lshl2_add_u32 %s, %s, %s\ns_lshl2_add_u32 %s, %s, %s" % (sFL, sHALF, sI, sFL, sFL, sJL, sFL, sFL, sW))
        e("s_lshl_b32 %s, %s, 7\ns_add_u32 %s, %s, %d" % (sFL, sFL, sFL, sFL, F_KV))
        return last

    def z1_store(self, nblk, first_text):
        e = self
        e("s_lshl2_add_u32 %s, %s, %s\ns_mul_i32 %s, %s, 28" % (sT0, sI, sW, sT0, sT0))
        e(first_text)
        e("s_add_u32 %s, %s, %s\ns_lshl_b32 %s, %s, 11\ns_add_u32 %s, %s, %d" % (sT0, sT0, sT1, sT0, sT0, sT0, sT0, Z1))
        for b in range(nblk):
            d = Z2ACC + 8 * (b % 4)
            e.pack(ACCB + 16 * b, 16, d)
            if b == 4:
                e("s_add_u32 %s, %s, 8192" % (sT0, sT0))
            for p in range(2):
                o_ = (b % 4) * 2048 + p * 1024
                last = e("buffer_store_dwordx4 %s, v%d, %s, %s offen offset:%d sc1" % (R("v", d + 4 * p, 4), vL16B if o_ >= 4096 else vL16, sWS, sT0, o_ % 4096))
            e.tok -= 2
        return last

    def z1_flag_addr(self):
        self("s_lshl2_add_u32 %s, %s, %s\ns_lshl3_add_u32 %s, %s, %s" % (sFL, sI, sW, sFL, sFL, sG))
        self("s_lshl_b32 %s, %s, 7\ns_add_u32 %s, %s, %d" % (sFL, sFL, sFL, sFL, F_Z1))

    def role_b(self):
        e = self

        def queue_b():
            e("s_mul_i32 %s, %s, 3\ns_add_u32 %s, %s, %s\ns_sub_u32 %s, %s, 4" % (sG, sHALF, sG, sG, sJL, sG, sG))
            e.stream_init(sBO, sBB, sBE, "s_mul_i32 %s, %s, 5\ns_lshr_b32 %s, %s, 1\ns_lshl_b32 %s, %s, 7" % (sBB, sG, sBB, sBB, sBB, sBB), 3456)
            e.w_jobs("B", [0, 128, 256], lambda s, k: (k, s % 3), sWIN, vWDI, (sBO, sBB, sBE), 3456, self.occ, False)

        def setup():
            e.V("s_and_b32 %s, %s, 1\ns_lshl_b32 %s, %s, 5" % (sT2, sG, sT2, sT2))
            for b in range(5):
                e.dyn_addr(b, "v_lshl_add_u32 v%d, v3, 4, %s\nv_add_u32 v%d, %d, v%d" % (vT[0], sT2, vT[0], 32 * b, vT[0]))
        e.pass_a(queue_b, setup)
        e.second_pass([(e.rd_dyn(b), ACCB + 16 * b, 2) for b in range(5)])
        last = e.z1_store(5, "s_mul_i32 %s, %s, 5\ns_add_u32 %s, %s, 1" % (sT1, sG, sT1, sT1))
        e.z1_flag_addr()
        return last

    def seg320(self, regs_):
        e = self
        e.V("s_mul_i32 %s, %s, 320" % (sT2, sW))
        for k, r_ in enumerate(regs_):
            e.V("v_add_u32 v%d, %d, v0\nv_mul_u32_u24 v%d, 0xccd, v%d\nv_lshrrev_b32 v%d, 16, v%d" % (vT[0], 64 * k, vT[1], vT[0], vT[1], vT[1]))
            e.V("v_mul_u32_u24 v%d, %d, v%d\nv_lshl_add_u32 v%d, v%d, 4, v%d\nv_add_u32 v%d, %s, v%d"
                % (vT[1], 1280 - 320, vT[1], r_, vT[0], vT[1], r_, sT2, r_))

    @staticmethod
    def unit_col(U):
        c, t = divmod(U, 5)
        return (80 * c + (32 * (t >> 1) + 4 * (t & 1) if t < 4 else 64), 8 if t < 4 else 4)

    def role_l(self):
        e = self
        slotf = lambda s, k: (k, s % 3)
        GWL = WOFF + 3 * REGION

        def queue_b():
            e("s_mov_b32 %s, 5" % sG)
            e.stream_init(sBO, sBB, sBE, "s_mov_b32 %s, %d" % (sBB, 12 * 128), 3456)
            e("s_lshl_b32 %s, %s, 7" % (sT0, sROT))
            ids = e.ev.setdefault(("dma", "B", 0), [])
            for t in range(2):
                e("v_add_u32 v%d, %s, v%d" % (vT[0], sT0, vL16))
                if t:
                    e("v_add_u32 v%d, 0x400, v%d" % (vT[0], vT[0]))
                e("v_subrev_u32 v%d, 0x500, v%d\nv_min_u32 v%d, v%d, v%d" % (vT[1], vT[0], vT[0], vT[0], vT[1]))
                e("s_mov_b32 m0, %d" % (GWL + t * 1024))
                ids.append(e("buffer_load_dwordx4 v%d, %s, 0 offen lds" % (vT[0], sGW)))
            e.w_jobs("B", [0, 128], slotf, sWIN, vWDI, (sBO, sBB, sBE), 3456, self.occ, False)
            e.ev[("ndma", "B", 0)] += 2

        def setup():
            e.V("v_lshrrev_b32 v%d, 5, v0\nv_lshlrev_b32 v%d, 4, v%d\nv_add_u32 v%d, %d, v%d" % (vWB[0], vWB[0], vWB[0], vWB[0], GWL, vWB[0]))

        def rd_gate(s, ks, dst):
            return e("ds_read_b128 %s, v%d offset:%d" % (R("v", dst, 4), vWB[0], s * 128 + ks * 32))
        e.pass_a(queue_b, setup)
        e.second_pass([(e.rd_static(slotf, 0, 1), ACCB, 2), (e.rd_static(slotf, 1, 0), ACCB + 16, 2), (rd_gate, ACCB + 32, 2)])
        e.wait_all(vm=False)
        e("s_barrier")
        SG = [ACCB + 48 + k for k in range(5)]
        e.seg320(SG)
        dm = []
        for kb in range(2):
            e("s_add_u32 %s, %s, %d\ns_mul_i32 %s, %s, %d" % (sT0, sI, 16 * kb, sT0, sT0, 32 * 1280))
            for pc in range(10):
                if pc == 5:
                    e("s_add_u32 %s, %s, %d" % (sT0, sT0, 16 * 1280))
                e("s_add_u32 m0, %s, %d" % (sREG, WOFF + kb * 10240 + pc * 1024))
                i = e("buffer_load_dwordx4 v%d, %s, %s offen lds" % (SG[pc % 5], sWOUT, sT0))
            dm.append(i)
            e.tok -= 10
        g = ACCB + 32
        e.V("v_mul_f32 v%d, %s, v%d\nv_exp_f32 v%d, v%d\nv_add_f32 v%d, 1.0, v%d\nv_rcp_f32 v%d, v%d" % (g, f32(-LOG2E), g, g, g, g, g, g, g))
        e("s_lshl2_add_u32 %s, %s, %s\ns_lshl_b32 %s, %s, 7\ns_add_u32 %s, %s, %d" % (sT0, sI, sW, sT0, sT0, sT0, sT0, GATE))
        e("v_and_b32 v%d, 0x7c, v%d" % (vT[0], vL4))
        e("buffer_store_dword v%d, v%d, %s, %s offen sc1" % (g, vT[0], sWS, sT0))
        last = e.z1_store(2, "s_mov_b32 %s, 26" % sT1)
        e.z1_flag_addr()
        a = vT[2]
        e.V("v_lshrrev_b32 v%d, 5, v0\nv_bfe_u32 v%d, v0, 2, 3\nv_lshl_add_u32 v%d, v%d, 4, v%d" % (a, a + 1, a, a, a + 1))
        e.V("v_mul_u32_u24 v%d, 320, v%d\nv_add_u32 v%d, %s, v%d\nv_and_b32 v%d, 3, v0" % (a, a, a, sREG, a, a + 2))
        e.V("v_lshl_add_u32 v%d, v%d, 3, v%d\nv_lshl_add_u32 v%d, v%d, 4, v%d" % (a + 1, a + 2, a, a, a + 2, a))
        e("s_cmp_lt_u32 %s, 11\ns_cselect_b32 %s, 0, 0x%x" % (sI, sT1, OOB))
        e.V("v_add_u32 v%d, %s, v%d" % (a + 3, sT1, vL16))
        e.flag(last, sFL)
        for kb in range(2):
            e.wait(vm=dm[kb])
            for U in range(10):
                col, step = self.unit_col(U)
                for sub in range(2):
                    e("ds_read_b64_tr_b16 %s, v%d offset:%d" % (R("a", 40 * kb + 4 * U + 2 * sub, 2), a if step == 8 else a + 1,
                                                                WOFF + kb * 10240 + sub * 8 * 320 + col * 2))
            for U in range(10):
                c, t = divmod(U, 5)
                if t in (0, 4):
                    e("s_lshl1_add_u32 %s, %s, %d\ns_mul_i32 %s, %s, 48\ns_add_u32 %s, %s, %s" % (sT0, sW, c, sT0, sT0, sT0, sT0, sI))
                    e("s_mul_i32 %s, %s, 5120\ns_add_u32 %s, %s, %d" % (sT0, sT0, sT0, sT0, BP + (20 + 16 * kb) * 5120 + t * 1024))
                last = e("buffer_store_dwordx4 %s, v%d, %s, %s offen offset:%d sc1" % (R("a", 40 * kb + 4 * U, 4), a + 3 if kb else vL16, sWS, sT0, (t % 4) * 1024))
                e.tick()
            e.tok -= 10
        e("s_lshl_b32 %s, %s, 5\ns_add_u32 %s, %s, %s\ns_lshl_b32 %s, %s, 7\ns_add_u32 %s, %s, %d" % (sFL, sW, sFL, sFL, sI, sFL, sFL, sFL, sFL, F_WO))
        return last

    def ap_voff(self, dst):
        self.V("v_bfe_u32 v%d, v0, 4, 1\nv_mul_u32_u24 v%d, 0xc000, v%d\nv_and_b32 v%d, 15, v0" % (dst, dst, dst, vT[0]))
        self.V("v_lshl_add_u32 v%d, v%d, 4, v%d\nv_lshrrev_b32 v%d, 5, v0\nv_lshl_add_u32 v%d, v%d, 8, v%d" % (dst, vT[0], dst, vT[0], dst, vT[0], dst))

    def role_h(self):
        e = self
        e.wring = 208
        Q = 48
        e("v_lshlrev_b32 v%d, 4, v0" % vL16)
        for k in range(4):
            e("v_mov_b32 v%d, -1" % (240 + k))
        e("s_lshl1_add_u32 %s, %s, %s\ns_lshl2_add_u32 %s, %s, %s\ns_mul_i32 %s, %s, 5120" % (sT0, sI, sHALF, sT0, sT0, sW, sT0, sT0))
        for k in range(5):
            if k == 4:
                e("s_add_u32 %s, %s, 4096" % (sT0, sT0))
            e("buffer_store_dwordx4 v[240:243], v%d, %s, %s offen offset:%d sc1" % (vL16, sWS, sT0, (k % 4) * 1024))
        e.stream_init(sAO, sAB, sAE, "s_mul_i32 %s, %s, 640" % (sAB, sHALF), 3840)
        occ = {}
        PS = [(3, 0), (3, 1), (3, 2), (0, 2), (1, 2), (2, 2), (0, 1), (1, 1)]
        sl1 = lambda s, k: PS[(s % 4) * 2 + k]
        sl2 = lambda s, k: (k, s % 3)
        e.w_jobs("A", [0, 128], sl1, sWQ, vWDQ, (sAO, sAB, sAE), 3840, occ, True)
        e.bg_vm(force=True, maxn=16)
        e.late_setup()
        e.stamp(0)
        e.bg_vm(force=True, maxn=16)
        e.stream_init(sBO, sBB, sBE, "s_mov_b32 %s, %s" % (sBB, sAB), 3840)
        e.w_jobs("B", [256, 384, 512], sl2, sWQ, vWDQ, (sBO, sBB, sBE), 3840, occ, False)

        def arrive():
            e("v_mov_b32 v244, 1\ns_lshl_b32 %s, %s, 12\ns_mov_b64 exec, 1" % (sT0, sW))
            e("buffer_atomic_add v244, off, %s, %s sc1" % (sDBG, sT0))
            e("s_mov_b64 exec, -1")
        e.p1_pass("A", [(e.rd_static(sl1, b >> 1, b & 1), Q + 16 * b, 2) for b in range(4)], True, False, {0: arrive})
        e.stamp(1)
        e.p1_pass("B", [(e.rd_static(sl2, b >> 1, b & 1), Q + 64 + 16 * b, 2) for b in range(6)], False, False, prev_tag="A")
        e.stamp(4)
        ld0 = "buffer_load_dword v%d, off, %s, 0 sc1" % (vT[11], sDBG)
        e(ld0)
        e.wait_all(vm=False)
        e("s_barrier")
        SG = [16, 17, 18, 19, 20]
        e.seg320(SG)
        e("s_lshl4_add_u32 %s, %s, %s\ns_mul_i32 %s, %s, %d" % (sG, sHALF, sI, sT0, sG, 20 * 1280))
        for pc in range(7):
            if pc == 5:
                e("s_add_u32 %s, %s, %d" % (sT0, sT0, 16 * 1280))
            e("s_add_u32 m0, %s, %d" % (sREG, WOFF + pc * 1024))
            if pc == 6:
                e("s_mov_b64 exec, 0xffff")
            wo_id = e("buffer_load_dwordx4 v%d, %s, %s offen lds" % (SG[pc % 5], sWO, sT0))
        e("s_mov_b64 exec, -1")
        e("s_mov_b32 s100, %s\ns_mov_b32 s101, %s" % (f32(LOG2E), f32(1e-6)))
        e.phi(Q, 128, 240, 100)
        e.check(ld0, "v_cmp_gt_u32 vcc, 32, v%d" % vT[11])
        e("s_lshl2_add_u32 %s, %s, %s\ns_lshl_b32 %s, %s, 13\ns_add_u32 %s, %s, %d" % (sT0, sHALF, sW, sT0, sT0, sT0, sT0, F_KV))
        e("s_lshl2_add_u32 %s, %s, %s\ns_lshl_b32 %s, %s, 7\ns_lshl_b32 %s, %s, 3\ns_add_u32 %s, %s, %d" % (sT2, sI, sW, sT2, sT2, sT1, sT2, sT1, sT1, F_Z1 + 5 * 128))
        ld1 = "buffer_load_dword v208, v%d, %s, %s offen sc1\nbuffer_load_dword v209, off, %s, %s sc1" % (vL128, sWS, sT0, sWS, sT1)
        e(ld1)
        e.phi(Q + 128, 32, 240, 100)
        e.stamp(5)
        e.check(ld1, "v_max_u32 v213, v208, v209\nv_cmp_eq_u32 vcc, -1, v213")
        e.stamp(6)
        e("v_cmp_gt_u32 vcc, 36, v0\nv_mov_b32 v%d, 0x%x\nv_cndmask_b32 v%d, v%d, v%d, vcc" % (vT[1], OOB, vT[0], vT[1], vL16))
        e("s_lshl_b32 %s, %s, 15\ns_lshl_b32 %s, %s, 13\ns_add_u32 %s, %s, %s\ns_add_u32 %s, %s, %d" % (sT0, sG, sT1, sW, sT0, sT0, sT1, sT0, sT0, KVP))
        for r in range(4):
            if r == 2:
                e("s_add_u32 %s, %s, 4096" % (sT0, sT0))
            e("buffer_load_dwordx4 %s, v%d, %s, %s offen offset:%d sc1" % (R("v", 208 + 8 * r, 4), vL16, sWS, sT0, (r & 1) * 2048))
            e("buffer_load_dwordx4 %s, v%d, %s, %s offen offset:%d sc1" % (R("v", 212 + 8 * r, 4), vT[0], sWS, sT0, (r & 1) * 2048 + 1024))
        e("s_mul_i32 %s, %s, %d\ns_mul_i32 %s, %s, 1280\ns_add_u32 %s, %s, %s\ns_add_u32 %s, %s, %d" % (sT0, sW, 4 * 2560, sT1, sHALF, sT0, sT0, sT1, sT0, sT0, ZP))
        for r in range(4):
            e("buffer_load_dwordx4 %s, v%d, %s, %s offen sc1" % (R("v", 240 + 4 * r, 4), vL16, sWS, sT0))
            e("buffer_load_dword v%d, v%d, %s, %s offen offset:1024 sc1" % (32 + r, vL4, sWS, sT0))
            if r < 3:
                e("s_add_u32 %s, %s, 2560" % (sT0, sT0))
        vG = vT[10]
        e("s_add_u32 %s, %s, %d\nv_and_b32 v%d, 0x7c, v%d" % (sT2, sT2, GATE, vT[2], vL4))
        e("buffer_load_dword v%d, v%d, %s, %s offen sc1" % (vG, vT[2], sWS, sT2))
        a16, a4 = vT[3], vT[4]
        e("v_add_u32 v%d, %s, v%d\nv_add_u32 v%d, %s, v%d" % (a16, sREG, vL16, a4, sREG, vL4))
        for r in range(1, 4):
            for k in range(0, 8, 2):
                e("v_pk_add_f32 %s, %s, %s" % (R("v", 208 + k, 2), R("v", 208 + k, 2), R("v", 208 + 8 * r + k, 2)))
        e("ds_write_b128 v%d, v[208:211]\nds_write_b128 v%d, v[212:215] offset:1024" % (a16, a16))
        for r in range(1, 4):
            for k in range(0, 4, 2):
                e("v_pk_add_f32 %s, %s, %s" % (R("v", 240 + k, 2), R("v", 240 + k, 2), R("v", 240 + 4 * r + k, 2)))
            e("v_add_f32 v32, v32, v%d" % (32 + r))
        e("ds_write_b128 v%d, v[240:243] offset:2048\nds_write_b32 v%d, v32 offset:3072" % (a16, a4))
        ka = [21, 22]
        e("v_and_b32 v%d, 31, v0\nv_min_u32 v%d, 19, v%d\nv_mul_u32_u24 v%d, 80, v%d" % (vT[0], vT[0], vT[0], 23, vT[0]))
        e("v_lshrrev_b32 v24, 5, v0\nv_lshl_add_u32 v%d, v24, 5, v23\nv_add_u32 v%d, %d, v%d" % (ka[0], ka[1], 2 * REGION, ka[0]))
        e("v_add_u32 v25, %d, v23\nv_add_u32 v26, %d, v%d\nv_add_u32 v27, %d, v%d" % (2 * REGION, 2 * REGION, vL16, 2 * REGION, vL4))
        e.wait_all(vm=False)
        e("s_barrier")
        for r in range(4):
            e("ds_read_b128 %s, v%d offset:%d" % (R("v", 240 + 4 * r, 4), 26 if r >= 2 else vL16, (r & 1) * REGION + 2048))
            e("ds_read_b32 v%d, v%d offset:%d" % (32 + r, 27 if r >= 2 else vL4, (r & 1) * REGION + 3072))
        for r in range(4):
            for k in range(2):
                e("ds_read_b128 %s, v%d offset:%d" % (R("v", 208 + 8 * r + 4 * k, 4), ka[r >> 1], (r & 1) * REGION + 16 * k))
        for r in range(1, 4):
            for k in range(0, 4, 2):
                e("v_pk_add_f32 %s, %s, %s" % (R("v", 240 + k, 2), R("v", 240 + k, 2), R("v", 240 + 4 * r + k, 2)))
            e("v_add_f32 v32, v32, v%d" % (32 + r))
        e("ds_write_b128 v%d, v[240:243] offset:4096\nds_write_b32 v%d, v32 offset:5120" % (a16, a4))
        for r in range(4):
            e("ds_read_b128 %s, v%d offset:%d" % (R("v", 240 + 4 * r, 4), 25 if r >= 2 else 23, (r & 1) * REGION + 64))
        for r in range(1, 4):
            for k in range(0, 8, 2):
                e("v_pk_add_f32 %s, %s, %s" % (R("v", 208 + k, 2), R("v", 208 + k, 2), R("v", 208 + 8 * r + k, 2)))
        for r in range(1, 4):
            for k in range(0, 4, 2):
                e("v_pk_add_f32 %s, %s, %s" % (R("v", 240 + k, 2), R("v", 240 + k, 2), R("v", 240 + 4 * r + k, 2)))
        KA = 244
        e.pack(208, 8, KA)
        e.pack(240, 4, KA + 4)
        e("v_cmp_gt_u32 vcc, 32, v0\nv_mov_b32 v%d, 0\nv_mov_b32 v%d, 0" % (KA + 6, KA + 7))
        e("v_cndmask_b32 v%d, 0, v%d, vcc\nv_cndmask_b32 v%d, 0, v%d, vcc" % (KA + 4, KA + 4, KA + 5, KA + 5))
        e("v_bfe_u32 v16, v0, 2, 2\nv_mul_u32_u24 v16, 320, v16\nv_add_u32 v16, %s, v16\nv_mul_u32_u24 v17, %d, v24" % (sREG, 8 * 320))
        e("v_and_b32 v18, 3, v0\nv_bfe_u32 v19, v0, 4, 1\nv_cmp_eq_u32 %s, 1, v19" % sMASK)
        e.wait(vm=wo_id)
        for bb in range(5):
            (c0, s0), (c1, s1) = self.unit_col(2 * bb), self.unit_col(2 * bb + 1)
            e("v_mul_u32_u24 v20, %d, v18\nv_add_u32 v20, %d, v20\nv_mul_u32_u24 v21, %d, v18\nv_add_u32 v21, %d, v21" % (2 * s0, 2 * c0, 2 * s1, 2 * c1))
            e("v_cndmask_b32_e64 v20, v20, v21, %s\nv_add_u32 v20, v20, v16\nv_add_u32 v21, v20, v17" % sMASK)
            for t in range(2):
                e("ds_read_b64_tr_b16 %s, v21 offset:%d" % (R("a", 8 * bb + 2 * t, 2), WOFF + t * 4 * 320))
            for t in range(2):
                e("ds_read_b64_tr_b16 %s, v20 offset:%d" % (R("a", 8 * bb + 4 + 2 * t, 2), WOFF + 16 * 320))
        KP = [16, 17, 18]
        e("s_mul_i32 %s, %s, 5" % (sT0, sG))
        e("v_and_b32 v20, 15, v0\nv_lshlrev_b32 v20, 4, v20\nv_mov_b32 v25, 0x%x" % OOB)
        for jq in range(3):
            e("v_add_u32 v21, %s, v24\nv_add_u32 v21, %d, v21" % (sT0, 2 * jq))
            e("v_lshrrev_b32 v22, 3, v21\nv_mul_u32_u24 v22, 5120, v22\nv_add_u32 v22, v22, v20")
            e("v_bfe_u32 v23, v21, 2, 1\nv_lshl_add_u32 v22, v23, 9, v22\nv_and_b32 v23, 1, v21\nv_lshl_add_u32 v22, v23, 8, v22")
            e("v_bfe_u32 v23, v21, 1, 1\nv_lshl_add_u32 v%d, v23, 3, v22" % KP[jq])
        e("v_cndmask_b32 v%d, v25, v%d, vcc" % (KP[2], KP[2]))
        e("v_lshlrev_b32 v20, 10, v19\nv_mul_u32_u24 v21, %d, v19" % (48 * 5120 - 4096))
        for jq in range(3):
            e("v_add_u32 v%d, v%d, v21\nv_add_u32 v%d, v%d, v20" % (22 + jq + (1 if jq == 2 else 0), KP[jq], KP[jq], KP[jq]))
        KPX = [22, 23, 25]
        e("s_mul_i32 %s, %s, %d\ns_add_u32 %s, %s, %d" % (sT0, sW, 2 * 48 * 5120, sT0, sT0, BP))

        def mm(bb):
            d = R("v", 208 + 16 * (bb & 1), 16)
            e("v_mfma_f32_32x32x16_bf16 %s, %s, %s, 0" % (d, R("v", KA, 4), R("a", 8 * bb, 4)))
            e("v_mfma_f32_32x32x16_bf16 %s, %s, %s, %s" % (d, R("v", KA + 4, 4), R("a", 8 * bb + 4, 4), d))
        mm(0)
        for bb in range(5):
            if bb < 4:
                mm(bb + 1)
            pk = 32 + 6 * 0
            c, t = divmod(2 * bb, 5)
            e("s_add_u32 %s, %s, %d" % (sT1, sT0, c * 48 * 5120 + t * 1024))
            for jq in range(3):
                src = 208 + 16 * (bb & 1) + 4 * jq
                dst = (252, 254, 32)[jq]
                e.pack(src, 4, dst)
                m_last = e("buffer_store_dwordx2 %s, v%d, %s, %s offen sc1" % (R("v", dst, 2), (KPX if bb == 2 else KP)[jq], sWS, sT1))
        e.stamp(7)
        vz = 16
        e("v_lshl_add_u32 v%d, v24, 4, %s" % (vz, sREG))
        e.ap_voff(17)
        e("s_lshl2_add_u32 %s, %s, %s\ns_mul_i32 %s, %s, %d\ns_mul_i32 %s, %s, 10240" % (sT0, sI, sW, sT0, sT0, 2 * 49152, sT1, sHALF))
        e("s_add_u32 %s, %s, %s\ns_add_u32 %s, %s, %d" % (sT0, sT0, sT1, sT0, sT0, AP))
        ZB = [208, 228]

        def zread(pr):
            for k in range(5):
                e("ds_read_b128 %s, v%d offset:%d" % (R("v", ZB[pr & 1] + 4 * k, 4), vz, 4096 + (5 * pr + k) * 32))
        zread(0)
        A_, B_, M_ = 18, 20, 22
        done = 0
        for pr in range(8):
            if pr < 7:
                zread(pr + 1)
            for k in range(5):
                acc = (A_, A_, M_, B_, B_)[k]
                x = Q + 4 * (5 * pr + k)
                z = ZB[pr & 1] + 4 * k
                if k in (0, 2, 3):
                    e("v_pk_mul_f32 %s, %s, %s" % (R("v", acc, 2), R("v", x, 2), R("v", z, 2)))
                else:
                    e("v_pk_fma_f32 %s, %s, %s, %s" % (R("v", acc, 2), R("v", x, 2), R("v", z, 2), R("v", acc, 2)))
                e("v_pk_fma_f32 %s, %s, %s, %s" % (R("v", acc, 2), R("v", x + 2, 2), R("v", z + 2, 2), R("v", acc, 2)))
            e("v_add_f32 v%d, v%d, v%d\nv_add_f32 v%d, v%d, v%d\nv_add_f32 v%d, v%d, v%d" % (A_, A_, A_ + 1, B_, B_, B_ + 1, M_, M_, M_ + 1))
            e("v_add_f32 v%d, %s, v%d" % (M_, f32(1e-6), M_))
            e("v_permlane32_swap_b32 v%d, v%d" % (A_, B_))
            e("v_add_f32 v%d, v%d, v%d\nv_add_f32 v%d, v%d, v%d" % (A_, A_, B_, M_, M_, A_))
            e("v_rcp_f32 v%d, v%d\nv_mul_f32 v%d, v%d, v%d" % (M_, M_, M_, M_, vG))
            e("v_mov_b32 v%d, v%d\nv_mov_b32 v%d, v%d" % (A_, M_, B_, M_))
            x = Q + 4 * (5 * pr + 2)
            for o_ in (0, 2):
                e("v_pk_mul_f32 %s, %s, %s op_sel_hi:[1,0]" % (R("v", x + o_, 2), R("v", x + o_, 2), R("v", M_, 2)))
            e("v_permlane32_swap_b32 v%d, v%d" % (A_, B_))
            for k in (0, 1, 3, 4):
                x = Q + 4 * (5 * pr + k)
                for o_ in (0, 2):
                    e("v_pk_mul_f32 %s, %s, %s op_sel_hi:[1,0]" % (R("v", x + o_, 2), R("v", x + o_, 2), R("v", A_ if k < 2 else B_, 2)))
            while 2 * (done + 1) <= 5 * (pr + 1):
                b, p = divmod(done, 2)
                d = 248 + 4 * (done & 1)
                e.pack(Q + 8 * done, 8, d)
                if done and done % 8 == 0:
                    e("s_add_u32 %s, %s, 4096" % (sT0, sT0))
                last = e("buffer_store_dwordx4 %s, v17, %s, %s offen offset:%d sc1" % (R("v", d, 4), sWS, sT0, (b % 4) * 1024 + p * 512))
                done += 1
            if pr == 4:
                e("s_lshl_b32 %s, %s, 5\ns_add_u32 %s, %s, %s\ns_lshl_b32 %s, %s, 7\ns_add_u32 %s, %s, %d" % (sT1, sW, sT1, sT1, sG, sT1, sT1, sT1, sT1, F_M))
                e.flag(m_last, sT1)
        e("s_lshr_b32 %s, %s, 1\ns_lshl1_add_u32 %s, %s, %s\ns_lshl_b32 %s, %s, 5" % (sT0, sW, sT0, sI, sT0, sT0, sT0))
        e("s_and_b32 %s, %s, 1\ns_lshl1_add_u32 %s, %s, %s\ns_add_u32 %s, %s, %s" % (sT1, sW, sT1, sHALF, sT1, sT0, sT0, sT1))
        e("s_lshl_b32 %s, %s, 7\ns_add_u32 %s, %s, %d" % (sT0, sT0, sT0, sT0, F_U + 28 * 128))
        e.flag(last, sT0)
        e.stamp(8)
        e.wait_all(vm=False)
        e("s_barrier")
        e("s_mov_b32 %s, 0x%x" % (sFL, OOB))
        if e.opt.get("stop", 9) <= 2:
            return None
        e.p3_setup()
        e.p3_poll1()
        e.p3_check1()
        e.p3_jobs()
        while e.ev["n3"] < N3:
            e.q1.pop(0).emit()
        e.q1 = []
        return e.join_state({"last": -1})

    def p2_entry_loads(self):
        e = self
        e("s_lshl2_add_u32 %s, %s, %s\ns_lshl_b32 %s, %s, 11\ns_add_u32 %s, %s, %d" % (sAO, sJ, sW, sAO, sAO, sAO, sAO, F_Z2N))
        e("v_min_u32 v%d, %d, v%d" % (vT[8], 15 * 128, vL128))
        e("s_lshl2_add_u32 %s, %s, %s\ns_lshl_b32 %s, %s, 6" % (sT0, sI, sW, sT0, sT0))
        e("v_and_b32 v%d, 31, v0\nv_lshlrev_b32 v%d, 1, v%d" % (vT[7], vT[7], vT[7]))
        e("buffer_load_ushort v%d, v%d, %s, %s offen" % (vT[10], vT[7], sBSP, sT0))
        self.z2n_poll = "buffer_load_dword v%d, v%d, %s, %s offen sc1" % (vT[9], vT[8], sWS, sAO)
        e(self.z2n_poll)

    def phase2(self, ids):
        e = self
        o = e.opt
        e.ev = {"xfree": True, "norm_done": True}
        for q in range(NQ_D):
            e.ev[("adma", q)] = [ids.get(("adma", q), -1)] * 4
            e.ev[("adma_t", q)] = e.cyc
        for q in range(NQ_R):
            e.ev[("ard", q)] = (-1, 0)
        e.lat = o.get("lat2", 1400)
        e.pace = o.get("pace2", 55)
        BS = [("a", 96), ("a", 128), ("v", 160)]
        ACC = [("a", 0), ("a", 32), ("a", 64), ("v", Z2ACC)]
        TT, RAW = 80, 112
        order = self.q_order()
        e("s_barrier")
        qa = []
        e.a_jobs(NQ_D, 32, NQ_R, 32, qa)
        cur = dict(f=-1)
        qb = []
        bid = {}
        for cs in range(8):
            for ks in range(4):
                def pre(cs=cs, ks=ks):
                    return cs < 3 or cur["f"] >= 32 * (cs - 3) + 25 + 2 * ks

                def emit(cs=cs, ks=ks):
                    for fb in range(2):
                        k = 2 * ks + fb
                        bid[(cs, ks)] = e("buffer_load_dwordx4 %s, v%d, %s, %s offen offset:%d sc1"
                                          % (rr(BS[cs % 3], 4, 4 * k), vL16B if k >= 4 else vL16, sWS, sBCH[cs], (k % 4) * 1024))
                j = Job(pre, emit, 2)
                j.need = (32 * cs if cs < 7 else 200) + 2 * ks
                qb.append(j)

        def issue(force=False):
            if not force and e.tokens() < 1.0:
                return False
            cand = [q for q in (qa, qb) if q and q[0].pre()]
            if not cand:
                if not qa and not qb and e.q1 and e.q1[0].pre() and e.ev["n3"] < N3:
                    cand = [e.q1]
                else:
                    return False
            q = min(cand, key=lambda q: q[0].need)
            j = q.pop(0)
            j.emit()
            e.tok = max(-8.0, e.tok - j.n)
            return True

        for _ in range(o.get("a_first", 2)):
            qa.pop(0).emit()
        e.check(e.z2n_poll, "v_cmp_eq_u32 vcc, -1, v%d" % vT[9])
        e.stamp(6)
        for _ in range(6):
            issue(True)
        e.tok, e.tok_t = 0.0, e.cyc
        e("v_lshlrev_b32 v%d, 16, v%d" % (vT[10], vT[10]))
        for k in range(32):
            e("v_mov_b32 v%d, v%d" % (Z2ACC + k, vT[10]))
        vG, vK = vT[6], vT[5]

        def z1_poll():
            e("s_lshl2_add_u32 %s, %s, %s\ns_lshl_b32 %s, %s, 7\ns_lshl_b32 %s, %s, 10\ns_add_u32 %s, %s, %d" % (sAB, sI, sW, sAE, sAB, sAO, sAB, sAO, sAO, F_Z1))
            e("v_min_u32 v%d, %d, v%d" % (vT[8], 5 * 128, vL128))
            self.z1_ld = "buffer_load_dword v%d, v%d, %s, %s offen sc1" % (vT[9], vT[8], sWS, sAO)
            e(self.z1_ld)

        def z1_load():
            e.check(self.z1_ld, "v_cmp_eq_u32 vcc, -1, v%d" % vT[9])
            e("s_mul_i32 %s, %s, 14\ns_add_u32 %s, %s, %s\ns_lshl_b32 %s, %s, 12\ns_add_u32 %s, %s, %d" % (sAB, sAB, sAB, sAB, sJ, sAB, sAB, sAB, sAB, Z1))
            e("s_add_u32 %s, %s, %d\nv_and_b32 v%d, 0x7c, v%d" % (sAE, sAE, GATE, vT[8], vL4))
            e("buffer_load_dword v%d, v%d, %s, %s offen sc1" % (vG, vT[8], sWS, sAE))
            for k in range(4):
                e("buffer_load_dwordx4 %s, v%d, %s, %s offen offset:%d sc1" % (R("v", RAW + 4 * k, 4), vL16, sWS, sAB, k * 1024))
            e.tok -= 4

        def z1_act():
            v = e.qv
            v.append("v_sub_f32 v%d, 1.0, v%d" % (vG, vG))
            v.append("v_mov_b32 v%d, %s" % (vK, f32(GK2)))
            for g0 in range(0, 32, 4):
                xs = [(TT + g0 + k, 128 + k) for k in range(4)]
                for k in range(0, 4, 2):
                    v.append("v_lshlrev_b32 v%d, 16, v%d" % (TT + g0 + k, RAW + (g0 + k) // 2))
                    v.append("v_and_b32 v%d, 0xffff0000, v%d" % (TT + g0 + k + 1, RAW + (g0 + k) // 2))
                for fmt in ("v_mul_f32 v{t}, v{x}, v{x}", "v_fmaak_f32 v{t}, v%d, v{t}, %s" % (vK, f32(GK1)), "v_mul_f32 v{t}, v{t}, v{x}",
                            "v_exp_f32 v{t}, v{t}", "v_mul_f32 v{x}, v{x}, v%d" % vG, "v_add_f32 v{t}, 1.0, v{t}", "v_rcp_f32 v{t}, v{t}",
                            "v_mul_f32 v{x}, v{x}, v{t}"):
                    for x, t in xs:
                        v.append(fmt.format(x=x, t=t))

        RA = vT[1:4]

        def tail_setup():
            e("v_add_u32 v%d, %s, v%d" % (vT[4], sREG, vL16))
            for b in range(3):
                e("s_add_u32 %s, %s, %d\ns_and_b32 %s, %s, 3\ns_mul_i32 %s, %s, %d" % (sT0, sW, 3 - b, sT0, sT0, sT0, sT0, REGION))
                e("v_add_u32 v%d, %s, v%d" % (RA[b], sT0, vL16))

        def p3_go():
            e.p3_check1()
            e.p3_jobs()

        hooks = {o.get("f_rflag", 24): lambda: e.flag(ids["last"], sFL), 56: z1_poll, 80: z1_load, 110: z1_act, 190: tail_setup}
        if o.get("stop", 9) > 2:
            hooks.update({180: e.p3_setup, 196: e.p3_poll1, 216: p3_go})
        e.ev["n3"] = 0
        wr = []
        for f in range(256):
            q, rem = divmod(f, 8)
            ks, fb = divmod(rem, 2)
            cs, b = order[q]
            if f in hooks:
                hooks[f]()
            while (cs, ks) not in bid:
                assert issue(True)
            guard = 0
            while ("ard", q) not in e.ev:
                if not (e.bg_ds() or issue(True)):
                    e.cyc += 200
                    guard += 1
                    assert guard < 50
            if fb == 0:
                e.wait(vm=bid[(cs, ks)])
            acc = rr(ACC[b], 16, 16 * fb)
            c = "0" if (cs == 0 and ks == 0 and b < 3) else acc
            e("v_mfma_f32_32x32x16_bf16 %s, %s, %s, %s" % (acc, rr(BS[cs % 3], 4, 4 * (2 * ks + fb)), rr(ASLOT[q % 10], 4, 4 * ks), c))
            cur["f"] = f
            e.ev["f"] = f
            if rem == 7:
                e.ev[("aused", q)] = True
                if cs == 7 and b < 3:
                    wr += [(f + 3 + 2 * k if k < 4 else f + 3 + 2 * k - 3, b, k) for k in range(8)]
            t0 = e.cyc
            if wr and wr[0][0] <= f:
                _, b_, k = wr.pop(0)
                e("ds_write_b128 v%d, %s offset:%d" % (vT[4], rr(ACC[b_], 4, 4 * k), WOFF + b_ * 8192 + k * 1024))
                if k == 7:
                    e.ev[("accfree", b_)] = True
            elif not e.bg_ds():
                issue()
            while e.qv and e.cyc - t0 <= 12:
                e(e.qv.pop(0))
        while wr:
            _, b_, k = wr.pop(0)
            e("ds_write_b128 v%d, %s offset:%d" % (vT[4], rr(ACC[b_], 4, 4 * k), WOFF + b_ * 8192 + k * 1024))
        e.ev[("accfree", 2)] = True
        e.ev["f"] = 999
        while e.qv:
            e(e.qv.pop(0))
        e.stamp(7)
        e.wait_all(vm=False)
        e("s_barrier")
        rd = [(b, k) for k in range(8) for b in range(3)]
        NTMP = 12

        def rd_issue(n):
            b, k = rd[n]
            e("ds_read_b128 %s, v%d offset:%d" % (R("v", RAW + 4 * (n % NTMP), 4), RA[b], WOFF + b * 8192 + k * 1024))
        for n in range(NTMP):
            rd_issue(n)
        vU, vU0 = vT[7], vT[8]
        saved, e.q1 = e.q1, []
        e.ap_voff(vU)
        e.q1 = saved
        e("s_cmp_eq_u32 %s, 0\ns_cselect_b32 %s, 0x%x, 0\nv_add_u32 v%d, %s, v%d" % (sJ, sT1, OOB, vU0, sT1, vU))
        e("s_lshl2_add_u32 %s, %s, %s\ns_mul_i32 %s, %s, %d\ns_lshl_b32 %s, %s, 11" % (sT0, sI, sW, sT0, sT0, 2 * 49152, sT1, sJ))
        e("s_add_u32 %s, %s, %s\ns_add_u32 %s, %s, %d" % (sT0, sT0, sT1, sT0, sT0, AP + 19 * 1024))
        for k in range(8):
            g = Z2ACC + 4 * k
            for b in range(3):
                n = 3 * k + b
                t = RAW + 4 * (n % NTMP)
                for o_ in (0, 2):
                    e("v_pk_add_f32 %s, %s, %s" % (R("v", g + o_, 2), R("v", g + o_, 2), R("v", t + o_, 2)))
            for n in range(3 * k + NTMP, min(24, 3 * k + NTMP + 3)):
                rd_issue(n)
            for o_ in (0, 2):
                e("v_pk_mul_f32 %s, %s, %s" % (R("v", g + o_, 2), R("v", g + o_, 2), R("v", TT + 4 * k + o_, 2)))
            for o_ in (0, 2):
                e("v_cvt_pk_bf16_f32 v%d, v%d, v%d" % (TT + 2 * k + o_ // 2, g + o_, g + o_ + 1))
            if k & 1:
                blk, p = divmod(k >> 1, 2)
                last = e("buffer_store_dwordx4 %s, v%d, %s, %s offen offset:%d sc1" % (R("v", TT + 2 * k - 2, 4), vU if blk else vU0, sWS, sT0, blk * 1024 + p * 512))
        e("s_lshr_b32 %s, %s, 1\ns_lshl1_add_u32 %s, %s, %s\ns_lshl_b32 %s, %s, 5" % (sT0, sW, sT0, sI, sT0, sT0, sT0))
        e("s_and_b32 %s, %s, 1\ns_lshl1_add_u32 %s, %s, %s\ns_add_u32 %s, %s, %s" % (sT1, sW, sT1, sJ, sT1, sT0, sT0, sT1))
        e("s_lshl_b32 %s, %s, 7\ns_add_u32 %s, %s, %d" % (sT0, sT0, sFL, sT0, F_U))
        e.stamp(8)
        if o.get("stop", 9) <= 2:
            return None
        while e.ev["n3"] < N3:
            e.q1.pop(0).emit()
        e.q1 = []
        return e.join_state({"last": last})

    J7R = [("v", 160 + 4 * k) for k in range(8)] + [(ASLOT[s][0], ASLOT[s][1] + 4 * k) for s in (2, 3, 4, 5, 6, 7, 8, 9, 0, 1) for k in range(4)]
    J7FREE = [191] * 8 + [8 * q + 7 for q in range(22, 32) for _ in range(4)]
    sRU = ["s63", "s64", "s65", "s71"]
    sB3, sF3 = "s72", "s73"
    vP1, vP2, vZ = 16, 17, 18

    def p3_setup(self):
        e = self
        for b in range(4):
            e("s_add_u32 %s, %s, %d\ns_and_b32 %s, %s, 3\ns_lshl2_add_u32 %s, %s, %s" % (sT0, sW, b + 1, sT0, sT0, sT0, sP, sT0))
            e("s_mul_i32 %s, %s, 48\ns_mul_i32 %s, %s, 5\ns_add_u32 %s, %s, %s" % (sT0, sT0, sT1, sW, sT0, sT0, sT1))
            e("s_lshl_b32 %s, %s, 10\ns_add_u32 %s, %s, %d" % (sT0, sT0, e.sRU[b], sT0, AP))
        e("s_mul_i32 %s, %s, 48\ns_add_u32 %s, %s, %s\ns_mul_i32 %s, %s, 5120\ns_add_u32 %s, %s, %d" % (sT0, sC, sT0, sT0, sT1, sT0, sT0, e.sB3, sT0, BP))
        e("s_lshr_b32 %s, %s, 1\ns_lshl_b32 %s, %s, 12" % (sT0, sC, sT0, sT0))
        e("s_add_u32 %s, %s, %d\nv_add_u32 v%d, %s, v%d" % (sT1, sT0, F_WO, e.vP1, sT1, vL128))
        e("s_lshl_b32 %s, %s, 10\ns_add_u32 %s, %s, %s\ns_add_u32 %s, %s, %d" % (sT1, sW, sT0, sT0, sT1, sT0, sT0, F_M - 16 * 128))
        e("v_add_u32 v%d, %s, v%d\nv_cmp_gt_u32 vcc, 16, v0\nv_cndmask_b32 v%d, v%d, v%d, vcc" % (e.vP2, sT0, vL128, e.vP1, e.vP2, e.vP1))
        e("s_lshl_b32 %s, %s, 12\ns_add_u32 %s, %s, %d" % (e.sF3, sP, e.sF3, e.sF3, F_U))
        e("s_lshr_b32 %s, %s, 1\ns_lshl_b32 %s, %s, 8\ns_add_u32 %s, %s, %s\ns_add_u32 %s, %s, %d" % (sT0, sW, sT0, sT0, sT0, sT0, e.sF3, sT0, sT0, 28 * 128))
        e("v_and_b32 v%d, 0x80, v%d\nv_add_u32 v%d, %s, v%d" % (e.vP2, vL128, e.vP2, sT0, e.vP2))
        e("v_cmp_gt_u32 vcc, 24, v0\nv_cndmask_b32 v%d, v%d, v%d, vcc" % (e.vP1, e.vP2, e.vP1))
        e("s_mul_i32 %s, %s, 7\ns_add_u32 %s, %s, 1\ns_and_b32 %s, %s, 0xfe" % (sT0, sW, sT0, sT0, sT0, sT0))
        e("v_and_b32 v%d, 7, v0\nv_add_u32 v%d, %s, v%d\nv_min_u32 v%d, 27, v%d\nv_lshlrev_b32 v%d, 7, v%d"
          % (e.vP2, e.vP2, sT0, e.vP2, e.vP2, e.vP2, e.vP2, e.vP2))
        e("s_cmp_eq_u32 %s, 3\ns_cselect_b32 %s, 0x%x, 0\nv_add_u32 v%d, %s, v%d" % (sW, sT0, OOB, e.vZ, sT0, vL16))

    def p3_poll1(self):
        self.p3_ld1 = "buffer_load_dword v19, v%d, %s, 0 offen sc1" % (self.vP1, sWS)
        self(self.p3_ld1)

    def p3_check1(self):
        self.check(self.p3_ld1, "v_cmp_eq_u32 vcc, -1, v19")

    def p3_jobs(self, start=0):
        e = self
        e.ev.setdefault("f", 999)
        e.ev["n3"] = start
        jobs = []
        for kl in range(5):
            for t in range(5):
                jobs.append(("B", e.J7R[9 * kl + t], e.J7FREE[9 * kl + t], 5 * kl + t))
            for b in range(4):
                jobs.append(("A", e.J7R[9 * kl + 5 + b], e.J7FREE[9 * kl + 5 + b], (b, kl)))
        for n in range(35):
            jobs.append(("W", ("a", 4 * n), 998, n))
        for kind, reg, free, x in jobs[start:]:
            def emit(kind=kind, reg=reg, x=x):
                if kind == "A":
                    b, kl = x
                    e("buffer_load_dwordx4 %s, v%d, %s, %s offen offset:%d sc1" % (rr(reg, 4), vL16B if kl >= 4 else vL16, sWS, e.sRU[b], (kl % 4) * 1024))
                elif kind == "B":
                    if x and x % 8 == 0:
                        e("s_add_u32 %s, %s, 8192" % (e.sB3, e.sB3))
                    e("buffer_load_dwordx4 %s, v%d, %s, %s offen offset:%d sc1" % (rr(reg, 4), vL16B if x % 8 >= 4 else vL16, sWS, e.sB3, (x % 4) * 1024))
                else:
                    if x == 0:
                        e("s_mul_i32 %s, %s, %d\ns_add_u32 %s, %s, %s\ns_add_u32 %s, %s, %d" % (sSO, sW, 2 * 5120, e.sB3, e.sB3, sSO, e.sB3, e.sB3, 20 * 5120 - 3 * 8192))
                    elif x % 4 == 0:
                        e("s_add_u32 %s, %s, 4096" % (e.sB3, e.sB3))
                    e("buffer_load_dwordx4 %s, v%d, %s, %s offen offset:%d sc1" % (rr(reg, 4), e.vZ if x >= 30 else vL16, sWS, e.sB3, (x % 4) * 1024))
                e.ev["n3"] += 1
            j = Job(lambda free=free: e.ev["f"] >= free, emit, 1)
            j.need = 1000
            e.q1.append(j)

    def phase3(self, ids):
        e = self
        o = e.opt
        e.ev = {}
        e.p3_jobs(N3)
        ACC = 80
        ahead = o.get("ahead3", 14)
        vW = 20
        RA = [21, 22, 23]

        def top_up(n):
            while e.q1 and e.ev["n3"] < n:
                e.q1.pop(0).emit()
        top_up(N3 + o.get("burst3", 6))
        ld2 = "buffer_load_dword v19, v%d, %s, %s offen sc1" % (e.vP2, sWS, e.sF3)
        for kl in range(5):
            if kl == 2:
                e.flag(ids["last"], sFL)
            for b in range(4):
                for t in range(5):
                    top_up(9 * kl + 9)
                    acc = R("v", ACC + 20 * b + 4 * t, 4)
                    e("v_mfma_f32_16x16x32_bf16 %s, %s, %s, %s" % (acc, rr(e.J7R[9 * kl + t], 4), rr(e.J7R[9 * kl + 5 + b], 4), "0" if kl == 0 else acc))
                    if e.q1 and e.ev["n3"] < 9 * kl + 9 + ahead:
                        e.q1.pop(0).emit()
        e.stamp(9)
        top_up(80 - o.get("poll3", 8))
        e(ld2)
        top_up(80)
        for b in range(4):
            e("s_lshl_b32 %s, %s, 11\ns_add_u32 %s, %s, %s\ns_add_u32 %s, %s, %d" % (sT0, sW, e.sRU[b], e.sRU[b], sT0, e.sRU[b], e.sRU[b], 20 * 1024))
        e("v_add_u32 v%d, %s, v%d\nv_add_u32 v%d, 0x1000, v%d" % (vW, sREG, vL16, e.vZ, e.vZ))
        for b in range(3):
            e("s_add_u32 %s, %s, %d\ns_and_b32 %s, %s, 3\ns_mul_i32 %s, %s, %d" % (sT0, sW, 3 - b, sT0, sT0, sT0, sT0, REGION))
            e("v_add_u32 v%d, %s, v%d" % (RA[b], sT0, vL16))
        vO, vO2 = 24, 25
        e("v_and_b32 v%d, 15, v0\nv_mul_u32_u24 v%d, 1280, v%d\nv_lshrrev_b32 v26, 4, v0" % (vO, vO, vO))
        e("v_lshl_add_u32 v%d, v26, 3, v%d\nv_lshl_add_u32 v%d, v26, 4, v%d" % (vO2, vO, vO, vO))
        e("s_lshl2_add_u32 %s, %s, %s\ns_mul_i32 %s, %s, %d\ns_mul_i32 %s, %s, 160\ns_add_u32 %s, %s, %s" % (sT2, sP, sW, sT2, sT2, 16 * 1280, sT1, sC, sT2, sT2, sT1))
        e.check(ld2, "v_cmp_eq_u32 vcc, -1, v19")
        e.stamp(10)
        ul = [(b, kl) for b in range(4) for kl in range(7)]
        nu = 0

        def uload():
            nonlocal nu
            b, kl = ul[nu]
            v = e.vZ if kl == 6 else (vL16B if kl >= 4 else vL16)
            e("buffer_load_dwordx4 %s, v%d, %s, %s offen offset:%d sc1" % (rr(e.J7R[nu], 4), v, sWS, e.sRU[b], (kl % 4) * 1024))
            nu += 1
        for _ in range(o.get("burstu", 14)):
            uload()
        wr = []
        n = 0
        for b in range(4):
            for kl in range(7):
                for t in range(5):
                    acc = R("v", ACC + 20 * b + 4 * t, 4)
                    e("v_mfma_f32_16x16x32_bf16 %s, %s, %s, %s" % (acc, R("a", 4 * (5 * kl + t), 4), rr(e.J7R[7 * b + kl], 4), acc))
                    n += 1
                    if t == 0 and nu < 28:
                        uload()
                    elif wr and wr[0][0] <= n:
                        _, b_, t_ = wr.pop(0)
                        e("ds_write_b128 v%d, %s offset:%d" % (vW, R("v", ACC + 20 * b_ + 4 * t_, 4), b_ * 5120 + t_ * 1024))
            if b < 3:
                wr += [(n + 6 + 4 * t, b, t) for t in range(5)]
        assert not wr and nu == 28
        e.stamp(11)
        e.wait_all(vm=False)
        e("s_barrier")
        T = 192
        for t in range(5):
            for b in range(3):
                e("ds_read_b128 %s, v%d offset:%d" % (R("v", T + 12 * t + 4 * b, 4), RA[b], b * 5120 + t * 1024))
        OWN = ACC + 60
        P = 48
        for t in range(5):
            for b in range(3):
                for o_ in (0, 2):
                    e("v_pk_add_f32 %s, %s, %s" % (R("v", OWN + 4 * t + o_, 2), R("v", OWN + 4 * t + o_, 2), R("v", T + 12 * t + 4 * b + o_, 2)))
            for o_ in (0, 2):
                e("v_cvt_pk_bf16_f32 v%d, v%d, v%d" % (P + 2 * t + o_ // 2, OWN + 4 * t + o_, OWN + 4 * t + o_ + 1))
            sc = o.get("outsc", "")
            if t in (1, 3):
                e("buffer_store_dwordx4 %s, v%d, %s, %s offen offset:%d %s" % (R("v", P + 2 * t - 2, 4), vO, sOUT, sT2, 32 * (t - 1), sc))
            elif t == 4:
                e("buffer_store_dwordx2 %s, v%d, %s, %s offen offset:128 %s" % (R("v", P + 8, 2), vO2, sOUT, sT2, sc))

    def finish(self):
        e = self
        if e.opt.get("diag"):
            e.wait_all()
            e.stamp(12)
            e("s_lshl2_add_u32 %s, s2, %s\ns_lshl_b32 %s, %s, 8\ns_add_u32 %s, %s, %d" % (sT0, sW, sT0, sT0, sT0, sT0, DIAG))
            e("s_nop 4")
            e("buffer_store_dword v7, v%d, %s, %s offen" % (vL4, sWS, sT0))
            if e.opt.get("dbgout"):
                e("v_not_b32 v8, v7\nv_cmp_eq_u32 vcc, 13, v0\nv_cndmask_b32 v7, v7, v8, vcc")
                e("s_lshl_b32 %s, %s, 12\ns_mov_b64 exec, 0x3fff" % (sT0, sW))
                e("buffer_atomic_umax v7, v%d, %s, %s offen offset:4 sc1" % (vL4, sDBG, sT0))

    def build(self):
        e = self
        stop = e.opt.get("stop", 9)
        e.prologue()
        e("s_cmp_eq_u32 %s, 7\ns_cbranch_scc1 L_role_h" % sJL)
        e("s_cmp_eq_u32 %s, 13\ns_cbranch_scc1 L_role_l" % sJ)
        e("s_cmp_ge_u32 %s, 4\ns_cbranch_scc1 L_role_b" % sJL)
        snap = e.snapshot()
        main, e.L = e.L, []
        parts = {}
        states = []
        for name, fn in (("a", e.role_a), ("b", e.role_b), ("l", e.role_l)):
            e.restore(snap)
            e.ev, e.q1, e.q2, e.qd, e.qv = {}, [], [], [], []
            e.tok, e.tok_t = 0.0, e.cyc
            last = fn()
            states.append(e.p1_finish(last))
            parts[name], e.L = e.L, []
        e.restore(snap)
        e.ev, e.q1, e.q2, e.qd, e.qv = {}, [], [], [], []
        sth = e.role_h()
        if sth is None:
            e.finish()
            e("s_endpgm")
        parts["h"], e.L = e.L, []
        ids = e.merge(states)
        e.q1, e.q2, e.qd, e.qv = [], [], [], []
        e.raw("L_p2:")
        if stop <= 1:
            e.flag(ids["last"], sFL)
        else:
            st2 = e.phase2(ids)
            if st2 is not None:
                ids = e.merge([st2, sth])
                e.raw("L_p3:")
                e.phase3(ids)
        e.finish()
        rest, e.L = e.L, []
        e.L = main + parts["a"] + rest + ["L_end:", "    s_endpgm"]
        e.L += ["L_role_b:"] + parts["b"] + ["    s_branch L_p2"]
        e.L += ["L_role_l:"] + parts["l"] + ["    s_branch L_p2"]
        e.L += ["L_role_h:"] + parts["h"]
        if sth is not None:
            e.L += ["    s_branch L_p3"]
        return e.text() + "L_code_end:\n    s_endpgm\n"


N3 = 18


def generate(opt):
    head = open("cdna_kernels/%s.s.ref" % NAME).read().split("; Override launch")[0] if opt.get("head", 1) else ""
    body = K(opt).build()
    return (head + "; @launch grid=(256,1,1) block=(256,1,1) lds=163840\n"
            '.amdgcn_target "amdgcn-amd-amdhsa--gfx950"\n.text\n.globl %s_kernel\n.p2align 8\n.type %s_kernel,@function\n%s_kernel:\n' % (NAME, NAME, NAME)
            + body +
            '.section .rodata,"a"\n.p2align 6\n.amdhsa_kernel %s_kernel\n'
            "  .amdhsa_next_free_vgpr 512\n  .amdhsa_next_free_sgpr 102\n  .amdhsa_accum_offset 256\n"
            "  .amdhsa_group_segment_fixed_size 0\n  .amdhsa_kernarg_size 96\n  .amdhsa_user_sgpr_count 2\n"
            "  .amdhsa_user_sgpr_kernarg_segment_ptr 1\n  .amdhsa_system_sgpr_workgroup_id_x 1\n.end_amdhsa_kernel\n" % NAME)


if __name__ == "__main__":
    out = sys.argv[1]
    opt = {}
    for a in sys.argv[2:]:
        k, v = a.split("=")
        opt[k] = int(v) if v.lstrip("-").isdigit() else v
    open(out, "w").write(generate(opt))
```

```python
import math
import struct
import sys

from em import Em, R, rr

NAME = "gated_mix__linear_attn_block__mixer_gmlp__prompt"

STATS = 0
F_Z2N = 0x38000
F_Z1 = 0x54000
F_KV = 0x64000
F_U = 0x74000
F_M = 0x94000
F_WO = 0x98000
F_PX = 0x9C000
GATE = 0xC0000
ZP = 0xC4000
KVP = 0x1900000
Z2N = 0x200000
Z1 = 0x600000
AP = 0xA00000
BP = 0x1000000
PX = 0x1200000
DIAG = 0x1C00000
WS_SIZE = 0x1D00000
OOB = 0x80000000

sX, sWQ, sWO, sWIN, sWSP, sBSP, sWOUT, sGW, sOUT, sDBG, sWS, sCODE = [R("s", 8 + 4 * k, 4) for k in range(12)]
sW, sI, sJL, sHALF, sJ, sREG, sW2K = ["s%d" % k for k in range(56, 63)]
sXO, sXB, sXE = "s63", "s64", "s65"
sAO, sAB, sAE = "s66", "s67", "s70"
sKC = "s[68:69]"
sBO, sBB, sBE = "s71", "s72", "s73"
sSPIN = "s74"
sT0, sT1, sT2, sT3 = "s75", "s76", "s77", "s3"
sROW = ["s78", "s79", "s80", "s81"]
sCH = ["s%d" % k for k in range(82, 90)]
sBCH = ["s%d" % k for k in range(90, 98)]
sG, sROT = "s98", "s99"
sI2, sJ2 = "s52", "s53"
sMASK = "s[100:101]"
sP, sC = "s4", "s5"
sSO = "s6"
sFL = "s7"

vLANE = "v0"
vXD = [8, 9, 10, 11]
vXR = [12, 13, 14, 15]
vWDI = [16, 17]
vWW = [18, 19]
vWS = [[20, 21], [22, 23]]
vWB = [24, 25, 26, 27, 28]
vL16, vL16B, vL4 = 29, 30, 31
vL128 = 2
vAD = [32, 33, 34, 35]
vT = list(range(36, 48))
Z2ACC = 48
ACCB = 80
WRING = 160
NR = 8
ASLOT = [("a", 160 + 16 * k) for k in range(6)] + [("v", 192 + 16 * k) for k in range(4)] + [("a", 16 * k) for k in range(6)]
REGION = 40960
WOFF = 16384

NB0 = 3
SPIN_MAX = 1 << 17


def f32(x):
    return "0x%08x" % struct.unpack("<I", struct.pack("<f", x))[0]


LOG2E = 1.4426950408889634
GK1 = -2.0 * math.sqrt(2.0 / math.pi) * LOG2E
GK2 = GK1 * 0.044715


class Job:
    def __init__(self, pre, loads, setup=(), post=(), sink=None, done=None, weight=1.0):
        self.weight = weight
        self.need = None
        self.pre, self.loads, self.setup, self.post, self.sink, self.done = pre, list(loads), list(setup), list(post), sink, done


def cost(text):
    c = 0
    for ln in text.split("\n"):
        op = ln.split()[0]
        if op == "ds_write_b128":
            c += 16
        elif op.startswith(("buffer_", "v_exp", "v_rcp", "v_rsq", "v_permlane", "ds_write_b64")):
            c += 8
        else:
            c += 4
    return c


def is_mem(item):
    return isinstance(item, str) and item.startswith(("ds_", "buffer_"))


class _Redirect:
    def __init__(self, k, emit):
        self._k, self._emit = k, emit or k

    def __call__(self, text):
        return self._emit(text)

    def __getattr__(self, name):
        return getattr(self._k, name)


class K(Em):
    def __init__(self, opt):
        super().__init__()
        self.opt = opt
        self.q1 = []
        self.q2 = []
        self.qd = []
        self.prog = []
        self.hi = []
        self.hold = 0
        self.armed = None
        self.post = []
        self.pipe = 0
        self.weight = 1.0
        self.behind = opt.get("behind", 10)
        self.boost = 0
        self.slack = opt.get("slack", 8)
        self.pace = opt.get("pace", 66)
        self.ev = {}
        self.lpend = None
        self.wring = WRING
        self.nqd = opt.get("nqd", 14)
        self.n3 = opt.get("n3", 44)
        self.lat = opt.get("lat1", 1000)

    def I(self, text):
        r = super().I(text)
        if text.startswith("buffer_"):
            wide = "dwordx4" in text.split()[0]
            if text.startswith("buffer_load"):
                c = self.pace * self.weight if wide else 24
            else:
                c = self.opt.get("stcost", 150) if wide else 40
            self.pipe = max(self.pipe, self.cyc - 10) + c
        return r

    def pipe_ok(self, ahead=0):
        return self.cyc + ahead + self.slack >= self.pipe

    def flush_post(self):
        c = 0
        while self.post:
            t = self.post.pop(0)
            self(t)
            c += cost(t)
        return c

    def next_job(self):
        for q in (self.q1, self.q2):
            if q and q[0].pre():
                return q
        return None

    def arm(self, q):
        j = q.pop(0)
        self.flush_post()
        for t in j.setup:
            t() if callable(t) else self(t)
        self.armed = j

    def fire(self):
        j = self.armed
        self.weight = j.weight
        i = self(j.loads.pop(0))
        self.weight = 1.0
        if j.sink is not None:
            j.sink.append(i)
        if not j.loads:
            self.post += j.post
            self.armed = None
            if j.done:
                j.done()

    def bg_vm(self, force=False, maxn=1):
        done = 0
        while done < maxn and (force or self.pipe_ok()):
            if not self.armed:
                q = self.next_job()
                if q is None:
                    break
                self.arm(q)
            self.fire()
            done += 1
        return done

    def settle(self):
        while self.armed:
            self.fire()
        self.flush_post()

    def bg_ds(self):
        if self.qd and self.qd[0][0]():
            self.qd.pop(0)[1]()
            return True
        return False

    def tick(self):
        if not self.bg_vm():
            self.bg_ds() and self.bg_ds()

    def V(self, text):
        for ln in text.split("\n"):
            if ln.strip():
                self(ln)
                self.tick()

    def drain(self, cond):
        guard = 0
        while not cond():
            if self.bg_ds() or self.bg_vm(force=True):
                guard = 0
                continue
            self.cyc += 200
            guard += 1
            assert guard < 100, "background queues stuck"

    def prog_step(self, left, head, force=False):
        for q in (self.hi, self.prog):
            while q:
                it = q[0]
                if isinstance(it, tuple) and it[0] == "delay":
                    if head:
                        break
                    q.pop(0)
                    self.hold = 0 if force else it[1]
                    continue
                if q is self.prog and self.hold and not force:
                    break
                if isinstance(it, tuple) and it[0] == "until":
                    if not force and it[1]() > self.vm_done:
                        break
                    q.pop(0)
                    continue
                c = it[2] if isinstance(it, tuple) else cost(it)
                if c and not force:
                    if is_mem(it) != head or (c > left and not (c > 12 and left >= 12)):
                        break
                    if head and it.startswith("buffer_") and not self.pipe_ok():
                        break
                q.pop(0)
                if isinstance(it, tuple):
                    it[1]()
                else:
                    self.last_id = self(it)
                left -= c
        return left

    def prog_flush(self):
        self.prog_step(0, False, force=True)
        self.hold = 0
        self.settle()

    def mark(self, name):
        return ("call", lambda: self.ev.__setitem__(name, self.last_id), 0)

    def fill_gap(self, left, paced):
        e = self
        if e.hold:
            e.hold -= 1
        if not paced:
            if e.armed:
                e.fire()
            if not e.armed and e.next_job() is not None:
                e.arm(e.next_job())
            return 0
        head = e.armed or (e.q1[0] if e.q1 and e.q1[0].pre() else None)
        if head is not None and head.need and head.need[0] == e.tag and head.need[1] - e.ev["f"] <= e.opt.get("minlead", 36):
            if e.armed:
                e.fire()
                left -= 8
            if not e.armed and e.q1 and e.q1[0].pre():
                left -= 4 * len(e.q1[0].setup)
                e.arm(e.q1)
        left += e.boost
        left = e.prog_step(left, True)
        while e.armed and left >= 8 and (not paced or e.pipe_ok()):
            e.fire()
            left -= 8
        if left == 24 and e.qd:
            left = 20
        n = 0
        while left >= 4 and n < 2 and e.bg_ds():
            left -= 4
            n += 1
        if e.post and left >= cost(e.post[0]):
            left -= e.flush_post()
        if not e.armed and not e.post and (not paced or e.pipe_ok(40)):
            q = e.next_job()
            if q is not None and left >= min(8, 4 * len(q[0].setup)):
                left -= 4 * len(q[0].setup)
                e.arm(q)
        return e.prog_step(left, False)

    def mfma_loop(self, tag, nstage, per, read, mfma, opened, paced, hooks, stamp0):
        e = self
        F = nstage * per
        e.tag = tag
        for j in e.q1 + ([e.armed] if e.armed else []):
            for s_ in range(nstage):
                if j.sink is e.ev.get(("dma", tag, s_)):
                    j.need = (tag, s_ * per - 6)
        rd_id = {}
        st = dict(next=0, opened=-1, last=-9)

        def open_stage(s):
            e.drain(lambda: len(e.ev[("dma", tag, s)]) == e.ev[("ndma", tag, s)])
            e.wait(vm=max(e.ev[("dma", tag, s)]), lg=e.lg_n - 1)
            e("s_barrier")
            e.lstamp(stamp0 + s)
            st["opened"] = s
            e.ev[("free", tag, s - 1)] = True
            opened(s)

        def one():
            n0 = e.lg_n
            rd_id[st["next"]] = read(st["next"], e.wring + 4 * (st["next"] % NR))
            st["next"] += 1
            return 4 * (e.lg_n - n0)

        open_stage(0)
        for _ in range(6):
            one()
        for f in range(F):
            while hooks and min(hooks) <= f:
                hooks.pop(min(hooks))()
            if f % 2 == 0:
                e.wait(lg=rd_id[f + 1])
            mfma(f, R("v", e.wring + 4 * (f % NR), 4))
            e.ev["f"] = f
            left = 24 - (4 if f % 2 else 0)
            sync = False
            for _ in range(2):
                nx = st["next"]
                if nx < F and nx <= f + 7:
                    if nx // per <= st["opened"]:
                        left -= one() + (4 if st["last"] != f else 0)
                        st["last"] = f
                    elif f - st["last"] >= 2:
                        sync = True
            if sync:
                qd, e.qd = e.qd, []
                e.fill_gap(16, paced)
                e.qd = qd
                open_stage(st["next"] // per)
            else:
                e.fill_gap(left, paced)
        assert not hooks

    def stamp(self, k):
        sel = self.opt.get("stamps")
        if self.opt.get("diag") and (sel is None or k == 12 or str(k) in str(sel).split(".")):
            self.lstamp(None)
            self.wait_all(vm=False)
            self.raw("    %s s[0:1]\n" % ("s_memtime" if self.opt["diag"] == 2 else "s_memrealtime") + "    s_waitcnt lgkmcnt(0)\n    v_writelane_b32 v7, s0, %d" % k)
            self.pos += 3

    def lstamp(self, k):
        if self.opt.get("diag") and self.opt.get("fine"):
            if self.lpend is not None:
                self.raw("    s_waitcnt lgkmcnt(0)\n    v_writelane_b32 v7, s0, %d" % self.lpend)
                self.lg_done = self.lg_n - 1
                self.pend = {r: p for r, p in self.pend.items() if p[0] == "vm"}
            self.lpend = k
            if k is not None:
                self.raw("    %s s[0:1]" % ("s_memtime" if self.opt["diag"] == 2 else "s_memrealtime"))

    def check(self, loads, test, pretest=None):
        slow, back = self.label("Lslow"), self.label("Lback")
        self(test)
        self("s_cbranch_vccnz " + slow)
        self.raw(back + ":")
        c = self.cold
        c.append(slow + ":")
        c.append("    s_add_u32 %s, %s, 1\n    s_cmp_ge_u32 %s, %d\n    s_cbranch_scc1 L_end" % (sSPIN, sSPIN, sSPIN, SPIN_MAX))
        if self.opt.get("backoff", 2):
            c.append("    s_sleep %d" % self.opt.get("backoff", 2))
        c.append("\n".join("    " + l for l in loads.split("\n")))
        c.append("    s_waitcnt vmcnt(0)")
        if pretest:
            c.append("\n".join("    " + l for l in pretest.split("\n")))
        c.append("\n".join("    " + l for l in test.split("\n")))
        c.append("    s_nop 4\n    s_cbranch_vccnz %s\n    s_branch %s" % (slow, back))

    def flag(self, after_id, soff):
        self.wait(vm=after_id)
        self("s_mov_b64 exec, 1")
        i = self("buffer_store_dword v%d, off, %s, %s sc1" % (vL4, sWS, soff))
        self("s_mov_b64 exec, -1")
        return i

    def prologue(self):
        e = self
        o = self.opt
        e("s_cmp_ge_u32 s2, 256")
        e("s_cbranch_scc1 L_end")
        order = [(8, 0), (20, 32), (48, 88), (12, 8), (44, 80), (24, 40), (16, 16), (28, 48), (32, 56), (36, 64), (40, 72)]
        for sreg, off in order:
            e.raw("    s_load_dwordx2 s[%d:%d], s[0:1], %d" % (sreg, sreg + 1, off))
        if o.get("diag"):
            e.raw("    %s s[100:101]" % ("s_memtime" if o["diag"] == 2 else "s_memrealtime"))
        e.raw("    s_getpc_b64 s[52:53]")
        e.raw("L_pc:")
        self.sizes = sizes = {8: 2621440, 12: 2457600, 16: 819200, 20: 2211840, 24: 8388608, 28: 4096, 32: 1105920, 36: 1280,
                              40: 2621440, 44: 256, 48: WS_SIZE}
        sLOC = sT1
        e("v_lshrrev_b32 v1, 6, v0\nv_and_b32 v0, 63, v0")
        e("s_lshr_b32 %s, s2, 3" % sLOC)
        e("v_readfirstlane_b32 %s, v1" % sW)
        e("s_mov_b32 s54, L_code_end-L_pc\ns_mov_b32 s55, 0x20000")
        e("s_and_b32 %s, %s, 3\ns_lshl2_add_u32 %s, %s, %s\ns_lshl_b32 %s, %s, 13" % (sT2, sLOC, sT2, sT2, sW, sT2, sT2))
        e("v_lshlrev_b32 v2, 7, v0")
        if o.get("codepf", 1):
            e("buffer_load_dword v6, v2, %s, %s offen" % (sCODE, sT2))
            self.pend.clear()
        if o.get("map84", 1):
            e("s_and_b32 %s, s2, 1\ns_bfe_u32 %s, s2, 0x10001\ns_lshr_b32 %s, %s, 3" % (sT0, sHALF, sT2, sLOC))
            e("s_lshl1_add_u32 %s, %s, %s\ns_add_u32 %s, %s, 4\ns_cmp_eq_u32 %s, 2\ns_cselect_b32 %s, %s, %s" % (sJL, sT0, sT2, sT3, sT0, sT2, sJL, sT3, sJL))
            e("s_and_b32 %s, %s, 3\ns_lshl2_add_u32 %s, %s, %s\ns_and_b32 %s, %s, 7\ns_lshr_b32 %s, %s, 2" % (sT3, sLOC, sT0, sT0, sT3, sI, sLOC, sT3, sLOC))
            e("s_cmp_eq_u32 %s, 3\ns_cselect_b32 %s, %s, %s\ns_cselect_b32 %s, %s, %s" % (sT2, sJL, sT3, sJL, sI, sT0, sI))
            if o.get("rot", 1):
                e("s_mul_i32 %s, %s, 5\ns_lshr_b32 %s, %s, 2\ns_mul_i32 %s, %s, 5\ns_lshr_b32 %s, %s, 1\ns_add_u32 %s, %s, %s"
                  % (sROT, sI, sROT, sROT, sT2, sT2, sT2, sT2, sROT, sROT, sT2))
            e("s_bfe_u32 %s, s2, 0x10002\ns_lshl3_add_u32 %s, %s, %s" % (sT0, sI, sT0, sI))
        else:
            e("s_and_b32 %s, s2, 1\ns_bfe_u32 %s, s2, 0x20001" % (sHALF, sT0))
            e("s_and_b32 %s, %s, 3\ns_lshl2_add_u32 %s, %s, %s\ns_lshr_b32 %s, %s, 2" % (sT2, sLOC, sI, sT0, sT2, sJL, sLOC))
            if o.get("rot", 1):
                e("s_mul_i32 %s, %s, 5\ns_lshr_b32 %s, %s, 1" % (sT2, sT2, sT2, sT2))
                e("s_mul_i32 %s, %s, 5\ns_lshr_b32 %s, %s, 2\ns_add_u32 %s, %s, %s" % (sROT, sJL, sROT, sROT, sROT, sROT, sT2))
        if o.get("rot", 1):
            e("s_cmp_ge_u32 %s, 10\ns_cselect_b32 %s, 10, 0\ns_sub_u32 %s, %s, %s" % (sROT, sT2, sROT, sROT, sT2))
        else:
            e("s_mov_b32 %s, 0" % sROT)
        e("s_mul_i32 %s, %s, 7\ns_add_u32 %s, %s, %s" % (sJ, sHALF, sJ, sJ, sJL))
        e("s_mul_i32 %s, %s, %d\ns_lshl_b32 %s, %s, 11" % (sREG, sW, REGION, sW2K, sW))
        e("s_lshl2_add_u32 %s, %s, %s\ns_mul_i32 %s, %s, %d" % (sXB, sI, sW, sXB, sXB, 32 * 1280))
        e("s_add_u32 %s, %s, 1280\ns_lshl_b32 %s, %s, 7\ns_add_u32 %s, %s, %s" % (sXE, sXB, sXO, sROT, sXO, sXO, sXB))
        for sreg in (8, 20, 48):
            e("s_mov_b32 s%d, %d\ns_mov_b32 s%d, 0x20000" % (sreg + 2, sizes[sreg], sreg + 3))
        e("v_lshrrev_b32 v1, 3, v0\nv_and_b32 v2, 7, v0\nv_lshrrev_b32 v3, 4, v0")
        e("v_xor_b32 v4, v2, v3\nv_lshlrev_b32 v4, 4, v4\nv_xor_b32 v5, 64, v4")
        e("v_mul_u32_u24 v%d, 1280, v1" % vT[0])
        for r in range(4):
            e("v_add_u32 v%d, v%d, v%d" % (vXD[r], vT[0], 4 + (r & 1)))
            if r:
                e("v_add_u32 v%d, %d, v%d" % (vXD[r], r * (8 * 1280 - 1024), vXD[r]))
        e("v_lshlrev_b32 v%d, 4, v0" % vL16)
        e.raw("    s_waitcnt lgkmcnt(0)")
        e.pos += 1
        if o.get("wsoff"):
            e("s_add_u32 s48, s48, 0x%x\ns_addc_u32 s49, s49, 0" % (o["wsoff"] << 20))
        e("s_cmp_eq_u32 %s, 7\ns_cbranch_scc0 L_noclear" % sJL)
        for k in range(4):
            e("v_mov_b32 v%d, -1" % (240 + k))
        e("s_lshl1_add_u32 %s, %s, %s\ns_lshl2_add_u32 %s, %s, %s\ns_mul_i32 %s, %s, 6144" % (sT0, sI, sHALF, sT0, sT0, sW, sT0, sT0))
        for k in range(6):
            if k == 4:
                e("s_add_u32 %s, %s, 4096" % (sT0, sT0))
            self.clear_id = e("buffer_store_dwordx4 v[240:243], v%d, %s, %s offen offset:%d sc1" % (vL16, sWS, sT0, (k % 4) * 1024))
        e.raw("L_noclear:")
        e.q1 = [e.job_x("A", 0)]
        e.bg_vm(force=True, maxn=4)
        e.settle()
        self.x0 = list(e.ev[("dma", "A", 0)])
        e("v_and_b32 v%d, 1, v3\nv_lshlrev_b32 v%d, 2, v%d\nv_xor_b32 v%d, v2, v%d\nv_lshlrev_b32 v%d, 4, v%d"
          % (vT[1], vT[1], vT[1], vT[1], vT[1], vT[1], vT[1]))
        e("s_lshl_b32 %s, %s, 4\nv_add_u32 v%d, %s, v1" % (sT0, sW, vT[2], sT0))

    def w_offsets(self, regs_, stride):
        self("v_mul_u32_u24 v%d, %d, v%d\nv_add_u32 v%d, v%d, v%d" % (regs_[0], stride, vT[2], regs_[0], regs_[0], vT[1]))
        self("v_add_u32 v%d, %d, v%d" % (regs_[1], 8 * stride - 1024, regs_[0]))

    def late_setup(self, natural=False):
        e = self
        for sreg in (12, 44, 24, 16, 28, 32, 36, 40):
            e("s_mov_b32 s%d, %d\ns_mov_b32 s%d, 0x20000" % (sreg + 2, self.sizes[sreg], sreg + 3))
        e("s_mov_b32 s68, %s\ns_mov_b32 s69, %s\ns_mov_b32 %s, 0" % (f32(GK1), f32(GK2), sSPIN))
        e("v_add_u32 v%d, 0x1000, v%d\nv_lshlrev_b32 v%d, 2, v0" % (vL16B, vL16, vL4))
        e("s_bfe_u32 %s, s2, 0x20001\ns_bfe_u32 %s, s2, 0x20003\ns_lshl2_add_u32 %s, %s, %s" % (sT0, sT1, sI2, sT0, sT1))
        e("s_and_b32 %s, s2, 1\ns_lshr_b32 %s, s2, 5\ns_lshl1_add_u32 %s, %s, %s" % (sT2, sT1, sJ2, sT1, sT2))
        e("s_bfe_u32 %s, s2, 0x30003\ns_lshl3_add_u32 %s, %s, %s" % (sP, sP, sT0, sP))
        e("s_lshr_b32 %s, s2, 6\ns_lshl2_add_u32 %s, %s, %s" % (sC, sC, sT2, sC))
        if self.opt.get("diag"):
            e("v_mov_b32 v7, 0")
            e.raw("    s_nop 1\n    v_writelane_b32 v7, s100, 13")
        e("v_lshlrev_b32 v%d, 12, v1" % vT[0])
        for r in range(4):
            e("v_add_u32 v%d, v%d, v%d" % (vAD[r], vT[0], 4 + (r & 1)))
            if r:
                e("v_add_u32 v%d, %d, v%d" % (vAD[r], r * (8 * 4096 - 1024), vAD[r]))
        e("v_and_b32 v1, 31, v0\nv_lshrrev_b32 v2, 5, v0\nv_bfe_u32 v4, v0, 1, 3\nv_xor_b32 v4, v4, v2")
        e("v_lshlrev_b32 v4, 4, v4\nv_lshl_add_u32 v4, v1, 7, v4")
        for ks in range(4):
            e("v_xor_b32 v%d, %d, v4\nv_add_u32 v%d, %s, v%d" % (vXR[ks], ks * 32, vXR[ks], sREG, vXR[ks]))
        e("v_bfe_u32 v5, v0, 2, 2\nv_lshl_add_u32 v5, v2, 3, v5\nv_lshlrev_b32 v5, 7, v5\nv_add_u32 v5, %d, v5" % WOFF)
        e("v_bfe_u32 v4, v0, 3, 1\nv_lshlrev_b32 v4, 6, v4")
        if natural:
            e("v_and_b32 v1, 1, v0\nv_bfe_u32 v3, v0, 1, 1\nv_lshl_or_b32 v1, v1, 1, v3\nv_lshlrev_b32 v1, 3, v1\nv_bfe_u32 v3, v0, 4, 1")
        else:
            e("v_and_b32 v1, 3, v0\nv_lshlrev_b32 v1, 3, v1\nv_bfe_u32 v3, v0, 4, 1")
        e("v_lshl_add_u32 v%d, v3, 5, v1\nv_xor_b32 v%d, v%d, v4" % (vT[0], vT[0], vT[0]))
        e("v_add_u32 v%d, v%d, v5\nv_xor_b32 v%d, 64, v%d" % (vWS[0][0], vT[0], vWS[0][1], vWS[0][0]))
        e("v_add_u32 v%d, %d, v%d\nv_add_u32 v%d, %d, v%d" % (vWS[1][0], 2 * REGION, vWS[0][0], vWS[1][1], 2 * REGION, vWS[0][1]))
        e("v_lshlrev_b32 v%d, 7, v0" % vL128)

    def stream_init(self, o, b, en, base_text, stride):
        self(base_text)
        self("s_add_u32 %s, %s, %d\ns_mul_i32 %s, %s, %d\ns_add_u32 %s, %s, %s" % (en, b, 640 * stride, o, sROT, 64 * stride, o, o, b))

    @staticmethod
    def advance(o, b, en, step):
        return "s_add_u32 %s, %s, %d\ns_cmp_eq_u32 %s, %s\ns_cselect_b32 %s, %s, %s" % (o, o, step, o, en, o, b, o)

    def job_x(self, tag, s):
        pre = (lambda: True) if s < 4 else (lambda: self.ev.get(("free", tag, s - 4)))
        return Job(pre, ["buffer_load_dwordx4 v%d, %s, %s offen offset:%d lds" % (vXD[r], sX, sXO, r * 1024) for r in range(4)],
                   ["s_add_u32 m0, %s, %d" % (sREG, (s % 4) * 4096)], [self.advance(sXO, sXB, sXE, 128)] if s < 9 else [],
                   self.ev.setdefault(("dma", tag, s), []))

    def w_jobs(self, tag, wide, offf, srd, stream, stride, occ, withx, weight=1.0):
        for s in range(10):
            if withx and s < 1:
                self.ev[("dma", tag, s)] = list(self.x0)
            elif withx:
                self.q1.append(self.job_x(tag, s))
            off = offf(s)
            prev = occ.get(off)
            occ[off] = (tag, s)
            pre = (lambda: True) if prev is None else (lambda prev=prev: self.ev.get(("free",) + prev))
            sink = self.ev.setdefault(("dma", tag, s), [])
            post = [self.advance(stream[0], stream[1], stream[2], 64 * stride)] if s < 9 else []
            ld = "buffer_load_dwordx4 v%%d, %s, %s offen offset:%%d lds" % (srd, stream[0])
            m0 = "s_add_u32 m0, %s, %%d" % sREG
            if wide:
                self.q1.append(Job(pre, [ld % (vWB[k], k * 1024) for k in range(4)], [m0 % (WOFF + off)], [], sink, weight=weight))
                self.q1.append(Job(pre, [ld % (vWB[4], 0)], [m0 % (WOFF + off + 4096)], post, sink, weight=weight))
            else:
                self.q1.append(Job(pre, [ld % (vWDI[t], t * 1024) for t in range(2)], [m0 % (WOFF + off)], post, sink, weight=weight))
            self.ev[("ndma", tag, s)] = (5 if wide else 2) + (4 if withx else 0)

    def p1_pass(self, tag, blocks, withx, paced, hooks=None, prev_tag=None):
        e = self
        nb = len(blocks)

        def split(f):
            s, rem = divmod(f, 4 * nb)
            return (s,) + divmod(rem, nb)

        def opened(s):
            if s == 0 and prev_tag:
                e.ev[("free", prev_tag, 9)] = True
            if withx:
                for ks in range(4):
                    e("ds_read_b128 %s, v%d offset:%d" % (R("a", (s * 4 + ks) * 4, 4), vXR[ks], (s % 4) * 4096))

        def read(f, dst):
            s, ks, b = split(f)
            return blocks[b][0](s, ks, dst)

        def mfma(f, wf):
            s, ks, b = split(f)
            acc = R("v", blocks[b][1], 16)
            xf = R("a", (s * 4 + ks) * 4, 4)
            ops = (wf, xf) if blocks[b][2] == 2 else (xf, wf)
            e("v_mfma_f32_32x32x16_bf16 %s, %s, %s, %s" % (acc, ops[0], ops[1], "0" if f < nb else acc))
        e.mfma_loop(tag, 10, 4 * nb, read, mfma, opened, paced, dict(hooks or {}), 16 if tag == "A" else 26)

    def rd_narrow(self, offf, hf):
        def read(s, ks, dst):
            for t in range(2):
                i = self("ds_read_b64_tr_b16 %s, v%d offset:%d" % (R("v", dst + 2 * t, 2), vWS[ks >> 1][hf], (ks & 1) * REGION + offf(s) + t * 512))
            return i
        return read

    def rd_wide(self, offf, b):
        def read(s, ks, dst):
            for t in range(2):
                i = self("ds_read_b64_tr_b16 %s, v%d offset:%d" % (R("v", dst + 2 * t, 2), vWW[ks >> 1], (ks & 1) * REGION + offf(s) + t * 1280 + b * 64))
            return i
        return read

    def seg320(self, stride, wmul, gap=0, regs_=vWB):
        e = self
        e("s_mul_i32 %s, %s, %d" % (sT2, sW, wmul))
        for k, r_ in enumerate(regs_):
            e("v_add_u32 v%d, %d, v0\nv_mul_u32_u24 v%d, 0xccd, v%d\nv_lshrrev_b32 v%d, 16, v%d" % (vT[0], 64 * k, vT[1], vT[0], vT[1], vT[1]))
            e("v_mul_u32_u24 v%d, %d, v%d\nv_lshl_add_u32 v%d, v%d, 4, v%d" % (r_, stride - 320 - 2 * gap, vT[1], r_, vT[0], r_))
            if gap:
                e("v_mul_u32_u24 v%d, 0x199a, v%d\nv_lshrrev_b32 v%d, 16, v%d\nv_mul_u32_u24 v%d, %d, v%d\nv_add_u32 v%d, v%d, v%d"
                  % (vT[1], vT[0], vT[1], vT[1], vT[1], gap, vT[1], r_, r_, vT[1]))
            e("v_add_u32 v%d, %s, v%d" % (r_, sT2, r_))
            if 0 < k < 4:
                e("v_subrev_u32 v%d, %d, v%d" % (r_, 1024 * k, r_))

    def wide_read_addr(self):
        e = self
        e("v_lshrrev_b32 v%d, 5, v0\nv_bfe_u32 v%d, v0, 2, 2\nv_lshl_add_u32 v%d, v%d, 3, v%d" % (vT[0], vT[1], vT[0], vT[0], vT[1]))
        e("v_mul_u32_u24 v%d, 320, v%d\nv_lshl_add_u32 v%d, v3, 5, v1\nv_add_u32 v%d, v%d, v%d" % (vT[0], vT[0], vT[1], vT[0], vT[0], vT[1]))
        e("v_add_u32 v%d, %d, v%d\nv_add_u32 v%d, %d, v%d" % (vWW[0], WOFF, vT[0], vWW[1], WOFF + 2 * REGION, vT[0]))

    def gelu(self, regs_, tmp, emit):
        for b0 in range(0, len(regs_), 8):
            ps = [(regs_[b0 + k], tmp + k) for k in range(0, min(8, len(regs_) - b0), 2)]
            for x, t in ps:
                emit("v_pk_mul_f32 %s, %s, %s" % (R("v", t, 2), R("v", x, 2), R("v", x, 2)))
            for x, t in ps:
                emit("v_pk_fma_f32 %s, %s, %s, %s op_sel:[0,1,0] op_sel_hi:[1,1,0]" % (R("v", t, 2), R("v", t, 2), sKC, sKC))
            for x, t in ps:
                emit("v_pk_mul_f32 %s, %s, %s" % (R("v", t, 2), R("v", t, 2), R("v", x, 2)))
            for x, t in ps:
                emit("v_exp_f32 v%d, v%d\nv_exp_f32 v%d, v%d" % (t, t, t + 1, t + 1))
            for x, t in ps:
                emit("v_pk_add_f32 %s, %s, 1.0 op_sel_hi:[1,0]" % (R("v", t, 2), R("v", t, 2)))
            for x, t in ps:
                emit("v_rcp_f32 v%d, v%d\nv_rcp_f32 v%d, v%d" % (t, t, t + 1, t + 1))
            for x, t in ps:
                emit("v_pk_mul_f32 %s, %s, %s" % (R("v", x, 2), R("v", t, 2), R("v", x, 2)))

    def phi(self, base, n, tmp, kreg):
        for b0 in range(0, n, 8):
            ps = [(base + b0 + k, tmp + k) for k in range(0, 8, 2)]
            for x, t in ps:
                self.V("v_pk_mul_f32 %s, %s, %s op_sel_hi:[1,0]" % (R("v", t, 2), R("v", x, 2), R("s", kreg, 2)))
            for x, t in ps:
                self.V("v_exp_f32_e64 v%d, v%d clamp\nv_exp_f32_e64 v%d, v%d clamp" % (t, t, t + 1, t + 1))
            for x, t in ps:
                self.V("v_max_f32 v%d, s%d, v%d\nv_max_f32 v%d, s%d, v%d" % (x, kreg + 1, x, x + 1, kreg + 1, x + 1))
            for x, t in ps:
                self.V("v_pk_add_f32 %s, %s, %s" % (R("v", x, 2), R("v", x, 2), R("v", t, 2)))

    def pack(self, src, n, dst):
        for k in range(n // 2):
            self.V("v_cvt_pk_bf16_f32 v%d, v%d, v%d" % (dst + k, src + 2 * k, src + 2 * k + 1))

    def z2_stats(self):
        e = self
        ld = self.dbg_ld
        e.gelu(list(range(Z2ACC, Z2ACC + 32)), ACCB, e.V)
        S = [ACCB + 8, ACCB + 10]
        Q = [ACCB + 12, ACCB + 14]
        for b in range(2):
            z = Z2ACC + 16 * b
            e.V("v_pk_add_f32 %s, %s, %s" % (R("v", S[b], 2), R("v", z, 2), R("v", z + 2, 2)))
            e.V("v_pk_mul_f32 %s, %s, %s" % (R("v", Q[b], 2), R("v", z, 2), R("v", z, 2)))
            for k in range(1, 8):
                if k > 1:
                    e.V("v_pk_add_f32 %s, %s, %s" % (R("v", S[b], 2), R("v", S[b], 2), R("v", z + 2 * k, 2)))
                e.V("v_pk_fma_f32 %s, %s, %s, %s" % (R("v", Q[b], 2), R("v", z + 2 * k, 2), R("v", z + 2 * k, 2), R("v", Q[b], 2)))
        e("s_cmp_eq_u32 %s, 0\ns_cselect_b32 %s, 0, 1.0" % (sJ, sT0))
        for a in (S, Q):
            e("v_add_f32 v%d, v%d, v%d\nv_add_f32 v%d, v%d, v%d" % (a[0], a[0], a[0] + 1, a[1], a[1], a[1] + 1))
            e("v_fmac_f32 v%d, %s, v%d" % (a[1], sT0, a[0]))
        e("s_lshl2_add_u32 %s, %s, %s\ns_mul_i32 %s, %s, %d" % (sT1, sI, sW, sFL, sT1, 14 * 256))
        e("s_lshl_b32 %s, %s, 8\ns_add_u32 %s, %s, %s" % (sT1, sJ, sT1, sT1, sFL))
        e("v_permlane32_swap_b32 v%d, v%d" % (S[1], Q[1]))
        e("v_add_f32 v%d, v%d, v%d" % (S[1], S[1], Q[1]))
        e.check(ld, "v_cmp_gt_u32 vcc, 32, v%d" % vT[11])
        e("buffer_store_dword v%d, v%d, %s, %s offen sc1" % (S[1], vL4, sWS, sT1))

    def z2_norm(self):
        e = self
        o = e.opt
        p = e.prog
        T = 192
        lds = ["buffer_load_dword v%d, v%d, %s, %s offen offset:%d sc1" % (T + k, vL4, sWS, sFL, k * 256) for k in range(14)]
        p += lds + [e.mark("stat_ld")]
        a = T + 48
        b = a + 5
        p += ["v_bfe_u32 v%d, v0, 1, 1" % a, "v_bfe_u32 v%d, v0, 2, 2" % (a + 1), "v_and_b32 v%d, 1, v0" % (a + 2),
              "v_lshl_or_b32 v%d, v%d, 1, v%d" % (a + 1, a + 1, a + 2), "v_lshl_or_b32 v%d, v%d, 3, v%d" % (a, a, a + 1),
              "v_lshrrev_b32 v%d, 5, v0" % (a + 1), "v_xor_b32 v%d, v%d, v%d" % (a, a, a + 1), "v_lshlrev_b32 v%d, 3, v%d" % (a, a),
              "v_and_b32 v%d, 31, v0" % (a + 2), "v_lshl_add_u32 v%d, v%d, 7, v%d" % (a, a + 2, a), "v_add_u32 v%d, %s, v%d" % (a, sREG, a)]
        p += ["v_bfe_u32 v%d, v0, 3, 1" % b, "v_lshlrev_b32 v%d, 3, v%d" % (b, b), "v_lshl_or_b32 v%d, v%d, 2, v%d" % (b, a + 1, b),
              "v_bfe_u32 v%d, v0, 2, 1" % (b + 1), "v_or_b32 v%d, v%d, v%d" % (b, b, b + 1),
              "v_bfe_u32 v%d, v0, 4, 1" % (b + 1), "v_and_b32 v%d, 3, v0" % (b + 2), "v_lshl_or_b32 v%d, v%d, 2, v%d" % (b + 1, b + 1, b + 2),
              "v_xor_b32 v%d, v%d, v%d" % (b, b, b + 1), "v_lshlrev_b32 v%d, 3, v%d" % (b, b),
              "v_bfe_u32 v%d, v0, 2, 2" % (b + 1), "v_lshl_add_u32 v%d, v%d, 3, v%d" % (b + 1, a + 1, b + 1),
              "v_lshl_add_u32 v%d, v%d, 7, v%d" % (b, b + 1, b), "v_add_u32 v%d, %s, v%d" % (b, sREG, b)]
        p += ["v_xor_b32 v%d, %d, v%d" % (b + k, (k >> 1) * 64 + (k & 1) * 16, b) for k in range(1, 4)]
        p += ["s_lshl2_add_u32 %s, %s, %s" % (sT0, sI, sW), "s_lshl_b32 %s, %s, 12" % (sT0, sT0), "s_lshl_b32 %s, %s, 18" % (sT1, sJ),
              "s_add_u32 %s, %s, %s" % (sT0, sT0, sT1), "s_add_u32 %s, %s, %d" % (sT0, sT0, Z2N),
              "s_lshl4_add_u32 %s, %s, %s" % (sT1, sJ, sI), "s_lshl2_add_u32 %s, %s, %s" % (sT1, sT1, sW), "s_lshl_b32 %s, %s, 7" % (sT1, sT1),
              "s_add_u32 %s, %s, %d" % (sT1, sT1, F_Z2N)]
        p.append(("delay", o.get("d_stat", 8)))
        p.append(("call", lambda: setattr(e, "boost", o.get("boost", 24)), 0))
        m = T + 14
        mx = ["v_max3_u32 v%d, v%d, v%d, v%d" % (m, T, T + 1, T + 2)]
        mx += ["v_max3_u32 v%d, v%d, v%d, v%d" % (m, m, T + k, T + k + 1) for k in range(3, 13, 2)]
        mx += ["v_max_u32 v%d, v%d, v%d" % (m, m, T + 13)]
        p += mx
        p.append(("call", lambda: e.check("\n".join(lds), "v_cmp_eq_u32 vcc, -1, v%d" % m, "\n".join(mx)), 16))
        p += ["v_add_f32 v%d, v%d, v%d" % (T + (k & 1), T + (k & 1), T + k) for k in range(2, 14)]
        p += ["v_add_f32 v%d, v%d, v%d" % (T, T, T + 1), "v_mul_f32 v%d, %s, v%d" % (T, f32(1.0 / 864), T), "v_mov_b32 v%d, v%d" % (T + 1, T), ("delay", 1),
              "v_permlane32_swap_b32 v%d, v%d" % (T, T + 1), "v_fma_f32 v%d, -v%d, v%d, v%d" % (T + 1, T, T, T + 1),
              "v_max_f32 v%d, 0, v%d" % (T + 1, T + 1), "v_add_f32 v%d, %s, v%d" % (T + 1, f32(1e-5), T + 1), "v_rsq_f32 v%d, v%d" % (T + 2, T + 1),
              "v_xor_b32 v%d, 16, v%d" % (a + 1, a), "v_mul_f32_e64 v%d, -v%d, v%d" % (T + 3, T, T + 2)]
        P = T + 16
        for q in range(8):
            p += ["v_fma_f32 v%d, v%d, v%d, v%d" % (Z2ACC + 4 * q + k, Z2ACC + 4 * q + k, T + 2, T + 3) for k in range(4)]
            p += ["v_cvt_pk_bf16_f32 v%d, v%d, v%d" % (P + 2 * q + k, Z2ACC + 4 * q + 2 * k, Z2ACC + 4 * q + 2 * k + 1) for k in range(2)]
            r_ = a + (1 + (q + 1) % 2 if q else 0)
            if q > 1:
                p.append("v_xor_b32 v%d, %d, v%d" % (r_, q * 16, a))
            p.append("ds_write_b64 v%d, %s offset:%d" % (r_, R("v", P + 2 * q, 2), 3 * 4096))
        Fr = T + 32
        for ks in range(2):
            for blk in range(2):
                for t in range(2):
                    p.append("ds_read_b64_tr_b16 %s, v%d offset:%d" % (R("v", Fr + 8 * ks + 4 * blk + 2 * t, 2), b + 2 * blk + t, 3 * 4096 + ks * 2048 + t * 512))
        p.append(("call", lambda: setattr(e, "boost", 0), 0))
        for k in range(4):
            p.append(("delay", o.get("d_z2n", 0) if k else 2))
            p.append("buffer_store_dwordx4 %s, v%d, %s, %s offen offset:%d sc1" % (R("v", Fr + 4 * k, 4), vL16, sWS, sT0, k * 1024))
        p += [e.mark("z2n_st"), ("call", lambda: (e.ev.__setitem__("norm_done", True), e.stamp(3)), 0), ("until", lambda: e.ev["z2n_st"]),
              ("call", lambda: e.flag(e.ev["z2n_st"], sT1), 16)]

    def a_tables(self):
        e = self
        e("s_lshl2_add_u32 %s, %s, %s\ns_lshl_b32 %s, %s, 17\ns_and_b32 %s, %s, 1" % (sT0, sI2, sW, sT0, sT0, sT3, sJ2))
        e("s_lshl_b32 %s, %s, 11\ns_add_u32 %s, %s, %s" % (sT1, sT3, sT0, sT0, sT1))
        e("s_xor_b32 %s, %s, 1\ns_lshl1_add_u32 %s, %s, %s\ns_lshl_b32 %s, %s, 17" % (sT2, sJ2, sT2, sT2, sT3, sT2, sT2))
        e("s_lshl_b32 %s, %s, 12\ns_add_u32 %s, %s, %s\ns_add_u32 %s, %s, %d" % (sT1, sW, sT2, sT2, sT1, sT2, sT2, Z2N))
        e("s_lshl_b32 %s, %s, 19\ns_sub_u32 %s, %s, 0x40000" % (sROW[0], sT3, sROW[0], sROW[0]))
        e("s_lshr_b32 %s, %s, 1" % (sT3, sJ2))
        for st in range(8):
            if self.opt.get("rot2", 0):
                e("s_add_u32 %s, %s, %d\ns_and_b32 %s, %s, 7" % (sT1, sT3, st, sT1, sT1))
                e("s_lshl_b32 %s, %s, 8\ns_add_u32 %s, %s, %s" % (sCH[st], sT1, sCH[st], sCH[st], sT0))
                e("s_lshl_b32 %s, %s, 14\ns_add_u32 %s, %s, %s" % (sT1, sT1, sBCH[st], sT1, sT2))
            else:
                e("s_add_u32 %s, %s, %d\ns_add_u32 %s, %s, %d" % (sCH[st], sT0, st * 256, sBCH[st], sT2, st * 16384))

    def a_jobs(self, q0, q1, r0, r1, queue):
        e = self
        for q in range(q0, q1):
            def pre(q=q):
                if q < 4:
                    return e.ev.get("xfree") and (q != 3 or e.ev.get("norm_done"))
                rd = e.ev.get(("ard", q - 4))
                return rd is not None and (rd[0] <= e.lg_done or e.cyc - rd[1] >= 160)
            setup = ["s_add_u32 m0, %s, %d" % (sREG, (q % 4) * 4096)]
            if q & 1:
                setup.append("s_add_u32 %s, %s, 128" % (sSO, sCH[q >> 1]))
            if q >= 4:
                setup.insert(0, lambda q=q: e.wait(lg=e.ev[("ard", q - 4)][0]))
            queue.append(Job(pre, ["buffer_load_dwordx4 v%d, %s, %s offen offset:%d lds" % (vAD[r], sWSP, sSO if q & 1 else sCH[q >> 1], r * 1024)
                                   for r in range(4)], setup, [], e.ev.setdefault(("adma", q), []),
                             lambda q=q: e.ev.__setitem__(("adma_t", q), e.cyc)))
        for q in range(r0, r1):
            def pre(q=q):
                ids = e.ev.get(("adma", q), [])
                if len(ids) < 4 or (6 <= q < 10 and not e.ev.get("norm_done")):
                    return False
                return max(ids) <= e.vm_done or e.cyc - e.ev[("adma_t", q)] >= e.lat or e.vm_n - 1 - max(ids) >= e.behind

            def emit(ks, q=q):
                e.wait(vm=max(e.ev[("adma", q)]))
                i = e("ds_read_b128 %s, v%d offset:%d" % (rr(ASLOT[q], 4, 4 * ks), vXR[ks], (q % 4) * 4096))
                if ks == 3:
                    e.ev[("ard", q)] = (i, e.cyc)
            for ks in range(4):
                e.qd.append((pre, lambda ks=ks, emit=emit: emit(ks)))

    def b_jobs(self, g0, g1):
        e = self
        for g in range(g0, g1):
            e.ev[("ndma", "P", g)] = 4
            setup = ["s_add_u32 m0, %s, %d" % (sREG, WOFF + ((g + 3) % 6) * 4096)]
            if g >= 8:
                setup.append("s_add_u32 %s, %s, %s" % (sSO, sBCH[g - 8], sROW[0]))
            pre = (lambda: True) if g < 6 else (lambda g=g: e.ev.get(("free", "P", g - 6)))
            e.q1.append(Job(pre, ["buffer_load_dwordx4 v%d, %s, %s offen offset:%d sc1 lds" % (vL16, sWS, sSO if g >= 8 else sBCH[g], k * 1024)
                                  for k in range(4)], setup, [], e.ev.setdefault(("dma", "P", g), [])))

    def z2n_poll_issue(self):
        e = self
        e("s_and_b32 %s, %s, 1\ns_andn2_b32 %s, %s, 1\ns_lshl1_add_u32 %s, %s, %s" % (sT0, sJ2, sAO, sJ2, sAO, sAO, sT0))
        e("s_lshl_b32 %s, %s, 5\ns_add_u32 %s, %s, %s\ns_lshl_b32 %s, %s, 7\ns_add_u32 %s, %s, %d" % (sAO, sAO, sAO, sAO, sW, sAO, sAO, sAO, sAO, F_Z2N))
        e("v_and_b32 v%d, 7, v0\nv_bfe_u32 v%d, v0, 3, 1\nv_lshl_add_u32 v%d, v%d, 4, v%d\nv_lshlrev_b32 v%d, 9, v%d"
          % (vT[8], vT[7], vT[8], vT[7], vT[8], vT[8], vT[8]))
        e("s_lshl2_add_u32 %s, %s, %s\ns_lshl_b32 %s, %s, 6" % (sT0, sI2, sW, sT0, sT0))
        e("v_and_b32 v%d, 31, v0\nv_lshlrev_b32 v%d, 1, v%d" % (vT[7], vT[7], vT[7]))
        e("buffer_load_ushort v%d, v%d, %s, %s offen" % (vT[10], vT[7], sBSP, sT0))
        self.z2n_poll = "buffer_load_dword v%d, v%d, %s, %s offen sc1" % (vT[9], vT[8], sWS, sAO)
        e(self.z2n_poll)

    def z2n_go(self):
        e = self
        e.check(e.z2n_poll, "v_cmp_eq_u32 vcc, -1, v%d" % vT[9])
        e.stamp(6)
        e.b_jobs(0, NB0)

    def drain_all(self):
        self.drain(lambda: not self.q1 and not self.q2 and not self.qd and not self.armed)
        self.settle()
        return self.vm_n - 1

    def p1_finish(self, last, upto):
        e = self
        e.lstamp(None)
        e.stamp(5)
        e.wait(vm=upto, lg=e.lg_n - 1)
        return e.join_state({"last": last})

    OFF_A = staticmethod(lambda s: 16384 + (s % 4) * 2048)
    OFF_W = staticmethod(lambda s: (s % 4) * 5120)

    def main_start(self):
        e = self
        e.w_offsets(vWDI, 3456)
        e.stream_init(sAO, sAB, sAE, "s_add_u32 %s, %s, 13\ns_lshl_b32 %s, %s, 7" % (sAB, sJ, sAB, sAB), 3456)
        e.w_jobs("A", False, e.OFF_A, sWIN, (sAO, sAB, sAE), 3456, {}, True)
        n = len(e.q1)
        e.bg_vm(force=True, maxn=e.opt.get("n0", 8))
        e.settle()
        self.n_start = n - len(e.q1)
        self.start_ev = {k: list(v) for k, v in e.ev.items() if k[0] == "dma"}
        e.late_setup()
        e.a_tables()

    def pass_a(self, queue_b):
        e = self
        e.w_jobs("A", False, e.OFF_A, sWIN, (sAO, sAB, sAE), 3456, {}, True)
        del e.q1[:self.n_start]
        for k, v in self.start_ev.items():
            e.ev[k][:] = v
        e.bg_vm(force=True, maxn=e.opt.get("n1", 0))
        e.settle()
        queue_b()
        e.stamp(0)
        e.bg_vm(force=True, maxn=12)
        self.dbg_ld = "buffer_load_dword v%d, off, %s, 0 sc1" % (vT[11], sDBG)

        def limit():
            k = max(i for i, j in enumerate(e.q1) if j.sink is e.ev[("dma", "B", e.opt.get("pre_b", 2))]) + 1
            e.q1, self.q_later = e.q1[:k], e.q1[k:]
        limit()
        e.p1_pass("A", [(e.rd_narrow(e.OFF_A, 0), Z2ACC, 2), (e.rd_narrow(e.OFF_A, 1), Z2ACC + 16, 2)], True, False,
                  {e.opt.get("f_dbg", 56): lambda: e(self.dbg_ld)})
        e.stamp(1)

    def second_pass(self, blocks, hooks=None):
        e = self
        e.pipe = e.cyc
        e.wait_all(vm=False)
        e.ev["xfree"] = True
        e.z2_stats()
        e.stamp(2)
        e.q1 += self.q_later
        e.a_jobs(0, e.nqd, 0, e.nqd - 4, e.q2)
        e.bg_vm(force=True, maxn=e.opt.get("n2", 3))
        e.lat = 10 ** 9
        o = e.opt
        e.p1_pass("B", blocks, False, True, {**(hooks or {}), o.get("f_poll", 30): e.z2_norm}, prev_tag="A")
        e.ev["passb"] = True
        e.prog_flush()
        e.lat = o.get("lat1", 800)
        e.stamp(4)
        e.wait_all(vm=False)
        e("s_barrier")

    def role_a(self):
        e = self

        def queue_b():
            e("s_lshl2_add_u32 %s, %s, %s" % (sG, sHALF, sJL))
            e.stream_init(sBO, sBB, sBE, "s_mul_i32 %s, %s, 160\ns_add_u32 %s, %s, 1280" % (sBB, sG, sBB, sBB), 3840)
            e.w_jobs("B", True, e.OFF_W, sWQ, (sBO, sBB, sBE), 3840, {15360: ("A", 9)}, False, 1.6)
            e.seg320(3840, 16 * 3840, 1280 - 160)
            e.wide_read_addr()
        e.pass_a(queue_b)
        e.second_pass([(e.rd_wide(e.OFF_W, b), ACCB + 16 * b, 1) for b in range(5)])
        e("s_mov_b32 s100, %s\ns_mov_b32 s101, %s" % (f32(LOG2E), f32(1e-6)))
        tmp = WRING
        P = Z2ACC
        e.z2n_poll_issue()
        e.V("v_add_u32 v%d, %s, v%d" % (vT[0], sREG, vL16))
        ones = WRING + 8
        for k in range(4):
            e.V("v_mov_b32 v%d, 0x3f803f80" % (ones + k))
        for st in range(2):
            e("ds_write_b128 v%d, %s offset:%d" % (vT[0], R("v", ones, 4), WOFF + (10 + st) * 1024))
        for n_, b in enumerate((3, 4, 0, 1, 2)):
            if b < 2:
                e.phi(ACCB + 16 * b, 16, tmp, 100)
            elif b == 2:
                e.bg_vm(force=True, maxn=2)
                e.settle()
                saved = (e.q1, e.q2, e.qd)
                e.q1, e.q2, e.qd = [], [], []
                e("s_mov_b32 exec_lo, 0xffff\ns_mov_b32 exec_hi, 0xffff")
                e.phi(ACCB + 32, 16, tmp, 100)
                e("s_mov_b64 exec, -1")
                e.q1, e.q2, e.qd = saved
            if n_ == e.opt.get("a_go", 3):
                e.z2n_go()
            d = P + 8 * (n_ % 4)
            e.pack(ACCB + 16 * b, 16, d)
            for st in range(2):
                e("ds_write_b128 v%d, %s offset:%d" % (vT[0], R("v", d + 4 * st, 4), WOFF + (2 * b + st) * 1024))
        sA = [sT0, sT1]
        sB = [sT2, sT3]
        e("s_add_u32 %s, %s, 2\ns_add_u32 %s, %s, 3\ns_min_u32 %s, %s, 5" % (sA[0], sW, sA[1], sW, sA[1], sA[1]))
        e("s_cmp_eq_u32 %s, 3\ns_cselect_b32 %s, 0, %s\ns_cselect_b32 %s, 1, %s" % (sW, sB[0], sW, sB[1], sW))
        AD = vT[1:5]
        for k, s_ in enumerate((sA[0], sB[0], sA[1], sB[1])):
            e("v_mov_b32 v%d, %s\nv_lshl_add_u32 v%d, v%d, 11, v%d" % (AD[k], s_, AD[k], AD[k], vL16))
        e.wait_all(vm=False)
        e("s_barrier")
        RES = [ACCB, ACCB + 16]

        def reads(step):
            w_, st = divmod(step, 2)
            if step == 4:
                for k in range(4):
                    e("v_add_u32 v%d, %d, v%d" % (AD[k], 2 * REGION, AD[k]))
            for k in range(4):
                e("ds_read_b128 %s, v%d offset:%d" % (R("a", (step % 6) * 16 + 4 * k, 4), AD[k], WOFF + (w_ & 1) * REGION + st * 1024))
        reads(0); reads(1); reads(2)
        for step in range(8):
            for jb in range(2):
                base = (step % 6) * 16 + 8 * jb
                acc = R("v", RES[jb], 16)
                e("v_mfma_f32_32x32x16_bf16 %s, %s, %s, %s" % (acc, R("a", base, 4), R("a", base + 4, 4), "0" if step == 0 else acc))
                if jb == 0 and step + 3 < 8:
                    reads(step + 3)
                else:
                    e.tick()
        upto = e.drain_all()
        e("s_lshl4_add_u32 %s, %s, %s\ns_mul_i32 %s, %s, 20480\ns_add_u32 %s, %s, %d" % (sAB, sG, sI, sAB, sAB, sAB, sAB, KVP - 2 * 4096))
        e("s_lshl3_add_u32 %s, %s, %s\ns_mul_i32 %s, %s, 384\ns_add_u32 %s, %s, %d" % (sAE, sI, sG, sAE, sAE, sAE, sAE, ZP))
        e("v_and_b32 v%d, 0x7c, v%d" % (vT[0], vL4))
        for jb in range(2):
            e("s_add_u32 %s, %s, %s\ns_lshl_b32 %s, %s, 12\ns_add_u32 %s, %s, %s" % (sSO, sA[jb], sB[jb], sSO, sSO, sSO, sSO, sAB))
            e("s_lshl_b32 %s, %s, 7\ns_add_u32 %s, %s, %s" % (sB[jb], sB[jb], sB[jb], sB[jb], sAE))
            e("s_cmp_eq_u32 %s, 5\ns_cselect_b32 %s, 0x%x, %s\ns_cselect_b32 %s, %s, 0x%x" % (sA[jb], sA[jb], OOB, sSO, sB[jb], sB[jb], OOB))
        for jb in range(2):
            e("buffer_store_dword v%d, v%d, %s, %s offen sc1" % (RES[jb], vT[0], sWS, sB[jb]))
            for jq in range(4):
                last = e("buffer_store_dwordx4 %s, v%d, %s, %s offen offset:%d sc1" % (R("v", RES[jb] + 4 * jq, 4), vL16, sWS, sA[jb], jq * 1024))
        e("s_lshl4_add_u32 %s, %s, %s\ns_lshl2_add_u32 %s, %s, %s\ns_lshl2_add_u32 %s, %s, %s" % (sFL, sHALF, sI, sFL, sFL, sJL, sFL, sFL, sW))
        e("s_lshl_b32 %s, %s, 7\ns_add_u32 %s, %s, %d" % (sFL, sFL, sFL, sFL, F_KV))
        return last, upto

    def early_finish(self, last):
        e = self
        e.bg_vm(force=True, maxn=8)
        e.flag(last, sFL)
        e("s_mov_b32 %s, 0x%x" % (sFL, OOB))
        e.drain(lambda: len(e.q2) <= 2)
        e.z2n_poll_issue()
        e.drain_all()
        e.z2n_go()
        return -1, e.drain_all()

    def z1_store(self, nblk, first_text):
        e = self
        e("s_lshl2_add_u32 %s, %s, %s\ns_mul_i32 %s, %s, 28" % (sT0, sI, sW, sT0, sT0))
        e(first_text)
        e("s_add_u32 %s, %s, %s\ns_lshl_b32 %s, %s, 11\ns_add_u32 %s, %s, %d" % (sT0, sT0, sT1, sT0, sT0, sT0, sT0, Z1))
        for b in range(nblk):
            d = Z2ACC + 8 * (b % 4)
            e.pack(ACCB + 16 * b, 16, d)
            if b == 4:
                e("s_add_u32 %s, %s, 8192" % (sT0, sT0))
            for p in range(2):
                o_ = (b % 4) * 2048 + p * 1024
                last = e("buffer_store_dwordx4 %s, v%d, %s, %s offen offset:%d sc1" % (R("v", d + 4 * p, 4), vL16B if o_ >= 4096 else vL16, sWS, sT0, o_ % 4096))
        return last

    def z1_flag_addr(self):
        self("s_lshl2_add_u32 %s, %s, %s\ns_lshl3_add_u32 %s, %s, %s" % (sFL, sI, sW, sFL, sFL, sG))
        self("s_lshl_b32 %s, %s, 7\ns_add_u32 %s, %s, %d" % (sFL, sFL, sFL, sFL, F_Z1))

    def role_b(self):
        e = self

        def queue_b():
            e("s_mul_i32 %s, %s, 3\ns_add_u32 %s, %s, %s\ns_sub_u32 %s, %s, 4" % (sG, sHALF, sG, sG, sJL, sG, sG))
            e.stream_init(sBO, sBB, sBE, "s_mul_i32 %s, %s, 320" % (sBB, sG), 3456)
            e.w_jobs("B", True, e.OFF_W, sWIN, (sBO, sBB, sBE), 3456, {15360: ("A", 9)}, False, 1.2)
            e.seg320(3456, 16 * 3456)
            e.wide_read_addr()
        e.pass_a(queue_b)
        e.second_pass([(e.rd_wide(e.OFF_W, b), ACCB + 16 * b, 2) for b in range(5)])
        last = e.z1_store(5, "s_mul_i32 %s, %s, 5\ns_add_u32 %s, %s, 1" % (sT1, sG, sT1, sT1))
        e.z1_flag_addr()
        return e.early_finish(last)

    @staticmethod
    def unit_col(U):
        c, t = divmod(U, 5)
        return (80 * c + (32 * (t >> 1) + 4 * (t & 1) if t < 4 else 64), 8 if t < 4 else 4)

    def role_l(self):
        e = self
        offf = lambda s: (s % 7) * 2048
        vGR = 18

        def queue_b():
            e("s_mov_b32 %s, 5" % sG)
            e.stream_init(sBO, sBB, sBE, "s_mov_b32 %s, 1600" % sBB, 3456)
            e("s_lshl_b32 %s, %s, 7" % (sT0, sROT))
            for t in range(2):
                e("v_add_u32 v%d, %s, v%d" % (vT[2 + t], sT0, vL16))
                if t:
                    e("v_add_u32 v%d, 0x400, v%d" % (vT[3], vT[3]))
                e("v_subrev_u32 v%d, 0x500, v%d\nv_min_u32 v%d, v%d, v%d" % (vT[1], vT[2 + t], vT[2 + t], vT[2 + t], vT[1]))
                e.q1.append(Job(lambda: True, ["buffer_load_dwordx4 v%d, %s, 0 offen lds" % (vT[2 + t], sGW)],
                                ["s_add_u32 m0, %s, %d" % (sREG, WOFF + 14336 + 1024 * t)], [], e.ev.setdefault(("dma", "B", 0), [])))
            e.w_jobs("B", False, offf, sWIN, (sBO, sBB, sBE), 3456, {}, False, 2.0)
            e.ev[("ndma", "B", 0)] += 2
            e("v_lshrrev_b32 v%d, 5, v0\nv_lshl_add_u32 v%d, v%d, 4, %s" % (vGR, vGR, vGR, sREG))

        def rd_gate(s, ks, dst):
            return e("ds_read_b128 %s, v%d offset:%d" % (R("v", dst, 4), vGR, WOFF + 14336 + s * 128 + ks * 32))
        e.pass_a(queue_b)
        e.second_pass([(e.rd_narrow(offf, 0), ACCB, 2), (e.rd_narrow(offf, 1), ACCB + 16, 2), (rd_gate, ACCB + 32, 2)])
        g = ACCB + 32
        e.V("v_mul_f32 v%d, %s, v%d\nv_exp_f32 v%d, v%d\nv_add_f32 v%d, 1.0, v%d\nv_rcp_f32 v%d, v%d" % (g, f32(-LOG2E), g, g, g, g, g, g, g))
        e("s_lshl2_add_u32 %s, %s, %s\ns_lshl_b32 %s, %s, 7\ns_add_u32 %s, %s, %d" % (sT0, sI, sW, sT0, sT0, sT0, sT0, GATE))
        e("v_and_b32 v%d, 0x7c, v%d" % (vT[0], vL4))
        e("buffer_store_dword v%d, v%d, %s, %s offen sc1" % (g, vT[0], sWS, sT0))
        last = e.z1_store(2, "s_mov_b32 %s, 26" % sT1)
        e.z1_flag_addr()
        return e.early_finish(last)

    def ap_voff(self, dst):
        self.V("v_bfe_u32 v%d, v0, 4, 1\nv_mul_u32_u24 v%d, 0xc000, v%d\nv_and_b32 v%d, 15, v0" % (dst, dst, dst, vT[0]))
        self.V("v_lshl_add_u32 v%d, v%d, 4, v%d\nv_lshrrev_b32 v%d, 5, v0\nv_lshl_add_u32 v%d, v%d, 8, v%d" % (dst, vT[0], dst, vT[0], dst, vT[0], dst))

    def role_h(self):
        e = self
        e.wring = 208
        Q = 48
        e("s_mov_b32 s14, %d\ns_mov_b32 s15, 0x20000" % self.sizes[12])
        e.stream_init(sAO, sAB, sAE, "s_mul_i32 %s, %s, 640" % (sAB, sHALF), 3840)
        e.seg320(3840, 16 * 3840)
        occ = {}
        off2 = lambda s: e.OFF_W(s + 10)
        e.w_jobs("A", True, e.OFF_W, sWQ, (sAO, sAB, sAE), 3840, occ, True, 1.2)
        e.bg_vm(force=True, maxn=5)
        e.settle()
        e.late_setup(natural=True)
        e.wide_read_addr()
        SG, ra = [32, 33, 34, 35, 16], 20
        sWB, sDB, sDO = sROW[1], sROW[2], sROW[3]
        e.seg320(1280, 320, regs_=SG)
        e("v_lshrrev_b32 v%d, 5, v0\nv_bfe_u32 v%d, v0, 2, 3\nv_lshl_add_u32 v%d, v%d, 4, v%d" % (ra, ra + 1, ra, ra, ra + 1))
        e("v_mul_u32_u24 v%d, 320, v%d\nv_add_u32 v%d, %s, v%d\nv_and_b32 v%d, 3, v0" % (ra, ra, ra, sREG, ra, vT[0]))
        e("v_lshl_add_u32 v%d, v%d, 3, v%d\nv_lshl_add_u32 v%d, v%d, 4, v%d" % (ra + 1, vT[0], ra, ra, vT[0], ra))
        e("s_lshl1_add_u32 %s, %s, %s\ns_mul_i32 %s, %s, %d" % (sT0, sI, sHALF, sWB, sT0, 32 * 1280))
        e("s_mul_i32 %s, %s, 96\ns_add_u32 %s, %s, %s\ns_mul_i32 %s, %s, 5120\ns_add_u32 %s, %s, %d" % (sDB, sW, sDB, sDB, sT0, sDB, sDB, sDB, sDB, BP + 20 * 5120))
        e("s_cmp_lt_u32 %s, 27\ns_cselect_b32 %s, %s, 0x%x" % (sT0, sDB, sDB, OOB))
        e("s_lshl_b32 %s, %s, 5\ns_add_u32 %s, %s, %s\ns_lshl_b32 %s, %s, 7\ns_add_u32 %s, %s, %d" % (sFL, sW, sFL, sFL, sT0, sFL, sFL, sFL, sFL, F_WO))
        ld0 = "buffer_load_dword v%d, off, %s, 0 sc1" % (vT[11], sDBG)

        def relayout():
            sink = e.ev.setdefault("wo", [])
            for hf in range(2):
                so = "s_add_u32 %s, %s, %d" % (sSO, sWB, 16 * hf * 1280)
                ld = "buffer_load_dwordx4 v%%d, %s, %s offen offset:%%d lds" % (sWOUT, sSO)
                e.q2.append(Job(lambda: True, [ld % (SG[k], k * 1024) for k in range(4)], ["s_add_u32 m0, %s, %d" % (sREG, 5120 * hf), so], [], sink, weight=1.2))
                e.q2.append(Job(lambda: True, [ld % (SG[4], 0)], ["s_add_u32 m0, %s, %d" % (sREG, 5120 * hf + 4096), so], [], sink, weight=1.2))
            p = e.prog
            p.append(ld0)
            p.append(("until", lambda: max(sink) if len(sink) == 10 else 10 ** 9))
            p.append(("call", lambda: (e.drain(lambda: len(sink) == 10), e.wait(vm=max(sink))), 0))
            for U in range(10):
                col, step = self.unit_col(U)
                for sub in range(2):
                    p.append("ds_read_b64_tr_b16 %s, v%d offset:%d" % (R("a", 160 + 4 * U + 2 * sub, 2), ra if step == 8 else ra + 1, sub * 8 * 320 + col * 2))
            for U in range(10):
                c, t = divmod(U, 5)
                if t == 0:
                    p.append("s_add_u32 %s, %s, %d" % (sDO, sDB, 48 * c * 5120))
                p.append(("delay", e.opt.get("d_wo", 4)))
                p.append("buffer_store_dwordx4 %s, v%d, %s, %s offen offset:%d sc1" % (R("a", 160 + 4 * U, 4), vL16B if t == 4 else vL16, sWS, sDO, (t % 4) * 1024))
            p += [e.mark("wo_st"), ("call", lambda: e.check(ld0, "v_cmp_gt_u32 vcc, 32, v%d" % vT[11]), 16),
                  ("delay", 24), ("call", lambda: e.flag(e.ev["wo_st"], sFL), 16)]
        e.wait(vm=self.clear_id)
        e("s_barrier")
        e("v_mov_b32 v244, 1\ns_lshl_b32 %s, %s, 12\ns_mov_b64 exec, 1" % (sT0, sW))
        e("buffer_atomic_add v244, off, %s, %s sc1" % (sDBG, sT0))
        e("s_mov_b64 exec, -1")
        e.stamp(0)
        e.bg_vm(force=True, maxn=18)
        e.stream_init(sBO, sBB, sBE, "s_add_u32 %s, %s, 320" % (sBB, sAB), 3840)
        e.w_jobs("B", True, off2, sWQ, (sBO, sBB, sBE), 3840, occ, False, 1.2)
        e.pipe = e.cyc
        e.p1_pass("A", [(e.rd_wide(e.OFF_W, b), Q + 16 * b, 2) for b in range(5)], True, e.opt.get("hpaced", 1))
        e.stamp(1)
        e.pipe = e.cyc
        e.p1_pass("B", [(e.rd_wide(off2, b), Q + 80 + 16 * b, 2) for b in range(5)], False, True, {0: relayout}, prev_tag="A")
        e.prog_flush()
        e.lstamp(None)
        e.stamp(4)
        e.wait_all(vm=False)
        e("s_barrier")
        sCT = sAO
        IMG = 8192
        e("s_lshr_b32 %s, %s, 1\ns_lshl3_add_u32 %s, %s, %s" % (sG, sI, sG, sHALF, sG))
        e("s_and_b32 %s, %s, 1\ns_lshl2_add_u32 %s, %s, %s" % (sCT, sI, sCT, sCT, sW))
        e("s_mul_i32 %s, %s, %d\ns_mul_i32 %s, %s, 160\ns_add_u32 %s, %s, %s" % (sT0, sG, 40 * 1280, sT1, sCT, sT0, sT0, sT1))
        for pc in range(7):
            e("v_add_u32 v16, %d, v0\nv_mul_u32_u24 v17, 0x199a, v16\nv_lshrrev_b32 v17, 16, v17" % (64 * pc))
            e("v_mul_u32_u24 v17, %d, v17\nv_lshl_add_u32 v16, v16, 4, v17" % (1280 - 160))
            e("s_add_u32 m0, %s, %d" % (sREG, WOFF + pc * 1024))
            if pc == 6:
                e("s_mov_b64 exec, 0xffff")
            wo_id = e("buffer_load_dwordx4 v16, %s, %s offen lds" % (sWO, sT0))
        e("s_mov_b64 exec, -1")
        for k in range(4):
            e("v_mov_b32 v%d, 0" % (240 + k))
        e("s_lshl_b32 %s, %s, 10\nv_add_u32 v16, %s, v%d" % (sT0, sW, sT0, vL16))
        e("ds_write_b128 v16, v[240:243] offset:%d" % IMG)
        e("s_mov_b32 s100, %s\ns_mov_b32 s101, %s" % (f32(LOG2E), f32(1e-6)))
        full = e.opt.get("stop", 9) > 2
        if full:
            e("s_lshr_b32 %s, %s, 1\ns_lshl_b32 %s, %s, 12\ns_add_u32 %s, %s, %d" % (sSO, sC, sSO, sSO, sSO, sSO, F_WO))
            e("s_mul_i32 %s, %s, %d\ns_add_u32 %s, %s, %s" % (e.sW3, sW, 7 * 128, sSO, sSO, e.sW3))
            e("v_min_u32 v%d, %d, v%d\nv_add_u32 v%d, %s, v%d" % (e.vP[0], 6 * 128, vL128, e.vP[0], sSO, e.vP[0]))
            e.p3_poll(0)
            e("s_mul_i32 %s, %s, 48\ns_mul_i32 %s, %s, 7\ns_add_u32 %s, %s, %s" % (e.sW3, sC, sSO, sW, e.sW3, e.sW3, sSO))
            e("s_mul_i32 %s, %s, 5120\ns_add_u32 %s, %s, %d" % (e.sW3, e.sW3, e.sW3, e.sW3, BP + 20 * 5120))
            e("s_cmp_eq_u32 %s, 3\ns_cselect_b32 %s, 0x%x, 0\nv_add_u32 v%d, %s, v%d" % (sW, sSO, OOB, e.vZ, sSO, vL16))
        e.phi(Q, 48, 240, 100)
        if full:
            e.p3_check(0)
            e.ev["f"] = 999
            e.p3_jobs(e.q1, 0, 35)
            e.pipe = e.cyc - 200
        e.phi(Q + 48, 112, 240, 100)
        e("s_lshl2_add_u32 %s, %s, %s\ns_lshl_b32 %s, %s, 13\ns_add_u32 %s, %s, %d" % (sBO, sHALF, sW, sBO, sBO, sBO, sBO, F_KV))
        e("s_lshl2_add_u32 %s, %s, %s\ns_lshl_b32 %s, %s, 7\ns_lshl_b32 %s, %s, 3\ns_add_u32 %s, %s, %d" % (sBE, sI, sW, sBE, sBE, sBB, sBE, sBB, sBB, F_Z1 + 5 * 128))
        ld1 = "buffer_load_dword v208, v%d, %s, %s offen sc1\nbuffer_load_dword v209, off, %s, %s sc1" % (vL128, sWS, sBO, sWS, sBB)
        vH, vGA, vIW, vAR, vAR2, vAP, vZR = 24, 8, 9, 10, 11, 25, 26
        MS = [12, 13, 14]
        e.V("v_lshrrev_b32 v%d, 5, v0\nv_mov_b32 v23, 0x%x" % (vH, OOB))
        e.V("v_bfe_u32 v16, v0, 2, 2\nv_mul_u32_u24 v16, 160, v16\nv_add_u32 v16, %s, v16\nv_mul_u32_u24 v17, %d, v%d" % (sREG, 8 * 160, vH))
        e.V("v_and_b32 v18, 3, v0\nv_bfe_u32 v19, v0, 4, 1\nv_lshlrev_b32 v20, 3, v19\nv_lshl_add_u32 v20, v18, 4, v20\nv_add_u32 v20, v20, v16")
        e.V("v_lshl_add_u32 v16, v18, 3, v16\nv_add_u32 v21, v20, v17\nv_add_u32 v17, v16, v17")
        e.wait(vm=wo_id)
        for bb in range(3):
            for ks in range(3):
                for t in range(2):
                    r_ = ((21, 17) if ks < 2 else (20, 16))[bb == 2]
                    e("ds_read_b64_tr_b16 %s, v%d offset:%d" % (R("a", 12 * bb + 4 * ks + 2 * t, 2), r_, WOFF + (16 * ks + 4 * t) * 160 + 64 * bb))
        e.V("s_mul_i32 %s, %s, 50\ns_and_b32 %s, %s, 1\ns_mul_i32 %s, %s, 40" % (sT0, sW, sT1, sG, sT1, sT1))
        e.V("v_add_u32 v16, %s, v0\nv_mul_u32_u24 v17, 0xccd, v16\nv_lshrrev_b32 v17, 16, v17" % sT0)
        e.V("v_mul_u32_u24 v18, 20, v17\nv_sub_u32 v16, v16, v18\nv_cmp_lt_u32 vcc, 4, v17\nv_cndmask_b32_e64 v18, 0, 20, vcc\nv_add_u32 v16, v16, v18")
        e.V("v_mul_u32_u24 v%d, 96, v16\nv_lshl_add_u32 v%d, v17, 3, v%d" % (vIW, vIW, vIW))
        e.V("v_add_u32 v16, %s, v16\nv_lshl_add_u32 v17, v17, 2, %s\nv_add_u32 v17, 16, v17" % (sT1, sT1))
        e.V("v_lshrrev_b32 v18, 5, v16\nv_lshlrev_b32 v17, 7, v17\nv_lshl_add_u32 v17, v18, 12, v17")
        e.V("v_and_b32 v16, 31, v16\nv_lshl_add_u32 v%d, v16, 4, v17" % vGA)
        e.V("v_cmp_gt_u32 vcc, 50, v0\nv_cndmask_b32 v%d, v23, v%d, vcc\nv_mov_b32 v16, %d\nv_cndmask_b32 v%d, v16, v%d, vcc" % (vGA, vGA, 3840, vIW, vIW))
        e.V("v_and_b32 v16, 0x13, v0\nv_bfe_u32 v17, v0, 2, 1\nv_lshl_or_b32 v16, v17, 3, v16\nv_bfe_u32 v17, v0, 3, 1\nv_lshl_or_b32 v16, v17, 2, v16")
        e.V("v_mul_u32_u24 v%d, 96, v16\nv_lshl_add_u32 v%d, v%d, 4, v%d" % (vAR, vAR, vH, vAR))
        e.V("v_and_b32 v16, 7, v16\nv_mul_u32_u24 v%d, 96, v16\nv_lshl_add_u32 v%d, v%d, 4, v%d" % (vAR2, vAR2, vH, vAR2))
        e.V("s_mul_i32 %s, %s, 5" % (sT0, sG))
        e.V("v_and_b32 v16, 15, v0\nv_lshlrev_b32 v16, 4, v16\nv_lshl_add_u32 v16, v19, 10, v16")
        for p in range(3):
            e.V("v_add_u32 v17, %s, v%d\nv_add_u32 v17, %d, v17\nv_lshrrev_b32 v18, 2, v17\nv_mul_u32_u24 v18, 5120, v18" % (sT0, vH, 2 * p))
            e.V("v_and_b32 v17, 3, v17\nv_lshl_add_u32 v17, v17, 8, v16\nv_add_u32 v%d, v17, v18" % MS[p])
        e.V("v_cmp_gt_u32 vcc, 32, v0\nv_cndmask_b32 v%d, v23, v%d, vcc\nv_cmp_eq_u32 %s, 0, v19" % (MS[2], MS[2], sMASK))
        e.ap_voff(vAP)
        a16, a8 = vT[3], vT[4]
        e.V("v_lshl_add_u32 v%d, v%d, 5, %s\nv_add_u32 v%d, %s, v%d" % (vZR, vH, sREG, a16, sREG, vL16))
        e.V("v_lshlrev_b32 v27, 3, v0\nv_add_u32 v%d, %s, v27\nv_add_u32 v28, %d, v27\nv_add_u32 v15, %d, v%d" % (a8, sREG, 2 * REGION, 2 * REGION, vL16))
        e.V("s_mul_i32 %s, %s, %d\ns_mul_i32 %s, %s, 1536\ns_add_u32 %s, %s, %s\ns_add_u32 %s, %s, %d" % (sT0, sW, 4 * 3072, sT1, sHALF, sT0, sT0, sT1, sT0, sT0, ZP))
        e.V("s_lshr_b32 %s, %s, 1\ns_mul_i32 %s, %s, %d\ns_add_u32 %s, %s, %d" % (sT1, sG, sT1, sT1, 16 * 20480, sT1, sT1, KVP))
        e.V("s_add_u32 %s, %s, %d\nv_and_b32 v%d, 0x7c, v%d" % (sBE, sBE, GATE, vT[2], vL4))
        e.V("s_lshl2_add_u32 %s, %s, %s\ns_mul_i32 %s, %s, %d\ns_mul_i32 %s, %s, 10240" % (sT2, sI, sW, sT2, sT2, 2 * 49152, sT3, sHALF))
        e.V("s_add_u32 %s, %s, %s\ns_add_u32 %s, %s, %d" % (sT2, sT2, sT3, sT2, sT2, AP))
        e.V("s_mul_i32 %s, %s, %d\ns_add_u32 %s, %s, %d" % (sT3, sCT, 48 * 5120, sT3, sT3, BP))
        e.drain_all()
        e.stamp(5)
        ldw = "buffer_load_dword v208, off, %s, %s sc1" % (sWS, sBO)
        e(ldw)
        e.check(ldw, "v_cmp_eq_u32 vcc, -1, v208")
        e(ld1)
        e.check(ld1, "v_max_u32 v213, v208, v209\nv_cmp_eq_u32 vcc, -1, v213")
        e.wait_all(vm=False)
        e("s_barrier")
        e.stamp(6)
        vG = vT[10]
        KL = lambda r: 36 + 4 * r if r < 15 else 240
        for r in range(4):
            e("buffer_load_dwordx4 %s, v%d, %s, %s offen sc1" % (R("v", 208 + 4 * r, 4), vL16, sWS, sT0))
            e("buffer_load_dwordx2 %s, v27, %s, %s offen offset:1024 sc1" % (R("v", 224 + 2 * r, 2), sWS, sT0))
            if r < 3:
                e("s_add_u32 %s, %s, 3072" % (sT0, sT0))
        e("buffer_load_dword v%d, v%d, %s, %s offen sc1" % (vG, vT[2], sWS, sBE))
        for r in range(16):
            e("buffer_load_dwordx4 %s, v%d, %s, %s offen sc1" % (R("a", KL(r), 4), vGA, sWS, sT1))
            if r < 15:
                e("s_add_u32 %s, %s, 20480" % (sT1, sT1))

        def zsum(off):
            for r in range(1, 4):
                for k in (0, 2):
                    e("v_pk_add_f32 %s, %s, %s" % (R("v", 208 + k, 2), R("v", 208 + k, 2), R("v", 208 + 4 * r + k, 2)))
                e("v_pk_add_f32 v[224:225], v[224:225], %s" % R("v", 224 + 2 * r, 2))
            e("ds_write_b128 v%d, v[208:211] offset:%d\nds_write_b64 v%d, v[224:225] offset:%d" % (a16, off, a8, off + 1024))
        zsum(0)
        e.wait_all(vm=False)
        e("s_barrier")
        for r in range(4):
            e("ds_read_b128 %s, v%d offset:%d" % (R("v", 208 + 4 * r, 4), 15 if r >= 2 else vL16, (r & 1) * REGION))
            e("ds_read_b64 %s, v%d offset:%d" % (R("v", 224 + 2 * r, 2), 28 if r >= 2 else 27, (r & 1) * REGION + 1024))
        zsum(2048)
        e.stamp(2)
        ZB = [208, 228]

        def zread(hg):
            for k in range(5):
                J = 5 * (hg & 1) + k
                e("ds_read_b128 %s, v%d offset:%d" % (R("v", ZB[hg & 1] + 4 * k, 4), vZR, 2048 + 384 * (hg >> 1) + 64 * (J >> 1) + 16 * (J & 1)))
        zread(0)
        zread(1)
        AA, AB, BB, BC, CC, CD, DD = 16, 18, 20, 22, 32, 34, 36
        side = []

        def X(text):
            for ln in text.split("\n"):
                e(ln)
                if side and e.cyc >= e.mfma_free - 8:
                    e(side.pop(0))
        done = 0
        e("v_cmp_gt_u32 vcc, 32, v0")
        for gr in range(4):
            for J in range(10):
                acc = (AA, AA, AB, BB, BC, BC, CC, CD, DD, DD)[J]
                x = Q + 40 * gr + 4 * J
                z = ZB[J // 5] + 4 * (J % 5)
                if J in (1, 5, 9):
                    X("v_pk_fma_f32 %s, %s, %s, %s" % (R("v", acc, 2), R("v", x, 2), R("v", z, 2), R("v", acc, 2)))
                else:
                    X("v_pk_mul_f32 %s, %s, %s" % (R("v", acc, 2), R("v", x, 2), R("v", z, 2)))
                X("v_pk_fma_f32 %s, %s, %s, %s" % (R("v", acc, 2), R("v", x + 2, 2), R("v", z + 2, 2), R("v", acc, 2)))
                if J in (4, 9) and gr < 3:
                    zread(2 * gr + 2 + J // 5)
            for r_ in (BC, AA, AB, BB, CC, CD, DD):
                X("v_add_f32 v%d, v%d, v%d" % (r_, r_, r_ + 1))
            X("v_cndmask_b32 v%d, 0, v%d, vcc\nv_sub_f32 v%d, v%d, v%d" % (BC + 1, BC, BC, BC, BC + 1))
            X("v_add_f32 v%d, v%d, v%d\nv_add_f32 v%d, v%d, v%d" % (BB, BB, BC + 1, CC, CC, BC))
            X("v_add_f32 v%d, %s, v%d\nv_add_f32 v%d, %s, v%d" % (AB, f32(1e-6), AB, CD, f32(1e-6), CD))
            X("v_permlane32_swap_b32 v%d, v%d\nv_permlane32_swap_b32 v%d, v%d" % (AA, BB, CC, DD))
            X("v_add_f32 v%d, v%d, v%d\nv_add_f32 v%d, v%d, v%d" % (AB, AB, AA, CD, CD, CC))
            X("v_add_f32 v%d, v%d, v%d\nv_add_f32 v%d, v%d, v%d" % (AB, AB, BB, CD, CD, DD))
            X("v_rcp_f32 v%d, v%d\nv_rcp_f32 v%d, v%d" % (AB, AB, CD, CD))
            X("v_mul_f32 v%d, v%d, v%d\nv_mul_f32 v%d, v%d, v%d" % (AB, AB, vG, CD, CD, vG))
            X("v_mov_b32 v%d, v%d\nv_mov_b32 v%d, v%d\nv_mov_b32 v%d, v%d\nv_mov_b32 v%d, v%d" % (AA, AB, BB, AB, CC, CD, DD, CD))
            X("v_permlane32_swap_b32 v%d, v%d\nv_permlane32_swap_b32 v%d, v%d" % (AA, BB, CC, DD))
            X("v_cndmask_b32 v%d, v%d, v%d, vcc" % (BC, CC, BB))
            for J in range(10):
                x = Q + 40 * gr + 4 * J
                sc = (AA, AA, AB, BB, BC, BC, CC, CD, DD, DD)[J]
                for o_ in (0, 2):
                    X("v_pk_mul_f32 %s, %s, %s op_sel_hi:[1,0]" % (R("v", x + o_, 2), R("v", x + o_, 2), R("v", sc, 2)))
                if J & 1:
                    b, p = divmod(done, 2)
                    d = 248 + 4 * (done & 1)
                    for k in range(4):
                        X("v_cvt_pk_bf16_f32 v%d, v%d, v%d" % (d + k, Q + 8 * done + 2 * k, Q + 8 * done + 2 * k + 1))
                    if done and done % 8 == 0:
                        e("s_add_u32 %s, %s, 4096" % (sT2, sT2))
                    last = e("buffer_store_dwordx4 %s, v%d, %s, %s offen offset:%d sc1" % (R("v", d, 4), vAP, sWS, sT2, (b % 4) * 1024 + p * 512))
                    done += 1
            if gr == 0:
                for r in range(16):
                    d = Q + (4 if r else 0)
                    for k in range(4):
                        e("v_accvgpr_read_b32 v%d, a%d" % (d + k, KL(r) + k))
                    if r:
                        for k in (0, 2):
                            e("v_pk_add_f32 %s, %s, %s" % (R("v", Q + k, 2), R("v", Q + k, 2), R("v", d + k, 2)))
                e.pack(Q, 4, Q + 8)
                img_w = e("ds_write_b64 v%d, %s offset:%d" % (vIW, R("v", Q + 8, 2), IMG))
            if gr == 1:
                e.stamp(3)
                e.wait(lg=img_w)
                e("s_barrier")
                for ks in range(3):
                    e("ds_read_b128 %s, v%d offset:%d" % (R("a", 40 + 4 * ks, 4), vAR, IMG + 32 * ks))
                for ks in (1, 2):
                    e("ds_read_b128 %s, v%d offset:%d" % (R("a", 48 + 4 * ks, 4), vAR2, IMG + 32 * 96 + 32 * ks))
            if gr == 2:
                for bb in range(3):
                    d1, d2 = R("v", Q + 32 * bb, 16), R("v", Q + 32 * bb + 16, 16)
                    for ks in range(3):
                        side.append("v_mfma_f32_32x32x16_bf16 %s, %s, %s, %s" % (d1, R("a", 40 + 4 * ks, 4), R("a", 12 * bb + 4 * ks, 4), d1 if ks else "0"))
                    for ks in (1, 2):
                        side.append("v_mfma_f32_32x32x16_bf16 %s, %s, %s, %s" % (d2, R("a", 48 + 4 * ks, 4), R("a", 12 * bb + 4 * ks, 4), d2 if ks == 2 else "0"))
        while side:
            e(side.pop(0))
        e.stamp(7)
        for bb in range(3):
            if bb == 2:
                e("s_mov_b64 exec, %s\ns_add_u32 %s, %s, 4096" % (sMASK, sT3, sT3))
            for p in range(3):
                d = 208 + 4 * (3 * bb + p)
                e.pack(Q + 32 * bb + 8 * p, 8, d)
                m_last = e("buffer_store_dwordx4 %s, v%d, %s, %s offen offset:%d sc1" % (R("v", d, 4), MS[p], sWS, sT3, (bb & 1) * 2048))
        e("s_mov_b64 exec, -1")
        e("s_lshr_b32 %s, %s, 1\ns_lshl1_add_u32 %s, %s, %s\ns_lshl_b32 %s, %s, 5" % (sT0, sW, sT0, sI, sT0, sT0, sT0))
        e("s_and_b32 %s, %s, 1\ns_lshl1_add_u32 %s, %s, %s\ns_add_u32 %s, %s, %s" % (sT1, sW, sT1, sHALF, sT1, sT0, sT0, sT1))
        e("s_lshl_b32 %s, %s, 7\ns_add_u32 %s, %s, %d" % (sT0, sT0, sT0, sT0, F_U + 28 * 128))
        e("s_lshl4_add_u32 %s, %s, %s\ns_lshl_b32 %s, %s, 7\ns_add_u32 %s, %s, %d" % (sT1, sCT, sG, sT1, sT1, sT1, sT1, F_M))
        e.flag(last, sT0)
        e.flag(m_last, sT1)
        e.stamp(8)
        e.wait_all(vm=False)
        e("s_barrier")
        e("s_mov_b32 %s, 0x%x" % (sFL, OOB))
        if e.opt.get("stop", 9) <= 2:
            return None
        e.p3_setup()
        e.p3_jobs(e.q1, 35)
        e.p3_poll(1)
        if e.n3 > 35:
            e.p3_check(1)
        e.bg_vm(force=True, maxn=e.n3 - 35)
        e.q1 = []
        e.wait_all()
        return e.join_state({"last": -1})

    def phase2(self, ids):
        e = self
        o = e.opt
        e.ev = {"xfree": True, "norm_done": True, "f": -1, "n3": 0}
        nqd, nqr = e.nqd, e.nqd - 4
        for q in range(nqd):
            e.ev[("adma", q)] = [-1] * 4
        for g in range(NB0):
            e.ev[("dma", "P", g)] = [-1] * 4
            e.ev[("ndma", "P", g)] = 4
        e.lat = 10 ** 9
        e.wring = WRING
        e.pace = o.get("pace2", 66)
        ACC_S, ACC_O, TT, RAW = 128, Z2ACC, 80, 112
        vB = [20, 21]
        vG, vK = vT[6], vT[5]
        p = e.prog
        full = o.get("stop", 9) > 2
        e("v_add_u32 v%d, %d, v%d\nv_add_u32 v%d, %d, v%d" % (vB[0], WOFF, vL16, vB[1], WOFF + 2 * REGION, vL16))

        def opened(g):
            if g == 0:
                e.a_jobs(nqd, nqd, nqr, 16, e.q1)
                q = nqd
                for g_ in range(NB0, 16):
                    while q < 16 and q <= 2 * g_:
                        e.a_jobs(q, q + 1, 0, 0, e.q1)
                        e.q1[-1].need = ("P", 8 * q - 8)
                        q += 1
                    e.b_jobs(g_, g_ + 1)
                    e.q1[-1].need = ("P", 16 * g_ - 6)
                e.pipe = e.cyc

        def read(f, dst):
            g, rem = divmod(f, 16)
            ks, blk = divmod(rem, 2)
            r_ = ks >> 1
            return e("ds_read_b128 %s, v%d offset:%d" % (R("v", dst, 4), vB[r_ >> 1], (r_ & 1) * REGION + ((g + 3) % 6) * 4096 + (ks & 1) * 2048 + blk * 1024))

        def mfma(f, bf):
            g, rem = divmod(f, 16)
            ks, blk = divmod(rem, 2)
            q = 2 * (g % 8) + (ks >> 2)
            qn = min(15, (f + 4) >> 3)
            if qn >= nqr and ("ard", qn) not in e.ev:
                e.lat = 0
                e.drain(lambda: ("ard", qn) in e.ev)
                e.lat = 10 ** 9
            if f == 128:
                assert e.ev.get("bias")
            acc = R("v", (ACC_S if g < 8 else ACC_O) + 16 * blk, 16)
            e("v_mfma_f32_32x32x16_bf16 %s, %s, %s, %s" % (acc, bf, rr(ASLOT[q], 4, 4 * (ks & 3)), "0" if f < 2 else acc))

        def at(f):
            return ("until", lambda: -1 if e.ev["f"] >= f else 10 ** 9)

        def lines(text):
            p.extend(text.split("\n"))

        sPXS, sPXF, sPXR = sROW[1], sROW[2], sROW[3]
        nst = 4 if o.get("px16", 1) else 8
        lines("s_mul_i32 %s, %s, 14\ns_add_u32 %s, %s, %s\ns_lshl2_add_u32 %s, %s, %s" % (sT0, sI2, sT0, sT0, sJ2, sPXR, sT0, sW))
        lines("s_xor_b32 %s, %s, 4\ns_lshl_b32 %s, %s, 13\ns_add_u32 %s, %s, %d" % (sT0, sPXR, sPXS, sT0, sPXS, sPXS, PX))
        lines("s_lshl_b32 %s, %s, 7\ns_add_u32 %s, %s, %d" % (sPXF, sT0, sPXF, sPXF, F_PX))
        lines("s_lshl2_add_u32 %s, %s, %s\ns_lshl_b32 %s, %s, 7\ns_lshl_b32 %s, %s, 10\ns_add_u32 %s, %s, %d" % (sAB, sI2, sW, sAE, sAB, sAO, sAB, sAO, sAO, F_Z1))
        lines("s_mul_i32 %s, %s, 14\ns_add_u32 %s, %s, %s\ns_lshl_b32 %s, %s, 12\ns_add_u32 %s, %s, %d" % (sAB, sAB, sAB, sAB, sJ2, sAB, sAB, sAB, sAB, Z1))
        lines("s_add_u32 %s, %s, %d\nv_min_u32 v%d, %d, v%d\nv_and_b32 v%d, 0x7c, v%d" % (sAE, sAE, GATE, vT[8], 5 * 128, vL128, vT[7], vL4))
        p.append("v_lshlrev_b32 v%d, 16, v%d" % (vT[10], vT[10]))
        p.extend("v_mov_b32 v%d, v%d" % (ACC_O + k, vT[10]) for k in range(32))
        p += [("call", lambda: e.ev.__setitem__("bias", True), 0), at(o.get("f_rflag", 22)), ("call", lambda: e.flag(ids["last"], sFL), 20)]
        if full:
            e.p3_setup(p.append)
        z1_ld = "buffer_load_dword v%d, v%d, %s, %s offen sc1" % (vT[9], vT[8], sWS, sAO)
        p += [at(o.get("f_z1", 44)), z1_ld]
        if full:
            p.append(e.p3_ld(0))
        p += [e.mark("z1p"), ("until", lambda: e.ev["z1p"]), ("call", lambda: e.check(z1_ld, "v_cmp_eq_u32 vcc, -1, v%d" % vT[9]), 16)]
        p.append("buffer_load_dword v%d, v%d, %s, %s offen sc1" % (vG, vT[7], sWS, sAE))
        p += ["buffer_load_dwordx4 %s, v%d, %s, %s offen offset:%d sc1" % (R("v", RAW + 4 * k, 4), vL16, sWS, sAB, k * 1024) for k in range(4)]
        p.append(e.mark("z1d"))
        if full:
            p.append(("call", lambda: (e.p3_check(0), e.p3_jobs(e.q2, 0, 35)), 16))
        act = ["v_sub_f32 v%d, 1.0, v%d" % (vG, vG), "v_mov_b32 v%d, %s" % (vK, f32(GK2))]
        for g0 in range(0, 32, 4):
            xs = [(TT + g0 + k, vT[k]) for k in range(4)]
            for k in range(0, 4, 2):
                act.append("v_lshlrev_b32 v%d, 16, v%d" % (TT + g0 + k, RAW + (g0 + k) // 2))
                act.append("v_and_b32 v%d, 0xffff0000, v%d" % (TT + g0 + k + 1, RAW + (g0 + k) // 2))
            for fmt in ("v_mul_f32 v{t}, v{x}, v{x}", "v_fmaak_f32 v{t}, v%d, v{t}, %s" % (vK, f32(GK1)), "v_mul_f32 v{t}, v{t}, v{x}",
                        "v_exp_f32 v{t}, v{t}", "v_mul_f32 v{x}, v{x}, v%d" % vG, "v_add_f32 v{t}, 1.0, v{t}", "v_rcp_f32 v{t}, v{t}",
                        "v_mul_f32 v{x}, v{x}, v{t}"):
                act += [fmt.format(x=x, t=t) for x, t in xs]
        p += [("until", lambda: e.ev["z1d"])] + act

        def front(items):
            return lambda: e.hi.extend(items)
        px_ld = "buffer_load_dword v%d, off, %s, %s sc1" % (vT[9], sWS, sPXF)
        hooks = {}
        step = o.get("px_step", 5)
        for k in range(nst):
            st_ = "buffer_store_dwordx4 %s, v%d, %s, %s offen offset:%d sc1" % (R("v", ACC_S + 4 * k, 4), vL16B if k >= 4 else vL16, sWS, sPXS, (k % 4) * 1024)
            pk = ["v_cvt_pk_bf16_f32 v%d, v%d, v%d" % (ACC_S + 4 * k + j, ACC_S + 8 * k + 2 * j, ACC_S + 8 * k + 2 * j + 1) for j in range(4)] if nst == 4 else []
            hooks[131 + step * k] = front(pk + [st_, e.mark("px")])
        hooks[o.get("f_pxflag", 176)] = front([("call", lambda: e.flag(e.ev["px"], sPXF), 20)])
        hooks[o.get("f_pxpoll", 208)] = front(["s_lshl_b32 %s, %s, 7" % (sPXF, sPXR), "s_add_u32 %s, %s, %d" % (sPXF, sPXF, F_PX),
                                               "s_lshl_b32 %s, %s, 13" % (sPXR, sPXR), "s_add_u32 %s, %s, %d" % (sPXR, sPXR, PX), px_ld])
        PR = ACC_S + 16 if nst == 4 else ACC_S
        hooks[o.get("f_pxload", 228)] = front(
            [("call", lambda: e.check(px_ld, "v_cmp_eq_u32 vcc, -1, v%d" % vT[9]), 20)] +
            ["buffer_load_dwordx4 %s, v%d, %s, %s offen offset:%d sc1" % (R("v", PR + 4 * k, 4), vL16B if k >= 4 else vL16, sWS, sPXR, (k % 4) * 1024)
             for k in range(nst)] + ([e.p3_ld(1)] if full else []))
        e.mfma_loop("P", 16, 16, read, mfma, opened, True, hooks, 40)
        assert not e.q1 and not e.qd
        e.ev["f"] = 999
        e.prog_flush()
        e.lstamp(None)
        e.stamp(7)
        if full:
            e.drain_all()
            if e.n3 > 35:
                e.p3_check(1)
                e.p3_jobs(e.q2, 35, e.n3)
                e.drain_all()
        vU, vU0 = vT[7], vT[8]
        e.ap_voff(vU)
        e("s_cmp_eq_u32 %s, 0\ns_cselect_b32 %s, 0x%x, 0\nv_add_u32 v%d, %s, v%d" % (sJ2, sT1, OOB, vU0, sT1, vU))
        e("s_lshl2_add_u32 %s, %s, %s\ns_mul_i32 %s, %s, %d\ns_lshl_b32 %s, %s, 11" % (sT0, sI2, sW, sT0, sT0, 2 * 49152, sT1, sJ2))
        e("s_add_u32 %s, %s, %s\ns_add_u32 %s, %s, %d" % (sT0, sT0, sT1, sT0, sT0, AP + 19 * 1024))
        for k in range(8):
            g = ACC_O + 4 * k
            src = ACC_S + 4 * k
            if nst == 4:
                src = ACC_S + 4 * (k & 1)
                for j in range(2):
                    e("v_lshlrev_b32 v%d, 16, v%d\nv_and_b32 v%d, 0xffff0000, v%d" % (src + 2 * j, PR + 2 * k + j, src + 2 * j + 1, PR + 2 * k + j))
            for o_ in (0, 2):
                e("v_pk_add_f32 %s, %s, %s" % (R("v", g + o_, 2), R("v", g + o_, 2), R("v", src + o_, 2)))
            for o_ in (0, 2):
                e("v_pk_mul_f32 %s, %s, %s" % (R("v", g + o_, 2), R("v", g + o_, 2), R("v", TT + 4 * k + o_, 2)))
            for o_ in (0, 2):
                e("v_cvt_pk_bf16_f32 v%d, v%d, v%d" % (TT + 2 * k + o_ // 2, g + o_, g + o_ + 1))
            if k & 1:
                blk, p = divmod(k >> 1, 2)
                last = e("buffer_store_dwordx4 %s, v%d, %s, %s offen offset:%d sc1" % (R("v", TT + 2 * k - 2, 4), vU if blk else vU0, sWS, sT0, blk * 1024 + p * 512))
        e("s_lshr_b32 %s, %s, 1\ns_lshl1_add_u32 %s, %s, %s\ns_lshl_b32 %s, %s, 5" % (sT0, sW, sT0, sI2, sT0, sT0, sT0))
        e("s_and_b32 %s, %s, 1\ns_lshl1_add_u32 %s, %s, %s\ns_add_u32 %s, %s, %s" % (sT1, sW, sT1, sJ2, sT1, sT0, sT0, sT1))
        e("s_lshl_b32 %s, %s, 7\ns_add_u32 %s, %s, %d" % (sT0, sT0, sFL, sT0, F_U))
        e.stamp(8)
        if o.get("stop", 9) <= 2:
            return None
        e.wait(vm=last - 4, lg=e.lg_n - 1)
        return e.join_state({"last": last})

    POOL = [("a", 96 + 4 * k) for k in range(16)] + [(ASLOT[q][0], ASLOT[q][1] + 4 * k) for q in range(16) for k in range(4)]
    POOLFREE = [-1] * 16 + [128 + 16 * (q >> 1) + 8 * (q & 1) + 7 for q in range(16) for _ in range(4)]
    sRU = ["s63", "s64", "s65", "s71"]
    sB3, sF3, sW3 = "s72", "s73", "s99"
    vP = [16, 17, 18]
    vZ = 22

    def p3_setup(self, emit=None):
        e = _Redirect(self, emit)
        for b in range(4):
            e("s_add_u32 %s, %s, %d\ns_and_b32 %s, %s, 3\ns_lshl2_add_u32 %s, %s, %s" % (sT0, sW, b + 1, sT0, sT0, sT0, sP, sT0))
            e("s_mul_i32 %s, %s, 48\ns_mul_i32 %s, %s, 5\ns_add_u32 %s, %s, %s" % (sT0, sT0, sT1, sW, sT0, sT0, sT1))
            e("s_lshl_b32 %s, %s, 10\ns_add_u32 %s, %s, %d" % (sT0, sT0, e.sRU[b], sT0, AP))
        e("s_mul_i32 %s, %s, 48\ns_add_u32 %s, %s, %s\ns_mul_i32 %s, %s, 5120\ns_add_u32 %s, %s, %d" % (sT0, sC, sT0, sT0, sT1, sT0, sT0, e.sB3, sT0, BP))
        e("s_mul_i32 %s, %s, %d\ns_add_u32 %s, %s, %s\ns_add_u32 %s, %s, %d" % (sT0, sW, 2 * 5120, e.sW3, e.sB3, sT0, e.sW3, e.sW3, 20 * 5120))
        e("s_lshr_b32 %s, %s, 1\ns_lshl_b32 %s, %s, 12" % (sT0, sC, sT0, sT0))
        e("s_mul_i32 %s, %s, %d\ns_add_u32 %s, %s, %s" % (sT1, sW, 7 * 128, sT0, sT0, sT1))
        e("s_add_u32 %s, %s, %d\nv_min_u32 v%d, %d, v%d\nv_add_u32 v%d, %s, v%d" % (sT1, sT0, F_WO, e.vP[0], 6 * 128, vL128, e.vP[0], sT1, e.vP[0]))
        e("s_lshl2_add_u32 %s, %s, %s\ns_lshl_b32 %s, %s, 9\ns_add_u32 %s, %s, %d" % (sT0, sC, sW, sT0, sT0, sT0, sT0, F_M))
        e("v_add_u32 v%d, %s, v%d" % (e.vP[1], sT0, vL128))
        e("s_lshl_b32 %s, %s, 12\ns_add_u32 %s, %s, %d" % (e.sF3, sP, e.sF3, e.sF3, F_U))
        e("s_lshr_b32 %s, %s, 1\ns_lshl_b32 %s, %s, 8\ns_add_u32 %s, %s, %s\ns_add_u32 %s, %s, %d" % (sT0, sW, sT0, sT0, sT0, sT0, e.sF3, sT0, sT0, 28 * 128))
        e("v_and_b32 v%d, 0x80, v%d\nv_add_u32 v%d, %s, v%d" % (e.vP[2], vL128, e.vP[2], sT0, e.vP[2]))
        e("v_cmp_gt_u32 vcc, 4, v0\nv_cndmask_b32 v%d, v%d, v%d, vcc" % (e.vP[1], e.vP[2], e.vP[1]))
        e("s_mul_i32 %s, %s, 7\ns_add_u32 %s, %s, 1\ns_and_b32 %s, %s, 0xfe" % (sT0, sW, sT0, sT0, sT0, sT0))
        e("v_and_b32 v%d, 7, v0\nv_add_u32 v%d, %s, v%d\nv_min_u32 v%d, 27, v%d\nv_lshlrev_b32 v%d, 7, v%d\nv_add_u32 v%d, %s, v%d"
          % (e.vP[2], e.vP[2], sT0, e.vP[2], e.vP[2], e.vP[2], e.vP[2], e.vP[2], e.vP[2], e.sF3, e.vP[2]))
        e("s_cmp_eq_u32 %s, 3\ns_cselect_b32 %s, 0x%x, 0\nv_add_u32 v%d, %s, v%d" % (sW, sT0, OOB, e.vZ, sT0, vL16))

    def p3_ld(self, k):
        return "buffer_load_dword v19, v%d, %s, 0 offen sc1" % (self.vP[k], sWS)

    def p3_poll(self, k):
        return self(self.p3_ld(k))

    def p3_check(self, k):
        self.check(self.p3_ld(k), "v_cmp_eq_u32 vcc, -1, v19")

    def p3_jobs(self, queue, start=0, end=80):
        e = self
        e.ev.setdefault("f", 999)
        e.ev["n3"] = start
        jobs = [("W", n) for n in range(35)]
        for kl in range(5):
            jobs += [("B", 5 * kl + t) for t in range(5)] + [("A", (b, kl)) for b in range(4)]
        for n in range(start, end):
            kind, x = jobs[n]
            setup = []
            if kind == "A":
                v, so, off = vL16B if x[1] >= 4 else vL16, e.sRU[x[0]], x[1] % 4
            elif kind == "B":
                v, so, off = vL16B if x % 8 >= 4 else vL16, e.sB3, x % 4
                if x and x % 8 == 0:
                    setup = ["s_add_u32 %s, %s, 8192" % (so, so)]
            else:
                v, so, off = e.vZ if x >= 30 else vL16, e.sW3, x % 4
                if x and x % 4 == 0:
                    setup = ["s_add_u32 %s, %s, 4096" % (so, so)]
            queue.append(Job(lambda n=n: e.ev["f"] >= e.POOLFREE[n],
                             ["buffer_load_dwordx4 %s, v%d, %s, %s offen offset:%d sc1" % (rr(e.POOL[n], 4), v, sWS, so, off * 1024)], setup,
                             done=lambda n=n: e.ev.__setitem__("n3", n + 1)))

    def phase3(self, ids):
        e = self
        o = e.opt
        e.ev = {}
        ACC = 80
        vW = 20
        RA = [21, 23, 27]
        J = e.POOL[35:]
        UR = [("v", 160 + 4 * k) for k in range(8)] + [("v", 48 + 4 * k) for k in range(8)] + J[:12]
        if e.n3 <= 35:
            e.p3_check(1)
        e.p3_jobs(e.q1, e.n3)

        def top_up(n):
            while e.q1 and e.ev["n3"] < n:
                e.bg_vm(force=True)
        top_up(e.n3 + o.get("burst3", 8))
        e("v_add_u32 v%d, %s, v%d\nv_add_u32 v%d, 0x1000, v%d" % (vW, sREG, vL16, e.vZ, e.vZ))
        for b in range(3):
            e("s_add_u32 %s, %s, %d\ns_and_b32 %s, %s, 3\ns_mul_i32 %s, %s, %d" % (sT0, sW, 3 - b, sT0, sT0, sT0, sT0, REGION))
            e("v_add_u32 v%d, %s, v%d" % (RA[b], sT0, vL16))
        vO, vO2 = 24, 25
        e("v_and_b32 v%d, 15, v0\nv_mul_u32_u24 v%d, 1280, v%d\nv_lshrrev_b32 v26, 4, v0" % (vO, vO, vO))
        e("v_lshl_add_u32 v%d, v26, 3, v%d\nv_lshl_add_u32 v%d, v26, 4, v%d" % (vO2, vO, vO, vO))
        e("s_lshl2_add_u32 %s, %s, %s\ns_mul_i32 %s, %s, %d\ns_mul_i32 %s, %s, 160\ns_add_u32 %s, %s, %s" % (sT2, sP, sW, sT2, sT2, 16 * 1280, sT1, sC, sT2, sT2, sT1))
        ul = [(b, kl) for b in range(4) for kl in range(7)]
        nu = 0

        def uload():
            nonlocal nu
            b, kl = ul[nu]
            v = e.vZ if kl == 6 else (vL16B if kl >= 4 else vL16)
            e("buffer_load_dwordx4 %s, v%d, %s, %s offen offset:%d sc1" % (rr(UR[nu], 4), v, sWS, e.sRU[b], (kl % 4) * 1024))
            nu += 1

        ahead = o.get("ahead3", 10)
        flagged = polled = False
        for kl in range(5):
            if not flagged and 35 + 9 * kl + 9 > e.n3:
                e.flag(ids["last"], sFL)
                flagged = True
            if kl == o.get("kl_go", 4):
                top_up(80)
                if not polled:
                    e.p3_poll(2)
                for b in range(4):
                    e("s_lshl_b32 %s, %s, 11\ns_add_u32 %s, %s, %s\ns_add_u32 %s, %s, %d" % (sT0, sW, e.sRU[b], e.sRU[b], sT0, e.sRU[b], e.sRU[b], 20 * 1024))
                e.stamp(9)
                e.p3_check(2)
                e.stamp(10)
                for _ in range(o.get("burstu", 10)):
                    uload()
            for b in range(4):
                for t in range(5):
                    top_up(35 + 9 * kl + 9)
                    acc = R("v", ACC + 20 * b + 4 * t, 4)
                    e("v_mfma_f32_16x16x32_bf16 %s, %s, %s, %s" % (acc, rr(J[9 * kl + t], 4), rr(J[9 * kl + 5 + b], 4), "0" if kl == 0 else acc))
                    if e.q1 and e.ev["n3"] < 35 + 9 * kl + 9 + ahead:
                        e.bg_vm(force=True)
                        if e.ev["n3"] == 80 - o.get("poll3", 3):
                            e.p3_poll(2)
                            polled = True
        wr = []
        n = 0
        for b in range(4):
            for kl in range(7):
                for t in range(5):
                    acc = R("v", ACC + 20 * b + 4 * t, 4)
                    e("v_mfma_f32_16x16x32_bf16 %s, %s, %s, %s" % (acc, rr(e.POOL[5 * kl + t], 4), rr(UR[7 * b + kl], 4), acc))
                    n += 1
                    if t == 0 and nu < 28:
                        uload()
                    elif wr and wr[0][0] <= n:
                        _, b_, t_ = wr.pop(0)
                        e("ds_write_b128 v%d, %s offset:%d" % (vW, R("v", ACC + 20 * b_ + 4 * t_, 4), b_ * 5120 + t_ * 1024))
            if b < 3:
                wr += [(n + 6 + 4 * t, b, t) for t in range(5)]
        assert not wr and nu == 28
        e.stamp(11)
        e.wait_all(vm=False)
        e("s_barrier")
        T = 192
        for t in range(5):
            for b in range(3):
                e("ds_read_b128 %s, v%d offset:%d" % (R("v", T + 12 * t + 4 * b, 4), RA[b], b * 5120 + t * 1024))
        OWN = ACC + 60
        P = 48
        for t in range(5):
            for b in range(3):
                for o_ in (0, 2):
                    e("v_pk_add_f32 %s, %s, %s" % (R("v", OWN + 4 * t + o_, 2), R("v", OWN + 4 * t + o_, 2), R("v", T + 12 * t + 4 * b + o_, 2)))
            for o_ in (0, 2):
                e("v_cvt_pk_bf16_f32 v%d, v%d, v%d" % (P + 2 * t + o_ // 2, OWN + 4 * t + o_, OWN + 4 * t + o_ + 1))
            sc = o.get("outsc", "")
            if t in (1, 3):
                e("buffer_store_dwordx4 %s, v%d, %s, %s offen offset:%d %s" % (R("v", P + 2 * t - 2, 4), vO, sOUT, sT2, 32 * (t - 1), sc))
            elif t == 4:
                e("buffer_store_dwordx2 %s, v%d, %s, %s offen offset:128 %s" % (R("v", P + 8, 2), vO2, sOUT, sT2, sc))

    def finish(self):
        e = self
        if e.opt.get("diag"):
            e.wait_all()
            e.stamp(12)
            e("s_lshl2_add_u32 %s, s2, %s\ns_lshl_b32 %s, %s, 8\ns_add_u32 %s, %s, %d" % (sT0, sW, sT0, sT0, sT0, sT0, DIAG))
            e("s_nop 4")
            e("buffer_store_dword v7, v%d, %s, %s offen" % (vL4, sWS, sT0))
            if e.opt.get("dbgout"):
                e("v_not_b32 v8, v7\nv_cmp_eq_u32 vcc, 13, v0\nv_cndmask_b32 v7, v7, v8, vcc")
                e("s_lshl_b32 %s, %s, 12\ns_mov_b64 exec, 0x3fff" % (sT0, sW))
                e("buffer_atomic_umax v7, v%d, %s, %s offen offset:4 sc1" % (vL4, sDBG, sT0))

    def build(self):
        e = self
        stop = e.opt.get("stop", 9)
        e.prologue()
        e("s_cmp_eq_u32 %s, 7\ns_cbranch_scc1 L_role_h" % sJL)
        snap_h = e.snapshot()
        e.main_start()
        e("s_cmp_eq_u32 %s, 13\ns_cbranch_scc1 L_role_l" % sJ)
        e("s_cmp_ge_u32 %s, 4\ns_cbranch_scc1 L_role_b" % sJL)
        snap = e.snapshot()
        main, e.L = e.L, []
        parts = {}
        states = []
        for name, fn in (("a", e.role_a), ("b", e.role_b), ("l", e.role_l)):
            e.restore(snap)
            e.ev, e.q1, e.q2, e.qd, e.prog = {}, [], [], [], []
            e.lpend = None
            e.pipe = e.cyc
            states.append(e.p1_finish(*fn()))
            parts[name], e.L = e.L, []
        e.restore(snap_h)
        e.ev, e.q1, e.q2, e.qd, e.prog = {}, [], [], [], []
        sth = e.role_h()
        if sth is None:
            e.finish()
            e("s_endpgm")
        parts["h"], e.L = e.L, []
        ids = e.merge(states)
        e.q1, e.q2, e.qd, e.prog = [], [], [], []
        e.raw("L_p2:")
        if stop <= 1:
            e.flag(ids["last"], sFL)
        else:
            st2 = e.phase2(ids)
            if st2 is not None:
                ids = e.merge([st2, sth])
                e.raw("L_p3:")
                e.phase3(ids)
        e.finish()
        rest, e.L = e.L, []
        e.L = main + parts["a"] + rest + ["L_end:", "    s_endpgm"]
        e.L += ["L_role_b:"] + parts["b"] + ["    s_branch L_p2"]
        e.L += ["L_role_l:"] + parts["l"] + ["    s_branch L_p2"]
        e.L += ["L_role_h:"] + parts["h"]
        if sth is not None:
            e.L += ["    s_branch L_p3"]
        return e.text() + "L_code_end:\n    s_endpgm\n"


def generate(opt):
    head = open("cdna_kernels/%s.s.ref" % NAME).read().split("; Override launch")[0] if opt.get("head", 1) else ""
    body = K(opt).build()
    return (head + "; @launch grid=(256,1,1) block=(256,1,1) lds=163840\n"
            '.amdgcn_target "amdgcn-amd-amdhsa--gfx950"\n.text\n.globl %s_kernel\n.p2align 8\n.type %s_kernel,@function\n%s_kernel:\n' % (NAME, NAME, NAME)
            + body +
            '.section .rodata,"a"\n.p2align 6\n.amdhsa_kernel %s_kernel\n'
            "  .amdhsa_next_free_vgpr 512\n  .amdhsa_next_free_sgpr 102\n  .amdhsa_accum_offset 256\n"
            "  .amdhsa_group_segment_fixed_size 0\n  .amdhsa_kernarg_size 96\n  .amdhsa_user_sgpr_count 2\n"
            "  .amdhsa_user_sgpr_kernarg_segment_ptr 1\n  .amdhsa_system_sgpr_workgroup_id_x 1\n.end_amdhsa_kernel\n" % NAME)


if __name__ == "__main__":
    out = sys.argv[1]
    opt = {}
    for a in sys.argv[2:]:
        k, v = a.split("=")
        opt[k] = int(v) if v.lstrip("-").isdigit() else v
    open(out, "w").write(generate(opt))
```

```python
import math
import struct
import sys

from em import Em, R, rr

NAME = "gated_mix__linear_attn_block__mixer_gmlp__prompt"

STATS = 0
F_Z2N = 0x38000
F_Z1 = 0x54000
F_KV = 0x64000
F_U = 0x74000
F_M = 0x94000
F_WO = 0x98000
F_PX = 0x9C000
F_SC = 0xB8000
GATE = 0xC0000
ZP = 0xC4000
SC = 0x100000
KVP = 0x1900000
Z2N = 0x200000
Z1 = 0x600000
AP = 0xA00000
BP = 0x1000000
PX = 0x1200000
DIAG = 0x1C00000
WS_SIZE = 0x1D00000
OOB = 0x80000000

sX, sWQ, sWO, sWIN, sWSP, sBSP, sWOUT, sGW, sOUT, sDBG, sWS, sCODE = [R("s", 8 + 4 * k, 4) for k in range(12)]
sW, sI, sJL, sHALF, sJ, sREG, sW2K = ["s%d" % k for k in range(56, 63)]
sXO, sXB, sXE = "s63", "s64", "s65"
sAO, sAB, sAE = "s66", "s67", "s70"
sKC = "s[68:69]"
sBO, sBB, sBE = "s71", "s72", "s73"
sSPIN = "s74"
sT0, sT1, sT2, sT3 = "s75", "s76", "s77", "s3"
sROW = ["s78", "s79", "s80", "s81"]
sCH = ["s%d" % k for k in range(82, 90)]
sBCH = ["s%d" % k for k in range(90, 98)]
sG, sROT = "s98", "s99"
sI2, sJ2 = "s16", "s17"
sMASK = "s[100:101]"
sDEF = ["s32", "s33"]
sP, sC = "s4", "s5"
sSO = "s6"
sFL = "s7"

vLANE = "v0"
vXD = [8, 9, 10, 11]
vXR = [12, 13, 14, 15]
vWDI = [16, 17]
vWW = [18, 19]
vWS = [[20, 21], [22, 23]]
vWB = [24, 25, 26, 27, 28]
vL16, vL16B, vL4 = 29, 30, 31
vL128 = 2
vAD = [32, 33, 34, 35]
vT = list(range(36, 48))
Z2ACC = 48
ACCB = 80
WRING = 160
NR = 8
ASLOT = [("a", 160 + 16 * k) for k in range(6)] + [("v", 192 + 16 * k) for k in range(4)] + [("a", 16 * k) for k in range(6)]
REGION = 40960
WOFF = 16384

NB0 = 3
SPIN_MAX = 1 << 17


def f32(x):
    return "0x%08x" % struct.unpack("<I", struct.pack("<f", x))[0]


LOG2E = 1.4426950408889634
GK1 = -2.0 * math.sqrt(2.0 / math.pi) * LOG2E
GK2 = GK1 * 0.044715


class Job:
    def __init__(self, pre, loads, setup=(), post=(), sink=None, done=None, weight=1.0):
        self.weight = weight
        self.need = None
        self.pre, self.loads, self.setup, self.post, self.sink, self.done = pre, list(loads), list(setup), list(post), sink, done


def cost(text):
    c = 0
    for ln in text.split("\n"):
        op = ln.split()[0]
        if op == "ds_write_b128":
            c += 16
        elif op.startswith(("buffer_", "v_exp", "v_rcp", "v_rsq", "v_permlane", "ds_write_b64")):
            c += 8
        else:
            c += 4
    return c


def is_mem(item):
    return isinstance(item, str) and item.startswith(("ds_", "buffer_"))


class _Redirect:
    def __init__(self, k, emit):
        self._k, self._emit = k, emit or k

    def __call__(self, text):
        return self._emit(text)

    def __getattr__(self, name):
        return getattr(self._k, name)


class K(Em):
    def __init__(self, opt):
        super().__init__()
        self.opt = opt
        self.q1 = []
        self.q2 = []
        self.qd = []
        self.prog = []
        self.hi = []
        self.hold = 0
        self.armed = None
        self.post = []
        self.pipe = 0
        self.weight = 1.0
        self.gate = 0
        self.st_scale = 1.0
        self.eta = {}
        self.behind = opt.get("behind", 10)
        self.boost = 0
        self.slack = opt.get("slack", 8)
        self.pace = opt.get("pace", 66)
        self.ev = {}
        self.lpend = None
        self.wring = WRING
        self.nqd = opt.get("nqd", 11)
        self.n3 = opt.get("n3", 24)
        self.lat = opt.get("lat1", 1000)

    def I(self, text):
        r = super().I(text)
        if text.startswith("buffer_"):
            wide = "dwordx4" in text.split()[0]
            if text.startswith("buffer_load"):
                c = self.pace * self.weight if wide else 24
            else:
                c = self.opt.get("stcost", 150) * self.st_scale if wide else 40
            self.pipe = max(self.pipe, self.cyc - 10 - self.opt.get("credit", 48)) + c
            self.gate = self.cyc - 10 + (24 if not wide else 60 if text.startswith("buffer_load") else self.opt.get("stgate", 90))
            lat = self.opt.get("lat_ld", 650) if text.startswith("buffer_load") else self.opt.get("lat_st", 800)
            self.eta[r] = max(self.eta.get(r - 1, 0), max(self.pipe, self.cyc) + lat)
        return r

    def wait(self, vm=None, lg=None):
        before = self.vm_done
        super().wait(vm, lg)
        if self.vm_done > before:
            self.cyc = max(self.cyc, self.eta.get(self.vm_done, 0) - 150)

    def landed(self, i):
        return i <= self.vm_done or self.cyc >= self.eta.get(i, 10 ** 9)

    def pipe_ok(self, ahead=0):
        return self.cyc + ahead + self.slack >= max(self.pipe, self.gate)

    def flush_post(self):
        c = 0
        while self.post:
            t = self.post.pop(0)
            self(t)
            c += cost(t)
        return c

    def next_job(self):
        for q in (self.q1, self.q2):
            if q and q[0].pre():
                return q
        return None

    def arm(self, q):
        j = q.pop(0)
        self.flush_post()
        for t in j.setup:
            t() if callable(t) else self(t)
        self.armed = j

    def fire(self):
        j = self.armed
        self.weight = j.weight
        i = self(j.loads.pop(0))
        self.weight = 1.0
        if j.sink is not None:
            j.sink.append(i)
        if not j.loads:
            self.post += j.post
            self.armed = None
            if j.done:
                j.done()

    def bg_vm(self, force=False, maxn=1):
        done = 0
        while done < maxn and (force or self.pipe_ok()):
            if not self.armed:
                q = self.next_job()
                if q is None:
                    break
                self.arm(q)
            self.fire()
            done += 1
        return done

    def settle(self):
        while self.armed:
            self.fire()
        self.flush_post()

    def bg_ds(self):
        if self.qd and self.qd[0][0]():
            self.qd.pop(0)[1]()
            return True
        return False

    def tick(self):
        if not self.bg_vm():
            self.bg_ds() and self.bg_ds()

    def V(self, text):
        for ln in text.split("\n"):
            if ln.strip():
                self(ln)
                self.tick()

    def drain(self, cond):
        guard = 0
        while not cond():
            if self.bg_ds() or self.bg_vm(force=True):
                guard = 0
                continue
            self.cyc += 200
            guard += 1
            assert guard < 100, "background queues stuck"

    def prog_step(self, left, head, force=False, only_hi=False):
        for q in (self.hi,) if only_hi else (self.hi, self.prog):
            while q:
                it = q[0]
                if isinstance(it, tuple) and it[0] == "delay":
                    if head:
                        break
                    q.pop(0)
                    self.hold = 0 if force else it[1]
                    continue
                if q is self.prog and self.hold and not force:
                    break
                if isinstance(it, tuple) and it[0] == "until":
                    if not force and not self.landed(it[1]()):
                        break
                    q.pop(0)
                    continue
                c = it[2] if isinstance(it, tuple) else cost(it)
                if c and not force:
                    if is_mem(it) != head or (c > left and not (c > 12 and left >= 12)):
                        break
                    if head and it.startswith("buffer_") and not (self.cyc + self.slack >= self.gate if q is self.hi else self.pipe_ok()):
                        break
                q.pop(0)
                if isinstance(it, tuple):
                    it[1]()
                else:
                    self.last_id = self(it)
                left -= c
        return left

    def prog_flush(self):
        self.prog_step(0, False, force=True)
        self.hold = 0
        self.settle()

    def mark(self, name):
        return ("call", lambda: self.ev.__setitem__(name, self.last_id), 0)

    def fill_gap(self, left, paced):
        e = self
        if e.hold:
            e.hold -= 1
        if not paced:
            if e.armed:
                e.fire()
            if not e.armed and e.next_job() is not None:
                e.arm(e.next_job())
            return 0
        head = e.armed or (e.q1[0] if e.q1 and e.q1[0].pre() else None)
        left = e.prog_step(left, True, only_hi=True)
        if head is not None and head.need and head.need[0] == e.tag and head.need[1] - e.ev["f"] <= e.opt.get("minlead", 36):
            if e.armed and e.cyc + 40 >= e.gate:
                e.fire()
                left -= 8
            if not e.armed and e.q1 and e.q1[0].pre():
                left -= 4 * len(e.q1[0].setup)
                e.arm(e.q1)
        left += e.boost
        left = e.prog_step(left, True)
        while e.armed and left >= 8 and (not paced or e.pipe_ok()):
            e.fire()
            left -= 8
        if left == 24 and e.qd:
            left = 20
        n = 0
        while left >= 4 and n < 2 and e.bg_ds():
            left -= 4
            n += 1
        if e.post and left >= cost(e.post[0]):
            left -= e.flush_post()
        if not e.armed and not e.post and (not paced or e.pipe_ok(40)):
            q = e.next_job()
            if q is not None and left >= min(8, 4 * len(q[0].setup)):
                left -= 4 * len(q[0].setup)
                e.arm(q)
        return e.prog_step(left, False)

    def mfma_loop(self, tag, nstage, per, read, mfma, opened, paced, hooks, stamp0):
        e = self
        F = nstage * per
        e.tag = tag
        for j in e.q1 + ([e.armed] if e.armed else []):
            for s_ in range(nstage):
                if j.sink is e.ev.get(("dma", tag, s_)):
                    j.need = (tag, s_ * per - 6)
        rd_id = {}
        st = dict(next=0, opened=-1, last=-9)

        def open_stage(s):
            e.drain(lambda: len(e.ev[("dma", tag, s)]) == e.ev[("ndma", tag, s)])
            e.wait(vm=max(e.ev[("dma", tag, s)]), lg=e.lg_n - 1)
            e("s_barrier")
            e.lstamp(stamp0 + s)
            st["opened"] = s
            e.ev[("free", tag, s - 1)] = True
            opened(s)

        def one():
            n0 = e.lg_n
            rd_id[st["next"]] = read(st["next"], e.wring + 4 * (st["next"] % NR))
            st["next"] += 1
            return 4 * (e.lg_n - n0)

        open_stage(0)
        for _ in range(6):
            one()
        for f in range(F):
            while hooks and min(hooks) <= f:
                hooks.pop(min(hooks))()
            if f % 2 == 0:
                e.wait(lg=rd_id[f + 1])
            mfma(f, R("v", e.wring + 4 * (f % NR), 4))
            e.ev["f"] = f
            left = 24 - (4 if f % 2 else 0)
            sync = False
            for _ in range(2):
                nx = st["next"]
                if nx < F and nx <= f + 7:
                    if nx // per <= st["opened"]:
                        left -= one() + (4 if st["last"] != f else 0)
                        st["last"] = f
                    elif f - st["last"] >= 2:
                        sync = True
            if sync:
                qd, e.qd = e.qd, []
                e.fill_gap(16, paced)
                e.qd = qd
                open_stage(st["next"] // per)
            else:
                e.fill_gap(left, paced)
        assert not hooks

    def stamp(self, k):
        sel = self.opt.get("stamps")
        if self.opt.get("diag") and (sel is None or k == 12 or str(k) in str(sel).split(".")):
            self.lstamp(None)
            self.wait_all(vm=False)
            self.raw("    %s s[0:1]\n" % ("s_memtime" if self.opt["diag"] == 2 else "s_memrealtime") + "    s_waitcnt lgkmcnt(0)\n    v_writelane_b32 v7, s0, %d" % k)
            self.pos += 3

    def lstamp(self, k):
        if self.opt.get("diag") and self.opt.get("fine"):
            if self.lpend is not None:
                self.raw("    s_waitcnt lgkmcnt(0)\n    v_writelane_b32 v7, s0, %d" % self.lpend)
                self.lg_done = self.lg_n - 1
                self.pend = {r: p for r, p in self.pend.items() if p[0] == "vm"}
            self.lpend = k
            if k is not None:
                self.raw("    %s s[0:1]" % ("s_memtime" if self.opt["diag"] == 2 else "s_memrealtime"))

    def check(self, loads, test, pretest=None, site=None):
        slow, back = self.label("Lslow"), self.label("Lback")
        self(test)
        self("s_cbranch_vccnz " + slow)
        self.raw(back + ":")
        c = self.cold
        c.append(slow + ":")
        c.append("    s_add_u32 %s, %s, 1\n    s_cmp_ge_u32 %s, %d\n    s_cbranch_scc1 L_end" % (sSPIN, sSPIN, sSPIN, SPIN_MAX))
        if self.opt.get("diag") and site is not None:
            c.append("    v_readlane_b32 vcc_lo, v7, %d\n    s_nop 3\n    s_add_u32 vcc_lo, vcc_lo, 1\n    v_writelane_b32 v7, vcc_lo, %d" % (site, site))
        if self.opt.get("backoff", 2):
            c.append("    s_sleep %d" % self.opt.get("backoff", 2))
        c.append("\n".join("    " + l for l in loads.split("\n")))
        c.append("    s_waitcnt vmcnt(0)")
        if pretest:
            c.append("\n".join("    " + l for l in pretest.split("\n")))
        c.append("\n".join("    " + l for l in test.split("\n")))
        c.append("    s_nop 4\n    s_cbranch_vccnz %s\n    s_branch %s" % (slow, back))

    def flag(self, after_id, soff):
        self.wait(vm=after_id)
        self("s_mov_b64 exec, 1")
        i = self("buffer_store_dword v%d, off, %s, %s sc1" % (vL4, sWS, soff))
        self("s_mov_b64 exec, -1")
        return i

    def touch(self, label, off=0):
        if self.opt.get("touch", 0):
            self("s_add_u32 vcc_lo, %s, %s-L_pc+%d\ns_mov_b64 exec, 0xffff" % (sW2K, label, off))
            self("buffer_load_dword v6, v%d, %s, vcc_lo offen" % (vL128, sCODE))
            self.pend.pop(("v", 6))
            self("s_mov_b64 exec, -1")

    def prologue(self):
        e = self
        o = self.opt
        e("s_cmp_ge_u32 s2, 256")
        e("s_cbranch_scc1 L_end")
        order = [(8, 0), (20, 32), (48, 88), (12, 8), (44, 80), (24, 40), (16, 16), (28, 48), (32, 56), (36, 64), (40, 72)]
        for sreg, off in order:
            e.raw("    s_load_dwordx2 s[%d:%d], s[0:1], %d" % (sreg, sreg + 1, off))
        if o.get("diag"):
            e.raw("    %s s[100:101]" % ("s_memtime" if o["diag"] == 2 else "s_memrealtime"))
        e.raw("    s_getpc_b64 s[52:53]")
        e.raw("L_pc:")
        self.sizes = sizes = {8: 2621440, 12: 2457600, 16: 819200, 20: 2211840, 24: 8388608, 28: 4096, 32: 1105920, 36: 1280,
                              40: 2621440, 44: 256, 48: WS_SIZE}
        sLOC = sT1
        e("v_lshrrev_b32 v1, 6, v0\nv_and_b32 v0, 63, v0")
        e("s_lshr_b32 %s, s2, 3" % sLOC)
        e("v_readfirstlane_b32 %s, v1" % sW)
        e("s_mov_b32 s54, L_code_end-L_pc\ns_mov_b32 s55, 0x20000")
        e("s_and_b32 %s, %s, 3\ns_lshl2_add_u32 %s, %s, %s\ns_lshl_b32 %s, %s, 13" % (sT2, sLOC, sT2, sT2, sW, sT2, sT2))
        e("v_lshlrev_b32 v2, 7, v0")
        if o.get("codepf", 1):
            e("buffer_load_dword v6, v2, %s, %s offen" % (sCODE, sT2))
            self.pend.clear()
        if o.get("map84", 1):
            e("s_and_b32 %s, s2, 1\ns_bfe_u32 %s, s2, 0x10001\ns_lshr_b32 %s, %s, 3" % (sT0, sHALF, sT2, sLOC))
            e("s_lshl1_add_u32 %s, %s, %s\ns_add_u32 %s, %s, 4\ns_cmp_eq_u32 %s, 2\ns_cselect_b32 %s, %s, %s" % (sJL, sT0, sT2, sT3, sT0, sT2, sJL, sT3, sJL))
            e("s_and_b32 %s, %s, 3\ns_lshl2_add_u32 %s, %s, %s\ns_and_b32 %s, %s, 7\ns_lshr_b32 %s, %s, 2" % (sT3, sLOC, sT0, sT0, sT3, sI, sLOC, sT3, sLOC))
            e("s_cmp_eq_u32 %s, 3\ns_cselect_b32 %s, %s, %s\ns_cselect_b32 %s, %s, %s" % (sT2, sJL, sT3, sJL, sI, sT0, sI))
            if o.get("rot", 2) == 2:
                e("s_and_b32 %s, s2, 3" % sT2)
            if o.get("rot", 2):
                e("s_mul_i32 %s, %s, 5\ns_lshr_b32 %s, %s, 2\ns_mul_i32 %s, %s, 5\ns_lshr_b32 %s, %s, 1\ns_add_u32 %s, %s, %s"
                  % (sROT, sI, sROT, sROT, sT2, sT2, sT2, sT2, sROT, sROT, sT2))
            e("s_bfe_u32 %s, s2, 0x10002\ns_lshl3_add_u32 %s, %s, %s" % (sT0, sI, sT0, sI))
        else:
            e("s_and_b32 %s, s2, 1\ns_bfe_u32 %s, s2, 0x20001" % (sHALF, sT0))
            e("s_and_b32 %s, %s, 3\ns_lshl2_add_u32 %s, %s, %s\ns_lshr_b32 %s, %s, 2" % (sT2, sLOC, sI, sT0, sT2, sJL, sLOC))
            if o.get("rot", 2):
                e("s_mul_i32 %s, %s, 5\ns_lshr_b32 %s, %s, 1" % (sT2, sT2, sT2, sT2))
                e("s_mul_i32 %s, %s, 5\ns_lshr_b32 %s, %s, 2\ns_add_u32 %s, %s, %s" % (sROT, sJL, sROT, sROT, sROT, sROT, sT2))
        if o.get("rot", 2):
            e("s_cmp_ge_u32 %s, 10\ns_cselect_b32 %s, 10, 0\ns_sub_u32 %s, %s, %s" % (sROT, sT2, sROT, sROT, sT2))
        else:
            e("s_mov_b32 %s, 0" % sROT)
        e("s_mul_i32 %s, %s, 7\ns_add_u32 %s, %s, %s" % (sJ, sHALF, sJ, sJ, sJL))
        e("s_mul_i32 %s, %s, %d\ns_lshl_b32 %s, %s, 11" % (sREG, sW, REGION, sW2K, sW))
        e("s_lshl2_add_u32 %s, %s, %s\ns_mul_i32 %s, %s, %d" % (sXB, sI, sW, sXB, sXB, 32 * 1280))
        e("s_add_u32 %s, %s, 1280\ns_lshl_b32 %s, %s, 7\ns_add_u32 %s, %s, %s" % (sXE, sXB, sXO, sROT, sXO, sXO, sXB))
        for sreg in (8, 20, 48):
            e("s_mov_b32 s%d, %d\ns_mov_b32 s%d, 0x20000" % (sreg + 2, sizes[sreg], sreg + 3))
        e("v_lshrrev_b32 v1, 3, v0\nv_and_b32 v2, 7, v0\nv_lshrrev_b32 v3, 4, v0")
        e("v_xor_b32 v4, v2, v3\nv_lshlrev_b32 v4, 4, v4\nv_xor_b32 v5, 64, v4")
        e("v_mul_u32_u24 v%d, 1280, v1" % vT[0])
        for r in range(4):
            e("v_add_u32 v%d, v%d, v%d" % (vXD[r], vT[0], 4 + (r & 1)))
            if r:
                e("v_add_u32 v%d, %d, v%d" % (vXD[r], r * (8 * 1280 - 1024), vXD[r]))
        e("v_lshlrev_b32 v%d, 4, v0" % vL16)
        e.raw("    s_waitcnt lgkmcnt(0)")
        e.pos += 1
        if o.get("wsoff"):
            e("s_add_u32 s48, s48, 0x%x\ns_addc_u32 s49, s49, 0" % (o["wsoff"] << 20))
        e("s_cmp_eq_u32 %s, 7\ns_cbranch_scc0 L_noclear" % sJL)
        for k in range(4):
            e("v_mov_b32 v%d, -1" % (240 + k))
        e("s_lshl1_add_u32 %s, %s, %s\ns_lshl2_add_u32 %s, %s, %s\ns_mul_i32 %s, %s, 6144" % (sT0, sI, sHALF, sT0, sT0, sW, sT0, sT0))
        for k in range(6):
            if k == 4:
                e("s_add_u32 %s, %s, 4096" % (sT0, sT0))
            self.clear_id = e("buffer_store_dwordx4 v[240:243], v%d, %s, %s offen offset:%d sc1" % (vL16, sWS, sT0, (k % 4) * 1024))
        e.raw("L_noclear:")
        e.q1 = [e.job_x("A", 0)]
        e.bg_vm(force=True, maxn=4)
        e.settle()
        self.x0 = list(e.ev[("dma", "A", 0)])
        e("v_and_b32 v%d, 1, v3\nv_lshlrev_b32 v%d, 2, v%d\nv_xor_b32 v%d, v2, v%d\nv_lshlrev_b32 v%d, 4, v%d"
          % (vT[1], vT[1], vT[1], vT[1], vT[1], vT[1], vT[1]))
        e("s_lshl_b32 %s, %s, 4\nv_add_u32 v%d, %s, v1" % (sT0, sW, vT[2], sT0))

    def w_offsets(self, regs_, stride):
        self("v_mul_u32_u24 v%d, %d, v%d\nv_add_u32 v%d, v%d, v%d" % (regs_[0], stride, vT[2], regs_[0], regs_[0], vT[1]))
        self("v_add_u32 v%d, %d, v%d" % (regs_[1], 8 * stride - 1024, regs_[0]))

    def late_setup(self, natural=False):
        e = self
        for sreg in (12, 44, 24, 16, 28, 32, 36, 40):
            e("s_mov_b32 s%d, %d\ns_mov_b32 s%d, 0x20000" % (sreg + 2, self.sizes[sreg], sreg + 3))
        e("s_mov_b32 s68, %s\ns_mov_b32 s69, %s\ns_mov_b32 %s, 0" % (f32(GK1), f32(GK2), sSPIN))
        e("v_add_u32 v%d, 0x1000, v%d\nv_lshlrev_b32 v%d, 2, v0" % (vL16B, vL16, vL4))
        e("s_bfe_u32 %s, s2, 0x20001\ns_and_b32 %s, s2, 1" % (sT0, sT2))
        if not natural:
            e("s_bfe_u32 %s, s2, 0x20003\ns_lshl2_add_u32 %s, %s, %s" % (sT1, sI2, sT0, sT1))
            e("s_lshr_b32 %s, s2, 5\ns_lshl1_add_u32 %s, %s, %s" % (sT1, sJ2, sT1, sT2))
        e("s_bfe_u32 %s, s2, 0x30003\ns_lshl3_add_u32 %s, %s, %s" % (sP, sP, sT0, sP))
        e("s_lshr_b32 %s, s2, 6\ns_lshl2_add_u32 %s, %s, %s" % (sC, sC, sT2, sC))
        if self.opt.get("diag"):
            e("v_mov_b32 v7, 0")
            e.raw("    s_nop 1\n    v_writelane_b32 v7, s100, 13")
        e("v_lshlrev_b32 v%d, 12, v1" % vT[0])
        for r in range(4):
            e("v_add_u32 v%d, v%d, v%d" % (vAD[r], vT[0], 4 + (r & 1)))
            if r:
                e("v_add_u32 v%d, %d, v%d" % (vAD[r], r * (8 * 4096 - 1024), vAD[r]))
        e("v_and_b32 v1, 31, v0\nv_lshrrev_b32 v2, 5, v0\nv_bfe_u32 v4, v0, 1, 3\nv_xor_b32 v4, v4, v2")
        e("v_lshlrev_b32 v4, 4, v4\nv_lshl_add_u32 v4, v1, 7, v4")
        for ks in range(4):
            e("v_xor_b32 v%d, %d, v4\nv_add_u32 v%d, %s, v%d" % (vXR[ks], ks * 32, vXR[ks], sREG, vXR[ks]))
        e("v_bfe_u32 v5, v0, 2, 2\nv_lshl_add_u32 v5, v2, 3, v5\nv_lshlrev_b32 v5, 7, v5\nv_add_u32 v5, %d, v5" % WOFF)
        e("v_bfe_u32 v4, v0, 3, 1\nv_lshlrev_b32 v4, 6, v4")
        if natural:
            e("v_and_b32 v1, 1, v0\nv_bfe_u32 v3, v0, 1, 1\nv_lshl_or_b32 v1, v1, 1, v3\nv_lshlrev_b32 v1, 3, v1\nv_bfe_u32 v3, v0, 4, 1")
        else:
            e("v_and_b32 v1, 3, v0\nv_lshlrev_b32 v1, 3, v1\nv_bfe_u32 v3, v0, 4, 1")
        e("v_lshl_add_u32 v%d, v3, 5, v1\nv_xor_b32 v%d, v%d, v4" % (vT[0], vT[0], vT[0]))
        e("v_add_u32 v%d, v%d, v5\nv_xor_b32 v%d, 64, v%d" % (vWS[0][0], vT[0], vWS[0][1], vWS[0][0]))
        e("v_add_u32 v%d, %d, v%d\nv_add_u32 v%d, %d, v%d" % (vWS[1][0], 2 * REGION, vWS[0][0], vWS[1][1], 2 * REGION, vWS[0][1]))
        e("v_lshlrev_b32 v%d, 7, v0" % vL128)

    def stream_init(self, o, b, en, base_text, stride):
        self(base_text)
        self("s_add_u32 %s, %s, %d\ns_mul_i32 %s, %s, %d\ns_add_u32 %s, %s, %s" % (en, b, 640 * stride, o, sROT, 64 * stride, o, o, b))

    @staticmethod
    def advance(o, b, en, step):
        return "s_add_u32 %s, %s, %d\ns_cmp_eq_u32 %s, %s\ns_cselect_b32 %s, %s, %s" % (o, o, step, o, en, o, b, o)

    def job_x(self, tag, s):
        pre = (lambda: True) if s < 4 else (lambda: self.ev.get(("free", tag, s - 4)))
        return Job(pre, ["buffer_load_dwordx4 v%d, %s, %s offen offset:%d lds" % (vXD[r], sX, sXO, r * 1024) for r in range(4)],
                   ["s_add_u32 m0, %s, %d" % (sREG, (s % 4) * 4096)], [self.advance(sXO, sXB, sXE, 128)] if s < 9 else [],
                   self.ev.setdefault(("dma", tag, s), []))

    def w_jobs(self, tag, wide, offf, srd, stream, stride, occ, withx, weight=1.0):
        for s in range(10):
            if withx and s < 1:
                self.ev[("dma", tag, s)] = list(self.x0)
            elif withx:
                self.q1.append(self.job_x(tag, s))
            off = offf(s)
            prev = occ.get(off)
            occ[off] = (tag, s)
            pre = (lambda: True) if prev is None else (lambda prev=prev: self.ev.get(("free",) + prev))
            sink = self.ev.setdefault(("dma", tag, s), [])
            post = [self.advance(stream[0], stream[1], stream[2], 64 * stride)] if s < 9 else []
            ld = "buffer_load_dwordx4 v%%d, %s, %s offen offset:%%d lds" % (srd, stream[0])
            m0 = "s_add_u32 m0, %s, %%d" % sREG
            if wide:
                self.q1.append(Job(pre, [ld % (vWB[k], k * 1024) for k in range(4)], [m0 % (WOFF + off)], [], sink, weight=weight))
                self.q1.append(Job(pre, [ld % (vWB[4], 0)], [m0 % (WOFF + off + 4096)], post, sink, weight=weight))
            else:
                self.q1.append(Job(pre, [ld % (vWDI[t], t * 1024) for t in range(2)], [m0 % (WOFF + off)], post, sink, weight=weight))
            self.ev[("ndma", tag, s)] = (5 if wide else 2) + (4 if withx else 0)

    def p1_pass(self, tag, blocks, withx, paced, hooks=None, prev_tag=None):
        e = self
        nb = len(blocks)

        def split(f):
            s, rem = divmod(f, 4 * nb)
            return (s,) + divmod(rem, nb)

        def opened(s):
            if s == 0 and prev_tag:
                e.ev[("free", prev_tag, 9)] = True
            if withx:
                for ks in range(4):
                    e("ds_read_b128 %s, v%d offset:%d" % (R("a", (s * 4 + ks) * 4, 4), vXR[ks], (s % 4) * 4096))

        def read(f, dst):
            s, ks, b = split(f)
            return blocks[b][0](s, ks, dst)

        def mfma(f, wf):
            s, ks, b = split(f)
            acc = R("v", blocks[b][1], 16)
            xf = R("a", (s * 4 + ks) * 4, 4)
            ops = (wf, xf) if blocks[b][2] == 2 else (xf, wf)
            e("v_mfma_f32_32x32x16_bf16 %s, %s, %s, %s" % (acc, ops[0], ops[1], "0" if f < nb else acc))
        e.mfma_loop(tag, 10, 4 * nb, read, mfma, opened, paced, dict(hooks or {}), 16 if tag == "A" else 26)

    def rd_narrow(self, offf, hf):
        def read(s, ks, dst):
            for t in range(2):
                i = self("ds_read_b64_tr_b16 %s, v%d offset:%d" % (R("v", dst + 2 * t, 2), vWS[ks >> 1][hf], (ks & 1) * REGION + offf(s) + t * 512))
            return i
        return read

    def rd_wide(self, offf, b):
        def read(s, ks, dst):
            for t in range(2):
                i = self("ds_read_b64_tr_b16 %s, v%d offset:%d" % (R("v", dst + 2 * t, 2), vWW[ks >> 1], (ks & 1) * REGION + offf(s) + t * 1280 + b * 64))
            return i
        return read

    def seg320(self, stride, wmul, gap=0, regs_=vWB):
        e = self
        e("s_mul_i32 %s, %s, %d" % (sT2, sW, wmul))
        for k, r_ in enumerate(regs_):
            e("v_add_u32 v%d, %d, v0\nv_mul_u32_u24 v%d, 0xccd, v%d\nv_lshrrev_b32 v%d, 16, v%d" % (vT[0], 64 * k, vT[1], vT[0], vT[1], vT[1]))
            e("v_mul_u32_u24 v%d, %d, v%d\nv_lshl_add_u32 v%d, v%d, 4, v%d" % (r_, stride - 320 - 2 * gap, vT[1], r_, vT[0], r_))
            if gap:
                e("v_mul_u32_u24 v%d, 0x199a, v%d\nv_lshrrev_b32 v%d, 16, v%d\nv_mul_u32_u24 v%d, %d, v%d\nv_add_u32 v%d, v%d, v%d"
                  % (vT[1], vT[0], vT[1], vT[1], vT[1], gap, vT[1], r_, r_, vT[1]))
            e("v_add_u32 v%d, %s, v%d" % (r_, sT2, r_))
            if 0 < k < 4:
                e("v_subrev_u32 v%d, %d, v%d" % (r_, 1024 * k, r_))

    def wide_read_addr(self):
        e = self
        e("v_lshrrev_b32 v%d, 5, v0\nv_bfe_u32 v%d, v0, 2, 2\nv_lshl_add_u32 v%d, v%d, 3, v%d" % (vT[0], vT[1], vT[0], vT[0], vT[1]))
        e("v_mul_u32_u24 v%d, 320, v%d\nv_lshl_add_u32 v%d, v3, 5, v1\nv_add_u32 v%d, v%d, v%d" % (vT[0], vT[0], vT[1], vT[0], vT[0], vT[1]))
        e("v_add_u32 v%d, %d, v%d\nv_add_u32 v%d, %d, v%d" % (vWW[0], WOFF, vT[0], vWW[1], WOFF + 2 * REGION, vT[0]))

    def gelu(self, regs_, tmp, emit):
        for b0 in range(0, len(regs_), 8):
            ps = [(regs_[b0 + k], tmp + k) for k in range(0, min(8, len(regs_) - b0), 2)]
            for x, t in ps:
                emit("v_pk_mul_f32 %s, %s, %s" % (R("v", t, 2), R("v", x, 2), R("v", x, 2)))
            for x, t in ps:
                emit("v_pk_fma_f32 %s, %s, %s, %s op_sel:[0,1,0] op_sel_hi:[1,1,0]" % (R("v", t, 2), R("v", t, 2), sKC, sKC))
            for x, t in ps:
                emit("v_pk_mul_f32 %s, %s, %s" % (R("v", t, 2), R("v", t, 2), R("v", x, 2)))
            for x, t in ps:
                emit("v_exp_f32 v%d, v%d\nv_exp_f32 v%d, v%d" % (t, t, t + 1, t + 1))
            for x, t in ps:
                emit("v_pk_add_f32 %s, %s, 1.0 op_sel_hi:[1,0]" % (R("v", t, 2), R("v", t, 2)))
            for x, t in ps:
                emit("v_rcp_f32 v%d, v%d\nv_rcp_f32 v%d, v%d" % (t, t, t + 1, t + 1))
            for x, t in ps:
                emit("v_pk_mul_f32 %s, %s, %s" % (R("v", x, 2), R("v", t, 2), R("v", x, 2)))

    def phi(self, base, n, tmp, kreg):
        for b0 in range(0, n, 8):
            ps = [(base + b0 + k, tmp + k) for k in range(0, 8, 2)]
            for x, t in ps:
                self.V("v_pk_mul_f32 %s, %s, %s op_sel_hi:[1,0]" % (R("v", t, 2), R("v", x, 2), R("s", kreg, 2)))
            for x, t in ps:
                self.V("v_exp_f32_e64 v%d, v%d clamp\nv_exp_f32_e64 v%d, v%d clamp" % (t, t, t + 1, t + 1))
            for x, t in ps:
                self.V("v_max_f32 v%d, s%d, v%d\nv_max_f32 v%d, s%d, v%d" % (x, kreg + 1, x, x + 1, kreg + 1, x + 1))
            for x, t in ps:
                self.V("v_pk_add_f32 %s, %s, %s" % (R("v", x, 2), R("v", x, 2), R("v", t, 2)))

    def pack(self, src, n, dst):
        for k in range(n // 2):
            self.V("v_cvt_pk_bf16_f32 v%d, v%d, v%d" % (dst + k, src + 2 * k, src + 2 * k + 1))

    def z2_stats(self):
        e = self
        ld = self.dbg_ld
        e.gelu(list(range(Z2ACC, Z2ACC + 32)), ACCB, e.V)
        S = [ACCB + 8, ACCB + 10]
        Q = [ACCB + 12, ACCB + 14]
        for b in range(2):
            z = Z2ACC + 16 * b
            e.V("v_pk_add_f32 %s, %s, %s" % (R("v", S[b], 2), R("v", z, 2), R("v", z + 2, 2)))
            e.V("v_pk_mul_f32 %s, %s, %s" % (R("v", Q[b], 2), R("v", z, 2), R("v", z, 2)))
            for k in range(1, 8):
                if k > 1:
                    e.V("v_pk_add_f32 %s, %s, %s" % (R("v", S[b], 2), R("v", S[b], 2), R("v", z + 2 * k, 2)))
                e.V("v_pk_fma_f32 %s, %s, %s, %s" % (R("v", Q[b], 2), R("v", z + 2 * k, 2), R("v", z + 2 * k, 2), R("v", Q[b], 2)))
        e("s_cmp_eq_u32 %s, 0\ns_cselect_b32 %s, 0, 1.0" % (sJ, sT0))
        for a in (S, Q):
            e("v_add_f32 v%d, v%d, v%d\nv_add_f32 v%d, v%d, v%d" % (a[0], a[0], a[0] + 1, a[1], a[1], a[1] + 1))
            e("v_fmac_f32 v%d, %s, v%d" % (a[1], sT0, a[0]))
        e("s_lshl2_add_u32 %s, %s, %s\ns_mul_i32 %s, %s, %d" % (sT1, sI, sW, sFL, sT1, 14 * 256))
        e("s_lshl_b32 %s, %s, 8\ns_add_u32 %s, %s, %s" % (sT1, sJ, sT1, sT1, sFL))
        e("v_permlane32_swap_b32 v%d, v%d" % (S[1], Q[1]))
        e("v_add_f32 v%d, v%d, v%d" % (S[1], S[1], Q[1]))
        e.check(ld, "v_cmp_gt_u32 vcc, 32, v%d" % vT[11], site=56)
        e("buffer_store_dword v%d, v%d, %s, %s offen sc1" % (S[1], vL4, sWS, sT1))

    def z2_norm(self):
        e = self
        o = e.opt
        p = e.prog
        T = 192
        lds = ["buffer_load_dword v%d, v%d, %s, %s offen offset:%d sc1" % (T + k, vL4, sWS, sFL, k * 256) for k in range(14)]
        a = T + 48
        b = a + 5
        p += ["v_bfe_u32 v%d, v0, 1, 1" % a, "v_bfe_u32 v%d, v0, 2, 2" % (a + 1), "v_and_b32 v%d, 1, v0" % (a + 2),
              "v_lshl_or_b32 v%d, v%d, 1, v%d" % (a + 1, a + 1, a + 2), "v_lshl_or_b32 v%d, v%d, 3, v%d" % (a, a, a + 1),
              "v_lshrrev_b32 v%d, 5, v0" % (a + 1), "v_xor_b32 v%d, v%d, v%d" % (a, a, a + 1), "v_lshlrev_b32 v%d, 3, v%d" % (a, a),
              "v_and_b32 v%d, 31, v0" % (a + 2), "v_lshl_add_u32 v%d, v%d, 7, v%d" % (a, a + 2, a), "v_add_u32 v%d, %s, v%d" % (a, sREG, a)]
        p += ["v_bfe_u32 v%d, v0, 3, 1" % b, "v_lshlrev_b32 v%d, 3, v%d" % (b, b), "v_lshl_or_b32 v%d, v%d, 2, v%d" % (b, a + 1, b),
              "v_bfe_u32 v%d, v0, 2, 1" % (b + 1), "v_or_b32 v%d, v%d, v%d" % (b, b, b + 1),
              "v_bfe_u32 v%d, v0, 4, 1" % (b + 1), "v_and_b32 v%d, 3, v0" % (b + 2), "v_lshl_or_b32 v%d, v%d, 2, v%d" % (b + 1, b + 1, b + 2),
              "v_xor_b32 v%d, v%d, v%d" % (b, b, b + 1), "v_lshlrev_b32 v%d, 3, v%d" % (b, b),
              "v_bfe_u32 v%d, v0, 2, 2" % (b + 1), "v_lshl_add_u32 v%d, v%d, 3, v%d" % (b + 1, a + 1, b + 1),
              "v_lshl_add_u32 v%d, v%d, 7, v%d" % (b, b + 1, b), "v_add_u32 v%d, %s, v%d" % (b, sREG, b)]
        p += ["v_xor_b32 v%d, %d, v%d" % (b + k, (k >> 1) * 64 + (k & 1) * 16, b) for k in range(1, 4)]
        p += ["s_lshl2_add_u32 %s, %s, %s" % (sT0, sI, sW), "s_lshl_b32 %s, %s, 12" % (sT0, sT0), "s_lshl_b32 %s, %s, 18" % (sT1, sJ),
              "s_add_u32 %s, %s, %s" % (sT0, sT0, sT1), "s_add_u32 %s, %s, %d" % (sT0, sT0, Z2N),
              "s_lshl4_add_u32 %s, %s, %s" % (sT1, sJ, sI), "s_lshl2_add_u32 %s, %s, %s" % (sT1, sT1, sW), "s_lshl_b32 %s, %s, 7" % (sT1, sT1),
              "s_add_u32 %s, %s, %d" % (sT1, sT1, F_Z2N)]
        p += [("until", lambda: -1 if e.ev["f"] >= o.get("f_poll", 30) else 10 ** 9)] + lds + [e.mark("stat_ld"), ("until", lambda: e.ev["stat_ld"])]
        p.append(("call", lambda: setattr(e, "boost", o.get("boost", 24)), 0))
        m = T + 14
        mx = ["v_max3_u32 v%d, v%d, v%d, v%d" % (m, T, T + 1, T + 2)]
        mx += ["v_max3_u32 v%d, v%d, v%d, v%d" % (m, m, T + k, T + k + 1) for k in range(3, 13, 2)]
        mx += ["v_max_u32 v%d, v%d, v%d" % (m, m, T + 13)]
        p += mx
        p.append(("call", lambda: e.check("\n".join(lds), "v_cmp_eq_u32 vcc, -1, v%d" % m, "\n".join(mx), site=57), 16))
        p += ["v_add_f32 v%d, v%d, v%d" % (T + (k & 1), T + (k & 1), T + k) for k in range(2, 14)]
        p += ["v_add_f32 v%d, v%d, v%d" % (T, T, T + 1), "v_mul_f32 v%d, %s, v%d" % (T, f32(1.0 / 864), T), "v_mov_b32 v%d, v%d" % (T + 1, T), ("delay", 1),
              "v_permlane32_swap_b32 v%d, v%d" % (T, T + 1), "v_fma_f32 v%d, -v%d, v%d, v%d" % (T + 1, T, T, T + 1),
              "v_max_f32 v%d, 0, v%d" % (T + 1, T + 1), "v_add_f32 v%d, %s, v%d" % (T + 1, f32(1e-5), T + 1), "v_rsq_f32 v%d, v%d" % (T + 2, T + 1),
              "v_xor_b32 v%d, 16, v%d" % (a + 1, a), "v_mul_f32_e64 v%d, -v%d, v%d" % (T + 3, T, T + 2)]
        P = T + 16
        for q in range(8):
            p += ["v_fma_f32 v%d, v%d, v%d, v%d" % (Z2ACC + 4 * q + k, Z2ACC + 4 * q + k, T + 2, T + 3) for k in range(4)]
            p += ["v_cvt_pk_bf16_f32 v%d, v%d, v%d" % (P + 2 * q + k, Z2ACC + 4 * q + 2 * k, Z2ACC + 4 * q + 2 * k + 1) for k in range(2)]
            r_ = a + (1 + (q + 1) % 2 if q else 0)
            if q > 1:
                p.append("v_xor_b32 v%d, %d, v%d" % (r_, q * 16, a))
            p.append("ds_write_b64 v%d, %s offset:%d" % (r_, R("v", P + 2 * q, 2), 3 * 4096))
        Fr = T + 32
        for ks in range(2):
            for blk in range(2):
                for t in range(2):
                    p.append("ds_read_b64_tr_b16 %s, v%d offset:%d" % (R("v", Fr + 8 * ks + 4 * blk + 2 * t, 2), b + 2 * blk + t, 3 * 4096 + ks * 2048 + t * 512))
        p.append(("call", lambda: setattr(e, "boost", 0), 0))
        for k in range(4):
            p.append(("delay", o.get("d_z2n", 0) if k else 2))
            p.append("buffer_store_dwordx4 %s, v%d, %s, %s offen offset:%d sc1" % (R("v", Fr + 4 * k, 4), vL16, sWS, sT0, k * 1024))
        p += [e.mark("z2n_st"), ("call", lambda: (e.ev.__setitem__("norm_done", True), e.stamp(3)), 0), ("until", lambda: e.ev["z2n_st"]),
              ("call", lambda: e.flag(e.ev["z2n_st"], sT1), 16)]

    def a_tables(self):
        e = self
        e("s_lshl2_add_u32 %s, %s, %s\ns_lshl_b32 %s, %s, 17\ns_and_b32 %s, %s, 1" % (sT0, sI2, sW, sT0, sT0, sT3, sJ2))
        e("s_lshl_b32 %s, %s, 11\ns_add_u32 %s, %s, %s" % (sT1, sT3, sT0, sT0, sT1))
        e("s_xor_b32 %s, %s, 1\ns_lshl1_add_u32 %s, %s, %s\ns_lshl_b32 %s, %s, 17" % (sT2, sJ2, sT2, sT2, sT3, sT2, sT2))
        e("s_lshl_b32 %s, %s, 12\ns_add_u32 %s, %s, %s\ns_add_u32 %s, %s, %d" % (sT1, sW, sT2, sT2, sT1, sT2, sT2, Z2N))
        e("s_lshl_b32 %s, %s, 19\ns_sub_u32 %s, %s, 0x40000" % (sROW[0], sT3, sROW[0], sROW[0]))
        e("s_lshr_b32 %s, %s, 1" % (sT3, sJ2))
        if self.opt.get("rot2", 1) == 2:
            e("s_lshl1_add_u32 %s, %s, %s" % (sT3, sI2, sT3))
        for st in range(8):
            if self.opt.get("rot2", 1):
                e("s_add_u32 %s, %s, %d\ns_and_b32 %s, %s, 7" % (sT1, sT3, st, sT1, sT1))
                e("s_lshl_b32 %s, %s, 8\ns_add_u32 %s, %s, %s" % (sCH[st], sT1, sCH[st], sCH[st], sT0))
                e("s_lshl_b32 %s, %s, 14\ns_add_u32 %s, %s, %s" % (sT1, sT1, sBCH[st], sT1, sT2))
            else:
                e("s_add_u32 %s, %s, %d\ns_add_u32 %s, %s, %d" % (sCH[st], sT0, st * 256, sBCH[st], sT2, st * 16384))

    def a_jobs(self, q0, q1, r0, r1, queue):
        e = self
        for q in range(q0, q1):
            def pre(q=q):
                if q < 4:
                    return e.ev.get("xfree") and (q != 3 or e.ev.get("norm_done"))
                rd = e.ev.get(("ard", q - 4))
                return rd is not None and (rd[0] <= e.lg_done or e.cyc - rd[1] >= 160)
            setup = ["s_add_u32 m0, %s, %d" % (sREG, (q % 4) * 4096)]
            if q & 1:
                setup.append("s_add_u32 %s, %s, 128" % (sSO, sCH[q >> 1]))
            if q >= 4:
                setup.insert(0, lambda q=q: e.wait(lg=e.ev[("ard", q - 4)][0]))
            queue.append(Job(pre, ["buffer_load_dwordx4 v%d, %s, %s offen offset:%d lds" % (vAD[r], sWSP, sSO if q & 1 else sCH[q >> 1], r * 1024)
                                   for r in range(4)], setup, [], e.ev.setdefault(("adma", q), []),
                             lambda q=q: e.ev.__setitem__(("adma_t", q), e.cyc)))
        for q in range(r0, r1):
            def pre(q=q):
                ids = e.ev.get(("adma", q), [])
                if len(ids) < 4 or (6 <= q < 10 and not e.ev.get("norm_done")):
                    return False
                return e.lat == 0 or e.landed(max(ids))

            def emit(ks, q=q):
                e.wait(vm=max(e.ev[("adma", q)]))
                i = e("ds_read_b128 %s, v%d offset:%d" % (rr(ASLOT[q], 4, 4 * ks), vXR[ks], (q % 4) * 4096))
                if ks == 3:
                    e.ev[("ard", q)] = (i, e.cyc)
            for ks in range(4):
                e.qd.append((pre, lambda ks=ks, emit=emit: emit(ks)))

    def b_jobs(self, g0, g1):
        e = self
        for g in range(g0, g1):
            e.ev[("ndma", "P", g)] = 4
            setup = ["s_add_u32 m0, %s, %d" % (sREG, WOFF + ((g + 3) % 6) * 4096)]
            if g >= 8:
                setup.append("s_add_u32 %s, %s, %s" % (sSO, sBCH[g - 8], sROW[0]))
            pre = (lambda: True) if g < 6 else (lambda g=g: e.ev.get(("free", "P", g - 6)))
            e.q1.append(Job(pre, ["buffer_load_dwordx4 v%d, %s, %s offen offset:%d sc1 lds" % (vL16, sWS, sSO if g >= 8 else sBCH[g], k * 1024)
                                  for k in range(4)], setup, [], e.ev.setdefault(("dma", "P", g), [])))

    def z2n_poll_issue(self):
        e = self
        e("s_and_b32 %s, %s, 1\ns_andn2_b32 %s, %s, 1\ns_lshl1_add_u32 %s, %s, %s" % (sT2, sJ2, sAO, sJ2, sAO, sAO, sT2))
        e("s_lshl_b32 %s, %s, 5\ns_add_u32 %s, %s, %s\ns_lshl_b32 %s, %s, 7\ns_add_u32 %s, %s, %d" % (sAO, sAO, sAO, sAO, sW, sAO, sAO, sAO, sAO, F_Z2N))
        e("v_and_b32 v%d, 7, v0\nv_bfe_u32 v%d, v0, 3, 1\nv_lshl_add_u32 v%d, v%d, 4, v%d\nv_lshlrev_b32 v%d, 9, v%d"
          % (vT[8], vT[7], vT[8], vT[7], vT[8], vT[8], vT[8]))
        e("s_lshl2_add_u32 %s, %s, %s\ns_lshl_b32 %s, %s, 6" % (sT2, sI2, sW, sT2, sT2))
        e("v_and_b32 v%d, 31, v0\nv_lshlrev_b32 v%d, 1, v%d" % (vT[7], vT[7], vT[7]))
        e("buffer_load_ushort v%d, v%d, %s, %s offen" % (vT[10], vT[7], sBSP, sT2))
        self.z2n_poll = "buffer_load_dword v%d, v%d, %s, %s offen sc1" % (vT[9], vT[8], sWS, sAO)
        e(self.z2n_poll)

    def z2n_go(self):
        e = self
        e.check(e.z2n_poll, "v_cmp_eq_u32 vcc, -1, v%d" % vT[9], site=58)
        e.stamp(6)
        e.b_jobs(0, NB0)

    def drain_all(self):
        self.drain(lambda: not self.q1 and not self.q2 and not self.qd and not self.armed)
        self.settle()
        return self.vm_n - 1

    def p1_finish(self, upto):
        e = self
        e.lstamp(None)
        e.stamp(5)
        e.wait(vm=upto, lg=e.lg_n - 1)
        return e.join_state({})

    def deferred_stores(self):
        return ["buffer_store_dwordx4 %s, v%d, %s, %s offen offset:%d sc1" % (R("v", ACCB + 4 * k, 4), vL16, sWS, sDEF[k // 4], (k % 4) * 1024) for k in range(8)]

    OFF_A = staticmethod(lambda s: 16384 + (s % 4) * 2048)
    OFF_W = staticmethod(lambda s: (s % 4) * 5120)

    def main_start(self):
        e = self
        e.w_offsets(vWDI, 3456)
        e.stream_init(sAO, sAB, sAE, "s_add_u32 %s, %s, 13\ns_lshl_b32 %s, %s, 7" % (sAB, sJ, sAB, sAB), 3456)
        e.w_jobs("A", False, e.OFF_A, sWIN, (sAO, sAB, sAE), 3456, {}, True)
        n = len(e.q1)
        e.bg_vm(force=True, maxn=e.opt.get("n0", 8))
        e.settle()
        self.n_start = n - len(e.q1)
        self.start_ev = {k: list(v) for k, v in e.ev.items() if k[0] == "dma"}
        e.late_setup()
        e.a_tables()

    def pass_a(self, queue_b):
        e = self
        e.w_jobs("A", False, e.OFF_A, sWIN, (sAO, sAB, sAE), 3456, {}, True)
        del e.q1[:self.n_start]
        for k, v in self.start_ev.items():
            e.ev[k][:] = v
        e.bg_vm(force=True, maxn=e.opt.get("n1", 0))
        e.settle()
        queue_b()
        e.stamp(0)
        e.bg_vm(force=True, maxn=12)
        self.dbg_ld = "buffer_load_dword v%d, off, %s, 0 sc1" % (vT[11], sDBG)

        def upto(stage):
            return max([i + 1 for i, j in enumerate(e.q1) if j.sink is e.ev[("dma", "B", stage)]]) if stage >= 0 else \
                min([i for i, j in enumerate(e.q1) if j.sink is e.ev[("dma", "B", 0)]])
        k0, k1 = upto(e.opt.get("pre_a", 0)), upto(e.opt.get("pre_b", 2))
        e.q1, self.q_act, self.q_later = e.q1[:k0], e.q1[k0:k1], e.q1[k1:]
        e.p1_pass("A", [(e.rd_narrow(e.OFF_A, 0), Z2ACC, 2), (e.rd_narrow(e.OFF_A, 1), Z2ACC + 16, 2)], True, False,
                  {e.opt.get("f_dbg", 56): lambda: e(self.dbg_ld)})
        e.stamp(1)

    def second_pass(self, blocks, hooks=None, early_poll=True):
        e = self
        e.pipe = e.gate = e.cyc
        e.wait_all(vm=False)
        e.ev["xfree"] = True
        e.q1 += self.q_act
        e.z2_stats()
        e.stamp(2)
        e.q1 += self.q_later
        e.a_jobs(0, e.nqd, 0, e.nqd - 4, e.q2)
        e.bg_vm(force=True, maxn=e.opt.get("n2", 3))
        e.lat = 10 ** 9
        o = e.opt
        tail = e.label("L_tail")
        e.p1_pass("B", blocks, False, True, {**(hooks or {}), 0: e.z2_norm, 40 * len(blocks) - o.get("z_early", 1): e.z2n_poll_issue if early_poll else lambda: None, 40 * len(blocks) - 60: lambda: e.touch(tail), 40 * len(blocks) - 30: lambda: e.touch("L_p2")},
                  prev_tag="A")
        e.raw(tail + ":")
        e.ev["passb"] = True
        e.prog_flush()
        e.lat = o.get("lat1", 800)
        e.stamp(4)
        e.wait_all(vm=False)
        e("s_barrier")

    def role_a(self):
        e = self

        def queue_b():
            e("s_lshl2_add_u32 %s, %s, %s" % (sG, sHALF, sJL))
            e.stream_init(sBO, sBB, sBE, "s_mul_i32 %s, %s, 160\ns_add_u32 %s, %s, 1280" % (sBB, sG, sBB, sBB), 3840)
            e.w_jobs("B", True, e.OFF_W, sWQ, (sBO, sBB, sBE), 3840, {15360: ("A", 9)}, False, 1.6)
            e.seg320(3840, 16 * 3840, 1280 - 160)
            e.wide_read_addr()
        e.pass_a(queue_b)
        e.second_pass([(e.rd_wide(e.OFF_W, b), ACCB + 16 * b, 1) for b in range(5)])
        e("s_mov_b32 s100, %s\ns_mov_b32 s101, %s" % (f32(LOG2E), f32(1e-6)))
        tmp = WRING
        P = Z2ACC
        e.V("v_add_u32 v%d, %s, v%d" % (vT[0], sREG, vL16))
        ones = WRING + 8
        for k in range(4):
            e.V("v_mov_b32 v%d, 0x3f803f80" % (ones + k))
        for st in range(2):
            e("ds_write_b128 v%d, %s offset:%d" % (vT[0], R("v", ones, 4), WOFF + (10 + st) * 1024))
        for n_, b in enumerate((3, 4, 0, 1, 2)):
            if b < 2:
                e.phi(ACCB + 16 * b, 16, tmp, 100)
            elif b == 2:
                e.bg_vm(force=True, maxn=2)
                e.settle()
                saved = (e.q1, e.q2, e.qd)
                e.q1, e.q2, e.qd = [], [], []
                e("s_mov_b32 exec_lo, 0xffff\ns_mov_b32 exec_hi, 0xffff")
                e.phi(ACCB + 32, 16, tmp, 100)
                e("s_mov_b64 exec, -1")
                e.q1, e.q2, e.qd = saved
            if n_ == e.opt.get("a_go", 2):
                e.z2n_go()
            d = P + 8 * (n_ % 4)
            e.pack(ACCB + 16 * b, 16, d)
            for st in range(2):
                e("ds_write_b128 v%d, %s offset:%d" % (vT[0], R("v", d + 4 * st, 4), WOFF + (2 * b + st) * 1024))
        sA = [sT0, sT1]
        sB = [sT2, sT3]
        e("s_add_u32 %s, %s, 2\ns_add_u32 %s, %s, 3\ns_min_u32 %s, %s, 5" % (sA[0], sW, sA[1], sW, sA[1], sA[1]))
        e("s_cmp_eq_u32 %s, 3\ns_cselect_b32 %s, 0, %s\ns_cselect_b32 %s, 1, %s" % (sW, sB[0], sW, sB[1], sW))
        AD = vT[1:5]
        for k, s_ in enumerate((sA[0], sB[0], sA[1], sB[1])):
            e("v_mov_b32 v%d, %s\nv_lshl_add_u32 v%d, v%d, 11, v%d" % (AD[k], s_, AD[k], AD[k], vL16))
        e.wait_all(vm=False)
        e("s_barrier")
        RES = [ACCB, ACCB + 16]

        def reads(step):
            w_, st = divmod(step, 2)
            if step == 4:
                for k in range(4):
                    e("v_add_u32 v%d, %d, v%d" % (AD[k], 2 * REGION, AD[k]))
            for k in range(4):
                e("ds_read_b128 %s, v%d offset:%d" % (R("a", (step % 6) * 16 + 4 * k, 4), AD[k], WOFF + (w_ & 1) * REGION + st * 1024))
        reads(0); reads(1); reads(2)
        side = ["s_lshl4_add_u32 %s, %s, %s\ns_mul_i32 %s, %s, 20480\ns_add_u32 %s, %s, %d" % (sAB, sG, sI, sAB, sAB, sAB, sAB, KVP - 2 * 4096),
                "s_lshl3_add_u32 %s, %s, %s\ns_mul_i32 %s, %s, 384\ns_add_u32 %s, %s, %d" % (sAE, sI, sG, sAE, sAE, sAE, sAE, ZP),
                "v_and_b32 v%d, 0x7c, v%d" % (vT[0], vL4)]
        for jb in range(2):
            side += ["s_add_u32 %s, %s, %s\ns_lshl_b32 %s, %s, 12\ns_add_u32 %s, %s, %s" % (sDEF[jb], sA[jb], sB[jb], sDEF[jb], sDEF[jb], sDEF[jb], sDEF[jb], sAB),
                     "s_lshl_b32 %s, %s, 7\ns_add_u32 %s, %s, %s" % (sB[jb], sB[jb], sB[jb], sB[jb], sAE),
                     "s_cmp_eq_u32 %s, 5\ns_cselect_b32 %s, 0x%x, %s\ns_cselect_b32 %s, %s, 0x%x" % (sA[jb], sDEF[jb], OOB, sDEF[jb], sB[jb], sB[jb], OOB)]
        for step in range(8):
            for jb in range(2):
                base = (step % 6) * 16 + 8 * jb
                acc = R("v", RES[jb], 16)
                e("v_mfma_f32_32x32x16_bf16 %s, %s, %s, %s" % (acc, R("a", base, 4), R("a", base + 4, 4), "0" if step == 0 else acc))
                if jb == 0 and step + 3 < 8:
                    reads(step + 3)
                else:
                    e.tick()
                    if side:
                        e(side.pop(0))
        assert not side
        upto = e.drain_all()
        e("s_lshl4_add_u32 %s, %s, %s\ns_lshl2_add_u32 %s, %s, %s\ns_lshl2_add_u32 %s, %s, %s" % (sFL, sHALF, sI, sFL, sFL, sJL, sFL, sFL, sW))
        e("s_lshl_b32 %s, %s, 7\ns_add_u32 %s, %s, %d" % (sFL, sFL, sFL, sFL, F_KV))
        for jb in range(2):
            e("buffer_store_dword v%d, v%d, %s, %s offen sc1" % (RES[jb], vT[0], sWS, sB[jb]))
        return upto

    def early_finish(self, last):
        e = self
        e.bg_vm(force=True, maxn=8)
        e.flag(last, sFL)
        for r_ in [sFL] + sDEF:
            e("s_mov_b32 %s, 0x%x" % (r_, OOB))
        e.drain(lambda: len(e.q2) <= 2)
        e.z2n_poll_issue()
        e.drain_all()
        e.z2n_go()
        return e.drain_all()

    def z1_store(self, nblk, first_text, packed=False):
        e = self
        e("s_lshl2_add_u32 %s, %s, %s\ns_mul_i32 %s, %s, 28" % (sT0, sI, sW, sT0, sT0))
        e(first_text)
        e("s_add_u32 %s, %s, %s\ns_lshl_b32 %s, %s, 11\ns_add_u32 %s, %s, %d" % (sT0, sT0, sT1, sT0, sT0, sT0, sT0, Z1))
        for b in range(nblk):
            d = ACCB + 8 * b
            if not packed:
                e.pack(ACCB + 16 * b, 16, d)
            if b == 4:
                e("s_add_u32 %s, %s, 8192" % (sT0, sT0))
            for p in range(2):
                o_ = (b % 4) * 2048 + p * 1024
                last = e("buffer_store_dwordx4 %s, v%d, %s, %s offen offset:%d sc1" % (R("v", d + 4 * p, 4), vL16B if o_ >= 4096 else vL16, sWS, sT0, o_ % 4096))
        return last

    def z1_flag_addr(self):
        self("s_lshl2_add_u32 %s, %s, %s\ns_lshl3_add_u32 %s, %s, %s" % (sFL, sI, sW, sFL, sFL, sG))
        self("s_lshl_b32 %s, %s, 7\ns_add_u32 %s, %s, %d" % (sFL, sFL, sFL, sFL, F_Z1))

    def role_b(self):
        e = self

        def queue_b():
            e("s_mul_i32 %s, %s, 3\ns_add_u32 %s, %s, %s\ns_sub_u32 %s, %s, 4" % (sG, sHALF, sG, sG, sJL, sG, sG))
            e.stream_init(sBO, sBB, sBE, "s_mul_i32 %s, %s, 320" % (sBB, sG), 3456)
            e.w_jobs("B", True, e.OFF_W, sWIN, (sBO, sBB, sBE), 3456, {15360: ("A", 9)}, False, 1.2)
            e.seg320(3456, 16 * 3456)
            e.wide_read_addr()
        e.pass_a(queue_b)
        e.second_pass([(e.rd_wide(e.OFF_W, b), ACCB + 16 * b, 2) for b in range(5)])
        for b in range(5):
            e.pack(ACCB + 16 * b, 16, ACCB + 8 * b)
        e.z2n_go()
        upto = e.drain_all()
        e.z1_store(5, "s_mul_i32 %s, %s, 5\ns_add_u32 %s, %s, 1" % (sT1, sG, sT1, sT1), packed=True)
        e.z1_flag_addr()
        for r_ in sDEF:
            e("s_mov_b32 %s, 0x%x" % (r_, OOB))
        return upto

    @staticmethod
    def unit_col(U):
        c, t = divmod(U, 5)
        return (80 * c + (32 * (t >> 1) + 4 * (t & 1) if t < 4 else 64), 8 if t < 4 else 4)

    def role_l(self):
        e = self
        offf = lambda s: (s % 7) * 2048
        vGR = 18

        def queue_b():
            e("s_mov_b32 %s, 5" % sG)
            e.stream_init(sBO, sBB, sBE, "s_mov_b32 %s, 1600" % sBB, 3456)
            e("s_lshl_b32 %s, %s, 7" % (sT0, sROT))
            for t in range(2):
                e("v_add_u32 v%d, %s, v%d" % (vT[2 + t], sT0, vL16))
                if t:
                    e("v_add_u32 v%d, 0x400, v%d" % (vT[3], vT[3]))
                e("v_subrev_u32 v%d, 0x500, v%d\nv_min_u32 v%d, v%d, v%d" % (vT[1], vT[2 + t], vT[2 + t], vT[2 + t], vT[1]))
                e.q1.append(Job(lambda: True, ["buffer_load_dwordx4 v%d, %s, 0 offen lds" % (vT[2 + t], sGW)],
                                ["s_add_u32 m0, %s, %d" % (sREG, WOFF + 14336 + 1024 * t)], [], e.ev.setdefault(("dma", "B", 0), [])))
            e.w_jobs("B", False, offf, sWIN, (sBO, sBB, sBE), 3456, {}, False, 2.0)
            e.ev[("ndma", "B", 0)] += 2
            e("v_lshrrev_b32 v%d, 5, v0\nv_lshl_add_u32 v%d, v%d, 4, %s" % (vGR, vGR, vGR, sREG))

        def rd_gate(s, ks, dst):
            return e("ds_read_b128 %s, v%d offset:%d" % (R("v", dst, 4), vGR, WOFF + 14336 + s * 128 + ks * 32))
        e.pass_a(queue_b)
        e.second_pass([(e.rd_narrow(offf, 0), ACCB, 2), (e.rd_narrow(offf, 1), ACCB + 16, 2), (rd_gate, ACCB + 32, 2)], early_poll=False)
        g = ACCB + 32
        e.V("v_mul_f32 v%d, %s, v%d\nv_exp_f32 v%d, v%d\nv_add_f32 v%d, 1.0, v%d\nv_rcp_f32 v%d, v%d" % (g, f32(-LOG2E), g, g, g, g, g, g, g))
        e("s_lshl2_add_u32 %s, %s, %s\ns_lshl_b32 %s, %s, 7\ns_add_u32 %s, %s, %d" % (sT0, sI, sW, sT0, sT0, sT0, sT0, GATE))
        e("v_and_b32 v%d, 0x7c, v%d" % (vT[0], vL4))
        e("buffer_store_dword v%d, v%d, %s, %s offen sc1" % (g, vT[0], sWS, sT0))
        last = e.z1_store(2, "s_mov_b32 %s, 26" % sT1)
        e.z1_flag_addr()
        return e.early_finish(last)

    def ap_voff(self, dst):
        self.V("v_bfe_u32 v%d, v0, 4, 1\nv_mul_u32_u24 v%d, 0xc000, v%d\nv_and_b32 v%d, 15, v0" % (dst, dst, dst, vT[0]))
        self.V("v_lshl_add_u32 v%d, v%d, 4, v%d\nv_lshrrev_b32 v%d, 5, v0\nv_lshl_add_u32 v%d, v%d, 8, v%d" % (dst, vT[0], dst, vT[0], dst, vT[0], dst))

    def role_h(self):
        e = self
        e.wring = 208
        Q = 48
        full = e.opt.get("stop", 9) > 2
        SG, ra = [40, 41, 42, 43, 44], 22
        sWB, sDB = sROW[1], sROW[2]
        e("s_mov_b32 s14, %d\ns_mov_b32 s15, 0x20000" % self.sizes[12])
        e.stream_init(sAO, sAB, sAE, "s_mul_i32 %s, %s, 640" % (sAB, sHALF), 3840)
        e.seg320(3840, 16 * 3840)
        occ = {}
        off2 = lambda s: e.OFF_W(s + 10)
        e.w_jobs("A", True, e.OFF_W, sWQ, (sAO, sAB, sAE), 3840, occ, True, 1.2)
        e.bg_vm(force=True, maxn=5)
        e.late_setup(natural=True)
        e.wide_read_addr()
        e.wait(vm=self.clear_id)
        e("s_barrier")
        e("v_mov_b32 v244, 1\ns_lshl_b32 %s, %s, 12\ns_mov_b64 exec, 1" % (sT0, sW))
        e("buffer_atomic_add v244, off, %s, %s sc1" % (sDBG, sT0))
        e("s_mov_b64 exec, -1")
        e.bg_vm(force=True, maxn=9)
        e.seg320(1280, 320, regs_=SG)
        e("s_lshl1_add_u32 %s, %s, %s\ns_mul_i32 %s, %s, %d" % (sT3, sI, sHALF, sWB, sT3, 32 * 1280))
        e("v_lshrrev_b32 v%d, 5, v0\nv_bfe_u32 v%d, v0, 2, 3\nv_lshl_add_u32 v%d, v%d, 4, v%d" % (ra, ra + 1, ra, ra, ra + 1))
        e("v_mul_u32_u24 v%d, 320, v%d\nv_add_u32 v%d, %s, v%d\nv_and_b32 v%d, 3, v0" % (ra, ra, ra, sREG, ra, vT[0]))
        e("v_lshl_add_u32 v%d, v%d, 3, v%d\nv_lshl_add_u32 v%d, v%d, 4, v%d" % (ra + 1, vT[0], ra, ra, vT[0], ra))
        e("s_mul_i32 %s, %s, 96\ns_add_u32 %s, %s, %s\ns_mul_i32 %s, %s, 5120\ns_add_u32 %s, %s, %d" % (sDB, sW, sDB, sDB, sT3, sDB, sDB, sDB, sDB, BP + 20 * 5120))
        e("s_cmp_lt_u32 %s, 27\ns_cselect_b32 %s, %s, 0x%x" % (sT3, sDB, sDB, OOB))
        e("s_lshl_b32 %s, %s, 5\ns_add_u32 %s, %s, %s\ns_lshl_b32 %s, %s, 7\ns_add_u32 %s, %s, %d" % (sFL, sW, sFL, sFL, sT3, sFL, sFL, sFL, sFL, F_WO))
        e.stream_init(sBO, sBB, sBE, "s_add_u32 %s, %s, 320" % (sBB, sAB), 3840)
        e.w_jobs("B", True, off2, sWQ, (sBO, sBB, sBE), 3840, occ, False, 1.2)
        e.stamp(0)
        e.bg_vm(force=True, maxn=9)
        ld0 = "buffer_load_dword v%d, off, %s, 0 sc1" % (vT[11], sDBG)
        wo_ld, wo_st = [], []

        def relayout():
            ld = "buffer_load_dwordx4 v%%d, %s, %s offen offset:%%d lds" % (sWOUT, sWB)
            for hf in range(2):
                e.q2.append(Job(lambda: True, [ld % (SG[k], k * 1024) for k in range(4)], ["s_add_u32 m0, %s, %d" % (sREG, 5120 * hf)], [], wo_ld, weight=1.2))
                e.q2.append(Job(lambda: True, [ld % (SG[4], 0)], ["s_add_u32 m0, %s, %d" % (sREG, 5120 * hf + 4096)],
                                ["s_add_u32 %s, %s, %d" % (sWB, sWB, 16 * 1280)], wo_ld, lambda: e.ev.__setitem__("wo_t", e.cyc), 1.2))
            ready = lambda: len(wo_ld) == 10 and e.landed(max(wo_ld))
            for U in range(10):
                col, step = self.unit_col(U)
                for sub in range(2):
                    def rd(U=U, sub=sub, col=col, step=step):
                        e.wait(vm=max(wo_ld))
                        e("ds_read_b64_tr_b16 %s, v%d offset:%d" % (R("a", 160 + 4 * U + 2 * sub, 2), ra if step == 8 else ra + 1, sub * 8 * 320 + col * 2))
                        e.ev["wo_rd"] = 2 * U + sub + 1
                    e.qd.append((ready, rd))
            for U in range(10):
                e.q2.append(Job(lambda U=U: e.ev.get("wo_rd", 0) >= min(20, 2 * U + 6), ["buffer_store_dwordx4 %s, v%d, %s, %s offen offset:%d sc1"
                                                   % (R("a", 160 + 4 * U, 4), vL16B if U % 5 == 4 else vL16, sWS, sDB, (U % 5 % 4) * 1024)],
                                ["s_add_u32 %s, %s, %d" % (sDB, sDB, 48 * 5120)] if U == 5 else [], [], wo_st))
            e.hi += [ld0, e.mark("ld0"), ("until", lambda: e.ev["ld0"]), ("call", lambda: e.check(ld0, "v_cmp_gt_u32 vcc, 32, v%d" % vT[11]), 16)]

        nsh = e.opt.get("h_sh", 56)

        def phi_shadow():
            e("s_mov_b32 s100, %s\ns_mov_b32 s101, %s" % (f32(LOG2E), f32(1e-6)))
            for g0 in range(0, nsh, 4):
                for fmt in ("v_mul_f32 v{t}, s100, v{x}", "v_exp_f32_e64 v{t}, v{t} clamp", "v_max_f32 v{x}, s101, v{x}", "v_add_f32 v{x}, v{x}, v{t}"):
                    e.prog += [fmt.format(x=Q + g0 + k, t=240 + k) for k in range(4)]
        e.pipe = e.gate = e.cyc
        e.p1_pass("A", [(e.rd_wide(e.OFF_W, b), Q + 16 * b, 2) for b in range(5)], True, True, {150: lambda: e.touch("L_h2")})
        e.raw("L_h2:")
        e.prog_flush()
        e.stamp(1)
        e.p1_pass("B", [(e.rd_wide(off2, b), Q + 80 + 16 * b, 2) for b in range(5)], False, True, {0: relayout, 6: phi_shadow, 140: lambda: e.touch("L_h3"), 170: lambda: e.touch("L_h3", 8192)}, prev_tag="A")
        e.raw("L_h3:")
        e.drain_all()
        e.prog_flush()
        e.flag(max(wo_st), sFL)
        e.lstamp(None)
        e.stamp(4)
        e.wait_all(vm=False)
        e("s_barrier")
        sCT = sAO
        sHM = "s[82:83]"
        IMG = 8192
        e("s_lshr_b32 %s, %s, 1\ns_lshl3_add_u32 %s, %s, %s" % (sG, sI, sG, sHALF, sG))
        e("s_and_b32 %s, %s, 1\ns_lshl2_add_u32 %s, %s, %s" % (sCT, sI, sCT, sCT, sW))
        e("s_mul_i32 %s, %s, %d\ns_mul_i32 %s, %s, 160\ns_add_u32 %s, %s, %s" % (sT0, sG, 40 * 1280, sT1, sCT, sT0, sT0, sT1))
        for pc in range(7):
            e("v_add_u32 v16, %d, v0\nv_mul_u32_u24 v17, 0x199a, v16\nv_lshrrev_b32 v17, 16, v17" % (64 * pc))
            e("v_mul_u32_u24 v17, %d, v17\nv_lshl_add_u32 v16, v16, 4, v17" % (1280 - 160))
            e("s_add_u32 m0, %s, %d" % (sREG, WOFF + pc * 1024))
            if pc == 6:
                e("s_mov_b64 exec, 0xffff")
            wo_id = e("buffer_load_dwordx4 v16, %s, %s offen lds" % (sWO, sT0))
        e("s_mov_b64 exec, -1")
        for k in range(4):
            e("v_mov_b32 v%d, 0" % (240 + k))
        e("s_lshl_b32 %s, %s, 10\nv_add_u32 v16, %s, v%d" % (sT0, sW, sT0, vL16))
        e("ds_write_b128 v16, v[240:243] offset:%d" % IMG)
        e("s_lshl2_add_u32 %s, %s, %s\ns_lshl_b32 %s, %s, 13\ns_add_u32 %s, %s, %d" % (sBO, sHALF, sW, sBO, sBO, sBO, sBO, F_KV))
        e("s_lshl2_add_u32 %s, %s, %s\ns_lshl_b32 %s, %s, 7\ns_lshl_b32 %s, %s, 3\ns_add_u32 %s, %s, %d" % (sBE, sI, sW, sBE, sBE, sBB, sBE, sBB, sBB, F_Z1 + 5 * 128))
        ld1 = "buffer_load_dword v208, v%d, %s, %s offen sc1\nbuffer_load_dword v209, off, %s, %s sc1" % (vL128, sWS, sBO, sWS, sBB)
        vAP = 25
        e.ap_voff(vAP)
        e("s_lshl2_add_u32 %s, %s, %s\ns_mul_i32 %s, %s, %d\ns_mul_i32 %s, %s, 10240" % (sT2, sI, sW, sT2, sT2, 2 * 49152, sT3, sHALF))
        e("s_add_u32 %s, %s, %s\ns_add_u32 %s, %s, %d" % (sT2, sT2, sT3, sT2, sT2, AP))
        todo = nsh
        for pc in range(20):
            if todo < 160:
                e.phi(Q + todo, 8, 240, 100)
                todo += 8
            d = 248 + 4 * (pc & 1)
            e.pack(Q + 8 * pc, 8, d)
            if pc and pc % 8 == 0:
                e("s_add_u32 %s, %s, 4096" % (sT2, sT2))
            pq_st = e("buffer_store_dwordx4 %s, v%d, %s, %s offen offset:%d sc1" % (R("v", d, 4), vAP, sWS, sT2, (pc // 2 % 4) * 1024 + (pc & 1) * 512))
        early_w = full and e.opt.get("h_w", 0)
        sPF, sSF = "s84", "s85"
        e("s_lshr_b32 %s, %s, 1\ns_lshl1_add_u32 %s, %s, %s\ns_and_b32 %s, %s, 1\ns_lshl1_add_u32 %s, %s, %s" % (sT0, sW, sT0, sI, sT0, sT1, sW, sT1, sHALF, sT1))
        e("s_lshl2_add_u32 %s, %s, %s\ns_lshl_b32 %s, %s, 7\ns_add_u32 %s, %s, %d" % (sSF, sT0, sT1, sSF, sSF, sSF, sSF, F_SC))
        e("s_lshl_b32 %s, %s, 5\ns_add_u32 %s, %s, %s\ns_lshl_b32 %s, %s, 7\ns_add_u32 %s, %s, %d" % (sT0, sT0, sT0, sT0, sT1, sT0, sT0, sPF, sT0, F_U + 28 * 128))
        if early_w:
            e("s_lshr_b32 %s, %s, 1\ns_lshl_b32 %s, %s, 12\ns_mul_i32 %s, %s, %d" % (sT0, sC, sT0, sT0, sT1, sW, 7 * 128))
            e("s_add_u32 %s, %s, %s\ns_add_u32 %s, %s, %d" % (sT0, sT0, sT1, sT0, sT0, F_WO))
            e("v_min_u32 v214, %d, v%d\nv_add_u32 v214, %s, v214" % (6 * 128, vL128, sT0))
            ldo = "buffer_load_dword v215, v214, %s, 0 offen sc1" % sWS
            e(ldo)
            e("s_mul_i32 %s, %s, 48\ns_mul_i32 %s, %s, 7\ns_add_u32 %s, %s, %s" % (e.sW3, sC, sT0, sW, e.sW3, e.sW3, sT0))
            e("s_mul_i32 %s, %s, 5120\ns_add_u32 %s, %s, %d" % (e.sW3, e.sW3, e.sW3, e.sW3, BP + 20 * 5120))
            e("s_cmp_eq_u32 %s, 3\ns_cselect_b32 %s, 0x%x, 0\nv_add_u32 v%d, %s, v%d" % (sW, sT0, OOB, e.vZ, sT0, vL16))
        ldw = "buffer_load_dword v208, off, %s, %s sc1" % (sWS, sBO)
        vH, vGA, vIW, vAR, vAR2, vZR = 24, 8, 9, 10, 11, 26
        MS = [12, 13, 14]
        e.V("v_lshrrev_b32 v%d, 5, v0\nv_mov_b32 v23, 0x%x" % (vH, OOB))
        e.V("v_bfe_u32 v16, v0, 2, 2\nv_mul_u32_u24 v16, 160, v16\nv_add_u32 v16, %s, v16\nv_mul_u32_u24 v17, %d, v%d" % (sREG, 8 * 160, vH))
        e.V("v_and_b32 v18, 3, v0\nv_bfe_u32 v19, v0, 4, 1\nv_lshlrev_b32 v20, 3, v19\nv_lshl_add_u32 v20, v18, 4, v20\nv_add_u32 v20, v20, v16")
        e.V("v_lshl_add_u32 v16, v18, 3, v16\nv_add_u32 v21, v20, v17\nv_add_u32 v17, v16, v17")
        e.wait(vm=wo_id)
        for bb in range(3):
            for ks in range(3):
                for t in range(2):
                    r_ = ((21, 17) if ks < 2 else (20, 16))[bb == 2]
                    e("ds_read_b64_tr_b16 %s, v%d offset:%d" % (R("a", 12 * bb + 4 * ks + 2 * t, 2), r_, WOFF + (16 * ks + 4 * t) * 160 + 64 * bb))
        e.V("s_mul_i32 %s, %s, 50\ns_and_b32 %s, %s, 1\ns_mul_i32 %s, %s, 40" % (sT0, sW, sT1, sG, sT1, sT1))
        e.V("v_add_u32 v16, %s, v0\nv_mul_u32_u24 v17, 0xccd, v16\nv_lshrrev_b32 v17, 16, v17" % sT0)
        e.V("v_mul_u32_u24 v18, 20, v17\nv_sub_u32 v16, v16, v18\nv_cmp_lt_u32 vcc, 4, v17\nv_cndmask_b32_e64 v18, 0, 20, vcc\nv_add_u32 v16, v16, v18")
        e.V("v_mul_u32_u24 v%d, 96, v16\nv_lshl_add_u32 v%d, v17, 3, v%d" % (vIW, vIW, vIW))
        e.V("v_add_u32 v16, %s, v16\nv_lshl_add_u32 v17, v17, 2, %s\nv_add_u32 v17, 16, v17" % (sT1, sT1))
        e.V("v_lshrrev_b32 v18, 5, v16\nv_lshlrev_b32 v17, 7, v17\nv_lshl_add_u32 v17, v18, 12, v17")
        e.V("v_and_b32 v16, 31, v16\nv_lshl_add_u32 v%d, v16, 4, v17" % vGA)
        e.V("v_cmp_gt_u32 vcc, 50, v0\nv_cndmask_b32 v%d, v23, v%d, vcc\nv_mov_b32 v16, %d\nv_cndmask_b32 v%d, v16, v%d, vcc" % (vGA, vGA, 3840, vIW, vIW))
        e.V("v_and_b32 v16, 0x13, v0\nv_bfe_u32 v17, v0, 2, 1\nv_lshl_or_b32 v16, v17, 3, v16\nv_bfe_u32 v17, v0, 3, 1\nv_lshl_or_b32 v16, v17, 2, v16")
        e.V("v_mul_u32_u24 v%d, 96, v16\nv_lshl_add_u32 v%d, v%d, 4, v%d" % (vAR, vAR, vH, vAR))
        e.V("v_and_b32 v16, 7, v16\nv_mul_u32_u24 v%d, 96, v16\nv_lshl_add_u32 v%d, v%d, 4, v%d" % (vAR2, vAR2, vH, vAR2))
        e.V("s_mul_i32 %s, %s, 5" % (sT0, sG))
        e.V("v_and_b32 v16, 15, v0\nv_lshlrev_b32 v16, 4, v16\nv_lshl_add_u32 v16, v19, 10, v16")
        for p in range(3):
            e.V("v_add_u32 v17, %s, v%d\nv_add_u32 v17, %d, v17\nv_lshrrev_b32 v18, 2, v17\nv_mul_u32_u24 v18, 5120, v18" % (sT0, vH, 2 * p))
            e.V("v_and_b32 v17, 3, v17\nv_lshl_add_u32 v17, v17, 8, v16\nv_add_u32 v%d, v17, v18" % MS[p])
        e.V("v_cmp_gt_u32 vcc, 32, v0\nv_cndmask_b32 v%d, v23, v%d, vcc\nv_cmp_eq_u32 %s, 0, v19" % (MS[2], MS[2], sHM))
        a16, a8 = vT[3], vT[4]
        e.V("v_lshl_add_u32 v%d, v%d, 5, %s\nv_add_u32 v%d, %s, v%d" % (vZR, vH, sREG, a16, sREG, vL16))
        e.V("v_lshlrev_b32 v27, 3, v0\nv_add_u32 v%d, %s, v27\nv_add_u32 v28, %d, v27\nv_add_u32 v15, %d, v%d" % (a8, sREG, 2 * REGION, 2 * REGION, vL16))
        e.V("s_mul_i32 %s, %s, %d\ns_mul_i32 %s, %s, 1536\ns_add_u32 %s, %s, %s\ns_add_u32 %s, %s, %d" % (sT0, sW, 4 * 3072, sT1, sHALF, sT0, sT0, sT1, sT0, sT0, ZP))
        e.V("s_lshr_b32 %s, %s, 1\ns_mul_i32 %s, %s, %d\ns_add_u32 %s, %s, %d" % (sT1, sG, sT1, sT1, 16 * 20480, sT1, sT1, KVP))
        e.V("s_add_u32 %s, %s, %d\nv_and_b32 v%d, 0x7c, v%d" % (sBE, sBE, GATE, vT[2], vL4))
        e.V("s_lshl2_add_u32 %s, %s, %s\ns_lshl1_add_u32 %s, %s, %s\ns_lshl_b32 %s, %s, 11\ns_add_u32 %s, %s, %d" % (sT2, sI, sW, sT2, sT2, sHALF, sT2, sT2, sT2, sT2, SC))
        e.V("s_mul_i32 %s, %s, %d\ns_add_u32 %s, %s, %d" % (sT3, sCT, 48 * 5120, sT3, sT3, BP))
        e.flag(pq_st, sPF)
        if early_w:
            e.check(ldo, "v_cmp_eq_u32 vcc, -1, v215")
            e.p3_jobs(e.q1, 0, e.n3, free=True)
            e.drain_all()
        if e.opt.get("h_two", 1):
            e(ldw)
            e.stamp(5)
            e.check(ldw, "v_cmp_eq_u32 vcc, -1, v208", site=57)
        e(ld1)
        e.check(ld1, "v_max_u32 v213, v208, v209\nv_cmp_eq_u32 vcc, -1, v213", site=58)
        e.wait_all(vm=False)
        e("s_barrier")
        e.stamp(6)
        vG = vT[10]
        KL = lambda r: 36 + 4 * r if r < 15 else 240
        for r in range(4):
            e("buffer_load_dwordx4 %s, v%d, %s, %s offen sc1" % (R("v", 208 + 4 * r, 4), vL16, sWS, sT0))
            e("buffer_load_dwordx2 %s, v27, %s, %s offen offset:1024 sc1" % (R("v", 224 + 2 * r, 2), sWS, sT0))
            if r < 3:
                e("s_add_u32 %s, %s, 3072" % (sT0, sT0))
        e("buffer_load_dword v%d, v%d, %s, %s offen sc1" % (vG, vT[2], sWS, sBE))
        for r in range(16):
            e.q1.append(Job(lambda: True, ["buffer_load_dwordx4 %s, v%d, %s, %s offen sc1" % (R("a", KL(r), 4), vGA, sWS, sT1)],
                            ["s_add_u32 %s, %s, 20480" % (sT1, sT1)] if r else [], weight=1.2))
        e.bg_vm(force=True, maxn=e.opt.get("h_n0", 5))

        def zsum(off):
            for r in range(1, 4):
                for k in (0, 2):
                    e("v_pk_add_f32 %s, %s, %s" % (R("v", 208 + k, 2), R("v", 208 + k, 2), R("v", 208 + 4 * r + k, 2)))
                e("v_pk_add_f32 v[224:225], v[224:225], %s" % R("v", 224 + 2 * r, 2))
            e("ds_write_b128 v%d, v[208:211] offset:%d\nds_write_b64 v%d, v[224:225] offset:%d" % (a16, off, a8, off + 1024))
        zsum(0)
        e.bg_vm(force=True, maxn=2)
        e.wait_all(vm=False)
        e("s_barrier")
        for r in range(4):
            e("ds_read_b128 %s, v%d offset:%d" % (R("v", 208 + 4 * r, 4), 15 if r >= 2 else vL16, (r & 1) * REGION))
            e("ds_read_b64 %s, v%d offset:%d" % (R("v", 224 + 2 * r, 2), 28 if r >= 2 else 27, (r & 1) * REGION + 1024))
        e.bg_vm(force=True, maxn=2)
        zsum(2048)
        e.stamp(2)
        e.pipe = e.gate = e.cyc
        ZB = [208, 228]

        def zread(hg):
            for k in range(5):
                J = 5 * (hg & 1) + k
                e("ds_read_b128 %s, v%d offset:%d" % (R("v", ZB[hg & 1] + 4 * k, 4), vZR, 2048 + 384 * (hg >> 1) + 64 * (J >> 1) + 16 * (J & 1)))
        zread(0)
        zread(1)
        AA, AB, BB, BC, CC, CD, DD = 16, 18, 20, 22, 32, 34, 36
        e.V("v_cmp_gt_u32 vcc, 32, v0")
        for gr in range(4):
            for J in range(10):
                acc = (AA, AA, AB, BB, BC, BC, CC, CD, DD, DD)[J]
                x = Q + 40 * gr + 4 * J
                z = ZB[J // 5] + 4 * (J % 5)
                if J in (1, 5, 9):
                    e.V("v_pk_fma_f32 %s, %s, %s, %s" % (R("v", acc, 2), R("v", x, 2), R("v", z, 2), R("v", acc, 2)))
                else:
                    e.V("v_pk_mul_f32 %s, %s, %s" % (R("v", acc, 2), R("v", x, 2), R("v", z, 2)))
                e.V("v_pk_fma_f32 %s, %s, %s, %s" % (R("v", acc, 2), R("v", x + 2, 2), R("v", z + 2, 2), R("v", acc, 2)))
                if J in (4, 9) and gr < 3:
                    zread(2 * gr + 2 + J // 5)
            for r_ in (BC, AA, AB, BB, CC, CD, DD):
                e.V("v_add_f32 v%d, v%d, v%d" % (r_, r_, r_ + 1))
            e.V("v_cndmask_b32 v%d, 0, v%d, vcc\nv_sub_f32 v%d, v%d, v%d" % (BC + 1, BC, BC, BC, BC + 1))
            e.V("v_add_f32 v%d, v%d, v%d\nv_add_f32 v%d, v%d, v%d" % (BB, BB, BC + 1, CC, CC, BC))
            e.V("v_add_f32 v%d, %s, v%d\nv_add_f32 v%d, %s, v%d" % (AB, f32(1e-6), AB, CD, f32(1e-6), CD))
            e.V("v_permlane32_swap_b32 v%d, v%d\nv_permlane32_swap_b32 v%d, v%d" % (AA, BB, CC, DD))
            e.V("v_add_f32 v%d, v%d, v%d\nv_add_f32 v%d, v%d, v%d" % (AB, AB, AA, CD, CD, CC))
            e.V("v_add_f32 v%d, v%d, v%d\nv_add_f32 v%d, v%d, v%d" % (AB, AB, BB, CD, CD, DD))
            e.V("v_rcp_f32 v%d, v%d\nv_rcp_f32 v%d, v%d" % (AB, AB, CD, CD))
            e.V("v_mul_f32 v%d, v%d, v%d\nv_mul_f32 v%d, v%d, v%d" % (248 + 2 * gr, AB, vG, 249 + 2 * gr, CD, vG))
            if gr == 3:
                for k in range(2):
                    last = e("buffer_store_dwordx4 %s, v%d, %s, %s offen offset:%d sc1" % (R("v", 248 + 4 * k, 4), vL16, sWS, sT2, k * 1024))
            if gr == e.opt.get("h_kv", 2):
                e.drain_all()
                for r in range(16):
                    d = Q + (4 if r else 0)
                    for k in range(4):
                        e("v_accvgpr_read_b32 v%d, a%d" % (d + k, KL(r) + k))
                    if r:
                        for k in (0, 2):
                            e("v_pk_add_f32 %s, %s, %s" % (R("v", Q + k, 2), R("v", Q + k, 2), R("v", d + k, 2)))
                e.pack(Q, 4, Q + 8)
                img_w = e("ds_write_b64 v%d, %s offset:%d" % (vIW, R("v", Q + 8, 2), IMG))
            if gr == 3:
                e.stamp(3)
                e.wait(lg=img_w)
                e("s_barrier")
                for ks in range(3):
                    e("ds_read_b128 %s, v%d offset:%d" % (R("a", 40 + 4 * ks, 4), vAR, IMG + 32 * ks))
                for ks in (1, 2):
                    e("ds_read_b128 %s, v%d offset:%d" % (R("a", 48 + 4 * ks, 4), vAR2, IMG + 32 * 96 + 32 * ks))

        def mm(bb):
            d1, d2 = R("v", Q + 32 * bb, 16), R("v", Q + 32 * bb + 16, 16)
            for ks in range(3):
                e("v_mfma_f32_32x32x16_bf16 %s, %s, %s, %s" % (d1, R("a", 40 + 4 * ks, 4), R("a", 12 * bb + 4 * ks, 4), d1 if ks else "0"))
            for ks in (1, 2):
                e("v_mfma_f32_32x32x16_bf16 %s, %s, %s, %s" % (d2, R("a", 48 + 4 * ks, 4), R("a", 12 * bb + 4 * ks, 4), d2 if ks == 2 else "0"))
        mm(0)
        e.stamp(7)
        for bb in range(3):
            if bb < 2:
                mm(bb + 1)
            if bb == 2:
                e("s_mov_b64 exec, %s\ns_add_u32 %s, %s, 4096" % (sHM, sT3, sT3))
            for p in range(3):
                d = 208 + 4 * (3 * bb + p)
                e.pack(Q + 32 * bb + 8 * p, 8, d)
                m_last = e("buffer_store_dwordx4 %s, v%d, %s, %s offen offset:%d sc1" % (R("v", d, 4), MS[p], sWS, sT3, (bb & 1) * 2048))
        e("s_mov_b64 exec, -1")
        e("s_lshl4_add_u32 %s, %s, %s\ns_lshl_b32 %s, %s, 7\ns_add_u32 %s, %s, %d" % (sT1, sCT, sG, sT1, sT1, sT1, sT1, F_M))
        e.flag(last, sSF)
        e.flag(m_last, sT1)
        e.stamp(8)
        e.wait_all(vm=False)
        e("s_barrier")
        e("s_mov_b32 %s, 0x%x" % (sFL, OOB))
        if e.opt.get("stop", 9) <= 2:
            return None
        e.p3_setup()
        if early_w:
            e("s_add_u32 %s, %s, %d" % (e.sW3, e.sW3, (e.n3 - 1) // 4 * 4096))
        else:
            e.p3_poll(0)
            e.p3_check(0)
            e.p3_jobs(e.q1, 0, e.n3, free=True)
            e.drain_all()
        e.q1 = []
        e.wait_all()
        return e.join_state({"last": -1})

    def phase2(self, ids):
        e = self
        o = e.opt
        e.ev = {"xfree": True, "norm_done": True, "f": -1, "n3": 0}
        nqd, nqr = e.nqd, e.nqd - 4
        for q in range(nqd):
            e.ev[("adma", q)] = [-1] * 4
        for g in range(NB0):
            e.ev[("dma", "P", g)] = [-1] * 4
            e.ev[("ndma", "P", g)] = 4
        e.lat = 10 ** 9
        e.wring = WRING
        e.pace = o.get("pace2", 66)
        ACC_S, ACC_O, TT, RAW = 128, Z2ACC, 80, 112
        vB = [20, 21]
        vG, vK = vT[6], vT[5]
        p = e.prog
        full = o.get("stop", 9) > 2
        e("v_add_u32 v%d, %d, v%d\nv_add_u32 v%d, %d, v%d" % (vB[0], WOFF, vL16, vB[1], WOFF + 2 * REGION, vL16))

        def opened(g):
            if g == 0:
                e.a_jobs(nqd, nqd, nqr, 16, e.q1)
                q = nqd
                for g_ in range(NB0, 16):
                    while q < 16 and q <= 2 * g_:
                        e.a_jobs(q, q + 1, 0, 0, e.q1)
                        e.q1[-1].need = ("P", 8 * q - 8)
                        q += 1
                    e.b_jobs(g_, g_ + 1)
                    e.q1[-1].need = ("P", 16 * g_ - 6)
                e.pipe = e.gate = e.cyc

        def read(f, dst):
            g, rem = divmod(f, 16)
            ks, blk = divmod(rem, 2)
            r_ = ks >> 1
            return e("ds_read_b128 %s, v%d offset:%d" % (R("v", dst, 4), vB[r_ >> 1], (r_ & 1) * REGION + ((g + 3) % 6) * 4096 + (ks & 1) * 2048 + blk * 1024))

        def mfma(f, bf):
            g, rem = divmod(f, 16)
            ks, blk = divmod(rem, 2)
            q = 2 * (g % 8) + (ks >> 2)
            qn = min(15, (f + 4) >> 3)
            if qn >= nqr and ("ard", qn) not in e.ev:
                e.lat = 0
                e.drain(lambda: ("ard", qn) in e.ev)
                e.lat = 10 ** 9
            if f == 128:
                assert e.ev.get("bias")
            acc = R("v", (ACC_S if g < 8 else ACC_O) + 16 * blk, 16)
            e("v_mfma_f32_32x32x16_bf16 %s, %s, %s, %s" % (acc, bf, rr(ASLOT[q], 4, 4 * (ks & 3)), "0" if f < 2 else acc))

        def at(f):
            return ("until", lambda: -1 if e.ev["f"] >= f else 10 ** 9)

        def lines(text):
            p.extend(text.split("\n"))

        sPXS, sPXF, sPXR = sROW[1], sROW[2], sROW[3]
        nst = 4 if o.get("px16", 1) else 8
        lines("s_mul_i32 %s, %s, 14\ns_add_u32 %s, %s, %s\ns_lshl2_add_u32 %s, %s, %s" % (sT0, sI2, sT0, sT0, sJ2, sPXR, sT0, sW))
        lines("s_xor_b32 %s, %s, 4\ns_lshl_b32 %s, %s, 13\ns_add_u32 %s, %s, %d" % (sT0, sPXR, sPXS, sT0, sPXS, sPXS, PX))
        lines("s_lshl_b32 %s, %s, 7\ns_add_u32 %s, %s, %d" % (sPXF, sT0, sPXF, sPXF, F_PX))
        lines("s_lshl2_add_u32 %s, %s, %s\ns_lshl_b32 %s, %s, 7\ns_lshl_b32 %s, %s, 10\ns_add_u32 %s, %s, %d" % (sAB, sI2, sW, sAE, sAB, sAO, sAB, sAO, sAO, F_Z1))
        lines("s_mul_i32 %s, %s, 14\ns_add_u32 %s, %s, %s\ns_lshl_b32 %s, %s, 12\ns_add_u32 %s, %s, %d" % (sAB, sAB, sAB, sAB, sJ2, sAB, sAB, sAB, sAB, Z1))
        lines("s_add_u32 %s, %s, %d\nv_min_u32 v%d, %d, v%d\nv_and_b32 v%d, 0x7c, v%d" % (sAE, sAE, GATE, vT[8], 5 * 128, vL128, vT[7], vL4))
        p.append("v_lshlrev_b32 v%d, 16, v%d" % (vT[10], vT[10]))
        p.extend("v_mov_b32 v%d, v%d" % (ACC_O + k, vT[10]) for k in range(32))
        p += [("call", lambda: e.ev.__setitem__("bias", True), 0)]
        if full:
            e.p3_setup(lambda t: p.append(t) if "cmp" in t else lines(t))
        z1_ld = "buffer_load_dword v%d, v%d, %s, %s offen sc1" % (vT[9], vT[8], sWS, sAO)
        z1p = [z1_ld] + ([e.p3_ld(0)] if full else [])
        z1p += [e.mark("z1p"), ("until", lambda: e.ev["z1p"]), ("call", lambda: e.check(z1_ld, "v_cmp_eq_u32 vcc, -1, v%d" % vT[9], site=59), 16)]
        z1p.append("buffer_load_dword v%d, v%d, %s, %s offen sc1" % (vG, vT[7], sWS, sAE))
        z1p += ["buffer_load_dwordx4 %s, v%d, %s, %s offen offset:%d sc1" % (R("v", RAW + 4 * k, 4), vL16, sWS, sAB, k * 1024) for k in range(4)]
        z1p.append(e.mark("z1d"))
        if full:
            z1p.append(("call", lambda: (e.p3_check(0), e.p3_jobs(e.q2, 0, e.n3)), 16))
        p.append(("call", lambda: e.ev.__setitem__("setup", True), 0))
        act = ["v_sub_f32 v%d, 1.0, v%d" % (vG, vG), "v_mov_b32 v%d, %s" % (vK, f32(GK2))]
        for g0 in range(0, 32, 4):
            xs = [(TT + g0 + k, vT[k]) for k in range(4)]
            for k in range(0, 4, 2):
                act.append("v_lshlrev_b32 v%d, 16, v%d" % (TT + g0 + k, RAW + (g0 + k) // 2))
                act.append("v_and_b32 v%d, 0xffff0000, v%d" % (TT + g0 + k + 1, RAW + (g0 + k) // 2))
            for fmt in ("v_mul_f32 v{t}, v{x}, v{x}", "v_fmaak_f32 v{t}, v%d, v{t}, %s" % (vK, f32(GK1)), "v_mul_f32 v{t}, v{t}, v{x}",
                        "v_exp_f32 v{t}, v{t}", "v_mul_f32 v{x}, v{x}, v%d" % vG, "v_add_f32 v{t}, 1.0, v{t}", "v_rcp_f32 v{t}, v{t}",
                        "v_mul_f32 v{x}, v{x}, v{t}"):
                act += [fmt.format(x=x, t=t) for x, t in xs]
        p += [("until", lambda: e.ev.get("z1d", 10 ** 9))] + act

        def front(items):
            return lambda: e.hi.extend(items)
        px_ld = "buffer_load_dword v%d, off, %s, %s sc1" % (vT[9], sWS, sPXF)
        e.st_scale = 0.65
        hooks = {0: front(e.deferred_stores() + [e.mark("role"), ("call", lambda: setattr(e, "st_scale", 1.0), 0)]),
                 o.get("f_rflag", 42): front([("call", lambda: e.flag(e.ev["role"], sFL), 20)]),
                 o.get("f_boost", 150): lambda: setattr(e, "boost", o.get("boost2", 4))}
        hooks[o.get("f_z1", 88)] = lambda: (e.ev["setup"], e.hi.extend(z1p))
        step = o.get("px_step", 5)
        for k in range(nst):
            st_ = "buffer_store_dwordx4 %s, v%d, %s, %s offen offset:%d sc1" % (R("v", ACC_S + 4 * k, 4), vL16B if k >= 4 else vL16, sWS, sPXS, (k % 4) * 1024)
            pk = ["v_cvt_pk_bf16_f32 v%d, v%d, v%d" % (ACC_S + 4 * k + j, ACC_S + 8 * k + 2 * j, ACC_S + 8 * k + 2 * j + 1) for j in range(4)] if nst == 4 else []
            hooks[131 + step * k] = front(pk + [st_, e.mark("px")])
        hooks[o.get("f_pxflag", 176)] = front([("call", lambda: e.flag(e.ev["px"], sPXF), 20)])
        hooks[o.get("f_pxpoll", 208)] = front(["s_lshl_b32 %s, %s, 7" % (sPXF, sPXR), "s_add_u32 %s, %s, %d" % (sPXF, sPXF, F_PX),
                                               "s_lshl_b32 %s, %s, 13" % (sPXR, sPXR), "s_add_u32 %s, %s, %d" % (sPXR, sPXR, PX), px_ld])
        PR = ACC_S + 16 if nst == 4 else ACC_S
        hooks[o.get("f_pxload", 228)] = front(
            [("call", lambda: e.check(px_ld, "v_cmp_eq_u32 vcc, -1, v%d" % vT[9], site=61), 20)] +
            ["buffer_load_dwordx4 %s, v%d, %s, %s offen offset:%d sc1" % (R("v", PR + 4 * k, 4), vL16B if k >= 4 else vL16, sWS, sPXR, (k % 4) * 1024)
             for k in range(nst)])
        hooks[100] = lambda: e.touch("L_p2", 8192)
        if full:
            hooks[180] = lambda: e.touch("L_p3")
        e.mfma_loop("P", 16, 16, read, mfma, opened, True, hooks, 40)
        assert not e.q1 and not e.qd
        e.boost = 0
        e.ev["f"] = 999
        e.prog_flush()
        e.lstamp(None)
        e.stamp(7)
        self.left3 = len(e.q2)
        e.drain_all()
        vU, vU0 = vT[7], vT[8]
        e.ap_voff(vU)
        e("s_cmp_eq_u32 %s, 0\ns_cselect_b32 %s, 0x%x, 0\nv_add_u32 v%d, %s, v%d" % (sJ2, sT1, OOB, vU0, sT1, vU))
        e("s_lshl2_add_u32 %s, %s, %s\ns_mul_i32 %s, %s, %d\ns_lshl_b32 %s, %s, 11" % (sT0, sI2, sW, sT0, sT0, 2 * 49152, sT1, sJ2))
        e("s_add_u32 %s, %s, %s\ns_add_u32 %s, %s, %d" % (sT0, sT0, sT1, sT0, sT0, AP + 19 * 1024))
        for k in range(8):
            g = ACC_O + 4 * k
            src = ACC_S + 4 * k
            if nst == 4:
                src = ACC_S + 4 * (k & 1)
                for j in range(2):
                    e("v_lshlrev_b32 v%d, 16, v%d\nv_and_b32 v%d, 0xffff0000, v%d" % (src + 2 * j, PR + 2 * k + j, src + 2 * j + 1, PR + 2 * k + j))
            for o_ in (0, 2):
                e("v_pk_add_f32 %s, %s, %s" % (R("v", g + o_, 2), R("v", g + o_, 2), R("v", src + o_, 2)))
            for o_ in (0, 2):
                e("v_pk_mul_f32 %s, %s, %s" % (R("v", g + o_, 2), R("v", g + o_, 2), R("v", TT + 4 * k + o_, 2)))
            for o_ in (0, 2):
                e("v_cvt_pk_bf16_f32 v%d, v%d, v%d" % (TT + 2 * k + o_ // 2, g + o_, g + o_ + 1))
            if k & 1:
                blk, p = divmod(k >> 1, 2)
                last = e("buffer_store_dwordx4 %s, v%d, %s, %s offen offset:%d sc1" % (R("v", TT + 2 * k - 2, 4), vU if blk else vU0, sWS, sT0, blk * 1024 + p * 512))
        e("s_lshr_b32 %s, %s, 1\ns_lshl1_add_u32 %s, %s, %s\ns_lshl_b32 %s, %s, 5" % (sT0, sW, sT0, sI2, sT0, sT0, sT0))
        e("s_and_b32 %s, %s, 1\ns_lshl1_add_u32 %s, %s, %s\ns_add_u32 %s, %s, %s" % (sT1, sW, sT1, sJ2, sT1, sT0, sT0, sT1))
        e("s_lshl_b32 %s, %s, 7\ns_add_u32 %s, %s, %d" % (sT0, sT0, sFL, sT0, F_U))
        e.stamp(8)
        if o.get("stop", 9) <= 2:
            return None
        e.wait(lg=e.lg_n - 1)
        return e.join_state({"last": last})

    POOL = ([("a", 96 + 4 * k) for k in range(35)] + [("v", 192 + 4 * k) for k in range(16)] + [("v", 160 + 4 * k) for k in range(4)]
            + [("a", 236 + 4 * k) for k in range(5)] + [("a", 4 * k) for k in range(20)])
    POOLFREE = [-1] * 16 + [128 + 8 * (k // 4) + 7 for k in range(19)] + [998] * 45
    sRU = ["s63", "s64", "s65", "s71"]
    sB3, sF3, sW3 = "s72", "s73", "s99"
    vP = [16, 17, 18, 28]
    vZ = 22

    def p3_setup(self, emit=None):
        e = _Redirect(self, emit)
        for b in range(4):
            e("s_add_u32 %s, %s, %d\ns_and_b32 %s, %s, 3\ns_lshl2_add_u32 %s, %s, %s" % (sT0, sW, b + 1, sT0, sT0, sT0, sP, sT0))
            e("s_mul_i32 %s, %s, 48\ns_mul_i32 %s, %s, 5\ns_add_u32 %s, %s, %s" % (sT0, sT0, sT1, sW, sT0, sT0, sT1))
            e("s_lshl_b32 %s, %s, 10\ns_add_u32 %s, %s, %d" % (sT0, sT0, e.sRU[b], sT0, AP))
        e("s_mul_i32 %s, %s, 48\ns_add_u32 %s, %s, %s\ns_mul_i32 %s, %s, 5120\ns_add_u32 %s, %s, %d" % (sT0, sC, sT0, sT0, sT1, sT0, sT0, e.sB3, sT0, BP))
        e("s_mul_i32 %s, %s, %d\ns_add_u32 %s, %s, %s\ns_add_u32 %s, %s, %d" % (sT0, sW, 2 * 5120, e.sW3, e.sB3, sT0, e.sW3, e.sW3, 20 * 5120))
        e("s_lshr_b32 %s, %s, 1\ns_lshl_b32 %s, %s, 12" % (sT0, sC, sT0, sT0))
        e("s_mul_i32 %s, %s, %d\ns_add_u32 %s, %s, %s" % (sT1, sW, 7 * 128, sT0, sT0, sT1))
        e("s_add_u32 %s, %s, %d\nv_min_u32 v%d, %d, v%d\nv_add_u32 v%d, %s, v%d" % (sT1, sT0, F_WO, e.vP[0], 6 * 128, vL128, e.vP[0], sT1, e.vP[0]))
        e("s_lshl2_add_u32 %s, %s, %s\ns_lshl_b32 %s, %s, 9\ns_add_u32 %s, %s, %d" % (sT0, sC, sW, sT0, sT0, sT0, sT0, F_M))
        e("v_add_u32 v%d, %s, v%d" % (e.vP[1], sT0, vL128))
        e("s_lshl_b32 %s, %s, 12\ns_add_u32 %s, %s, %d" % (e.sF3, sP, e.sF3, e.sF3, F_U))
        e("s_lshr_b32 %s, %s, 1\ns_lshl_b32 %s, %s, 8\ns_add_u32 %s, %s, %s\ns_add_u32 %s, %s, %d" % (sT0, sW, sT0, sT0, sT0, sT0, e.sF3, sT0, sT0, 28 * 128))
        e("v_and_b32 v%d, 0x80, v%d\nv_add_u32 v%d, %s, v%d" % (e.vP[2], vL128, e.vP[3], sT0, e.vP[2]))
        e("s_lshr_b32 %s, %s, 1\ns_lshl1_add_u32 %s, %s, %s\ns_lshl_b32 %s, %s, 8\ns_add_u32 %s, %s, %d" % (sT0, sW, sT0, sP, sT0, sT0, sT0, sT0, sT0, F_SC))
        e("v_add_u32 v%d, %s, v%d" % (e.vP[2], sT0, e.vP[2]))
        e("v_cmp_gt_u32 vcc, 4, v0\nv_cndmask_b32 v%d, v%d, v%d, vcc" % (e.vP[1], e.vP[2], e.vP[1]))
        e("s_mul_i32 %s, %s, 7\ns_add_u32 %s, %s, 1\ns_and_b32 %s, %s, 0xfe" % (sT0, sW, sT0, sT0, sT0, sT0))
        e("v_and_b32 v%d, 7, v0\nv_add_u32 v%d, %s, v%d\nv_min_u32 v%d, 27, v%d\nv_lshlrev_b32 v%d, 7, v%d\nv_add_u32 v%d, %s, v%d"
          % (e.vP[2], e.vP[2], sT0, e.vP[2], e.vP[2], e.vP[2], e.vP[2], e.vP[2], e.vP[2], e.sF3, e.vP[2]))
        e("s_cmp_eq_u32 %s, 3\ns_cselect_b32 %s, 0x%x, 0\nv_add_u32 v%d, %s, v%d" % (sW, sT0, OOB, e.vZ, sT0, vL16))

    def p3_ld(self, k):
        return "buffer_load_dword v19, v%d, %s, 0 offen sc1" % (self.vP[k], sWS)

    def p3_poll(self, k):
        return self(self.p3_ld(k))

    def p3_check(self, k):
        self.check(self.p3_ld(k), "v_cmp_eq_u32 vcc, -1, v19", site=(60, 62, 63, 15)[k])

    def p3_jobs(self, queue, start=0, end=80, free=False):
        e = self
        e.ev.setdefault("f", 999)
        e.ev["n3"] = start
        jobs = [("W", n) for n in range(35)]
        jobs = [(k, x, n) for n, (k, x) in enumerate(jobs)]
        jobs += [("A", (b, kl), 35 + 4 * kl + b) for kl in range(2) for b in range(4)]
        for kl in range(5):
            jobs += [("B", 5 * kl + t, 55 + 5 * kl + t) for t in range(5)]
            if kl < 3:
                jobs += [("A", (b, kl + 2), 43 + 4 * kl + b) for b in range(4)]
        for n in range(start, end):
            kind, x, slot = jobs[n]
            setup = []
            if kind == "A":
                v, so, off = vL16B if x[1] >= 4 else vL16, e.sRU[x[0]], x[1] % 4
            elif kind == "B":
                v, so, off = vL16B if x % 8 >= 4 else vL16, e.sB3, x % 4
                if x and x % 8 == 0:
                    setup = ["s_add_u32 %s, %s, 8192" % (so, so)]
            else:
                v, so, off = e.vZ if x >= 30 else vL16, e.sW3, x % 4
                if x and x % 4 == 0:
                    setup = ["s_add_u32 %s, %s, 4096" % (so, so)]
            queue.append(Job(lambda n=n: free or e.ev["f"] >= e.POOLFREE[n],
                             ["buffer_load_dwordx4 %s, v%d, %s, %s offen offset:%d sc1" % (rr(e.POOL[slot], 4), v, sWS, so, off * 1024)], setup,
                             done=lambda n=n: e.ev.__setitem__("n3", n + 1)))

    def phase3(self, ids):
        e = self
        o = e.opt
        e.ev = {}
        ACC = 80
        vW = 20
        RA = [21, 23, 27]
        PQ, MF = e.POOL[35:55], e.POOL[55:]
        UR = [("a", 80 + 4 * k) for k in range(4)] + [("v", 176 + 4 * k) for k in range(4)] + [("v", 48 + 4 * k) for k in range(4)] + MF[:16]
        SA = [8, 9, 10, 11, 12, 13, 14, 15, 1, 3]
        e.p3_jobs(e.q1, e.n3)

        def top_up(n):
            while e.q1 and e.ev["n3"] < n:
                e.bg_vm(force=True)
        both = e.p3_ld(3) + "\n" + e.p3_ld(1).replace("v19,", "v16,")
        top_up(min(35, e.n3 + o.get("burst3", 4)))
        e(both)
        top_up(min(35, e.n3 + o.get("burst3", 4) + 4))
        e("v_lshrrev_b32 v26, 4, v0\nv_and_b32 v24, 15, v0\nv_lshl_add_u32 v25, v24, 4, %s" % sREG)
        for n_, r_ in enumerate(SA):
            e("v_lshl_add_u32 v4, v26, 1, %d\nv_mul_u32_u24 v4, 0x3334, v4\nv_bfe_u32 v5, v4, 16, 1\nv_lshrrev_b32 v4, 17, v4" % (8 * (n_ >> 1) + (n_ & 1)))
            e("v_lshl_add_u32 v5, v5, 8, v25\nv_lshl_add_u32 v%d, v4, 2, v5" % r_)
        e("v_lshrrev_b32 v4, 5, v0\nv_add3_u32 v4, v4, %s, 1\nv_and_b32 v5, 1, v4\nv_bfe_u32 v4, v4, 1, 1" % sW)
        e("v_lshlrev_b32 v25, 4, v24\nv_lshl_add_u32 v25, v5, 8, v25\nv_and_b32 v5, 1, v26\nv_lshl_add_u32 v25, v5, 9, v25")
        e("v_lshl_add_u32 v4, v4, 12, v25\nv_xor_b32 v5, 0x1000, v4")
        e("s_lshl3_add_u32 %s, %s, %s\ns_lshl_b32 %s, %s, 10\ns_add_u32 %s, %s, %d" % (sT3, sP, sW, sT3, sT3, sT3, sT3, SC))
        e("v_add_u32 v%d, %s, v%d" % (vW, sREG, vL16))
        for b in range(3):
            e("s_add_u32 %s, %s, %d\ns_and_b32 %s, %s, 3\ns_mul_i32 %s, %s, %d" % (sT0, sW, 3 - b, sT0, sT0, sT0, sT0, REGION))
            e("v_add_u32 v%d, %s, v%d" % (RA[b], sT0, vL16))
        vO, vO2 = 24, 25
        e("v_mul_u32_u24 v%d, 1280, v%d" % (vO, vO))
        e("v_lshl_add_u32 v%d, v26, 3, v%d\nv_lshl_add_u32 v%d, v26, 4, v%d" % (vO2, vO, vO, vO))
        e("s_lshl2_add_u32 %s, %s, %s\ns_mul_i32 %s, %s, %d\ns_mul_i32 %s, %s, 160\ns_add_u32 %s, %s, %s" % (sT2, sP, sW, sT2, sT2, 16 * 1280, sT1, sC, sT2, sT2, sT1))
        e.flag(ids["last"], sFL)
        top_up(35)
        e("v_add_u32 v%d, 0x1000, v%d" % (e.vZ, e.vZ))
        e.check(both, "v_max_u32 v19, v19, v16\nv_cmp_eq_u32 vcc, -1, v19", site=62)
        e.stamp(9)
        for k in range(2):
            e("s_add_u32 m0, %s, %d" % (sREG, 1024 * k))
            sc_id = e("buffer_load_dwordx4 v%d, %s, %s offen sc1 lds" % (4 + k, sWS, sT3))
        top_up(35 + o.get("burstm", 9))
        ul = [(b, kl) for b in range(4) for kl in range(7)]
        nu = 0

        def uload():
            nonlocal nu
            b, kl = ul[nu]
            v = e.vZ if kl == 6 else (vL16B if kl >= 4 else vL16)
            e("buffer_load_dwordx4 %s, v%d, %s, %s offen offset:%d sc1" % (rr(UR[nu], 4), v, sWS, e.sRU[b], (kl % 4) * 1024))
            nu += 1

        def sread(kl):
            for b in range(4):
                for sub in range(2):
                    e("ds_read_b32 v%d, v%d offset:%d" % (32 + 8 * (kl & 1) + 2 * b + sub, SA[2 * kl + sub], 512 * b))

        state = 0

        def pump(limit):
            nonlocal state
            if not e.pipe_ok():
                return
            if state == 0 and e.ev["n3"] >= 80 - o.get("poll3", 5):
                e.p3_poll(2)
                state = 1
            elif e.q1:
                e.bg_vm()
            elif state == 1:
                for b in range(4):
                    e("s_lshl_b32 %s, %s, 11\ns_add_u32 %s, %s, %s\ns_add_u32 %s, %s, %d" % (sT0, sW, e.sRU[b], e.sRU[b], sT0, e.sRU[b], e.sRU[b], 20 * 1024))
                e.p3_check(2)
                e.stamp(10)
                state = 2
            elif state == 2 and nu < min(28, limit):
                uload()

        e.wait(vm=sc_id)
        sread(0)
        sread(1)
        e.pipe = e.gate = e.cyc
        e.pace = o.get("pace3", 80)

        def scale(kl):
            for b in range(4):
                x = PQ[4 * kl + b][1]
                t = 64 + 4 * b
                sreg = R("v", 32 + 8 * (kl & 1) + 2 * b, 2)
                for k in range(4):
                    e("v_lshlrev_b32 v%d, 16, v%d\nv_and_b32 v%d, 0xffff0000, v%d" % (t + k, x + k, x + k, x + k))
                pump(12 + 5 * max(0, kl - 1))
                for y in (x, t):
                    e("v_pk_mul_f32 %s, %s, %s op_sel_hi:[1,0]" % (R("v", y, 2), R("v", y, 2), sreg))
                    e("v_pk_mul_f32 %s, %s, %s op_sel:[0,1] op_sel_hi:[1,1]" % (R("v", y + 2, 2), R("v", y + 2, 2), sreg))
                for k in range(4):
                    e("v_cvt_pk_bf16_f32 v%d, v%d, v%d" % (x + k, t + k, x + k))
                pump(12 + 5 * max(0, kl - 1))
            if kl < 3:
                sread(kl + 2)
        scale(0)
        for kl in range(5):
            top_up(min(80, 48 + 9 * kl + o.get("ahead3", 8)))
            if kl < 4:
                scale(kl + 1)
            for b in range(4):
                for t in range(5):
                    acc = R("v", ACC + 20 * b + 4 * t, 4)
                    e("v_mfma_f32_16x16x32_bf16 %s, %s, %s, %s" % (acc, rr(MF[5 * kl + t], 4), rr(PQ[4 * kl + b], 4), "0" if kl == 0 else acc))
                    pump(12 + 5 * kl)
        while state < 2:
            e.pipe = e.gate = e.cyc
            pump(0)
        assert state == 2
        while nu < o.get("burstu", 10):
            uload()
        wr = []
        n = 0
        for b in range(4):
            for kl in range(7):
                for t in range(5):
                    acc = R("v", ACC + 20 * b + 4 * t, 4)
                    e("v_mfma_f32_16x16x32_bf16 %s, %s, %s, %s" % (acc, rr(e.POOL[5 * kl + t], 4), rr(UR[7 * b + kl], 4), acc))
                    n += 1
                    if t == 0 and nu < 28:
                        uload()
                    elif wr and wr[0][0] <= n:
                        _, b_, t_ = wr.pop(0)
                        e("ds_write_b128 v%d, %s offset:%d" % (vW, R("v", ACC + 20 * b_ + 4 * t_, 4), b_ * 5120 + t_ * 1024))
            if b < 3:
                wr += [(n + 6 + 4 * t, b, t) for t in range(5)]
        assert not wr and nu == 28
        e.stamp(11)
        e.wait_all(vm=False)
        e("s_barrier")
        T = 192
        for t in range(5):
            for b in range(3):
                e("ds_read_b128 %s, v%d offset:%d" % (R("v", T + 12 * t + 4 * b, 4), RA[b], b * 5120 + t * 1024))
        OWN = ACC + 60
        P = 48
        for t in range(5):
            for b in range(3):
                for o_ in (0, 2):
                    e("v_pk_add_f32 %s, %s, %s" % (R("v", OWN + 4 * t + o_, 2), R("v", OWN + 4 * t + o_, 2), R("v", T + 12 * t + 4 * b + o_, 2)))
            for o_ in (0, 2):
                e("v_cvt_pk_bf16_f32 v%d, v%d, v%d" % (P + 2 * t + o_ // 2, OWN + 4 * t + o_, OWN + 4 * t + o_ + 1))
            sc = o.get("outsc", "")
            if t in (1, 3):
                e("buffer_store_dwordx4 %s, v%d, %s, %s offen offset:%d %s" % (R("v", P + 2 * t - 2, 4), vO, sOUT, sT2, 32 * (t - 1), sc))
            elif t == 4:
                e("buffer_store_dwordx2 %s, v%d, %s, %s offen offset:128 %s" % (R("v", P + 8, 2), vO2, sOUT, sT2, sc))

    def finish(self):
        e = self
        if e.opt.get("diag"):
            e.wait_all()
            e.stamp(12)
            e("s_lshl2_add_u32 %s, s2, %s\ns_lshl_b32 %s, %s, 8\ns_add_u32 %s, %s, %d" % (sT0, sW, sT0, sT0, sT0, sT0, DIAG))
            e("s_nop 4")
            e("buffer_store_dword v7, v%d, %s, %s offen" % (vL4, sWS, sT0))
            if e.opt.get("dbgout"):
                e("v_not_b32 v8, v7\nv_cmp_eq_u32 vcc, 13, v0\nv_cndmask_b32 v7, v7, v8, vcc")
                e("s_lshl_b32 %s, %s, 12\ns_mov_b64 exec, 0x3fff" % (sT0, sW))
                e("buffer_atomic_umax v7, v%d, %s, %s offen offset:4 sc1" % (vL4, sDBG, sT0))

    def build(self):
        e = self
        stop = e.opt.get("stop", 9)
        e.prologue()
        e("s_cmp_eq_u32 %s, 7\ns_cbranch_scc1 L_role_h" % sJL)
        snap_h = e.snapshot()
        e.main_start()
        e("s_cmp_eq_u32 %s, 13\ns_cbranch_scc1 L_role_l" % sJ)
        e("s_cmp_ge_u32 %s, 4\ns_cbranch_scc1 L_role_b" % sJL)
        snap = e.snapshot()
        main, e.L = e.L, []
        parts = {}
        states = []
        for name, fn in (("a", e.role_a), ("b", e.role_b), ("l", e.role_l)):
            e.restore(snap)
            e.ev, e.q1, e.q2, e.qd, e.prog, e.eta = {}, [], [], [], [], {}
            e.lpend = None
            e.pipe = e.gate = e.cyc
            states.append(e.p1_finish(fn()))
            parts[name], e.L = e.L, []
        e.restore(snap_h)
        e.ev, e.q1, e.q2, e.qd, e.prog, e.eta = {}, [], [], [], [], {}
        sth = e.role_h()
        if sth is None:
            e.finish()
            e("s_endpgm")
        parts["h"], e.L = e.L, []
        ids = e.merge(states)
        e.q1, e.q2, e.qd, e.prog, e.eta = [], [], [], [], {}
        e.raw("L_p2:")
        if stop <= 1:
            e.flag(e("\n".join(e.deferred_stores())), sFL)
        else:
            st2 = e.phase2(ids)
            if st2 is not None:
                ids = e.merge([st2, sth])
                e.eta = {}
                e.raw("L_p3:")
                e.phase3(ids)
        e.finish()
        rest, e.L = e.L, []
        e.L = main + parts["a"] + rest + ["L_end:", "    s_endpgm"]
        e.L += ["L_role_b:"] + parts["b"] + ["    s_branch L_p2"]
        e.L += ["L_role_l:"] + parts["l"] + ["    s_branch L_p2"]
        e.L += ["L_role_h:"] + parts["h"]
        if sth is not None:
            e.L += ["    s_branch L_p3"]
        return e.text() + "L_code_end:\n    s_endpgm\n"


def generate(opt):
    head = open("cdna_kernels/%s.s.ref" % NAME).read().split("; Override launch")[0] if opt.get("head", 1) else ""
    k = K(opt)
    body = k.build()
    if opt.get("verbose"):
        print("fragments forced at the end of phase 2:", getattr(k, "left3", None), file=sys.stderr)
    return (head + "; @launch grid=(256,1,1) block=(256,1,1) lds=163840\n"
            '.amdgcn_target "amdgcn-amd-amdhsa--gfx950"\n.text\n.globl %s_kernel\n.p2align 8\n.type %s_kernel,@function\n%s_kernel:\n' % (NAME, NAME, NAME)
            + body +
            '.section .rodata,"a"\n.p2align 6\n.amdhsa_kernel %s_kernel\n'
            "  .amdhsa_next_free_vgpr 512\n  .amdhsa_next_free_sgpr 102\n  .amdhsa_accum_offset 256\n"
            "  .amdhsa_group_segment_fixed_size 0\n  .amdhsa_kernarg_size 96\n  .amdhsa_user_sgpr_count 2\n"
            "  .amdhsa_user_sgpr_kernarg_segment_ptr 1\n  .amdhsa_system_sgpr_workgroup_id_x 1\n.end_amdhsa_kernel\n" % NAME)


if __name__ == "__main__":
    out = sys.argv[1]
    opt = {}
    for a in sys.argv[2:]:
        k, v = a.split("=")
        opt[k] = int(v) if v.lstrip("-").isdigit() else v
    open(out, "w").write(generate(opt))
```

```python
import math
import struct
import sys

from em import Em, R, rr

NAME = "gated_mix__linear_attn_block__mixer_gmlp__prompt"

STATS = 0
F_Z2N = 0x38000
F_Z1 = 0x54000
F_KV = 0x64000
F_U = 0x74000
F_M = 0x94000
F_WO = 0x98000
F_PX = 0x9C000
F_SC = 0xB8000
GATE = 0xC0000
ZP = 0xC4000
SC = 0x100000
KVP = 0x1900000
Z2N = 0x200000
Z1 = 0x600000
AP = 0xA00000
BP = 0x1000000
PX = 0x1200000
DIAG = 0x1C00000
WS_SIZE = 0x1D00000
OOB = 0x80000000

sX, sWQ, sWO, sWIN, sWSP, sBSP, sWOUT, sGW, sOUT, sDBG, sWS, sCODE = [R("s", 8 + 4 * k, 4) for k in range(12)]
sW, sI, sJL, sHALF, sJ, sREG, sW2K = ["s%d" % k for k in range(56, 63)]
sXO, sXB, sXE = "s63", "s64", "s65"
sAO, sAB, sAE = "s66", "s67", "s70"
sKC = "s[68:69]"
sBO, sBB, sBE = "s71", "s72", "s73"
sSPIN = "s74"
sT0, sT1, sT2, sT3 = "s75", "s76", "s77", "s3"
sROW = ["s78", "s79", "s80", "s81"]
sCH = ["s%d" % k for k in range(82, 90)]
sBCH = ["s%d" % k for k in range(90, 98)]
sG, sROT = "s98", "s99"
sI2, sJ2 = "s16", "s17"
sMASK = "s[100:101]"
sDEF = ["s32", "s33"]
sP, sC = "s4", "s5"
sSO = "s6"
sFL = "s7"

vLANE = "v0"
vXD = [8, 9, 10, 11]
vXR = [12, 13, 14, 15]
vWDI = [16, 17]
vWW = [18, 19]
vWS = [[20, 21], [22, 23]]
vWB = [24, 25, 26, 27, 28]
vL16, vL16B, vL4 = 29, 30, 31
vL128 = 2
vAD = [32, 33, 34, 35]
vT = list(range(36, 48))
Z2ACC = 48
ACCB = 80
WRING = 160
NR = 8
ASLOT = [("a", 160 + 16 * k) for k in range(6)] + [("v", 192 + 16 * k) for k in range(4)] + [("a", 16 * k) for k in range(6)]
REGION = 40960
WOFF = 16384

NB0 = 3
SPIN_MAX = 1 << 17


def f32(x):
    return "0x%08x" % struct.unpack("<I", struct.pack("<f", x))[0]


LOG2E = 1.4426950408889634
GK1 = -2.0 * math.sqrt(2.0 / math.pi) * LOG2E
GK2 = GK1 * 0.044715


class Job:
    def __init__(self, pre, loads, setup=(), post=(), sink=None, done=None, weight=1.0):
        self.weight = weight
        self.need = None
        self.pre, self.loads, self.setup, self.post, self.sink, self.done = pre, list(loads), list(setup), list(post), sink, done


def cost(text):
    c = 0
    for ln in text.split("\n"):
        op = ln.split()[0]
        if op == "ds_write_b128":
            c += 16
        elif op.startswith(("buffer_", "v_exp", "v_rcp", "v_rsq", "v_permlane", "ds_write_b64")):
            c += 8
        else:
            c += 4
    return c


def is_mem(item):
    return isinstance(item, str) and item.startswith(("ds_", "buffer_"))


class _Redirect:
    def __init__(self, k, emit):
        self._k, self._emit = k, emit or k

    def __call__(self, text):
        return self._emit(text)

    def __getattr__(self, name):
        return getattr(self._k, name)


class K(Em):
    def __init__(self, opt):
        super().__init__()
        self.opt = opt
        self.q1 = []
        self.q2 = []
        self.qd = []
        self.prog = []
        self.hi = []
        self.hold = 0
        self.armed = None
        self.post = []
        self.pipe = 0
        self.weight = 1.0
        self.gate = 0
        self.st_scale = 1.0
        self.eta = {}
        self.behind = opt.get("behind", 10)
        self.boost = 0
        self.slack = opt.get("slack", 8)
        self.pace = opt.get("pace", 66)
        self.ev = {}
        self.lpend = None
        self.wring = WRING
        self.nqd = opt.get("nqd", 11)
        self.n3 = opt.get("n3", 24)
        self.lat = opt.get("lat1", 1000)

    def I(self, text):
        r = super().I(text)
        if text.startswith("buffer_"):
            wide = "dwordx4" in text.split()[0]
            if text.startswith("buffer_load"):
                c = self.pace * self.weight if wide else 24
            else:
                c = self.opt.get("stcost", 150) * self.st_scale if wide else 40
            self.pipe = max(self.pipe, self.cyc - 10 - self.opt.get("credit", 48)) + c
            self.gate = self.cyc - 10 + (24 if not wide else 60 if text.startswith("buffer_load") else self.opt.get("stgate", 90))
            lat = self.opt.get("lat_ld", 650) if text.startswith("buffer_load") else self.opt.get("lat_st", 800)
            self.eta[r] = max(self.eta.get(r - 1, 0), max(self.pipe, self.cyc) + lat)
        return r

    def wait(self, vm=None, lg=None):
        before = self.vm_done
        super().wait(vm, lg)
        if self.vm_done > before:
            self.cyc = max(self.cyc, self.eta.get(self.vm_done, 0) - 150)

    def landed(self, i):
        return i <= self.vm_done or self.cyc >= self.eta.get(i, 10 ** 9)

    def pipe_ok(self, ahead=0):
        return self.cyc + ahead + self.slack >= max(self.pipe, self.gate)

    def flush_post(self):
        c = 0
        while self.post:
            t = self.post.pop(0)
            self(t)
            c += cost(t)
        return c

    def next_job(self):
        for q in (self.q1, self.q2):
            if q and q[0].pre():
                return q
        return None

    def arm(self, q):
        j = q.pop(0)
        self.flush_post()
        for t in j.setup:
            t() if callable(t) else self(t)
        self.armed = j

    def fire(self):
        j = self.armed
        self.weight = j.weight
        i = self(j.loads.pop(0))
        self.weight = 1.0
        if j.sink is not None:
            j.sink.append(i)
        if not j.loads:
            self.post += j.post
            self.armed = None
            if j.done:
                j.done()

    def bg_vm(self, force=False, maxn=1):
        done = 0
        while done < maxn and (force or self.pipe_ok()):
            if not self.armed:
                q = self.next_job()
                if q is None:
                    break
                self.arm(q)
            self.fire()
            done += 1
        return done

    def settle(self):
        while self.armed:
            self.fire()
        self.flush_post()

    def bg_ds(self):
        if self.qd and self.qd[0][0]():
            self.qd.pop(0)[1]()
            return True
        return False

    def tick(self):
        if not self.bg_vm():
            self.bg_ds() and self.bg_ds()

    def V(self, text):
        for ln in text.split("\n"):
            if ln.strip():
                self(ln)
                self.tick()

    def drain(self, cond):
        guard = 0
        while not cond():
            if self.bg_ds() or self.bg_vm(force=True):
                guard = 0
                continue
            self.cyc += 200
            guard += 1
            assert guard < 100, "background queues stuck"

    def prog_step(self, left, head, force=False, only_hi=False):
        for q in (self.hi,) if only_hi else (self.hi, self.prog):
            while q:
                it = q[0]
                if isinstance(it, tuple) and it[0] == "delay":
                    if head:
                        break
                    q.pop(0)
                    self.hold = 0 if force else it[1]
                    continue
                if q is self.prog and self.hold and not force:
                    break
                if isinstance(it, tuple) and it[0] == "until":
                    if not force and not self.landed(it[1]()):
                        break
                    q.pop(0)
                    continue
                c = it[2] if isinstance(it, tuple) else cost(it)
                if c and not force:
                    if is_mem(it) != head or (c > left and not (c > 12 and left >= 12)):
                        break
                    if head and it.startswith("buffer_") and not (self.cyc + self.slack >= self.gate if q is self.hi else self.pipe_ok()):
                        break
                q.pop(0)
                if isinstance(it, tuple):
                    it[1]()
                else:
                    self.last_id = self(it)
                left -= c
        return left

    def prog_flush(self):
        self.prog_step(0, False, force=True)
        self.hold = 0
        self.settle()

    def mark(self, name):
        return ("call", lambda: self.ev.__setitem__(name, self.last_id), 0)

    def fill_gap(self, left, paced):
        e = self
        if e.hold:
            e.hold -= 1
        if not paced:
            if e.armed:
                e.fire()
            if not e.armed and e.next_job() is not None:
                e.arm(e.next_job())
            return 0
        head = e.armed or (e.q1[0] if e.q1 and e.q1[0].pre() else None)
        left = e.prog_step(left, True, only_hi=True)
        if head is not None and head.need and head.need[0] == e.tag and head.need[1] - e.ev["f"] <= e.opt.get("minlead", 36):
            if e.armed and e.cyc + 40 >= e.gate:
                e.fire()
                left -= 8
            if not e.armed and e.q1 and e.q1[0].pre():
                left -= 4 * len(e.q1[0].setup)
                e.arm(e.q1)
        left += e.boost
        left = e.prog_step(left, True)
        while e.armed and left >= 8 and (not paced or e.pipe_ok()):
            e.fire()
            left -= 8
        if left == 24 and e.qd:
            left = 20
        n = 0
        while left >= 4 and n < 2 and e.bg_ds():
            left -= 4
            n += 1
        if e.post and left >= cost(e.post[0]):
            left -= e.flush_post()
        if not e.armed and not e.post and (not paced or e.pipe_ok(40)):
            q = e.next_job()
            if q is not None and left >= min(8, 4 * len(q[0].setup)):
                left -= 4 * len(q[0].setup)
                e.arm(q)
        return e.prog_step(left, False)

    def mfma_loop(self, tag, nstage, per, read, mfma, opened, paced, hooks, stamp0):
        e = self
        F = nstage * per
        e.tag = tag
        for j in e.q1 + ([e.armed] if e.armed else []):
            for s_ in range(nstage):
                if j.sink is e.ev.get(("dma", tag, s_)):
                    j.need = (tag, s_ * per - 6)
        rd_id = {}
        st = dict(next=0, opened=-1, last=-9)

        def open_stage(s):
            e.drain(lambda: len(e.ev[("dma", tag, s)]) == e.ev[("ndma", tag, s)])
            e.wait(vm=max(e.ev[("dma", tag, s)]), lg=e.lg_n - 1)
            e("s_barrier")
            e.lstamp(stamp0 + s)
            st["opened"] = s
            e.ev[("free", tag, s - 1)] = True
            opened(s)

        def one():
            n0 = e.lg_n
            rd_id[st["next"]] = read(st["next"], e.wring + 4 * (st["next"] % NR))
            st["next"] += 1
            return 4 * (e.lg_n - n0)

        open_stage(0)
        for _ in range(6):
            one()
        for f in range(F):
            while hooks and min(hooks) <= f:
                hooks.pop(min(hooks))()
            if f % 2 == 0:
                e.wait(lg=rd_id[f + 1])
            mfma(f, R("v", e.wring + 4 * (f % NR), 4))
            e.ev["f"] = f
            left = 24 - (4 if f % 2 else 0)
            sync = False
            for _ in range(2):
                nx = st["next"]
                if nx < F and nx <= f + 7:
                    if nx // per <= st["opened"]:
                        left -= one() + (4 if st["last"] != f else 0)
                        st["last"] = f
                    elif f - st["last"] >= 2:
                        sync = True
            if sync:
                qd, e.qd = e.qd, []
                e.fill_gap(16, paced)
                e.qd = qd
                open_stage(st["next"] // per)
            else:
                e.fill_gap(left, paced)
        assert not hooks

    def stamp(self, k):
        sel = self.opt.get("stamps")
        if self.opt.get("diag") and (sel is None or k == 12 or str(k) in str(sel).split(".")):
            self.lstamp(None)
            self.wait_all(vm=False)
            self.raw("    %s s[0:1]\n" % ("s_memtime" if self.opt["diag"] == 2 else "s_memrealtime") + "    s_waitcnt lgkmcnt(0)\n    v_writelane_b32 v7, s0, %d" % k)
            self.pos += 3

    def lstamp(self, k):
        if self.opt.get("diag") and self.opt.get("fine"):
            if self.lpend is not None:
                self.raw("    s_waitcnt lgkmcnt(0)\n    v_writelane_b32 v7, s0, %d" % self.lpend)
                self.lg_done = self.lg_n - 1
                self.pend = {r: p for r, p in self.pend.items() if p[0] == "vm"}
            self.lpend = k
            if k is not None:
                self.raw("    %s s[0:1]" % ("s_memtime" if self.opt["diag"] == 2 else "s_memrealtime"))

    def check(self, loads, test, pretest=None, site=None):
        slow, back = self.label("Lslow"), self.label("Lback")
        self(test)
        self("s_cbranch_vccnz " + slow)
        self.raw(back + ":")
        c = self.cold
        c.append(slow + ":")
        c.append("    s_add_u32 %s, %s, 1\n    s_cmp_ge_u32 %s, %d\n    s_cbranch_scc1 L_end" % (sSPIN, sSPIN, sSPIN, SPIN_MAX))
        if self.opt.get("diag") and site is not None:
            c.append("    v_readlane_b32 vcc_lo, v7, %d\n    s_nop 3\n    s_add_u32 vcc_lo, vcc_lo, 1\n    v_writelane_b32 v7, vcc_lo, %d" % (site, site))
        if self.opt.get("backoff", 2):
            c.append("    s_sleep %d" % self.opt.get("backoff", 2))
        c.append("\n".join("    " + l for l in loads.split("\n")))
        c.append("    s_waitcnt vmcnt(0)")
        if pretest:
            c.append("\n".join("    " + l for l in pretest.split("\n")))
        c.append("\n".join("    " + l for l in test.split("\n")))
        c.append("    s_nop 4\n    s_cbranch_vccnz %s\n    s_branch %s" % (slow, back))

    def flag(self, after_id, soff):
        self.wait(vm=after_id)
        self("s_mov_b64 exec, 1")
        i = self("buffer_store_dword v%d, off, %s, %s sc1" % (vL4, sWS, soff))
        self("s_mov_b64 exec, -1")
        return i

    def touch(self, label, off=0):
        if self.opt.get("touch", 0):
            self("s_add_u32 vcc_lo, %s, %s-L_pc+%d\ns_mov_b64 exec, 0xffff" % (sW2K, label, off))
            self("buffer_load_dword v6, v%d, %s, vcc_lo offen" % (vL128, sCODE))
            self.pend.pop(("v", 6))
            self("s_mov_b64 exec, -1")

    def prologue(self):
        e = self
        o = self.opt
        e("s_cmp_ge_u32 s2, 256")
        e("s_cbranch_scc1 L_end")
        order = [(8, 0), (20, 32), (48, 88), (12, 8), (44, 80), (24, 40), (16, 16), (28, 48), (32, 56), (36, 64), (40, 72)]
        for sreg, off in order:
            e.raw("    s_load_dwordx2 s[%d:%d], s[0:1], %d" % (sreg, sreg + 1, off))
        if o.get("diag"):
            e.raw("    %s s[100:101]" % ("s_memtime" if o["diag"] == 2 else "s_memrealtime"))
        e.raw("    s_getpc_b64 s[52:53]")
        e.raw("L_pc:")
        self.sizes = sizes = {8: 2621440, 12: 2457600, 16: 819200, 20: 2211840, 24: 8388608, 28: 4096, 32: 1105920, 36: 1280,
                              40: 2621440, 44: 256, 48: WS_SIZE}
        sLOC = sT1
        e("v_lshrrev_b32 v1, 6, v0\nv_and_b32 v0, 63, v0")
        e("s_lshr_b32 %s, s2, 3" % sLOC)
        e("v_readfirstlane_b32 %s, v1" % sW)
        e("s_mov_b32 s54, L_code_end-L_pc\ns_mov_b32 s55, 0x20000")
        e("s_and_b32 %s, %s, 3\ns_lshl2_add_u32 %s, %s, %s\ns_lshl_b32 %s, %s, 13" % (sT2, sLOC, sT2, sT2, sW, sT2, sT2))
        e("v_lshlrev_b32 v2, 7, v0")
        if o.get("codepf", 1):
            e("buffer_load_dword v6, v2, %s, %s offen" % (sCODE, sT2))
            self.pend.clear()
        if o.get("map84", 1):
            e("s_and_b32 %s, s2, 1\ns_bfe_u32 %s, s2, 0x10001\ns_lshr_b32 %s, %s, 3" % (sT0, sHALF, sT2, sLOC))
            e("s_lshl1_add_u32 %s, %s, %s\ns_add_u32 %s, %s, 4\ns_cmp_eq_u32 %s, 2\ns_cselect_b32 %s, %s, %s" % (sJL, sT0, sT2, sT3, sT0, sT2, sJL, sT3, sJL))
            e("s_and_b32 %s, %s, 3\ns_lshl2_add_u32 %s, %s, %s\ns_and_b32 %s, %s, 7\ns_lshr_b32 %s, %s, 2" % (sT3, sLOC, sT0, sT0, sT3, sI, sLOC, sT3, sLOC))
            e("s_cmp_eq_u32 %s, 3\ns_cselect_b32 %s, %s, %s\ns_cselect_b32 %s, %s, %s" % (sT2, sJL, sT3, sJL, sI, sT0, sI))
            if o.get("rot", 2) == 2:
                e("s_and_b32 %s, s2, 3" % sT2)
            if o.get("rot", 2):
                e("s_mul_i32 %s, %s, 5\ns_lshr_b32 %s, %s, 2\ns_mul_i32 %s, %s, 5\ns_lshr_b32 %s, %s, 1\ns_add_u32 %s, %s, %s"
                  % (sROT, sI, sROT, sROT, sT2, sT2, sT2, sT2, sROT, sROT, sT2))
            e("s_bfe_u32 %s, s2, 0x10002\ns_lshl3_add_u32 %s, %s, %s" % (sT0, sI, sT0, sI))
        else:
            e("s_and_b32 %s, s2, 1\ns_bfe_u32 %s, s2, 0x20001" % (sHALF, sT0))
            e("s_and_b32 %s, %s, 3\ns_lshl2_add_u32 %s, %s, %s\ns_lshr_b32 %s, %s, 2" % (sT2, sLOC, sI, sT0, sT2, sJL, sLOC))
            if o.get("rot", 2):
                e("s_mul_i32 %s, %s, 5\ns_lshr_b32 %s, %s, 1" % (sT2, sT2, sT2, sT2))
                e("s_mul_i32 %s, %s, 5\ns_lshr_b32 %s, %s, 2\ns_add_u32 %s, %s, %s" % (sROT, sJL, sROT, sROT, sROT, sROT, sT2))
        if o.get("rot", 2):
            e("s_cmp_ge_u32 %s, 10\ns_cselect_b32 %s, 10, 0\ns_sub_u32 %s, %s, %s" % (sROT, sT2, sROT, sROT, sT2))
        else:
            e("s_mov_b32 %s, 0" % sROT)
        e("s_mul_i32 %s, %s, 7\ns_add_u32 %s, %s, %s" % (sJ, sHALF, sJ, sJ, sJL))
        e("s_mul_i32 %s, %s, %d\ns_lshl_b32 %s, %s, 11" % (sREG, sW, REGION, sW2K, sW))
        e("s_lshl2_add_u32 %s, %s, %s\ns_mul_i32 %s, %s, %d" % (sXB, sI, sW, sXB, sXB, 32 * 1280))
        e("s_add_u32 %s, %s, 1280\ns_lshl_b32 %s, %s, 7\ns_add_u32 %s, %s, %s" % (sXE, sXB, sXO, sROT, sXO, sXO, sXB))
        for sreg in (8, 20, 48):
            e("s_mov_b32 s%d, %d\ns_mov_b32 s%d, 0x20000" % (sreg + 2, sizes[sreg], sreg + 3))
        e("v_lshrrev_b32 v1, 3, v0\nv_and_b32 v2, 7, v0\nv_lshrrev_b32 v3, 4, v0")
        e("v_xor_b32 v4, v2, v3\nv_lshlrev_b32 v4, 4, v4\nv_xor_b32 v5, 64, v4")
        e("v_mul_u32_u24 v%d, 1280, v1" % vT[0])
        for r in range(4):
            e("v_add_u32 v%d, v%d, v%d" % (vXD[r], vT[0], 4 + (r & 1)))
            if r:
                e("v_add_u32 v%d, %d, v%d" % (vXD[r], r * (8 * 1280 - 1024), vXD[r]))
        e("v_lshlrev_b32 v%d, 4, v0" % vL16)
        e.raw("    s_waitcnt lgkmcnt(0)")
        e.pos += 1
        if o.get("wsoff"):
            e("s_add_u32 s48, s48, 0x%x\ns_addc_u32 s49, s49, 0" % (o["wsoff"] << 20))
        e("s_cmp_eq_u32 %s, 7\ns_cbranch_scc0 L_noclear" % sJL)
        for k in range(4):
            e("v_mov_b32 v%d, -1" % (240 + k))
        e("s_lshl1_add_u32 %s, %s, %s\ns_lshl2_add_u32 %s, %s, %s\ns_mul_i32 %s, %s, 6144" % (sT0, sI, sHALF, sT0, sT0, sW, sT0, sT0))
        for k in range(6):
            if k == 4:
                e("s_add_u32 %s, %s, 4096" % (sT0, sT0))
            self.clear_id = e("buffer_store_dwordx4 v[240:243], v%d, %s, %s offen offset:%d sc1" % (vL16, sWS, sT0, (k % 4) * 1024))
        e.raw("L_noclear:")
        e.q1 = [e.job_x("A", 0)]
        e.bg_vm(force=True, maxn=4)
        e.settle()
        self.x0 = list(e.ev[("dma", "A", 0)])
        e("v_and_b32 v%d, 1, v3\nv_lshlrev_b32 v%d, 2, v%d\nv_xor_b32 v%d, v2, v%d\nv_lshlrev_b32 v%d, 4, v%d"
          % (vT[1], vT[1], vT[1], vT[1], vT[1], vT[1], vT[1]))
        e("s_lshl_b32 %s, %s, 4\nv_add_u32 v%d, %s, v1" % (sT0, sW, vT[2], sT0))

    def w_offsets(self, regs_, stride):
        self("v_mul_u32_u24 v%d, %d, v%d\nv_add_u32 v%d, v%d, v%d" % (regs_[0], stride, vT[2], regs_[0], regs_[0], vT[1]))
        self("v_add_u32 v%d, %d, v%d" % (regs_[1], 8 * stride - 1024, regs_[0]))

    def late_setup(self, natural=False):
        e = self
        for sreg in (12, 44, 24, 16, 28, 32, 36, 40):
            e("s_mov_b32 s%d, %d\ns_mov_b32 s%d, 0x20000" % (sreg + 2, self.sizes[sreg], sreg + 3))
        e("s_mov_b32 s68, %s\ns_mov_b32 s69, %s\ns_mov_b32 %s, 0" % (f32(GK1), f32(GK2), sSPIN))
        e("v_add_u32 v%d, 0x1000, v%d\nv_lshlrev_b32 v%d, 2, v0" % (vL16B, vL16, vL4))
        e("s_bfe_u32 %s, s2, 0x20001\ns_and_b32 %s, s2, 1" % (sT0, sT2))
        if not natural:
            e("s_bfe_u32 %s, s2, 0x20003\ns_lshl2_add_u32 %s, %s, %s" % (sT1, sI2, sT0, sT1))
            e("s_lshr_b32 %s, s2, 5\ns_lshl1_add_u32 %s, %s, %s" % (sT1, sJ2, sT1, sT2))
        e("s_bfe_u32 %s, s2, 0x30003\ns_lshl3_add_u32 %s, %s, %s" % (sP, sP, sT0, sP))
        e("s_lshr_b32 %s, s2, 6\ns_lshl2_add_u32 %s, %s, %s" % (sC, sC, sT2, sC))
        if self.opt.get("diag"):
            e("v_mov_b32 v7, 0")
            e.raw("    s_nop 1\n    v_writelane_b32 v7, s100, 13")
        e("v_lshlrev_b32 v%d, 12, v1" % vT[0])
        for r in range(4):
            e("v_add_u32 v%d, v%d, v%d" % (vAD[r], vT[0], 4 + (r & 1)))
            if r:
                e("v_add_u32 v%d, %d, v%d" % (vAD[r], r * (8 * 4096 - 1024), vAD[r]))
        e("v_and_b32 v1, 31, v0\nv_lshrrev_b32 v2, 5, v0\nv_bfe_u32 v4, v0, 1, 3\nv_xor_b32 v4, v4, v2")
        e("v_lshlrev_b32 v4, 4, v4\nv_lshl_add_u32 v4, v1, 7, v4")
        for ks in range(4):
            e("v_xor_b32 v%d, %d, v4\nv_add_u32 v%d, %s, v%d" % (vXR[ks], ks * 32, vXR[ks], sREG, vXR[ks]))
        e("v_bfe_u32 v5, v0, 2, 2\nv_lshl_add_u32 v5, v2, 3, v5\nv_lshlrev_b32 v5, 7, v5\nv_add_u32 v5, %d, v5" % WOFF)
        e("v_bfe_u32 v4, v0, 3, 1\nv_lshlrev_b32 v4, 6, v4")
        if natural:
            e("v_and_b32 v1, 1, v0\nv_bfe_u32 v3, v0, 1, 1\nv_lshl_or_b32 v1, v1, 1, v3\nv_lshlrev_b32 v1, 3, v1\nv_bfe_u32 v3, v0, 4, 1")
        else:
            e("v_and_b32 v1, 3, v0\nv_lshlrev_b32 v1, 3, v1\nv_bfe_u32 v3, v0, 4, 1")
        e("v_lshl_add_u32 v%d, v3, 5, v1\nv_xor_b32 v%d, v%d, v4" % (vT[0], vT[0], vT[0]))
        e("v_add_u32 v%d, v%d, v5\nv_xor_b32 v%d, 64, v%d" % (vWS[0][0], vT[0], vWS[0][1], vWS[0][0]))
        e("v_add_u32 v%d, %d, v%d\nv_add_u32 v%d, %d, v%d" % (vWS[1][0], 2 * REGION, vWS[0][0], vWS[1][1], 2 * REGION, vWS[0][1]))
        e("v_lshlrev_b32 v%d, 7, v0" % vL128)

    def stream_init(self, o, b, en, base_text, stride):
        self(base_text)
        self("s_add_u32 %s, %s, %d\ns_mul_i32 %s, %s, %d\ns_add_u32 %s, %s, %s" % (en, b, 640 * stride, o, sROT, 64 * stride, o, o, b))

    @staticmethod
    def advance(o, b, en, step):
        return "s_add_u32 %s, %s, %d\ns_cmp_eq_u32 %s, %s\ns_cselect_b32 %s, %s, %s" % (o, o, step, o, en, o, b, o)

    def job_x(self, tag, s):
        pre = (lambda: True) if s < 4 else (lambda: self.ev.get(("free", tag, s - 4)))
        return Job(pre, ["buffer_load_dwordx4 v%d, %s, %s offen offset:%d lds" % (vXD[r], sX, sXO, r * 1024) for r in range(4)],
                   ["s_add_u32 m0, %s, %d" % (sREG, (s % 4) * 4096)], [self.advance(sXO, sXB, sXE, 128)] if s < 9 else [],
                   self.ev.setdefault(("dma", tag, s), []))

    def w_jobs(self, tag, wide, offf, srd, stream, stride, occ, withx, weight=1.0):
        for s in range(10):
            if withx and s < 1:
                self.ev[("dma", tag, s)] = list(self.x0)
            elif withx:
                self.q1.append(self.job_x(tag, s))
            off = offf(s)
            prev = occ.get(off)
            occ[off] = (tag, s)
            pre = (lambda: True) if prev is None else (lambda prev=prev: self.ev.get(("free",) + prev))
            sink = self.ev.setdefault(("dma", tag, s), [])
            post = [self.advance(stream[0], stream[1], stream[2], 64 * stride)] if s < 9 else []
            ld = "buffer_load_dwordx4 v%%d, %s, %s offen offset:%%d lds" % (srd, stream[0])
            m0 = "s_add_u32 m0, %s, %%d" % sREG
            if wide:
                self.q1.append(Job(pre, [ld % (vWB[k], k * 1024) for k in range(4)], [m0 % (WOFF + off)], [], sink, weight=weight))
                self.q1.append(Job(pre, [ld % (vWB[4], 0)], [m0 % (WOFF + off + 4096)], post, sink, weight=weight))
            else:
                self.q1.append(Job(pre, [ld % (vWDI[t], t * 1024) for t in range(2)], [m0 % (WOFF + off)], post, sink, weight=weight))
            self.ev[("ndma", tag, s)] = (5 if wide else 2) + (4 if withx else 0)

    def p1_pass(self, tag, blocks, withx, paced, hooks=None, prev_tag=None):
        e = self
        nb = len(blocks)

        def split(f):
            s, rem = divmod(f, 4 * nb)
            return (s,) + divmod(rem, nb)

        def opened(s):
            if s == 0 and prev_tag:
                e.ev[("free", prev_tag, 9)] = True
            if withx:
                for ks in range(4):
                    e("ds_read_b128 %s, v%d offset:%d" % (R("a", (s * 4 + ks) * 4, 4), vXR[ks], (s % 4) * 4096))

        def read(f, dst):
            s, ks, b = split(f)
            return blocks[b][0](s, ks, dst)

        def mfma(f, wf):
            s, ks, b = split(f)
            acc = R("v", blocks[b][1], 16)
            xf = R("a", (s * 4 + ks) * 4, 4)
            ops = (wf, xf) if blocks[b][2] == 2 else (xf, wf)
            e("v_mfma_f32_32x32x16_bf16 %s, %s, %s, %s" % (acc, ops[0], ops[1], "0" if f < nb else acc))
        e.mfma_loop(tag, 10, 4 * nb, read, mfma, opened, paced, dict(hooks or {}), 16 if tag == "A" else 26)

    def rd_narrow(self, offf, hf):
        def read(s, ks, dst):
            for t in range(2):
                i = self("ds_read_b64_tr_b16 %s, v%d offset:%d" % (R("v", dst + 2 * t, 2), vWS[ks >> 1][hf], (ks & 1) * REGION + offf(s) + t * 512))
            return i
        return read

    def rd_wide(self, offf, b):
        def read(s, ks, dst):
            for t in range(2):
                i = self("ds_read_b64_tr_b16 %s, v%d offset:%d" % (R("v", dst + 2 * t, 2), vWW[ks >> 1], (ks & 1) * REGION + offf(s) + t * 1280 + b * 64))
            return i
        return read

    def seg320(self, stride, wmul, gap=0, regs_=vWB):
        e = self
        e("s_mul_i32 %s, %s, %d" % (sT2, sW, wmul))
        for k, r_ in enumerate(regs_):
            e("v_add_u32 v%d, %d, v0\nv_mul_u32_u24 v%d, 0xccd, v%d\nv_lshrrev_b32 v%d, 16, v%d" % (vT[0], 64 * k, vT[1], vT[0], vT[1], vT[1]))
            e("v_mul_u32_u24 v%d, %d, v%d\nv_lshl_add_u32 v%d, v%d, 4, v%d" % (r_, stride - 320 - 2 * gap, vT[1], r_, vT[0], r_))
            if gap:
                e("v_mul_u32_u24 v%d, 0x199a, v%d\nv_lshrrev_b32 v%d, 16, v%d\nv_mul_u32_u24 v%d, %d, v%d\nv_add_u32 v%d, v%d, v%d"
                  % (vT[1], vT[0], vT[1], vT[1], vT[1], gap, vT[1], r_, r_, vT[1]))
            e("v_add_u32 v%d, %s, v%d" % (r_, sT2, r_))
            if 0 < k < 4:
                e("v_subrev_u32 v%d, %d, v%d" % (r_, 1024 * k, r_))

    def wide_read_addr(self):
        e = self
        e("v_lshrrev_b32 v%d, 5, v0\nv_bfe_u32 v%d, v0, 2, 2\nv_lshl_add_u32 v%d, v%d, 3, v%d" % (vT[0], vT[1], vT[0], vT[0], vT[1]))
        e("v_mul_u32_u24 v%d, 320, v%d\nv_lshl_add_u32 v%d, v3, 5, v1\nv_add_u32 v%d, v%d, v%d" % (vT[0], vT[0], vT[1], vT[0], vT[0], vT[1]))
        e("v_add_u32 v%d, %d, v%d\nv_add_u32 v%d, %d, v%d" % (vWW[0], WOFF, vT[0], vWW[1], WOFF + 2 * REGION, vT[0]))

    def gelu(self, regs_, tmp, emit):
        for b0 in range(0, len(regs_), 8):
            ps = [(regs_[b0 + k], tmp + k) for k in range(0, min(8, len(regs_) - b0), 2)]
            for x, t in ps:
                emit("v_pk_mul_f32 %s, %s, %s" % (R("v", t, 2), R("v", x, 2), R("v", x, 2)))
            for x, t in ps:
                emit("v_pk_fma_f32 %s, %s, %s, %s op_sel:[0,1,0] op_sel_hi:[1,1,0]" % (R("v", t, 2), R("v", t, 2), sKC, sKC))
            for x, t in ps:
                emit("v_pk_mul_f32 %s, %s, %s" % (R("v", t, 2), R("v", t, 2), R("v", x, 2)))
            for x, t in ps:
                emit("v_exp_f32 v%d, v%d\nv_exp_f32 v%d, v%d" % (t, t, t + 1, t + 1))
            for x, t in ps:
                emit("v_pk_add_f32 %s, %s, 1.0 op_sel_hi:[1,0]" % (R("v", t, 2), R("v", t, 2)))
            for x, t in ps:
                emit("v_rcp_f32 v%d, v%d\nv_rcp_f32 v%d, v%d" % (t, t, t + 1, t + 1))
            for x, t in ps:
                emit("v_pk_mul_f32 %s, %s, %s" % (R("v", x, 2), R("v", t, 2), R("v", x, 2)))

    def phi(self, base, n, tmp, kreg):
        for b0 in range(0, n, 8):
            ps = [(base + b0 + k, tmp + k) for k in range(0, 8, 2)]
            for x, t in ps:
                self.V("v_pk_mul_f32 %s, %s, %s op_sel_hi:[1,0]" % (R("v", t, 2), R("v", x, 2), R("s", kreg, 2)))
            for x, t in ps:
                self.V("v_exp_f32_e64 v%d, v%d clamp\nv_exp_f32_e64 v%d, v%d clamp" % (t, t, t + 1, t + 1))
            for x, t in ps:
                self.V("v_max_f32 v%d, s%d, v%d\nv_max_f32 v%d, s%d, v%d" % (x, kreg + 1, x, x + 1, kreg + 1, x + 1))
            for x, t in ps:
                self.V("v_pk_add_f32 %s, %s, %s" % (R("v", x, 2), R("v", x, 2), R("v", t, 2)))

    def pack(self, src, n, dst):
        for k in range(n // 2):
            self.V("v_cvt_pk_bf16_f32 v%d, v%d, v%d" % (dst + k, src + 2 * k, src + 2 * k + 1))

    def z2_stats(self):
        e = self
        ld = self.dbg_ld
        e.gelu(list(range(Z2ACC, Z2ACC + 32)), ACCB, e.V)
        S = [ACCB + 8, ACCB + 10]
        Q = [ACCB + 12, ACCB + 14]
        for b in range(2):
            z = Z2ACC + 16 * b
            e.V("v_pk_add_f32 %s, %s, %s" % (R("v", S[b], 2), R("v", z, 2), R("v", z + 2, 2)))
            e.V("v_pk_mul_f32 %s, %s, %s" % (R("v", Q[b], 2), R("v", z, 2), R("v", z, 2)))
            for k in range(1, 8):
                if k > 1:
                    e.V("v_pk_add_f32 %s, %s, %s" % (R("v", S[b], 2), R("v", S[b], 2), R("v", z + 2 * k, 2)))
                e.V("v_pk_fma_f32 %s, %s, %s, %s" % (R("v", Q[b], 2), R("v", z + 2 * k, 2), R("v", z + 2 * k, 2), R("v", Q[b], 2)))
        e("s_cmp_eq_u32 %s, 0\ns_cselect_b32 %s, 0, 1.0" % (sJ, sT0))
        for a in (S, Q):
            e("v_add_f32 v%d, v%d, v%d\nv_add_f32 v%d, v%d, v%d" % (a[0], a[0], a[0] + 1, a[1], a[1], a[1] + 1))
            e("v_fmac_f32 v%d, %s, v%d" % (a[1], sT0, a[0]))
        e("s_lshl2_add_u32 %s, %s, %s\ns_mul_i32 %s, %s, %d" % (sT1, sI, sW, sFL, sT1, 14 * 256))
        e("s_lshl_b32 %s, %s, 8\ns_add_u32 %s, %s, %s" % (sT1, sJ, sT1, sT1, sFL))
        e("v_permlane32_swap_b32 v%d, v%d" % (S[1], Q[1]))
        e("v_add_f32 v%d, v%d, v%d" % (S[1], S[1], Q[1]))
        e.check(ld, "v_cmp_gt_u32 vcc, 32, v%d" % vT[11], site=56)
        e("buffer_store_dword v%d, v%d, %s, %s offen sc1" % (S[1], vL4, sWS, sT1))

    def z2_norm(self):
        e = self
        o = e.opt
        p = e.prog
        T = 192
        lds = ["buffer_load_dword v%d, v%d, %s, %s offen offset:%d sc1" % (T + k, vL4, sWS, sFL, k * 256) for k in range(14)]
        a = T + 48
        b = a + 5
        p += ["v_bfe_u32 v%d, v0, 1, 1" % a, "v_bfe_u32 v%d, v0, 2, 2" % (a + 1), "v_and_b32 v%d, 1, v0" % (a + 2),
              "v_lshl_or_b32 v%d, v%d, 1, v%d" % (a + 1, a + 1, a + 2), "v_lshl_or_b32 v%d, v%d, 3, v%d" % (a, a, a + 1),
              "v_lshrrev_b32 v%d, 5, v0" % (a + 1), "v_xor_b32 v%d, v%d, v%d" % (a, a, a + 1), "v_lshlrev_b32 v%d, 3, v%d" % (a, a),
              "v_and_b32 v%d, 31, v0" % (a + 2), "v_lshl_add_u32 v%d, v%d, 7, v%d" % (a, a + 2, a), "v_add_u32 v%d, %s, v%d" % (a, sREG, a)]
        p += ["v_bfe_u32 v%d, v0, 3, 1" % b, "v_lshlrev_b32 v%d, 3, v%d" % (b, b), "v_lshl_or_b32 v%d, v%d, 2, v%d" % (b, a + 1, b),
              "v_bfe_u32 v%d, v0, 2, 1" % (b + 1), "v_or_b32 v%d, v%d, v%d" % (b, b, b + 1),
              "v_bfe_u32 v%d, v0, 4, 1" % (b + 1), "v_and_b32 v%d, 3, v0" % (b + 2), "v_lshl_or_b32 v%d, v%d, 2, v%d" % (b + 1, b + 1, b + 2),
              "v_xor_b32 v%d, v%d, v%d" % (b, b, b + 1), "v_lshlrev_b32 v%d, 3, v%d" % (b, b),
              "v_bfe_u32 v%d, v0, 2, 2" % (b + 1), "v_lshl_add_u32 v%d, v%d, 3, v%d" % (b + 1, a + 1, b + 1),
              "v_lshl_add_u32 v%d, v%d, 7, v%d" % (b, b + 1, b), "v_add_u32 v%d, %s, v%d" % (b, sREG, b)]
        p += ["v_xor_b32 v%d, %d, v%d" % (b + k, (k >> 1) * 64 + (k & 1) * 16, b) for k in range(1, 4)]
        p += ["s_lshl2_add_u32 %s, %s, %s" % (sT0, sI, sW), "s_lshl_b32 %s, %s, 12" % (sT0, sT0), "s_lshl_b32 %s, %s, 18" % (sT1, sJ),
              "s_add_u32 %s, %s, %s" % (sT0, sT0, sT1), "s_add_u32 %s, %s, %d" % (sT0, sT0, Z2N),
              "s_lshl4_add_u32 %s, %s, %s" % (sT1, sJ, sI), "s_lshl2_add_u32 %s, %s, %s" % (sT1, sT1, sW), "s_lshl_b32 %s, %s, 7" % (sT1, sT1),
              "s_add_u32 %s, %s, %d" % (sT1, sT1, F_Z2N)]
        p += [("until", lambda: -1 if e.ev["f"] >= o.get("f_poll", 30) else 10 ** 9)] + lds + [e.mark("stat_ld"), ("until", lambda: e.ev["stat_ld"])]
        p.append(("call", lambda: setattr(e, "boost", o.get("boost", 24)), 0))
        m = T + 14
        mx = ["v_max3_u32 v%d, v%d, v%d, v%d" % (m, T, T + 1, T + 2)]
        mx += ["v_max3_u32 v%d, v%d, v%d, v%d" % (m, m, T + k, T + k + 1) for k in range(3, 13, 2)]
        mx += ["v_max_u32 v%d, v%d, v%d" % (m, m, T + 13)]
        p += mx
        p.append(("call", lambda: e.check("\n".join(lds), "v_cmp_eq_u32 vcc, -1, v%d" % m, "\n".join(mx), site=57), 16))
        p += ["v_add_f32 v%d, v%d, v%d" % (T + (k & 1), T + (k & 1), T + k) for k in range(2, 14)]
        p += ["v_add_f32 v%d, v%d, v%d" % (T, T, T + 1), "v_mul_f32 v%d, %s, v%d" % (T, f32(1.0 / 864), T), "v_mov_b32 v%d, v%d" % (T + 1, T), ("delay", 1),
              "v_permlane32_swap_b32 v%d, v%d" % (T, T + 1), "v_fma_f32 v%d, -v%d, v%d, v%d" % (T + 1, T, T, T + 1),
              "v_max_f32 v%d, 0, v%d" % (T + 1, T + 1), "v_add_f32 v%d, %s, v%d" % (T + 1, f32(1e-5), T + 1), "v_rsq_f32 v%d, v%d" % (T + 2, T + 1),
              "v_xor_b32 v%d, 16, v%d" % (a + 1, a), "v_mul_f32_e64 v%d, -v%d, v%d" % (T + 3, T, T + 2)]
        P = T + 16
        for q in range(8):
            p += ["v_fma_f32 v%d, v%d, v%d, v%d" % (Z2ACC + 4 * q + k, Z2ACC + 4 * q + k, T + 2, T + 3) for k in range(4)]
            p += ["v_cvt_pk_bf16_f32 v%d, v%d, v%d" % (P + 2 * q + k, Z2ACC + 4 * q + 2 * k, Z2ACC + 4 * q + 2 * k + 1) for k in range(2)]
            r_ = a + (1 + (q + 1) % 2 if q else 0)
            if q > 1:
                p.append("v_xor_b32 v%d, %d, v%d" % (r_, q * 16, a))
            p.append("ds_write_b64 v%d, %s offset:%d" % (r_, R("v", P + 2 * q, 2), 3 * 4096))
        Fr = T + 32
        for ks in range(2):
            for blk in range(2):
                for t in range(2):
                    p.append("ds_read_b64_tr_b16 %s, v%d offset:%d" % (R("v", Fr + 8 * ks + 4 * blk + 2 * t, 2), b + 2 * blk + t, 3 * 4096 + ks * 2048 + t * 512))
        p.append(("call", lambda: setattr(e, "boost", 0), 0))
        for k in range(4):
            p.append(("delay", o.get("d_z2n", 0) if k else 2))
            p.append("buffer_store_dwordx4 %s, v%d, %s, %s offen offset:%d sc1" % (R("v", Fr + 4 * k, 4), vL16, sWS, sT0, k * 1024))
        p += [e.mark("z2n_st"), ("call", lambda: (e.ev.__setitem__("norm_done", True), e.stamp(3)), 0), ("until", lambda: e.ev["z2n_st"]),
              ("call", lambda: e.flag(e.ev["z2n_st"], sT1), 16)]

    def a_tables(self):
        e = self
        e("s_lshl2_add_u32 %s, %s, %s\ns_lshl_b32 %s, %s, 17\ns_and_b32 %s, %s, 1" % (sT0, sI2, sW, sT0, sT0, sT3, sJ2))
        e("s_lshl_b32 %s, %s, 11\ns_add_u32 %s, %s, %s" % (sT1, sT3, sT0, sT0, sT1))
        e("s_xor_b32 %s, %s, 1\ns_lshl1_add_u32 %s, %s, %s\ns_lshl_b32 %s, %s, 17" % (sT2, sJ2, sT2, sT2, sT3, sT2, sT2))
        e("s_lshl_b32 %s, %s, 12\ns_add_u32 %s, %s, %s\ns_add_u32 %s, %s, %d" % (sT1, sW, sT2, sT2, sT1, sT2, sT2, Z2N))
        e("s_lshl_b32 %s, %s, 19\ns_sub_u32 %s, %s, 0x40000" % (sROW[0], sT3, sROW[0], sROW[0]))
        e("s_lshr_b32 %s, %s, 1" % (sT3, sJ2))
        if self.opt.get("rot2", 1) == 2:
            e("s_lshl1_add_u32 %s, %s, %s" % (sT3, sI2, sT3))
        for st in range(8):
            if self.opt.get("rot2", 1):
                e("s_add_u32 %s, %s, %d\ns_and_b32 %s, %s, 7" % (sT1, sT3, st, sT1, sT1))
                e("s_lshl_b32 %s, %s, 8\ns_add_u32 %s, %s, %s" % (sCH[st], sT1, sCH[st], sCH[st], sT0))
                e("s_lshl_b32 %s, %s, 14\ns_add_u32 %s, %s, %s" % (sT1, sT1, sBCH[st], sT1, sT2))
            else:
                e("s_add_u32 %s, %s, %d\ns_add_u32 %s, %s, %d" % (sCH[st], sT0, st * 256, sBCH[st], sT2, st * 16384))

    def a_jobs(self, q0, q1, r0, r1, queue):
        e = self
        for q in range(q0, q1):
            def pre(q=q):
                if q < 4:
                    return e.ev.get("xfree") and (q != 3 or e.ev.get("norm_done"))
                rd = e.ev.get(("ard", q - 4))
                return rd is not None and (rd[0] <= e.lg_done or e.cyc - rd[1] >= 160)
            setup = ["s_add_u32 m0, %s, %d" % (sREG, (q % 4) * 4096)]
            if q & 1:
                setup.append("s_add_u32 %s, %s, 128" % (sSO, sCH[q >> 1]))
            if q >= 4:
                setup.insert(0, lambda q=q: e.wait(lg=e.ev[("ard", q - 4)][0]))
            queue.append(Job(pre, ["buffer_load_dwordx4 v%d, %s, %s offen offset:%d lds" % (vAD[r], sWSP, sSO if q & 1 else sCH[q >> 1], r * 1024)
                                   for r in range(4)], setup, [], e.ev.setdefault(("adma", q), []),
                             lambda q=q: e.ev.__setitem__(("adma_t", q), e.cyc)))
        for q in range(r0, r1):
            def pre(q=q):
                ids = e.ev.get(("adma", q), [])
                if len(ids) < 4 or (6 <= q < 10 and not e.ev.get("norm_done")):
                    return False
                return e.lat == 0 or e.landed(max(ids))

            def emit(ks, q=q):
                e.wait(vm=max(e.ev[("adma", q)]))
                i = e("ds_read_b128 %s, v%d offset:%d" % (rr(ASLOT[q], 4, 4 * ks), vXR[ks], (q % 4) * 4096))
                if ks == 3:
                    e.ev[("ard", q)] = (i, e.cyc)
            for ks in range(4):
                e.qd.append((pre, lambda ks=ks, emit=emit: emit(ks)))

    def b_jobs(self, g0, g1):
        e = self
        for g in range(g0, g1):
            e.ev[("ndma", "P", g)] = 4
            setup = ["s_add_u32 m0, %s, %d" % (sREG, WOFF + ((g + 3) % 6) * 4096)]
            if g >= 8:
                setup.append("s_add_u32 %s, %s, %s" % (sSO, sBCH[g - 8], sROW[0]))
            pre = (lambda: True) if g < 6 else (lambda g=g: e.ev.get(("free", "P", g - 6)))
            e.q1.append(Job(pre, ["buffer_load_dwordx4 v%d, %s, %s offen offset:%d sc1 lds" % (vL16, sWS, sSO if g >= 8 else sBCH[g], k * 1024)
                                  for k in range(4)], setup, [], e.ev.setdefault(("dma", "P", g), [])))

    def z2n_poll_issue(self):
        e = self
        e("s_and_b32 %s, %s, 1\ns_andn2_b32 %s, %s, 1\ns_lshl1_add_u32 %s, %s, %s" % (sT2, sJ2, sAO, sJ2, sAO, sAO, sT2))
        e("s_lshl_b32 %s, %s, 5\ns_add_u32 %s, %s, %s\ns_lshl_b32 %s, %s, 7\ns_add_u32 %s, %s, %d" % (sAO, sAO, sAO, sAO, sW, sAO, sAO, sAO, sAO, F_Z2N))
        e("v_and_b32 v%d, 7, v0\nv_bfe_u32 v%d, v0, 3, 1\nv_lshl_add_u32 v%d, v%d, 4, v%d\nv_lshlrev_b32 v%d, 9, v%d"
          % (vT[8], vT[7], vT[8], vT[7], vT[8], vT[8], vT[8]))
        e("s_lshl2_add_u32 %s, %s, %s\ns_lshl_b32 %s, %s, 6" % (sT2, sI2, sW, sT2, sT2))
        e("v_and_b32 v%d, 31, v0\nv_lshlrev_b32 v%d, 1, v%d" % (vT[7], vT[7], vT[7]))
        e("buffer_load_ushort v%d, v%d, %s, %s offen" % (vT[10], vT[7], sBSP, sT2))
        self.z2n_poll = "buffer_load_dword v%d, v%d, %s, %s offen sc1" % (vT[9], vT[8], sWS, sAO)
        e(self.z2n_poll)

    def z2n_go(self):
        e = self
        e.check(e.z2n_poll, "v_cmp_eq_u32 vcc, -1, v%d" % vT[9], site=58)
        e.stamp(6)
        e.b_jobs(0, NB0)

    def drain_all(self):
        self.drain(lambda: not self.q1 and not self.q2 and not self.qd and not self.armed)
        self.settle()
        return self.vm_n - 1

    def p1_finish(self, upto):
        e = self
        e.lstamp(None)
        e.stamp(5)
        e.wait(vm=upto, lg=e.lg_n - 1)
        return e.join_state({})

    def deferred_stores(self):
        return ["buffer_store_dwordx4 %s, v%d, %s, %s offen offset:%d sc1" % (R("v", ACCB + 4 * k, 4), vL16, sWS, sDEF[k // 4], (k % 4) * 1024) for k in range(8)]

    OFF_A = staticmethod(lambda s: 16384 + (s % 4) * 2048)
    OFF_W = staticmethod(lambda s: (s % 4) * 5120)

    def main_start(self):
        e = self
        e.w_offsets(vWDI, 3456)
        e.stream_init(sAO, sAB, sAE, "s_add_u32 %s, %s, 13\ns_lshl_b32 %s, %s, 7" % (sAB, sJ, sAB, sAB), 3456)
        e.w_jobs("A", False, e.OFF_A, sWIN, (sAO, sAB, sAE), 3456, {}, True)
        n = len(e.q1)
        e.bg_vm(force=True, maxn=e.opt.get("n0", 8))
        e.settle()
        self.n_start = n - len(e.q1)
        self.start_ev = {k: list(v) for k, v in e.ev.items() if k[0] == "dma"}
        e.late_setup()
        e.a_tables()

    def pass_a(self, queue_b):
        e = self
        e.w_jobs("A", False, e.OFF_A, sWIN, (sAO, sAB, sAE), 3456, {}, True)
        del e.q1[:self.n_start]
        for k, v in self.start_ev.items():
            e.ev[k][:] = v
        e.bg_vm(force=True, maxn=e.opt.get("n1", 0))
        e.settle()
        queue_b()
        e.stamp(0)
        e.bg_vm(force=True, maxn=12)
        self.dbg_ld = "buffer_load_dword v%d, off, %s, 0 sc1" % (vT[11], sDBG)

        def upto(stage):
            return max([i + 1 for i, j in enumerate(e.q1) if j.sink is e.ev[("dma", "B", stage)]]) if stage >= 0 else \
                min([i for i, j in enumerate(e.q1) if j.sink is e.ev[("dma", "B", 0)]])
        k0, k1 = upto(e.opt.get("pre_a", 0)), upto(e.opt.get("pre_b", 2))
        e.q1, self.q_act, self.q_later = e.q1[:k0], e.q1[k0:k1], e.q1[k1:]
        e.p1_pass("A", [(e.rd_narrow(e.OFF_A, 0), Z2ACC, 2), (e.rd_narrow(e.OFF_A, 1), Z2ACC + 16, 2)], True, False,
                  {e.opt.get("f_dbg", 56): lambda: e(self.dbg_ld)})
        e.stamp(1)

    def second_pass(self, blocks, hooks=None, early_poll=True):
        e = self
        e.pipe = e.gate = e.cyc
        e.wait_all(vm=False)
        e.ev["xfree"] = True
        e.q1 += self.q_act
        e.z2_stats()
        e.stamp(2)
        e.q1 += self.q_later
        e.a_jobs(0, e.nqd, 0, e.nqd - 4, e.q2)
        e.bg_vm(force=True, maxn=e.opt.get("n2", 3))
        e.lat = 10 ** 9
        o = e.opt
        tail = e.label("L_tail")
        e.p1_pass("B", blocks, False, True, {**(hooks or {}), 0: e.z2_norm, 40 * len(blocks) - o.get("z_early", 1): e.z2n_poll_issue if early_poll else lambda: None, 40 * len(blocks) - 60: lambda: e.touch(tail), 40 * len(blocks) - 30: lambda: e.touch("L_p2")},
                  prev_tag="A")
        e.raw(tail + ":")
        e.ev["passb"] = True
        e.prog_flush()
        e.lat = o.get("lat1", 800)
        e.stamp(4)
        e.wait_all(vm=False)
        e("s_barrier")

    def role_a(self):
        e = self

        def queue_b():
            e("s_lshl2_add_u32 %s, %s, %s" % (sG, sHALF, sJL))
            e.stream_init(sBO, sBB, sBE, "s_mul_i32 %s, %s, 160\ns_add_u32 %s, %s, 1280" % (sBB, sG, sBB, sBB), 3840)
            e.w_jobs("B", True, e.OFF_W, sWQ, (sBO, sBB, sBE), 3840, {15360: ("A", 9)}, False, 1.6)
            e.seg320(3840, 16 * 3840, 1280 - 160)
            e.wide_read_addr()
        e.pass_a(queue_b)
        e.second_pass([(e.rd_wide(e.OFF_W, b), ACCB + 16 * b, 1) for b in range(5)])
        e("s_mov_b32 s100, %s\ns_mov_b32 s101, %s" % (f32(LOG2E), f32(1e-6)))
        tmp = WRING
        P = Z2ACC
        e.V("v_add_u32 v%d, %s, v%d" % (vT[0], sREG, vL16))
        ones = WRING + 8
        for k in range(4):
            e.V("v_mov_b32 v%d, 0x3f803f80" % (ones + k))
        for st in range(2):
            e("ds_write_b128 v%d, %s offset:%d" % (vT[0], R("v", ones, 4), WOFF + (10 + st) * 1024))
        for n_, b in enumerate((3, 4, 0, 1, 2)):
            if b < 2:
                e.phi(ACCB + 16 * b, 16, tmp, 100)
            elif b == 2:
                e.bg_vm(force=True, maxn=2)
                e.settle()
                saved = (e.q1, e.q2, e.qd)
                e.q1, e.q2, e.qd = [], [], []
                e("s_mov_b32 exec_lo, 0xffff\ns_mov_b32 exec_hi, 0xffff")
                e.phi(ACCB + 32, 16, tmp, 100)
                e("s_mov_b64 exec, -1")
                e.q1, e.q2, e.qd = saved
            if n_ == e.opt.get("a_go", 2):
                e.z2n_go()
            d = P + 8 * (n_ % 4)
            e.pack(ACCB + 16 * b, 16, d)
            for st in range(2):
                e("ds_write_b128 v%d, %s offset:%d" % (vT[0], R("v", d + 4 * st, 4), WOFF + (2 * b + st) * 1024))
        sA = [sT0, sT1]
        sB = [sT2, sT3]
        e("s_add_u32 %s, %s, 2\ns_add_u32 %s, %s, 3\ns_min_u32 %s, %s, 5" % (sA[0], sW, sA[1], sW, sA[1], sA[1]))
        e("s_cmp_eq_u32 %s, 3\ns_cselect_b32 %s, 0, %s\ns_cselect_b32 %s, 1, %s" % (sW, sB[0], sW, sB[1], sW))
        AD = vT[1:5]
        for k, s_ in enumerate((sA[0], sB[0], sA[1], sB[1])):
            e("v_mov_b32 v%d, %s\nv_lshl_add_u32 v%d, v%d, 11, v%d" % (AD[k], s_, AD[k], AD[k], vL16))
        e.wait_all(vm=False)
        e("s_barrier")
        RES = [ACCB, ACCB + 16]

        def reads(step):
            w_, st = divmod(step, 2)
            if step == 4:
                for k in range(4):
                    e("v_add_u32 v%d, %d, v%d" % (AD[k], 2 * REGION, AD[k]))
            for k in range(4):
                e("ds_read_b128 %s, v%d offset:%d" % (R("a", (step % 6) * 16 + 4 * k, 4), AD[k], WOFF + (w_ & 1) * REGION + st * 1024))
        reads(0); reads(1); reads(2)
        side = ["s_lshl4_add_u32 %s, %s, %s\ns_mul_i32 %s, %s, 20480\ns_add_u32 %s, %s, %d" % (sAB, sG, sI, sAB, sAB, sAB, sAB, KVP - 2 * 4096),
                "s_lshl3_add_u32 %s, %s, %s\ns_mul_i32 %s, %s, 384\ns_add_u32 %s, %s, %d" % (sAE, sI, sG, sAE, sAE, sAE, sAE, ZP),
                "v_and_b32 v%d, 0x7c, v%d" % (vT[0], vL4)]
        for jb in range(2):
            side += ["s_add_u32 %s, %s, %s\ns_lshl_b32 %s, %s, 12\ns_add_u32 %s, %s, %s" % (sDEF[jb], sA[jb], sB[jb], sDEF[jb], sDEF[jb], sDEF[jb], sDEF[jb], sAB),
                     "s_lshl_b32 %s, %s, 7\ns_add_u32 %s, %s, %s" % (sB[jb], sB[jb], sB[jb], sB[jb], sAE),
                     "s_cmp_eq_u32 %s, 5\ns_cselect_b32 %s, 0x%x, %s\ns_cselect_b32 %s, %s, 0x%x" % (sA[jb], sDEF[jb], OOB, sDEF[jb], sB[jb], sB[jb], OOB)]
        for step in range(8):
            for jb in range(2):
                base = (step % 6) * 16 + 8 * jb
                acc = R("v", RES[jb], 16)
                e("v_mfma_f32_32x32x16_bf16 %s, %s, %s, %s" % (acc, R("a", base, 4), R("a", base + 4, 4), "0" if step == 0 else acc))
                if jb == 0 and step + 3 < 8:
                    reads(step + 3)
                else:
                    e.tick()
                    if side:
                        e(side.pop(0))
        assert not side
        upto = e.drain_all()
        e("s_lshl4_add_u32 %s, %s, %s\ns_lshl2_add_u32 %s, %s, %s\ns_lshl2_add_u32 %s, %s, %s" % (sFL, sHALF, sI, sFL, sFL, sJL, sFL, sFL, sW))
        e("s_lshl_b32 %s, %s, 7\ns_add_u32 %s, %s, %d" % (sFL, sFL, sFL, sFL, F_KV))
        for jb in range(2):
            e("buffer_store_dword v%d, v%d, %s, %s offen sc1" % (RES[jb], vT[0], sWS, sB[jb]))
        return upto

    def early_finish(self, last):
        e = self
        e.bg_vm(force=True, maxn=8)
        e.flag(last, sFL)
        for r_ in [sFL] + sDEF:
            e("s_mov_b32 %s, 0x%x" % (r_, OOB))
        e.drain(lambda: len(e.q2) <= 2)
        e.z2n_poll_issue()
        e.drain_all()
        e.z2n_go()
        return e.drain_all()

    def z1_store(self, nblk, first_text, packed=False):
        e = self
        e("s_lshl2_add_u32 %s, %s, %s\ns_mul_i32 %s, %s, 28" % (sT0, sI, sW, sT0, sT0))
        e(first_text)
        e("s_add_u32 %s, %s, %s\ns_lshl_b32 %s, %s, 11\ns_add_u32 %s, %s, %d" % (sT0, sT0, sT1, sT0, sT0, sT0, sT0, Z1))
        for b in range(nblk):
            d = ACCB + 8 * b
            if not packed:
                e.pack(ACCB + 16 * b, 16, d)
            if b == 4:
                e("s_add_u32 %s, %s, 8192" % (sT0, sT0))
            for p in range(2):
                o_ = (b % 4) * 2048 + p * 1024
                last = e("buffer_store_dwordx4 %s, v%d, %s, %s offen offset:%d sc1" % (R("v", d + 4 * p, 4), vL16B if o_ >= 4096 else vL16, sWS, sT0, o_ % 4096))
        return last

    def z1_flag_addr(self):
        self("s_lshl2_add_u32 %s, %s, %s\ns_lshl3_add_u32 %s, %s, %s" % (sFL, sI, sW, sFL, sFL, sG))
        self("s_lshl_b32 %s, %s, 7\ns_add_u32 %s, %s, %d" % (sFL, sFL, sFL, sFL, F_Z1))

    def role_b(self):
        e = self

        def queue_b():
            e("s_mul_i32 %s, %s, 3\ns_add_u32 %s, %s, %s\ns_sub_u32 %s, %s, 4" % (sG, sHALF, sG, sG, sJL, sG, sG))
            e.stream_init(sBO, sBB, sBE, "s_mul_i32 %s, %s, 320" % (sBB, sG), 3456)
            e.w_jobs("B", True, e.OFF_W, sWIN, (sBO, sBB, sBE), 3456, {15360: ("A", 9)}, False, 1.2)
            e.seg320(3456, 16 * 3456)
            e.wide_read_addr()
        e.pass_a(queue_b)
        e.second_pass([(e.rd_wide(e.OFF_W, b), ACCB + 16 * b, 2) for b in range(5)])
        for b in range(5):
            e.pack(ACCB + 16 * b, 16, ACCB + 8 * b)
        e.z2n_go()
        upto = e.drain_all()
        e.z1_store(5, "s_mul_i32 %s, %s, 5\ns_add_u32 %s, %s, 1" % (sT1, sG, sT1, sT1), packed=True)
        e.z1_flag_addr()
        for r_ in sDEF:
            e("s_mov_b32 %s, 0x%x" % (r_, OOB))
        return upto

    @staticmethod
    def unit_col(U):
        c, t = divmod(U, 5)
        return (80 * c + (32 * (t >> 1) + 4 * (t & 1) if t < 4 else 64), 8 if t < 4 else 4)

    def role_l(self):
        e = self
        offf = lambda s: (s % 7) * 2048
        vGR = 18

        def queue_b():
            e("s_mov_b32 %s, 5" % sG)
            e.stream_init(sBO, sBB, sBE, "s_mov_b32 %s, 1600" % sBB, 3456)
            e("s_lshl_b32 %s, %s, 7" % (sT0, sROT))
            for t in range(2):
                e("v_add_u32 v%d, %s, v%d" % (vT[2 + t], sT0, vL16))
                if t:
                    e("v_add_u32 v%d, 0x400, v%d" % (vT[3], vT[3]))
                e("v_subrev_u32 v%d, 0x500, v%d\nv_min_u32 v%d, v%d, v%d" % (vT[1], vT[2 + t], vT[2 + t], vT[2 + t], vT[1]))
                e.q1.append(Job(lambda: True, ["buffer_load_dwordx4 v%d, %s, 0 offen lds" % (vT[2 + t], sGW)],
                                ["s_add_u32 m0, %s, %d" % (sREG, WOFF + 14336 + 1024 * t)], [], e.ev.setdefault(("dma", "B", 0), [])))
            e.w_jobs("B", False, offf, sWIN, (sBO, sBB, sBE), 3456, {}, False, 2.0)
            e.ev[("ndma", "B", 0)] += 2
            e("v_lshrrev_b32 v%d, 5, v0\nv_lshl_add_u32 v%d, v%d, 4, %s" % (vGR, vGR, vGR, sREG))

        def rd_gate(s, ks, dst):
            return e("ds_read_b128 %s, v%d offset:%d" % (R("v", dst, 4), vGR, WOFF + 14336 + s * 128 + ks * 32))
        e.pass_a(queue_b)
        e.second_pass([(e.rd_narrow(offf, 0), ACCB, 2), (e.rd_narrow(offf, 1), ACCB + 16, 2), (rd_gate, ACCB + 32, 2)], early_poll=False)
        g = ACCB + 32
        e.V("v_mul_f32 v%d, %s, v%d\nv_exp_f32 v%d, v%d\nv_add_f32 v%d, 1.0, v%d\nv_rcp_f32 v%d, v%d" % (g, f32(-LOG2E), g, g, g, g, g, g, g))
        e("s_lshl2_add_u32 %s, %s, %s\ns_lshl_b32 %s, %s, 7\ns_add_u32 %s, %s, %d" % (sT0, sI, sW, sT0, sT0, sT0, sT0, GATE))
        e("v_and_b32 v%d, 0x7c, v%d" % (vT[0], vL4))
        e("buffer_store_dword v%d, v%d, %s, %s offen sc1" % (g, vT[0], sWS, sT0))
        last = e.z1_store(2, "s_mov_b32 %s, 26" % sT1)
        e.z1_flag_addr()
        return e.early_finish(last)

    def ap_voff(self, dst):
        self.V("v_bfe_u32 v%d, v0, 4, 1\nv_mul_u32_u24 v%d, 0xc000, v%d\nv_and_b32 v%d, 15, v0" % (dst, dst, dst, vT[0]))
        self.V("v_lshl_add_u32 v%d, v%d, 4, v%d\nv_lshrrev_b32 v%d, 5, v0\nv_lshl_add_u32 v%d, v%d, 8, v%d" % (dst, vT[0], dst, vT[0], dst, vT[0], dst))

    def role_h(self):
        e = self
        e.wring = 208
        Q = 48
        full = e.opt.get("stop", 9) > 2
        SG, ra = [40, 41, 42, 43, 44], 22
        sWB, sDB = sROW[1], sROW[2]
        e("s_mov_b32 s14, %d\ns_mov_b32 s15, 0x20000" % self.sizes[12])
        e.stream_init(sAO, sAB, sAE, "s_mul_i32 %s, %s, 640" % (sAB, sHALF), 3840)
        e.seg320(3840, 16 * 3840)
        occ = {}
        off2 = lambda s: e.OFF_W(s + 10)
        e.w_jobs("A", True, e.OFF_W, sWQ, (sAO, sAB, sAE), 3840, occ, True, 1.2)
        e.bg_vm(force=True, maxn=5)
        e.late_setup(natural=True)
        e.wide_read_addr()
        e.wait(vm=self.clear_id)
        e("s_barrier")
        e("v_mov_b32 v244, 1\ns_lshl_b32 %s, %s, 12\ns_mov_b64 exec, 1" % (sT0, sW))
        e("buffer_atomic_add v244, off, %s, %s sc1" % (sDBG, sT0))
        e("s_mov_b64 exec, -1")
        e.bg_vm(force=True, maxn=9)
        e.seg320(1280, 320, regs_=SG)
        e("s_lshl1_add_u32 %s, %s, %s\ns_mul_i32 %s, %s, %d" % (sT3, sI, sHALF, sWB, sT3, 32 * 1280))
        e("v_lshrrev_b32 v%d, 5, v0\nv_bfe_u32 v%d, v0, 2, 3\nv_lshl_add_u32 v%d, v%d, 4, v%d" % (ra, ra + 1, ra, ra, ra + 1))
        e("v_mul_u32_u24 v%d, 320, v%d\nv_add_u32 v%d, %s, v%d\nv_and_b32 v%d, 3, v0" % (ra, ra, ra, sREG, ra, vT[0]))
        e("v_lshl_add_u32 v%d, v%d, 3, v%d\nv_lshl_add_u32 v%d, v%d, 4, v%d" % (ra + 1, vT[0], ra, ra, vT[0], ra))
        e("s_mul_i32 %s, %s, 96\ns_add_u32 %s, %s, %s\ns_mul_i32 %s, %s, 5120\ns_add_u32 %s, %s, %d" % (sDB, sW, sDB, sDB, sT3, sDB, sDB, sDB, sDB, BP + 20 * 5120))
        e("s_cmp_lt_u32 %s, 27\ns_cselect_b32 %s, %s, 0x%x" % (sT3, sDB, sDB, OOB))
        e("s_lshl_b32 %s, %s, 5\ns_add_u32 %s, %s, %s\ns_lshl_b32 %s, %s, 7\ns_add_u32 %s, %s, %d" % (sFL, sW, sFL, sFL, sT3, sFL, sFL, sFL, sFL, F_WO))
        e.stream_init(sBO, sBB, sBE, "s_add_u32 %s, %s, 320" % (sBB, sAB), 3840)
        e.w_jobs("B", True, off2, sWQ, (sBO, sBB, sBE), 3840, occ, False, 1.2)
        e.stamp(0)
        e.bg_vm(force=True, maxn=9)
        ld0 = "buffer_load_dword v%d, off, %s, 0 sc1" % (vT[11], sDBG)
        wo_ld, wo_st = [], []

        def relayout():
            ld = "buffer_load_dwordx4 v%%d, %s, %s offen offset:%%d lds" % (sWOUT, sWB)
            for hf in range(2):
                e.q2.append(Job(lambda: True, [ld % (SG[k], k * 1024) for k in range(4)], ["s_add_u32 m0, %s, %d" % (sREG, 5120 * hf)], [], wo_ld, weight=1.2))
                e.q2.append(Job(lambda: True, [ld % (SG[4], 0)], ["s_add_u32 m0, %s, %d" % (sREG, 5120 * hf + 4096)],
                                ["s_add_u32 %s, %s, %d" % (sWB, sWB, 16 * 1280)], wo_ld, lambda: e.ev.__setitem__("wo_t", e.cyc), 1.2))
            ready = lambda: len(wo_ld) == 10 and e.landed(max(wo_ld))
            for U in range(10):
                col, step = self.unit_col(U)
                for sub in range(2):
                    def rd(U=U, sub=sub, col=col, step=step):
                        e.wait(vm=max(wo_ld))
                        e("ds_read_b64_tr_b16 %s, v%d offset:%d" % (R("a", 160 + 4 * U + 2 * sub, 2), ra if step == 8 else ra + 1, sub * 8 * 320 + col * 2))
                        e.ev["wo_rd"] = 2 * U + sub + 1
                    e.qd.append((ready, rd))
            for U in range(10):
                e.q2.append(Job(lambda U=U: e.ev.get("wo_rd", 0) >= min(20, 2 * U + 6), ["buffer_store_dwordx4 %s, v%d, %s, %s offen offset:%d sc1"
                                                   % (R("a", 160 + 4 * U, 4), vL16B if U % 5 == 4 else vL16, sWS, sDB, (U % 5 % 4) * 1024)],
                                ["s_add_u32 %s, %s, %d" % (sDB, sDB, 48 * 5120)] if U == 5 else [], [], wo_st))
            e.hi += [ld0, e.mark("ld0"), ("until", lambda: e.ev["ld0"]), ("call", lambda: e.check(ld0, "v_cmp_gt_u32 vcc, 32, v%d" % vT[11]), 16)]

        nsh = e.opt.get("h_sh", 56)

        def phi_shadow():
            e("s_mov_b32 s100, %s\ns_mov_b32 s101, %s" % (f32(LOG2E), f32(1e-6)))
            for g0 in range(0, nsh, 4):
                for fmt in ("v_mul_f32 v{t}, s100, v{x}", "v_exp_f32_e64 v{t}, v{t} clamp", "v_max_f32 v{x}, s101, v{x}", "v_add_f32 v{x}, v{x}, v{t}"):
                    e.prog += [fmt.format(x=Q + g0 + k, t=240 + k) for k in range(4)]
        e.pipe = e.gate = e.cyc
        e.p1_pass("A", [(e.rd_wide(e.OFF_W, b), Q + 16 * b, 2) for b in range(5)], True, True, {150: lambda: e.touch("L_h2")})
        e.raw("L_h2:")
        e.prog_flush()
        e.stamp(1)
        e.p1_pass("B", [(e.rd_wide(off2, b), Q + 80 + 16 * b, 2) for b in range(5)], False, True, {0: relayout, 6: phi_shadow, 140: lambda: e.touch("L_h3"), 170: lambda: e.touch("L_h3", 8192)}, prev_tag="A")
        e.raw("L_h3:")
        e.drain_all()
        e.prog_flush()
        e.flag(max(wo_st), sFL)
        e.lstamp(None)
        e.stamp(4)
        e.wait_all(vm=False)
        e("s_barrier")
        sCT = sAO
        sHM = "s[82:83]"
        IMG = 8192
        e("s_lshr_b32 %s, %s, 1\ns_lshl3_add_u32 %s, %s, %s" % (sG, sI, sG, sHALF, sG))
        e("s_and_b32 %s, %s, 1\ns_lshl2_add_u32 %s, %s, %s" % (sCT, sI, sCT, sCT, sW))
        e("s_mul_i32 %s, %s, %d\ns_mul_i32 %s, %s, 160\ns_add_u32 %s, %s, %s" % (sT0, sG, 40 * 1280, sT1, sCT, sT0, sT0, sT1))
        for pc in range(7):
            e("v_add_u32 v16, %d, v0\nv_mul_u32_u24 v17, 0x199a, v16\nv_lshrrev_b32 v17, 16, v17" % (64 * pc))
            e("v_mul_u32_u24 v17, %d, v17\nv_lshl_add_u32 v16, v16, 4, v17" % (1280 - 160))
            e("s_add_u32 m0, %s, %d" % (sREG, WOFF + pc * 1024))
            if pc == 6:
                e("s_mov_b64 exec, 0xffff")
            wo_id = e("buffer_load_dwordx4 v16, %s, %s offen lds" % (sWO, sT0))
        e("s_mov_b64 exec, -1")
        for k in range(4):
            e("v_mov_b32 v%d, 0" % (240 + k))
        e("s_lshl_b32 %s, %s, 10\nv_add_u32 v16, %s, v%d" % (sT0, sW, sT0, vL16))
        e("ds_write_b128 v16, v[240:243] offset:%d" % IMG)
        e("s_lshl2_add_u32 %s, %s, %s\ns_lshl_b32 %s, %s, 13\ns_add_u32 %s, %s, %d" % (sBO, sHALF, sW, sBO, sBO, sBO, sBO, F_KV))
        e("s_lshl2_add_u32 %s, %s, %s\ns_lshl_b32 %s, %s, 7\ns_lshl_b32 %s, %s, 3\ns_add_u32 %s, %s, %d" % (sBE, sI, sW, sBE, sBE, sBB, sBE, sBB, sBB, F_Z1 + 5 * 128))
        ld1 = "buffer_load_dword v208, v%d, %s, %s offen sc1\nbuffer_load_dword v209, off, %s, %s sc1" % (vL128, sWS, sBO, sWS, sBB)
        vAP = 25
        e.ap_voff(vAP)
        e("s_lshl2_add_u32 %s, %s, %s\ns_mul_i32 %s, %s, %d\ns_mul_i32 %s, %s, 10240" % (sT2, sI, sW, sT2, sT2, 2 * 49152, sT3, sHALF))
        e("s_add_u32 %s, %s, %s\ns_add_u32 %s, %s, %d" % (sT2, sT2, sT3, sT2, sT2, AP))
        todo = nsh
        for pc in range(20):
            if todo < 160:
                e.phi(Q + todo, 8, 240, 100)
                todo += 8
            d = 248 + 4 * (pc & 1)
            e.pack(Q + 8 * pc, 8, d)
            if pc and pc % 8 == 0:
                e("s_add_u32 %s, %s, 4096" % (sT2, sT2))
            pq_st = e("buffer_store_dwordx4 %s, v%d, %s, %s offen offset:%d sc1" % (R("v", d, 4), vAP, sWS, sT2, (pc // 2 % 4) * 1024 + (pc & 1) * 512))
        early_w = full and e.opt.get("h_w", 0)
        sPF, sSF = "s84", "s85"
        e("s_lshr_b32 %s, %s, 1\ns_lshl1_add_u32 %s, %s, %s\ns_and_b32 %s, %s, 1\ns_lshl1_add_u32 %s, %s, %s" % (sT0, sW, sT0, sI, sT0, sT1, sW, sT1, sHALF, sT1))
        e("s_lshl2_add_u32 %s, %s, %s\ns_lshl_b32 %s, %s, 7\ns_add_u32 %s, %s, %d" % (sSF, sT0, sT1, sSF, sSF, sSF, sSF, F_SC))
        e("s_lshl_b32 %s, %s, 5\ns_add_u32 %s, %s, %s\ns_lshl_b32 %s, %s, 7\ns_add_u32 %s, %s, %d" % (sT0, sT0, sT0, sT0, sT1, sT0, sT0, sPF, sT0, F_U + 28 * 128))
        if early_w:
            e("s_lshr_b32 %s, %s, 1\ns_lshl_b32 %s, %s, 12\ns_mul_i32 %s, %s, %d" % (sT0, sC, sT0, sT0, sT1, sW, 7 * 128))
            e("s_add_u32 %s, %s, %s\ns_add_u32 %s, %s, %d" % (sT0, sT0, sT1, sT0, sT0, F_WO))
            e("v_min_u32 v214, %d, v%d\nv_add_u32 v214, %s, v214" % (6 * 128, vL128, sT0))
            ldo = "buffer_load_dword v215, v214, %s, 0 offen sc1" % sWS
            e(ldo)
            e("s_mul_i32 %s, %s, 48\ns_mul_i32 %s, %s, 7\ns_add_u32 %s, %s, %s" % (e.sW3, sC, sT0, sW, e.sW3, e.sW3, sT0))
            e("s_mul_i32 %s, %s, 5120\ns_add_u32 %s, %s, %d" % (e.sW3, e.sW3, e.sW3, e.sW3, BP + 20 * 5120))
            e("s_cmp_eq_u32 %s, 3\ns_cselect_b32 %s, 0x%x, 0\nv_add_u32 v%d, %s, v%d" % (sW, sT0, OOB, e.vZ, sT0, vL16))
        ldw = "buffer_load_dword v208, off, %s, %s sc1" % (sWS, sBO)
        vH, vGA, vIW, vAR, vAR2, vZR = 24, 8, 9, 10, 11, 26
        MS = [12, 13, 14]
        e.V("v_lshrrev_b32 v%d, 5, v0\nv_mov_b32 v23, 0x%x" % (vH, OOB))
        e.V("v_bfe_u32 v16, v0, 2, 2\nv_mul_u32_u24 v16, 160, v16\nv_add_u32 v16, %s, v16\nv_mul_u32_u24 v17, %d, v%d" % (sREG, 8 * 160, vH))
        e.V("v_and_b32 v18, 3, v0\nv_bfe_u32 v19, v0, 4, 1\nv_lshlrev_b32 v20, 3, v19\nv_lshl_add_u32 v20, v18, 4, v20\nv_add_u32 v20, v20, v16")
        e.V("v_lshl_add_u32 v16, v18, 3, v16\nv_add_u32 v21, v20, v17\nv_add_u32 v17, v16, v17")
        e.wait(vm=wo_id)
        for bb in range(3):
            for ks in range(3):
                for t in range(2):
                    r_ = ((21, 17) if ks < 2 else (20, 16))[bb == 2]
                    e("ds_read_b64_tr_b16 %s, v%d offset:%d" % (R("a", 12 * bb + 4 * ks + 2 * t, 2), r_, WOFF + (16 * ks + 4 * t) * 160 + 64 * bb))
        e.V("s_mul_i32 %s, %s, 50\ns_and_b32 %s, %s, 1\ns_mul_i32 %s, %s, 40" % (sT0, sW, sT1, sG, sT1, sT1))
        e.V("v_add_u32 v16, %s, v0\nv_mul_u32_u24 v17, 0xccd, v16\nv_lshrrev_b32 v17, 16, v17" % sT0)
        e.V("v_mul_u32_u24 v18, 20, v17\nv_sub_u32 v16, v16, v18\nv_cmp_lt_u32 vcc, 4, v17\nv_cndmask_b32_e64 v18, 0, 20, vcc\nv_add_u32 v16, v16, v18")
        e.V("v_mul_u32_u24 v%d, 96, v16\nv_lshl_add_u32 v%d, v17, 3, v%d" % (vIW, vIW, vIW))
        e.V("v_add_u32 v16, %s, v16\nv_lshl_add_u32 v17, v17, 2, %s\nv_add_u32 v17, 16, v17" % (sT1, sT1))
        e.V("v_lshrrev_b32 v18, 5, v16\nv_lshlrev_b32 v17, 7, v17\nv_lshl_add_u32 v17, v18, 12, v17")
        e.V("v_and_b32 v16, 31, v16\nv_lshl_add_u32 v%d, v16, 4, v17" % vGA)
        e.V("v_cmp_gt_u32 vcc, 50, v0\nv_cndmask_b32 v%d, v23, v%d, vcc\nv_mov_b32 v16, %d\nv_cndmask_b32 v%d, v16, v%d, vcc" % (vGA, vGA, 3840, vIW, vIW))
        e.V("v_and_b32 v16, 0x13, v0\nv_bfe_u32 v17, v0, 2, 1\nv_lshl_or_b32 v16, v17, 3, v16\nv_bfe_u32 v17, v0, 3, 1\nv_lshl_or_b32 v16, v17, 2, v16")
        e.V("v_mul_u32_u24 v%d, 96, v16\nv_lshl_add_u32 v%d, v%d, 4, v%d" % (vAR, vAR, vH, vAR))
        e.V("v_and_b32 v16, 7, v16\nv_mul_u32_u24 v%d, 96, v16\nv_lshl_add_u32 v%d, v%d, 4, v%d" % (vAR2, vAR2, vH, vAR2))
        e.V("s_mul_i32 %s, %s, 5" % (sT0, sG))
        e.V("v_and_b32 v16, 15, v0\nv_lshlrev_b32 v16, 4, v16\nv_lshl_add_u32 v16, v19, 10, v16")
        for p in range(3):
            e.V("v_add_u32 v17, %s, v%d\nv_add_u32 v17, %d, v17\nv_lshrrev_b32 v18, 2, v17\nv_mul_u32_u24 v18, 5120, v18" % (sT0, vH, 2 * p))
            e.V("v_and_b32 v17, 3, v17\nv_lshl_add_u32 v17, v17, 8, v16\nv_add_u32 v%d, v17, v18" % MS[p])
        e.V("v_cmp_gt_u32 vcc, 32, v0\nv_cndmask_b32 v%d, v23, v%d, vcc\nv_cmp_eq_u32 %s, 0, v19" % (MS[2], MS[2], sHM))
        a16, a8 = vT[3], vT[4]
        e.V("v_lshl_add_u32 v%d, v%d, 5, %s\nv_add_u32 v%d, %s, v%d" % (vZR, vH, sREG, a16, sREG, vL16))
        e.V("v_lshlrev_b32 v27, 3, v0\nv_add_u32 v%d, %s, v27\nv_add_u32 v28, %d, v27\nv_add_u32 v15, %d, v%d" % (a8, sREG, 2 * REGION, 2 * REGION, vL16))
        e.V("s_mul_i32 %s, %s, %d\ns_mul_i32 %s, %s, 1536\ns_add_u32 %s, %s, %s\ns_add_u32 %s, %s, %d" % (sT0, sW, 4 * 3072, sT1, sHALF, sT0, sT0, sT1, sT0, sT0, ZP))
        e.V("s_lshr_b32 %s, %s, 1\ns_mul_i32 %s, %s, %d\ns_add_u32 %s, %s, %d" % (sT1, sG, sT1, sT1, 16 * 20480, sT1, sT1, KVP))
        e.V("s_add_u32 %s, %s, %d\nv_and_b32 v%d, 0x7c, v%d" % (sBE, sBE, GATE, vT[2], vL4))
        e.V("s_lshl2_add_u32 %s, %s, %s\ns_lshl1_add_u32 %s, %s, %s\ns_lshl_b32 %s, %s, 11\ns_add_u32 %s, %s, %d" % (sT2, sI, sW, sT2, sT2, sHALF, sT2, sT2, sT2, sT2, SC))
        e.V("s_mul_i32 %s, %s, %d\ns_add_u32 %s, %s, %d" % (sT3, sCT, 48 * 5120, sT3, sT3, BP))
        e.flag(pq_st, sPF)
        if early_w:
            e.check(ldo, "v_cmp_eq_u32 vcc, -1, v215")
            e.p3_jobs(e.q1, 0, e.n3, free=True)
            e.drain_all()
        if e.opt.get("h_two", 1):
            e(ldw)
            e.stamp(5)
            e.check(ldw, "v_cmp_eq_u32 vcc, -1, v208", site=57)
        e(ld1)
        e.check(ld1, "v_max_u32 v213, v208, v209\nv_cmp_eq_u32 vcc, -1, v213", site=58)
        e.wait_all(vm=False)
        e("s_barrier")
        e.stamp(6)
        vG = vT[10]
        KL = lambda r: 36 + 4 * r if r < 15 else 240
        for r in range(4):
            e("buffer_load_dwordx4 %s, v%d, %s, %s offen sc1" % (R("v", 208 + 4 * r, 4), vL16, sWS, sT0))
            e("buffer_load_dwordx2 %s, v27, %s, %s offen offset:1024 sc1" % (R("v", 224 + 2 * r, 2), sWS, sT0))
            if r < 3:
                e("s_add_u32 %s, %s, 3072" % (sT0, sT0))
        e("buffer_load_dword v%d, v%d, %s, %s offen sc1" % (vG, vT[2], sWS, sBE))
        for r in range(16):
            e.q1.append(Job(lambda: True, ["buffer_load_dwordx4 %s, v%d, %s, %s offen sc1" % (R("a", KL(r), 4), vGA, sWS, sT1)],
                            ["s_add_u32 %s, %s, 20480" % (sT1, sT1)] if r else [], weight=1.2))
        e.bg_vm(force=True, maxn=e.opt.get("h_n0", 5))

        def zsum(off):
            for r in range(1, 4):
                for k in (0, 2):
                    e("v_pk_add_f32 %s, %s, %s" % (R("v", 208 + k, 2), R("v", 208 + k, 2), R("v", 208 + 4 * r + k, 2)))
                e("v_pk_add_f32 v[224:225], v[224:225], %s" % R("v", 224 + 2 * r, 2))
            e("ds_write_b128 v%d, v[208:211] offset:%d\nds_write_b64 v%d, v[224:225] offset:%d" % (a16, off, a8, off + 1024))
        zsum(0)
        e.bg_vm(force=True, maxn=2)
        e.wait_all(vm=False)
        e("s_barrier")
        for r in range(4):
            e("ds_read_b128 %s, v%d offset:%d" % (R("v", 208 + 4 * r, 4), 15 if r >= 2 else vL16, (r & 1) * REGION))
            e("ds_read_b64 %s, v%d offset:%d" % (R("v", 224 + 2 * r, 2), 28 if r >= 2 else 27, (r & 1) * REGION + 1024))
        e.bg_vm(force=True, maxn=2)
        zsum(2048)
        e.stamp(2)
        e.pipe = e.gate = e.cyc
        ZB = [208, 228]

        def zread(hg):
            for k in range(5):
                J = 5 * (hg & 1) + k
                e("ds_read_b128 %s, v%d offset:%d" % (R("v", ZB[hg & 1] + 4 * k, 4), vZR, 2048 + 384 * (hg >> 1) + 64 * (J >> 1) + 16 * (J & 1)))
        zread(0)
        zread(1)
        AA, AB, BB, BC, CC, CD, DD = 16, 18, 20, 22, 32, 34, 36
        e.V("v_cmp_gt_u32 vcc, 32, v0")
        for gr in range(4):
            for J in range(10):
                acc = (AA, AA, AB, BB, BC, BC, CC, CD, DD, DD)[J]
                x = Q + 40 * gr + 4 * J
                z = ZB[J // 5] + 4 * (J % 5)
                if J in (1, 5, 9):
                    e.V("v_pk_fma_f32 %s, %s, %s, %s" % (R("v", acc, 2), R("v", x, 2), R("v", z, 2), R("v", acc, 2)))
                else:
                    e.V("v_pk_mul_f32 %s, %s, %s" % (R("v", acc, 2), R("v", x, 2), R("v", z, 2)))
                e.V("v_pk_fma_f32 %s, %s, %s, %s" % (R("v", acc, 2), R("v", x + 2, 2), R("v", z + 2, 2), R("v", acc, 2)))
                if J in (4, 9) and gr < 3:
                    zread(2 * gr + 2 + J // 5)
            for r_ in (BC, AA, AB, BB, CC, CD, DD):
                e.V("v_add_f32 v%d, v%d, v%d" % (r_, r_, r_ + 1))
            e.V("v_cndmask_b32 v%d, 0, v%d, vcc\nv_sub_f32 v%d, v%d, v%d" % (BC + 1, BC, BC, BC, BC + 1))
            e.V("v_add_f32 v%d, v%d, v%d\nv_add_f32 v%d, v%d, v%d" % (BB, BB, BC + 1, CC, CC, BC))
            e.V("v_add_f32 v%d, %s, v%d\nv_add_f32 v%d, %s, v%d" % (AB, f32(1e-6), AB, CD, f32(1e-6), CD))
            e.V("v_permlane32_swap_b32 v%d, v%d\nv_permlane32_swap_b32 v%d, v%d" % (AA, BB, CC, DD))
            e.V("v_add_f32 v%d, v%d, v%d\nv_add_f32 v%d, v%d, v%d" % (AB, AB, AA, CD, CD, CC))
            e.V("v_add_f32 v%d, v%d, v%d\nv_add_f32 v%d, v%d, v%d" % (AB, AB, BB, CD, CD, DD))
            e.V("v_rcp_f32 v%d, v%d\nv_rcp_f32 v%d, v%d" % (AB, AB, CD, CD))
            e.V("v_mul_f32 v%d, v%d, v%d\nv_mul_f32 v%d, v%d, v%d" % (248 + 2 * gr, AB, vG, 249 + 2 * gr, CD, vG))
            if gr == 3:
                for k in range(2):
                    last = e("buffer_store_dwordx4 %s, v%d, %s, %s offen offset:%d sc1" % (R("v", 248 + 4 * k, 4), vL16, sWS, sT2, k * 1024))
            if gr == e.opt.get("h_kv", 2):
                e.drain_all()
                for r in range(16):
                    d = Q + (4 if r else 0)
                    for k in range(4):
                        e("v_accvgpr_read_b32 v%d, a%d" % (d + k, KL(r) + k))
                    if r:
                        for k in (0, 2):
                            e("v_pk_add_f32 %s, %s, %s" % (R("v", Q + k, 2), R("v", Q + k, 2), R("v", d + k, 2)))
                e.pack(Q, 4, Q + 8)
                img_w = e("ds_write_b64 v%d, %s offset:%d" % (vIW, R("v", Q + 8, 2), IMG))
            if gr == 3:
                e.stamp(3)
                e.wait(lg=img_w)
                e("s_barrier")
                for ks in range(3):
                    e("ds_read_b128 %s, v%d offset:%d" % (R("a", 40 + 4 * ks, 4), vAR, IMG + 32 * ks))
                for ks in (1, 2):
                    e("ds_read_b128 %s, v%d offset:%d" % (R("a", 48 + 4 * ks, 4), vAR2, IMG + 32 * 96 + 32 * ks))

        def mm(bb):
            d1, d2 = R("v", Q + 32 * bb, 16), R("v", Q + 32 * bb + 16, 16)
            for ks in range(3):
                e("v_mfma_f32_32x32x16_bf16 %s, %s, %s, %s" % (d1, R("a", 40 + 4 * ks, 4), R("a", 12 * bb + 4 * ks, 4), d1 if ks else "0"))
            for ks in (1, 2):
                e("v_mfma_f32_32x32x16_bf16 %s, %s, %s, %s" % (d2, R("a", 48 + 4 * ks, 4), R("a", 12 * bb + 4 * ks, 4), d2 if ks == 2 else "0"))
        mm(0)
        e.stamp(7)
        for bb in range(3):
            if bb < 2:
                mm(bb + 1)
            if bb == 2:
                e("s_mov_b64 exec, %s\ns_add_u32 %s, %s, 4096" % (sHM, sT3, sT3))
            for p in range(3):
                d = 208 + 4 * (3 * bb + p)
                e.pack(Q + 32 * bb + 8 * p, 8, d)
                m_last = e("buffer_store_dwordx4 %s, v%d, %s, %s offen offset:%d sc1" % (R("v", d, 4), MS[p], sWS, sT3, (bb & 1) * 2048))
        e("s_mov_b64 exec, -1")
        e("s_lshl4_add_u32 %s, %s, %s\ns_lshl_b32 %s, %s, 7\ns_add_u32 %s, %s, %d" % (sT1, sCT, sG, sT1, sT1, sT1, sT1, F_M))
        e.flag(last, sSF)
        e.flag(m_last, sT1)
        e.stamp(8)
        e.wait_all(vm=False)
        e("s_barrier")
        e("s_mov_b32 %s, 0x%x" % (sFL, OOB))
        if e.opt.get("stop", 9) <= 2:
            return None
        e.p3_setup()
        if early_w:
            e("s_add_u32 %s, %s, %d" % (e.sW3, e.sW3, (e.n3 - 1) // 4 * 4096))
        else:
            e.p3_poll(0)
            e.p3_check(0)
            e.p3_jobs(e.q1, 0, e.n3, free=True)
            e.drain_all()
        e.q1 = []
        e.wait_all()
        return e.join_state({"last": -1})

    def phase2(self, ids):
        e = self
        o = e.opt
        e.ev = {"xfree": True, "norm_done": True, "f": -1, "n3": 0}
        nqd, nqr = e.nqd, e.nqd - 4
        for q in range(nqd):
            e.ev[("adma", q)] = [-1] * 4
        for g in range(NB0):
            e.ev[("dma", "P", g)] = [-1] * 4
            e.ev[("ndma", "P", g)] = 4
        e.lat = 10 ** 9
        e.wring = WRING
        e.pace = o.get("pace2", 66)
        ACC_S, ACC_O, TT, RAW = 128, Z2ACC, 80, 112
        vB = [20, 21]
        vG, vK = vT[6], vT[5]
        p = e.prog
        full = o.get("stop", 9) > 2
        e("v_add_u32 v%d, %d, v%d\nv_add_u32 v%d, %d, v%d" % (vB[0], WOFF, vL16, vB[1], WOFF + 2 * REGION, vL16))

        def opened(g):
            if g == 0:
                e.a_jobs(nqd, nqd, nqr, 16, e.q1)
                q = nqd
                for g_ in range(NB0, 16):
                    while q < 16 and q <= 2 * g_:
                        e.a_jobs(q, q + 1, 0, 0, e.q1)
                        e.q1[-1].need = ("P", 8 * q - 8)
                        q += 1
                    e.b_jobs(g_, g_ + 1)
                    e.q1[-1].need = ("P", 16 * g_ - 6)
                e.pipe = e.gate = e.cyc

        def read(f, dst):
            g, rem = divmod(f, 16)
            ks, blk = divmod(rem, 2)
            r_ = ks >> 1
            return e("ds_read_b128 %s, v%d offset:%d" % (R("v", dst, 4), vB[r_ >> 1], (r_ & 1) * REGION + ((g + 3) % 6) * 4096 + (ks & 1) * 2048 + blk * 1024))

        def mfma(f, bf):
            g, rem = divmod(f, 16)
            ks, blk = divmod(rem, 2)
            q = 2 * (g % 8) + (ks >> 2)
            qn = min(15, (f + 4) >> 3)
            if qn >= nqr and ("ard", qn) not in e.ev:
                e.lat = 0
                e.drain(lambda: ("ard", qn) in e.ev)
                e.lat = 10 ** 9
            if f == 128:
                assert e.ev.get("bias")
            acc = R("v", (ACC_S if g < 8 else ACC_O) + 16 * blk, 16)
            e("v_mfma_f32_32x32x16_bf16 %s, %s, %s, %s" % (acc, bf, rr(ASLOT[q], 4, 4 * (ks & 3)), "0" if f < 2 else acc))

        def at(f):
            return ("until", lambda: -1 if e.ev["f"] >= f else 10 ** 9)

        def lines(text):
            p.extend(text.split("\n"))

        sPXS, sPXF, sPXR = sROW[1], sROW[2], sROW[3]
        nst = 4 if o.get("px16", 1) else 8
        lines("s_mul_i32 %s, %s, 14\ns_add_u32 %s, %s, %s\ns_lshl2_add_u32 %s, %s, %s" % (sT0, sI2, sT0, sT0, sJ2, sPXR, sT0, sW))
        lines("s_xor_b32 %s, %s, 4\ns_lshl_b32 %s, %s, 13\ns_add_u32 %s, %s, %d" % (sT0, sPXR, sPXS, sT0, sPXS, sPXS, PX))
        lines("s_lshl_b32 %s, %s, 7\ns_add_u32 %s, %s, %d" % (sPXF, sT0, sPXF, sPXF, F_PX))
        lines("s_lshl2_add_u32 %s, %s, %s\ns_lshl_b32 %s, %s, 7\ns_lshl_b32 %s, %s, 10\ns_add_u32 %s, %s, %d" % (sAB, sI2, sW, sAE, sAB, sAO, sAB, sAO, sAO, F_Z1))
        lines("s_mul_i32 %s, %s, 14\ns_add_u32 %s, %s, %s\ns_lshl_b32 %s, %s, 12\ns_add_u32 %s, %s, %d" % (sAB, sAB, sAB, sAB, sJ2, sAB, sAB, sAB, sAB, Z1))
        lines("s_add_u32 %s, %s, %d\nv_min_u32 v%d, %d, v%d\nv_and_b32 v%d, 0x7c, v%d" % (sAE, sAE, GATE, vT[8], 5 * 128, vL128, vT[7], vL4))
        p.append("v_lshlrev_b32 v%d, 16, v%d" % (vT[10], vT[10]))
        p.extend("v_mov_b32 v%d, v%d" % (ACC_O + k, vT[10]) for k in range(32))
        p += [("call", lambda: e.ev.__setitem__("bias", True), 0)]
        if full:
            e.p3_setup(lambda t: p.append(t) if "cmp" in t else lines(t))
        z1_ld = "buffer_load_dword v%d, v%d, %s, %s offen sc1" % (vT[9], vT[8], sWS, sAO)
        z1p = [z1_ld] + ([e.p3_ld(0)] if full else [])
        z1p += [e.mark("z1p"), ("until", lambda: e.ev["z1p"]), ("call", lambda: e.check(z1_ld, "v_cmp_eq_u32 vcc, -1, v%d" % vT[9], site=59), 16)]
        z1p.append("buffer_load_dword v%d, v%d, %s, %s offen sc1" % (vG, vT[7], sWS, sAE))
        z1p += ["buffer_load_dwordx4 %s, v%d, %s, %s offen offset:%d sc1" % (R("v", RAW + 4 * k, 4), vL16, sWS, sAB, k * 1024) for k in range(4)]
        z1p.append(e.mark("z1d"))
        if full:
            z1p.append(("call", lambda: (e.p3_check(0), e.p3_jobs(e.q2, 0, e.n3)), 16))
        p.append(("call", lambda: e.ev.__setitem__("setup", True), 0))
        act = ["v_sub_f32 v%d, 1.0, v%d" % (vG, vG), "v_mov_b32 v%d, %s" % (vK, f32(GK2))]
        for g0 in range(0, 32, 4):
            xs = [(TT + g0 + k, vT[k]) for k in range(4)]
            for k in range(0, 4, 2):
                act.append("v_lshlrev_b32 v%d, 16, v%d" % (TT + g0 + k, RAW + (g0 + k) // 2))
                act.append("v_and_b32 v%d, 0xffff0000, v%d" % (TT + g0 + k + 1, RAW + (g0 + k) // 2))
            for fmt in ("v_mul_f32 v{t}, v{x}, v{x}", "v_fmaak_f32 v{t}, v%d, v{t}, %s" % (vK, f32(GK1)), "v_mul_f32 v{t}, v{t}, v{x}",
                        "v_exp_f32 v{t}, v{t}", "v_mul_f32 v{x}, v{x}, v%d" % vG, "v_add_f32 v{t}, 1.0, v{t}", "v_rcp_f32 v{t}, v{t}",
                        "v_mul_f32 v{x}, v{x}, v{t}"):
                act += [fmt.format(x=x, t=t) for x, t in xs]
        p += [("until", lambda: e.ev.get("z1d", 10 ** 9))] + act

        def front(items):
            return lambda: e.hi.extend(items)
        px_ld = "buffer_load_dword v%d, off, %s, %s sc1" % (vT[9], sWS, sPXF)
        e.st_scale = 0.65
        hooks = {0: front(e.deferred_stores() + [e.mark("role"), ("call", lambda: setattr(e, "st_scale", 1.0), 0)]),
                 o.get("f_rflag", 42): front([("call", lambda: e.flag(e.ev["role"], sFL), 20)]),
                 o.get("f_boost", 150): lambda: setattr(e, "boost", o.get("boost2", 4))}
        hooks[o.get("f_z1", 88)] = lambda: (e.ev["setup"], e.hi.extend(z1p))
        step = o.get("px_step", 5)
        for k in range(nst):
            st_ = "buffer_store_dwordx4 %s, v%d, %s, %s offen offset:%d sc1" % (R("v", ACC_S + 4 * k, 4), vL16B if k >= 4 else vL16, sWS, sPXS, (k % 4) * 1024)
            pk = ["v_cvt_pk_bf16_f32 v%d, v%d, v%d" % (ACC_S + 4 * k + j, ACC_S + 8 * k + 2 * j, ACC_S + 8 * k + 2 * j + 1) for j in range(4)] if nst == 4 else []
            hooks[131 + step * k] = front(pk + [st_, e.mark("px")])
        hooks[o.get("f_pxflag", 176)] = front([("call", lambda: e.flag(e.ev["px"], sPXF), 20)])
        hooks[o.get("f_pxpoll", 208)] = front(["s_lshl_b32 %s, %s, 7" % (sPXF, sPXR), "s_add_u32 %s, %s, %d" % (sPXF, sPXF, F_PX),
                                               "s_lshl_b32 %s, %s, 13" % (sPXR, sPXR), "s_add_u32 %s, %s, %d" % (sPXR, sPXR, PX), px_ld])
        PR = ACC_S + 16 if nst == 4 else ACC_S
        hooks[o.get("f_pxload", 228)] = front(
            [("call", lambda: e.check(px_ld, "v_cmp_eq_u32 vcc, -1, v%d" % vT[9], site=61), 20)] +
            ["buffer_load_dwordx4 %s, v%d, %s, %s offen offset:%d sc1" % (R("v", PR + 4 * k, 4), vL16B if k >= 4 else vL16, sWS, sPXR, (k % 4) * 1024)
             for k in range(nst)])
        hooks[100] = lambda: e.touch("L_p2", 8192)
        if full:
            hooks[180] = lambda: e.touch("L_p3")
        e.mfma_loop("P", 16, 16, read, mfma, opened, True, hooks, 40)
        assert not e.q1 and not e.qd
        e.boost = 0
        e.ev["f"] = 999
        e.prog_flush()
        e.lstamp(None)
        e.stamp(7)
        self.left3 = len(e.q2)
        e.drain_all()
        vU, vU0 = vT[7], vT[8]
        e.ap_voff(vU)
        e("s_cmp_eq_u32 %s, 0\ns_cselect_b32 %s, 0x%x, 0\nv_add_u32 v%d, %s, v%d" % (sJ2, sT1, OOB, vU0, sT1, vU))
        e("s_lshl2_add_u32 %s, %s, %s\ns_mul_i32 %s, %s, %d\ns_lshl_b32 %s, %s, 11" % (sT0, sI2, sW, sT0, sT0, 2 * 49152, sT1, sJ2))
        e("s_add_u32 %s, %s, %s\ns_add_u32 %s, %s, %d" % (sT0, sT0, sT1, sT0, sT0, AP + 19 * 1024))
        for k in range(8):
            g = ACC_O + 4 * k
            src = ACC_S + 4 * k
            if nst == 4:
                src = ACC_S + 4 * (k & 1)
                for j in range(2):
                    e("v_lshlrev_b32 v%d, 16, v%d\nv_and_b32 v%d, 0xffff0000, v%d" % (src + 2 * j, PR + 2 * k + j, src + 2 * j + 1, PR + 2 * k + j))
            for o_ in (0, 2):
                e("v_pk_add_f32 %s, %s, %s" % (R("v", g + o_, 2), R("v", g + o_, 2), R("v", src + o_, 2)))
            for o_ in (0, 2):
                e("v_pk_mul_f32 %s, %s, %s" % (R("v", g + o_, 2), R("v", g + o_, 2), R("v", TT + 4 * k + o_, 2)))
            for o_ in (0, 2):
                e("v_cvt_pk_bf16_f32 v%d, v%d, v%d" % (TT + 2 * k + o_ // 2, g + o_, g + o_ + 1))
            if k & 1:
                blk, p = divmod(k >> 1, 2)
                last = e("buffer_store_dwordx4 %s, v%d, %s, %s offen offset:%d sc1" % (R("v", TT + 2 * k - 2, 4), vU if blk else vU0, sWS, sT0, blk * 1024 + p * 512))
        e("s_lshr_b32 %s, %s, 1\ns_lshl1_add_u32 %s, %s, %s\ns_lshl_b32 %s, %s, 5" % (sT0, sW, sT0, sI2, sT0, sT0, sT0))
        e("s_and_b32 %s, %s, 1\ns_lshl1_add_u32 %s, %s, %s\ns_add_u32 %s, %s, %s" % (sT1, sW, sT1, sJ2, sT1, sT0, sT0, sT1))
        e("s_lshl_b32 %s, %s, 7\ns_add_u32 %s, %s, %d" % (sT0, sT0, sFL, sT0, F_U))
        e.stamp(8)
        if o.get("stop", 9) <= 2:
            return None
        e.wait(lg=e.lg_n - 1)
        return e.join_state({"last": last})

    POOL = ([("a", 96 + 4 * k) for k in range(35)] + [("v", 192 + 4 * k) for k in range(16)] + [("v", 160 + 4 * k) for k in range(4)]
            + [("a", 236 + 4 * k) for k in range(5)] + [("a", 4 * k) for k in range(20)])
    POOLFREE = [-1] * 16 + [128 + 8 * (k // 4) + 7 for k in range(19)] + [998] * 45
    sRU = ["s63", "s64", "s65", "s71"]
    sB3, sF3, sW3 = "s72", "s73", "s99"
    vP = [16, 17, 18, 28]
    vZ = 22

    def p3_setup(self, emit=None):
        e = _Redirect(self, emit)
        for b in range(4):
            e("s_add_u32 %s, %s, %d\ns_and_b32 %s, %s, 3\ns_lshl2_add_u32 %s, %s, %s" % (sT0, sW, b + 1, sT0, sT0, sT0, sP, sT0))
            e("s_mul_i32 %s, %s, 48\ns_mul_i32 %s, %s, 5\ns_add_u32 %s, %s, %s" % (sT0, sT0, sT1, sW, sT0, sT0, sT1))
            e("s_lshl_b32 %s, %s, 10\ns_add_u32 %s, %s, %d" % (sT0, sT0, e.sRU[b], sT0, AP))
        e("s_mul_i32 %s, %s, 48\ns_add_u32 %s, %s, %s\ns_mul_i32 %s, %s, 5120\ns_add_u32 %s, %s, %d" % (sT0, sC, sT0, sT0, sT1, sT0, sT0, e.sB3, sT0, BP))
        e("s_mul_i32 %s, %s, %d\ns_add_u32 %s, %s, %s\ns_add_u32 %s, %s, %d" % (sT0, sW, 2 * 5120, e.sW3, e.sB3, sT0, e.sW3, e.sW3, 20 * 5120))
        e("s_lshr_b32 %s, %s, 1\ns_lshl_b32 %s, %s, 12" % (sT0, sC, sT0, sT0))
        e("s_mul_i32 %s, %s, %d\ns_add_u32 %s, %s, %s" % (sT1, sW, 7 * 128, sT0, sT0, sT1))
        e("s_add_u32 %s, %s, %d\nv_min_u32 v%d, %d, v%d\nv_add_u32 v%d, %s, v%d" % (sT1, sT0, F_WO, e.vP[0], 6 * 128, vL128, e.vP[0], sT1, e.vP[0]))
        e("s_lshl2_add_u32 %s, %s, %s\ns_lshl_b32 %s, %s, 9\ns_add_u32 %s, %s, %d" % (sT0, sC, sW, sT0, sT0, sT0, sT0, F_M))
        e("v_add_u32 v%d, %s, v%d" % (e.vP[1], sT0, vL128))
        e("s_lshl_b32 %s, %s, 12\ns_add_u32 %s, %s, %d" % (e.sF3, sP, e.sF3, e.sF3, F_U))
        e("s_lshr_b32 %s, %s, 1\ns_lshl_b32 %s, %s, 8\ns_add_u32 %s, %s, %s\ns_add_u32 %s, %s, %d" % (sT0, sW, sT0, sT0, sT0, sT0, e.sF3, sT0, sT0, 28 * 128))
        e("v_and_b32 v%d, 0x80, v%d\nv_add_u32 v%d, %s, v%d" % (e.vP[2], vL128, e.vP[3], sT0, e.vP[2]))
        e("s_lshr_b32 %s, %s, 1\ns_lshl1_add_u32 %s, %s, %s\ns_lshl_b32 %s, %s, 8\ns_add_u32 %s, %s, %d" % (sT0, sW, sT0, sP, sT0, sT0, sT0, sT0, sT0, F_SC))
        e("v_add_u32 v%d, %s, v%d" % (e.vP[2], sT0, e.vP[2]))
        e("v_cmp_gt_u32 vcc, 4, v0\nv_cndmask_b32 v%d, v%d, v%d, vcc" % (e.vP[1], e.vP[2], e.vP[1]))
        e("s_mul_i32 %s, %s, 7\ns_add_u32 %s, %s, 1\ns_and_b32 %s, %s, 0xfe" % (sT0, sW, sT0, sT0, sT0, sT0))
        e("v_and_b32 v%d, 7, v0\nv_add_u32 v%d, %s, v%d\nv_min_u32 v%d, 27, v%d\nv_lshlrev_b32 v%d, 7, v%d\nv_add_u32 v%d, %s, v%d"
          % (e.vP[2], e.vP[2], sT0, e.vP[2], e.vP[2], e.vP[2], e.vP[2], e.vP[2], e.vP[2], e.sF3, e.vP[2]))
        e("s_cmp_eq_u32 %s, 3\ns_cselect_b32 %s, 0x%x, 0\nv_add_u32 v%d, %s, v%d" % (sW, sT0, OOB, e.vZ, sT0, vL16))

    def p3_ld(self, k):
        return "buffer_load_dword v19, v%d, %s, 0 offen sc1" % (self.vP[k], sWS)

    def p3_poll(self, k):
        return self(self.p3_ld(k))

    def p3_check(self, k):
        self.check(self.p3_ld(k), "v_cmp_eq_u32 vcc, -1, v19", site=(60, 62, 63, 15)[k])

    def p3_jobs(self, queue, start=0, end=80, free=False):
        e = self
        e.ev.setdefault("f", 999)
        e.ev["n3"] = start
        jobs = [("W", n) for n in range(35)]
        jobs = [(k, x, n) for n, (k, x) in enumerate(jobs)]
        jobs += [("A", (b, kl), 35 + 4 * kl + b) for kl in range(2) for b in range(4)]
        for kl in range(5):
            jobs += [("B", 5 * kl + t, 55 + 5 * kl + t) for t in range(5)]
            if kl < 3:
                jobs += [("A", (b, kl + 2), 43 + 4 * kl + b) for b in range(4)]
        for n in range(start, end):
            kind, x, slot = jobs[n]
            setup = []
            if kind == "A":
                v, so, off = vL16B if x[1] >= 4 else vL16, e.sRU[x[0]], x[1] % 4
            elif kind == "B":
                v, so, off = vL16B if x % 8 >= 4 else vL16, e.sB3, x % 4
                if x and x % 8 == 0:
                    setup = ["s_add_u32 %s, %s, 8192" % (so, so)]
            else:
                v, so, off = e.vZ if x >= 30 else vL16, e.sW3, x % 4
                if x and x % 4 == 0:
                    setup = ["s_add_u32 %s, %s, 4096" % (so, so)]
            queue.append(Job(lambda n=n: free or e.ev["f"] >= e.POOLFREE[n],
                             ["buffer_load_dwordx4 %s, v%d, %s, %s offen offset:%d sc1" % (rr(e.POOL[slot], 4), v, sWS, so, off * 1024)], setup,
                             done=lambda n=n: e.ev.__setitem__("n3", n + 1)))

    def phase3(self, ids):
        e = self
        o = e.opt
        e.ev = {}
        ACC = 80
        vW = 20
        RA = [21, 23, 27]
        PQ, MF = e.POOL[35:55], e.POOL[55:]
        UR = [("a", 80 + 4 * k) for k in range(4)] + [("v", 176 + 4 * k) for k in range(4)] + [("v", 48 + 4 * k) for k in range(4)] + MF[:16]
        SA = [8, 9, 10, 11, 12, 13, 14, 15, 1, 3]
        e.p3_jobs(e.q1, e.n3)

        def top_up(n):
            while e.q1 and e.ev["n3"] < n:
                e.bg_vm(force=True)
        both = e.p3_ld(3) + "\n" + e.p3_ld(1).replace("v19,", "v16,")
        top_up(min(35, e.n3 + o.get("burst3", 4)))
        e(both)
        top_up(min(35, e.n3 + o.get("burst3", 4) + 4))
        e("v_lshrrev_b32 v26, 4, v0\nv_and_b32 v24, 15, v0\nv_lshl_add_u32 v25, v24, 4, %s" % sREG)
        for n_, r_ in enumerate(SA):
            e("v_lshl_add_u32 v4, v26, 1, %d\nv_mul_u32_u24 v4, 0x3334, v4\nv_bfe_u32 v5, v4, 16, 1\nv_lshrrev_b32 v4, 17, v4" % (8 * (n_ >> 1) + (n_ & 1)))
            e("v_lshl_add_u32 v5, v5, 8, v25\nv_lshl_add_u32 v%d, v4, 2, v5" % r_)
        e("v_lshrrev_b32 v4, 5, v0\nv_add3_u32 v4, v4, %s, 1\nv_and_b32 v5, 1, v4\nv_bfe_u32 v4, v4, 1, 1" % sW)
        e("v_lshlrev_b32 v25, 4, v24\nv_lshl_add_u32 v25, v5, 8, v25\nv_and_b32 v5, 1, v26\nv_lshl_add_u32 v25, v5, 9, v25")
        e("v_lshl_add_u32 v4, v4, 12, v25\nv_xor_b32 v5, 0x1000, v4")
        e("s_lshl3_add_u32 %s, %s, %s\ns_lshl_b32 %s, %s, 10\ns_add_u32 %s, %s, %d" % (sT3, sP, sW, sT3, sT3, sT3, sT3, SC))
        e("v_add_u32 v%d, %s, v%d" % (vW, sREG, vL16))
        for b in range(3):
            e("s_add_u32 %s, %s, %d\ns_and_b32 %s, %s, 3\ns_mul_i32 %s, %s, %d" % (sT0, sW, 3 - b, sT0, sT0, sT0, sT0, REGION))
            e("v_add_u32 v%d, %s, v%d" % (RA[b], sT0, vL16))
        vO, vO2 = 24, 25
        e("v_mul_u32_u24 v%d, 1280, v%d" % (vO, vO))
        e("v_lshl_add_u32 v%d, v26, 3, v%d\nv_lshl_add_u32 v%d, v26, 4, v%d" % (vO2, vO, vO, vO))
        e("s_lshl2_add_u32 %s, %s, %s\ns_mul_i32 %s, %s, %d\ns_mul_i32 %s, %s, 160\ns_add_u32 %s, %s, %s" % (sT2, sP, sW, sT2, sT2, 16 * 1280, sT1, sC, sT2, sT2, sT1))
        e.flag(ids["last"], sFL)
        top_up(35)
        e("v_add_u32 v%d, 0x1000, v%d" % (e.vZ, e.vZ))
        e.check(both, "v_max_u32 v19, v19, v16\nv_cmp_eq_u32 vcc, -1, v19", site=62)
        e.stamp(9)
        for k in range(2):
            e("s_add_u32 m0, %s, %d" % (sREG, 1024 * k))
            sc_id = e("buffer_load_dwordx4 v%d, %s, %s offen sc1 lds" % (4 + k, sWS, sT3))
        top_up(35 + o.get("burstm", 9))
        ul = [(b, kl) for b in range(4) for kl in range(7)]
        nu = 0

        def uload():
            nonlocal nu
            b, kl = ul[nu]
            v = e.vZ if kl == 6 else (vL16B if kl >= 4 else vL16)
            e("buffer_load_dwordx4 %s, v%d, %s, %s offen offset:%d sc1" % (rr(UR[nu], 4), v, sWS, e.sRU[b], (kl % 4) * 1024))
            nu += 1

        def sread(kl):
            for b in range(4):
                for sub in range(2):
                    e("ds_read_b32 v%d, v%d offset:%d" % (32 + 8 * (kl & 1) + 2 * b + sub, SA[2 * kl + sub], 512 * b))

        state = 0

        def pump(limit):
            nonlocal state
            if not e.pipe_ok():
                return
            if state == 0 and e.ev["n3"] >= 80 - o.get("poll3", 5):
                e.p3_poll(2)
                state = 1
            elif e.q1:
                e.bg_vm()
            elif state == 1:
                for b in range(4):
                    e("s_lshl_b32 %s, %s, 11\ns_add_u32 %s, %s, %s\ns_add_u32 %s, %s, %d" % (sT0, sW, e.sRU[b], e.sRU[b], sT0, e.sRU[b], e.sRU[b], 20 * 1024))
                e.p3_check(2)
                e.stamp(10)
                state = 2
            elif state == 2 and nu < min(28, limit):
                uload()

        e.wait(vm=sc_id)
        sread(0)
        sread(1)
        e.pipe = e.gate = e.cyc
        e.pace = o.get("pace3", 80)

        def scale(kl):
            for b in range(4):
                x = PQ[4 * kl + b][1]
                t = 64 + 4 * b
                sreg = R("v", 32 + 8 * (kl & 1) + 2 * b, 2)
                for k in range(4):
                    e("v_lshlrev_b32 v%d, 16, v%d\nv_and_b32 v%d, 0xffff0000, v%d" % (t + k, x + k, x + k, x + k))
                pump(12 + 5 * max(0, kl - 1))
                for y in (x, t):
                    e("v_pk_mul_f32 %s, %s, %s op_sel_hi:[1,0]" % (R("v", y, 2), R("v", y, 2), sreg))
                    e("v_pk_mul_f32 %s, %s, %s op_sel:[0,1] op_sel_hi:[1,1]" % (R("v", y + 2, 2), R("v", y + 2, 2), sreg))
                for k in range(4):
                    e("v_cvt_pk_bf16_f32 v%d, v%d, v%d" % (x + k, t + k, x + k))
                pump(12 + 5 * max(0, kl - 1))
            if kl < 3:
                sread(kl + 2)
        scale(0)
        for kl in range(5):
            top_up(min(80, 48 + 9 * kl + o.get("ahead3", 8)))
            if kl < 4:
                scale(kl + 1)
            for b in range(4):
                for t in range(5):
                    acc = R("v", ACC + 20 * b + 4 * t, 4)
                    e("v_mfma_f32_16x16x32_bf16 %s, %s, %s, %s" % (acc, rr(MF[5 * kl + t], 4), rr(PQ[4 * kl + b], 4), "0" if kl == 0 else acc))
                    pump(12 + 5 * kl)
        while state < 2:
            e.pipe = e.gate = e.cyc
            pump(0)
        assert state == 2
        while nu < o.get("burstu", 10):
            uload()
        wr = []
        n = 0
        for b in range(4):
            for kl in range(7):
                for t in range(5):
                    acc = R("v", ACC + 20 * b + 4 * t, 4)
                    e("v_mfma_f32_16x16x32_bf16 %s, %s, %s, %s" % (acc, rr(e.POOL[5 * kl + t], 4), rr(UR[7 * b + kl], 4), acc))
                    n += 1
                    if t == 0 and nu < 28:
                        uload()
                    elif wr and wr[0][0] <= n:
                        _, b_, t_ = wr.pop(0)
                        e("ds_write_b128 v%d, %s offset:%d" % (vW, R("v", ACC + 20 * b_ + 4 * t_, 4), b_ * 5120 + t_ * 1024))
            if b < 3:
                wr += [(n + 6 + 4 * t, b, t) for t in range(5)]
        assert not wr and nu == 28
        e.stamp(11)
        e.wait_all(vm=False)
        e("s_barrier")
        T = 192
        for t in range(5):
            for b in range(3):
                e("ds_read_b128 %s, v%d offset:%d" % (R("v", T + 12 * t + 4 * b, 4), RA[b], b * 5120 + t * 1024))
        OWN = ACC + 60
        P = 48
        for t in range(5):
            for b in range(3):
                for o_ in (0, 2):
                    e("v_pk_add_f32 %s, %s, %s" % (R("v", OWN + 4 * t + o_, 2), R("v", OWN + 4 * t + o_, 2), R("v", T + 12 * t + 4 * b + o_, 2)))
            for o_ in (0, 2):
                e("v_cvt_pk_bf16_f32 v%d, v%d, v%d" % (P + 2 * t + o_ // 2, OWN + 4 * t + o_, OWN + 4 * t + o_ + 1))
            sc = o.get("outsc", "")
            if t in (1, 3):
                e("buffer_store_dwordx4 %s, v%d, %s, %s offen offset:%d %s" % (R("v", P + 2 * t - 2, 4), vO, sOUT, sT2, 32 * (t - 1), sc))
            elif t == 4:
                e("buffer_store_dwordx2 %s, v%d, %s, %s offen offset:128 %s" % (R("v", P + 8, 2), vO2, sOUT, sT2, sc))

    def finish(self):
        e = self
        if e.opt.get("diag"):
            e.wait_all()
            e.stamp(12)
            e("s_lshl2_add_u32 %s, s2, %s\ns_lshl_b32 %s, %s, 8\ns_add_u32 %s, %s, %d" % (sT0, sW, sT0, sT0, sT0, sT0, DIAG))
            e("s_nop 4")
            e("buffer_store_dword v7, v%d, %s, %s offen" % (vL4, sWS, sT0))
            if e.opt.get("padto"):
                e.raw("    v_readlane_b32 s4, v7, %d\n    s_mov_b32 s5, 0\nL_pad_%d:\n    s_memrealtime s[0:1]\n    s_waitcnt lgkmcnt(0)\n    s_sub_u32 s0, s0, s4\n"
                      "    s_add_u32 s5, s5, 1\n    s_cmp_ge_u32 s5, 0x10000\n    s_cbranch_scc1 L_end\n    s_cmp_lt_u32 s0, %d\n    s_cbranch_scc1 L_pad_%d"
                      % (e.opt.get("padfrom", 13), e.nlabel, e.opt["padto"], e.nlabel))
            if e.opt.get("dbgout"):
                e("v_not_b32 v8, v7\nv_cmp_eq_u32 vcc, 13, v0\nv_cndmask_b32 v7, v7, v8, vcc")
                e("s_lshl_b32 %s, %s, 12\ns_mov_b64 exec, 0x3fff" % (sT0, sW))
                e("buffer_atomic_umax v7, v%d, %s, %s offen offset:4 sc1" % (vL4, sDBG, sT0))

    def build(self):
        e = self
        stop = e.opt.get("stop", 9)
        e.prologue()
        e("s_cmp_eq_u32 %s, 7\ns_cbranch_scc1 L_role_h" % sJL)
        snap_h = e.snapshot()
        e.main_start()
        e("s_cmp_eq_u32 %s, 13\ns_cbranch_scc1 L_role_l" % sJ)
        e("s_cmp_ge_u32 %s, 4\ns_cbranch_scc1 L_role_b" % sJL)
        snap = e.snapshot()
        main, e.L = e.L, []
        parts = {}
        states = []
        for name, fn in (("a", e.role_a), ("b", e.role_b), ("l", e.role_l)):
            e.restore(snap)
            e.ev, e.q1, e.q2, e.qd, e.prog, e.eta = {}, [], [], [], [], {}
            e.lpend = None
            e.pipe = e.gate = e.cyc
            states.append(e.p1_finish(fn()))
            parts[name], e.L = e.L, []
        e.restore(snap_h)
        e.ev, e.q1, e.q2, e.qd, e.prog, e.eta = {}, [], [], [], [], {}
        sth = e.role_h()
        if sth is None:
            e.finish()
            e("s_endpgm")
        parts["h"], e.L = e.L, []
        ids = e.merge(states)
        e.q1, e.q2, e.qd, e.prog, e.eta = [], [], [], [], {}
        e.raw("L_p2:")
        if stop <= 1:
            e.flag(e("\n".join(e.deferred_stores())), sFL)
        else:
            st2 = e.phase2(ids)
            if st2 is not None:
                ids = e.merge([st2, sth])
                e.eta = {}
                e.raw("L_p3:")
                e.phase3(ids)
        e.finish()
        rest, e.L = e.L, []
        e.L = main + parts["a"] + rest + ["L_end:", "    s_endpgm"]
        e.L += ["L_role_b:"] + parts["b"] + ["    s_branch L_p2"]
        e.L += ["L_role_l:"] + parts["l"] + ["    s_branch L_p2"]
        e.L += ["L_role_h:"] + parts["h"]
        if sth is not None:
            e.L += ["    s_branch L_p3"]
        return e.text() + "L_code_end:\n    s_endpgm\n"


def generate(opt):
    head = open("cdna_kernels/%s.s.ref" % NAME).read().split("; Override launch")[0] if opt.get("head", 1) else ""
    k = K(opt)
    body = k.build()
    if opt.get("verbose"):
        print("fragments forced at the end of phase 2:", getattr(k, "left3", None), file=sys.stderr)
    return (head + "; @launch grid=(256,1,1) block=(256,1,1) lds=163840\n"
            '.amdgcn_target "amdgcn-amd-amdhsa--gfx950"\n.text\n.globl %s_kernel\n.p2align 8\n.type %s_kernel,@function\n%s_kernel:\n' % (NAME, NAME, NAME)
            + body +
            '.section .rodata,"a"\n.p2align 6\n.amdhsa_kernel %s_kernel\n'
            "  .amdhsa_next_free_vgpr 512\n  .amdhsa_next_free_sgpr 102\n  .amdhsa_accum_offset 256\n"
            "  .amdhsa_group_segment_fixed_size 0\n  .amdhsa_kernarg_size 96\n  .amdhsa_user_sgpr_count 2\n"
            "  .amdhsa_user_sgpr_kernarg_segment_ptr 1\n  .amdhsa_system_sgpr_workgroup_id_x 1\n.end_amdhsa_kernel\n" % NAME)


if __name__ == "__main__":
    out = sys.argv[1]
    opt = {}
    for a in sys.argv[2:]:
        k, v = a.split("=")
        opt[k] = int(v) if v.lstrip("-").isdigit() else v
    open(out, "w").write(generate(opt))
```

```python
import math
import struct
import sys

from em import Em, R, rr

NAME = "gated_mix__linear_attn_block__mixer_gmlp__prompt"

STATS = 0
F_Z2N = 0x38000
F_Z1 = 0x54000
F_KV = 0x64000
F_U = 0x74000
F_M = 0x94000
F_WO = 0x98000
F_PX = 0x9C000
F_SC = 0xB8000
GATE = 0xC0000
ZP = 0xC4000
SC = 0x100000
KVP = 0x1900000
Z2N = 0x200000
Z1 = 0x600000
AP = 0xA00000
BP = 0x1000000
PX = 0x1200000
DIAG = 0x1C00000
WS_SIZE = 0x1D00000
OOB = 0x80000000

sX, sWQ, sWO, sWIN, sWSP, sBSP, sWOUT, sGW, sOUT, sDBG, sWS, sCODE = [R("s", 8 + 4 * k, 4) for k in range(12)]
sW, sI, sJL, sHALF, sJ, sREG, sW2K = ["s%d" % k for k in range(56, 63)]
sXO, sXB, sXE = "s63", "s64", "s65"
sAO, sAB, sAE = "s66", "s67", "s70"
sKC = "s[68:69]"
sBO, sBB, sBE = "s71", "s72", "s73"
sSPIN = "s74"
sT0, sT1, sT2, sT3 = "s75", "s76", "s77", "s3"
sROW = ["s78", "s79", "s80", "s81"]
sCH = ["s%d" % k for k in range(82, 90)]
sBCH = ["s%d" % k for k in range(90, 98)]
sG, sROT = "s98", "s99"
sI2, sJ2 = "s16", "s17"
sMASK = "s[100:101]"
sDEF = ["s32", "s33", "s34", "s35"]
sP, sC = "s4", "s5"
sSO = "s6"
sFL = "s7"

vLANE = "v0"
vXD = [8, 9, 10, 11]
vXR = [12, 13, 14, 15]
vWDI = [16, 17]
vWW = [18, 19]
vWS = [[20, 21], [22, 23]]
vWB = [24, 25, 26, 27, 28]
vL16, vL16B, vL4 = 29, 30, 31
vL128 = 2
vAD = [32, 33, 34, 35]
vT = list(range(36, 48))
Z2ACC = 48
ACCB = 80
WRING = 160
NR = 8
ASLOT = [("a", 160 + 16 * k) for k in range(6)] + [("v", 192 + 16 * k) for k in range(4)] + [("a", 16 * k) for k in range(6)]
REGION = 40960
WOFF = 16384

NB0 = 3
SPIN_MAX = 1 << 17


def f32(x):
    return "0x%08x" % struct.unpack("<I", struct.pack("<f", x))[0]


LOG2E = 1.4426950408889634
GK1 = -2.0 * math.sqrt(2.0 / math.pi) * LOG2E
GK2 = GK1 * 0.044715


class Job:
    def __init__(self, pre, loads, setup=(), post=(), sink=None, done=None, weight=1.0):
        self.weight = weight
        self.need = None
        self.pre, self.loads, self.setup, self.post, self.sink, self.done = pre, list(loads), list(setup), list(post), sink, done


def cost(text):
    c = 0
    for ln in text.split("\n"):
        op = ln.split()[0]
        if op == "ds_write_b128":
            c += 16
        elif op.startswith(("buffer_", "v_exp", "v_rcp", "v_rsq", "v_permlane", "ds_write_b64")):
            c += 8
        else:
            c += 4
    return c


def is_mem(item):
    return isinstance(item, str) and item.startswith(("ds_", "buffer_"))


class K(Em):
    def __init__(self, opt):
        super().__init__()
        self.cap = None
        self.opt = opt
        self.q1 = []
        self.q2 = []
        self.qd = []
        self.prog = []
        self.hi = []
        self.hold = 0
        self.armed = None
        self.post = []
        self.pipe = 0
        self.weight = 1.0
        self.gate = 0
        self.st_scale = 1.0
        self.eta = {}
        self.behind = opt.get("behind", 10)
        self.boost = 0
        self.slack = opt.get("slack", 8)
        self.pace = opt.get("pace", 66)
        self.ev = {}
        self.lpend = None
        self.wring = WRING
        self.nqd = opt.get("nqd", 10)
        self.n3 = opt.get("n3", 24)
        self.lat = opt.get("lat1", 1000)

    def __call__(self, text):
        if self.cap is None:
            return super().__call__(text)
        if "cmp" in text:
            self.cap.append(text)
        else:
            self.cap.extend(text.split("\n"))

    def shadow(self, fn, *args):
        self.cap = self.prog
        fn(*args)
        self.cap = None

    def I(self, text):
        x = self.opt.get("xp", 0)
        if "v[240:243]" not in text and " v7," not in text and (
                x >= 1 and text.startswith("buffer_store_dwordx4") or x >= 2 and text.startswith("buffer_store_dword ") and " off," in text):
            text = text.replace(sWS, sGW)
        if x >= 3 and text.startswith("buffer_load_dwordx4") and self.ev.get("late"):
            for srd in (sWSP,) + ((sWS, sWQ, sWIN, sX, sWOUT, sWO) if x >= 4 else ()):
                text = text.replace(srd, sBSP)
        r = super().I(text)
        if text.startswith("buffer_"):
            wide = "dwordx4" in text.split()[0]
            if text.startswith("buffer_load"):
                c = self.pace * self.weight if wide else 24
            else:
                c = self.opt.get("stcost", 150) * self.st_scale if wide else 40
            self.cyc = max(self.cyc, self.pipe - self.opt.get("queue", 130))
            self.pipe = max(self.pipe, self.cyc - 10 - self.opt.get("credit", 48)) + c
            self.gate = self.cyc - 10 + (24 if not wide else 60 if text.startswith("buffer_load") else self.opt.get("stgate", 90))
            lat = self.opt.get("lat_ld", 650) if text.startswith("buffer_load") else self.opt.get("lat_st", 800)
            self.eta[r] = max(self.eta.get(r - 1, 0), max(self.pipe, self.cyc) + lat)
        return r

    def wait(self, vm=None, lg=None):
        before = self.vm_done
        super().wait(vm, lg)
        if self.vm_done > before:
            self.cyc = max(self.cyc, self.eta.get(self.vm_done, 0) - 150)

    def landed(self, i):
        return i <= self.vm_done or self.cyc >= self.eta.get(i, 10 ** 9)

    def pipe_ok(self, ahead=0):
        return self.cyc + ahead + self.slack >= max(self.pipe, self.gate)

    def flush_post(self):
        c = 0
        while self.post:
            t = self.post.pop(0)
            self(t)
            c += cost(t)
        return c

    def next_job(self):
        for q in (self.q1, self.q2):
            if q and q[0].pre():
                return q
        return None

    def arm(self, q):
        j = q.pop(0)
        self.flush_post()
        for t in j.setup:
            t() if callable(t) else self(t)
        self.armed = j

    def fire(self):
        j = self.armed
        self.weight = j.weight
        i = self(j.loads.pop(0))
        self.weight = 1.0
        if j.sink is not None:
            j.sink.append(i)
        if not j.loads:
            self.post += j.post
            self.armed = None
            if j.done:
                j.done()

    def bg_vm(self, force=False, maxn=1):
        done = 0
        while done < maxn and (force or self.pipe_ok()):
            if not self.armed:
                q = self.next_job()
                if q is None:
                    break
                self.arm(q)
            self.fire()
            done += 1
        return done

    def settle(self):
        while self.armed:
            self.fire()
        self.flush_post()

    def bg_ds(self):
        if self.qd and self.qd[0][0]():
            self.qd.pop(0)[1]()
            return True
        return False

    def tick(self):
        if not self.bg_vm():
            self.bg_ds() and self.bg_ds()

    def V(self, text):
        if self.cap is not None:
            return self(text)
        for ln in text.split("\n"):
            if ln.strip():
                self(ln)
                self.tick()

    def drain(self, cond):
        guard = 0
        while not cond():
            if self.bg_ds() or self.bg_vm(force=True):
                guard = 0
                continue
            self.cyc += 200
            guard += 1
            assert guard < 100, "background queues stuck"

    def prog_step(self, left, head, force=False, only_hi=False):
        for q in (self.hi,) if only_hi else (self.hi, self.prog):
            while q:
                it = q[0]
                if isinstance(it, tuple) and it[0] == "delay":
                    if head:
                        break
                    q.pop(0)
                    self.hold = 0 if force else it[1]
                    continue
                if q is self.prog and self.hold and not force:
                    break
                if isinstance(it, tuple) and it[0] == "until":
                    if not force and not self.landed(it[1]()):
                        break
                    q.pop(0)
                    continue
                c = it[2] if isinstance(it, tuple) else cost(it)
                if c and not force:
                    if is_mem(it) != head or (c > left and not (c > 12 and left >= 12)):
                        break
                    if head and it.startswith("buffer_") and not (self.cyc + self.slack >= self.gate if q is self.hi
                                                                    else self.pipe_ok(0 if "x4" in it else 40)):
                        break
                q.pop(0)
                if isinstance(it, tuple):
                    it[1]()
                else:
                    self.last_id = self(it)
                left -= c
        return left

    def prog_flush(self):
        self.prog_step(0, False, force=True)
        self.hold = 0
        self.settle()

    def mark(self, name):
        return ("call", lambda: self.ev.__setitem__(name, self.last_id), 0)

    def fill_gap(self, left, paced):
        e = self
        if e.hold:
            e.hold -= 1
        if not paced:
            if e.armed:
                e.fire()
            if not e.armed and e.next_job() is not None:
                e.arm(e.next_job())
            return e.prog_step(e.opt.get("gap_a", 12), False)
        head = e.armed or (e.q1[0] if e.q1 and e.q1[0].pre() else None)
        left = e.prog_step(left, True, only_hi=True)
        if head is not None and head.need and head.need[0] == e.tag and head.need[1] - e.ev["f"] <= e.opt.get("minlead", 36):
            if e.armed and e.cyc + 40 >= e.gate:
                e.fire()
                left -= 8
            if not e.armed and e.q1 and e.q1[0].pre():
                left -= 4 * len(e.q1[0].setup)
                e.arm(e.q1)
        left += e.boost
        left = e.prog_step(left, True)
        while e.armed and left >= 8 and (not paced or e.pipe_ok()):
            e.fire()
            left -= 8
        if left == 24 and e.qd:
            left = 20
        n = 0
        while left >= 4 and n < 2 and e.bg_ds():
            left -= 4
            n += 1
        if e.post and left >= cost(e.post[0]):
            left -= e.flush_post()
        if not e.armed and not e.post and (not paced or e.pipe_ok(40)):
            q = e.next_job()
            if q is not None and left >= min(8, 4 * len(q[0].setup)):
                left -= 4 * len(q[0].setup)
                e.arm(q)
        return e.prog_step(left, False)

    def mfma_loop(self, tag, nstage, per, read, mfma, opened, paced, hooks, stamp0):
        e = self
        F = nstage * per
        e.tag = tag
        e.ev["late"] = True
        for j in e.q1 + ([e.armed] if e.armed else []):
            for s_ in range(nstage):
                if j.sink is e.ev.get(("dma", tag, s_)):
                    j.need = (tag, s_ * per - 6)
        rd_id = {}
        st = dict(next=0, opened=-1, last=-9)

        def open_stage(s):
            e.drain(lambda: len(e.ev[("dma", tag, s)]) == e.ev[("ndma", tag, s)])
            e.wait(vm=max(e.ev[("dma", tag, s)]), lg=e.lg_n - 1)
            e("s_barrier")
            e.lstamp(stamp0 + s)
            st["opened"] = s
            e.ev[("free", tag, s - 1)] = True
            opened(s)

        def one():
            n0 = e.lg_n
            rd_id[st["next"]] = read(st["next"], e.wring + 4 * (st["next"] % NR))
            st["next"] += 1
            return 4 * (e.lg_n - n0)

        open_stage(0)
        for _ in range(6):
            one()
        for f in range(F):
            while hooks and min(hooks) <= f:
                hooks.pop(min(hooks))()
            if f % 2 == 0:
                e.wait(lg=rd_id[f + 1])
            mfma(f, R("v", e.wring + 4 * (f % NR), 4))
            e.ev["f"] = f
            left = 24 - (4 if f % 2 else 0)
            sync = False
            for _ in range(2):
                nx = st["next"]
                if nx < F and nx <= f + 7:
                    if nx // per <= st["opened"]:
                        left -= one() + (4 if st["last"] != f else 0)
                        st["last"] = f
                    elif f - st["last"] >= 2:
                        sync = True
            if sync:
                qd, e.qd = e.qd, []
                e.fill_gap(16, paced)
                e.qd = qd
                open_stage(st["next"] // per)
            else:
                e.fill_gap(left, paced)
        assert not hooks

    def stamp(self, k):
        sel = self.opt.get("stamps")
        if self.opt.get("diag") and (sel is None or k == 12 or str(k) in str(sel).split(".")):
            self.lstamp(None)
            self.wait_all(vm=False)
            self.raw("    %s s[0:1]\n" % ("s_memtime" if self.opt["diag"] == 2 else "s_memrealtime") + "    s_waitcnt lgkmcnt(0)\n    v_writelane_b32 v7, s0, %d" % k)
            self.pos += 3

    def lstamp(self, k):
        if self.opt.get("diag") and self.opt.get("fine"):
            if self.lpend is not None:
                self.raw("    s_waitcnt lgkmcnt(0)\n    v_writelane_b32 v7, s0, %d" % self.lpend)
                self.lg_done = self.lg_n - 1
                self.pend = {r: p for r, p in self.pend.items() if p[0] == "vm"}
            self.lpend = k
            if k is not None:
                self.raw("    %s s[0:1]" % ("s_memtime" if self.opt["diag"] == 2 else "s_memrealtime"))

    def check(self, loads, test, pretest=None, site=None, fast=None):
        slow, back = self.label("Lslow"), self.label("Lback")
        self(fast or test)
        self("s_cbranch_vccnz " + (slow if self.opt.get("xp", 0) < 2 else back))
        self.raw(back + ":")
        c = self.cold
        c.append(slow + ":")
        c.append("    s_add_u32 %s, %s, 1\n    s_cmp_ge_u32 %s, %d\n    s_cbranch_scc1 L_end" % (sSPIN, sSPIN, sSPIN, SPIN_MAX))
        if self.opt.get("diag") and site is not None:
            c.append("    v_readlane_b32 vcc_lo, v7, %d\n    s_nop 3\n    s_add_u32 vcc_lo, vcc_lo, 1\n    v_writelane_b32 v7, vcc_lo, %d" % (site, site))
        if self.opt.get("backoff", 2):
            c.append("    s_sleep %d" % self.opt.get("backoff", 2))
        c.append("\n".join("    " + l for l in loads.split("\n")))
        c.append("    s_waitcnt vmcnt(0)")
        if pretest:
            c.append("\n".join("    " + l for l in pretest.split("\n")))
        c.append("\n".join("    " + l for l in test.split("\n")))
        c.append("    s_nop 4\n    s_cbranch_vccnz %s\n    s_branch %s" % (slow, back))

    def flag(self, after_id, soff):
        self.wait(vm=after_id)
        self("s_mov_b64 exec, 1")
        i = self("buffer_store_dword v%d, off, %s, %s sc1" % (vL4, sWS, soff))
        self("s_mov_b64 exec, -1")
        return i

    def touch(self, label, off=0):
        if self.opt.get("touch", 0):
            self("s_add_u32 vcc_lo, %s, %s-L_pc+%d\ns_mov_b64 exec, 0xffff" % (sW2K, label, off))
            self("buffer_load_dword v6, v%d, %s, vcc_lo offen" % (vL128, sCODE))
            self.pend.pop(("v", 6))
            self("s_mov_b64 exec, -1")

    def prologue(self):
        e = self
        o = self.opt
        e("s_cmp_ge_u32 s2, 256")
        e("s_cbranch_scc1 L_end")
        order = [(8, 0), (20, 32), (48, 88), (12, 8), (44, 80), (24, 40), (16, 16), (28, 48), (32, 56), (36, 64), (40, 72)]
        for sreg, off in order:
            e.raw("    s_load_dwordx2 s[%d:%d], s[0:1], %d" % (sreg, sreg + 1, off))
        if o.get("diag"):
            e.raw("    %s s[100:101]" % ("s_memtime" if o["diag"] == 2 else "s_memrealtime"))
        e.raw("    s_getpc_b64 s[52:53]")
        e.raw("L_pc:")
        self.sizes = sizes = {8: 2621440, 12: 2457600, 16: 819200, 20: 2211840, 24: 8388608, 28: 4096, 32: 1105920, 36: 1280,
                              40: 2621440, 44: 256, 48: WS_SIZE}
        sLOC = sT1
        e("v_lshrrev_b32 v1, 6, v0\nv_and_b32 v0, 63, v0")
        e("s_lshr_b32 %s, s2, 3" % sLOC)
        e("v_readfirstlane_b32 %s, v1" % sW)
        e("s_mov_b32 s54, L_code_end-L_pc\ns_mov_b32 s55, 0x20000")
        e("s_nop 0\ns_lshl2_add_u32 %s, %s, %s\ns_lshl_b32 %s, %s, 10" % (sT2, sLOC, sW, sT2, sT2))
        e("v_and_b32 v2, 7, v0\nv_lshlrev_b32 v2, 7, v2")
        if o.get("codepf", 1):
            e("buffer_load_dword v6, v2, %s, %s offen" % (sCODE, sT2))
            self.pend.clear()
        if o.get("map84", 1):
            e("s_and_b32 %s, s2, 1\ns_bfe_u32 %s, s2, 0x10001\ns_lshr_b32 %s, %s, 3" % (sT0, sHALF, sT2, sLOC))
            e("s_lshl1_add_u32 %s, %s, %s\ns_add_u32 %s, %s, 4\ns_cmp_eq_u32 %s, 2\ns_cselect_b32 %s, %s, %s" % (sJL, sT0, sT2, sT3, sT0, sT2, sJL, sT3, sJL))
            e("s_and_b32 %s, %s, 3\ns_lshl2_add_u32 %s, %s, %s\ns_and_b32 %s, %s, 7\ns_lshr_b32 %s, %s, 2" % (sT3, sLOC, sT0, sT0, sT3, sI, sLOC, sT3, sLOC))
            e("s_cmp_eq_u32 %s, 3\ns_cselect_b32 %s, %s, %s\ns_cselect_b32 %s, %s, %s" % (sT2, sJL, sT3, sJL, sI, sT0, sI))
            if o.get("rot", 2) == 2:
                e("s_and_b32 %s, s2, 3" % sT2)
            if o.get("rot", 2):
                e("s_mul_i32 %s, %s, 5\ns_lshr_b32 %s, %s, 2\ns_mul_i32 %s, %s, 5\ns_lshr_b32 %s, %s, 1\ns_add_u32 %s, %s, %s"
                  % (sROT, sI, sROT, sROT, sT2, sT2, sT2, sT2, sROT, sROT, sT2))
            e("s_bfe_u32 %s, s2, 0x10002\ns_lshl3_add_u32 %s, %s, %s" % (sT0, sI, sT0, sI))
        else:
            e("s_and_b32 %s, s2, 1\ns_bfe_u32 %s, s2, 0x20001" % (sHALF, sT0))
            e("s_and_b32 %s, %s, 3\ns_lshl2_add_u32 %s, %s, %s\ns_lshr_b32 %s, %s, 2" % (sT2, sLOC, sI, sT0, sT2, sJL, sLOC))
            if o.get("rot", 2):
                e("s_mul_i32 %s, %s, 5\ns_lshr_b32 %s, %s, 1" % (sT2, sT2, sT2, sT2))
                e("s_mul_i32 %s, %s, 5\ns_lshr_b32 %s, %s, 2\ns_add_u32 %s, %s, %s" % (sROT, sJL, sROT, sROT, sROT, sROT, sT2))
        if o.get("rot", 2):
            e("s_cmp_ge_u32 %s, 10\ns_cselect_b32 %s, 10, 0\ns_sub_u32 %s, %s, %s" % (sROT, sT2, sROT, sROT, sT2))
        else:
            e("s_mov_b32 %s, 0" % sROT)
        e("s_mul_i32 %s, %s, 7\ns_add_u32 %s, %s, %s" % (sJ, sHALF, sJ, sJ, sJL))
        e("s_mul_i32 %s, %s, %d\ns_lshl_b32 %s, %s, 11" % (sREG, sW, REGION, sW2K, sW))
        e("s_lshl2_add_u32 %s, %s, %s\ns_mul_i32 %s, %s, %d" % (sXB, sI, sW, sXB, sXB, 32 * 1280))
        e("s_add_u32 %s, %s, 1280\ns_lshl_b32 %s, %s, 7\ns_add_u32 %s, %s, %s" % (sXE, sXB, sXO, sROT, sXO, sXO, sXB))
        for sreg in (8, 20, 48):
            e("s_mov_b32 s%d, %d\ns_mov_b32 s%d, 0x20000" % (sreg + 2, sizes[sreg], sreg + 3))
        e("v_lshrrev_b32 v1, 3, v0\nv_and_b32 v2, 7, v0\nv_lshrrev_b32 v3, 4, v0")
        e("v_xor_b32 v4, v2, v3\nv_lshlrev_b32 v4, 4, v4\nv_xor_b32 v5, 64, v4")
        e("v_mul_u32_u24 v%d, 1280, v1" % vT[0])
        for r in range(4):
            e("v_add_u32 v%d, v%d, v%d" % (vXD[r], vT[0], 4 + (r & 1)))
            if r:
                e("v_add_u32 v%d, %d, v%d" % (vXD[r], r * (8 * 1280 - 1024), vXD[r]))
        e("v_lshlrev_b32 v%d, 4, v0" % vL16)
        e.raw("    s_waitcnt lgkmcnt(0)")
        e.pos += 1
        if o.get("wsoff"):
            e("s_add_u32 s48, s48, 0x%x\ns_addc_u32 s49, s49, 0" % (o["wsoff"] << 20))
        e("s_cmp_eq_u32 %s, 7\ns_cbranch_scc0 L_noclear" % sJL)
        for k in range(4):
            e("v_mov_b32 v%d, -1" % (240 + k))
        e("s_lshl1_add_u32 %s, %s, %s\ns_lshl2_add_u32 %s, %s, %s\ns_mul_i32 %s, %s, 6144" % (sT0, sI, sHALF, sT0, sT0, sW, sT0, sT0))
        for k in range(6):
            if k == 4:
                e("s_add_u32 %s, %s, 4096" % (sT0, sT0))
            self.clear_id = e("buffer_store_dwordx4 v[240:243], v%d, %s, %s offen offset:%d sc1" % (vL16, sWS, sT0, (k % 4) * 1024))
        e.raw("L_noclear:")
        e.q1 = [e.job_x("A", 0)]
        e.bg_vm(force=True, maxn=4)
        e.settle()
        self.x0 = list(e.ev[("dma", "A", 0)])
        e("v_and_b32 v%d, 1, v3\nv_lshlrev_b32 v%d, 2, v%d\nv_xor_b32 v%d, v2, v%d\nv_lshlrev_b32 v%d, 4, v%d"
          % (vT[1], vT[1], vT[1], vT[1], vT[1], vT[1], vT[1]))
        e("s_lshl_b32 %s, %s, 4\nv_add_u32 v%d, %s, v1" % (sT0, sW, vT[2], sT0))

    def w_offsets(self, regs_, stride):
        self("v_mul_u32_u24 v%d, %d, v%d\nv_add_u32 v%d, v%d, v%d" % (regs_[0], stride, vT[2], regs_[0], regs_[0], vT[1]))
        self("v_add_u32 v%d, %d, v%d" % (regs_[1], 8 * stride - 1024, regs_[0]))

    def late_setup(self, natural=False):
        e = self
        for sreg in (12, 44, 24, 16, 28, 32, 36, 40):
            e("s_mov_b32 s%d, %d\ns_mov_b32 s%d, 0x20000" % (sreg + 2, self.sizes[sreg], sreg + 3))
        e("s_mov_b32 s68, %s\ns_mov_b32 s69, %s\ns_mov_b32 %s, 0" % (f32(GK1), f32(GK2), sSPIN))
        e("v_add_u32 v%d, 0x1000, v%d\nv_lshlrev_b32 v%d, 2, v0" % (vL16B, vL16, vL4))
        e("s_bfe_u32 %s, s2, 0x20001\ns_and_b32 %s, s2, 1" % (sT0, sT2))
        if not natural:
            e("s_bfe_u32 %s, s2, 0x20003\ns_lshl2_add_u32 %s, %s, %s" % (sT1, sI2, sT0, sT1))
            e("s_lshr_b32 %s, s2, 5\ns_lshl1_add_u32 %s, %s, %s" % (sT1, sJ2, sT1, sT2))
        if self.opt.get("map3", 1):
            e("s_lshr_b32 %s, s2, 5\ns_lshl3_add_u32 %s, %s, %s" % (sP, sP, sT0, sP))
            e("s_bfe_u32 %s, s2, 0x20003\ns_lshl2_add_u32 %s, %s, %s" % (sC, sC, sT2, sC))
        else:
            e("s_bfe_u32 %s, s2, 0x30003\ns_lshl3_add_u32 %s, %s, %s" % (sP, sP, sT0, sP))
            e("s_lshr_b32 %s, s2, 6\ns_lshl2_add_u32 %s, %s, %s" % (sC, sC, sT2, sC))
        if self.opt.get("diag"):
            e("v_mov_b32 v7, 0")
            e.raw("    s_nop 1\n    v_writelane_b32 v7, s100, 13")
        e("v_lshlrev_b32 v%d, 12, v1" % vT[0])
        for r in range(4):
            e("v_add_u32 v%d, v%d, v%d" % (vAD[r], vT[0], 4 + (r & 1)))
            if r:
                e("v_add_u32 v%d, %d, v%d" % (vAD[r], r * (8 * 4096 - 1024), vAD[r]))
        e("v_and_b32 v1, 31, v0\nv_lshrrev_b32 v2, 5, v0\nv_bfe_u32 v4, v0, 1, 3\nv_xor_b32 v4, v4, v2")
        e("v_lshlrev_b32 v4, 4, v4\nv_lshl_add_u32 v4, v1, 7, v4")
        for ks in range(4):
            e("v_xor_b32 v%d, %d, v4\nv_add_u32 v%d, %s, v%d" % (vXR[ks], ks * 32, vXR[ks], sREG, vXR[ks]))
        e("v_bfe_u32 v5, v0, 2, 2\nv_lshl_add_u32 v5, v2, 3, v5\nv_lshlrev_b32 v5, 7, v5\nv_add_u32 v5, %d, v5" % WOFF)
        e("v_bfe_u32 v4, v0, 3, 1\nv_lshlrev_b32 v4, 6, v4")
        if natural:
            e("v_and_b32 v1, 1, v0\nv_bfe_u32 v3, v0, 1, 1\nv_lshl_or_b32 v1, v1, 1, v3\nv_lshlrev_b32 v1, 3, v1\nv_bfe_u32 v3, v0, 4, 1")
        else:
            e("v_and_b32 v1, 3, v0\nv_lshlrev_b32 v1, 3, v1\nv_bfe_u32 v3, v0, 4, 1")
        e("v_lshl_add_u32 v%d, v3, 5, v1\nv_xor_b32 v%d, v%d, v4" % (vT[0], vT[0], vT[0]))
        e("v_add_u32 v%d, v%d, v5\nv_xor_b32 v%d, 64, v%d" % (vWS[0][0], vT[0], vWS[0][1], vWS[0][0]))
        e("v_add_u32 v%d, %d, v%d\nv_add_u32 v%d, %d, v%d" % (vWS[1][0], 2 * REGION, vWS[0][0], vWS[1][1], 2 * REGION, vWS[0][1]))
        e("v_lshlrev_b32 v%d, 7, v0" % vL128)

    def stream_init(self, o, b, en, base_text, stride):
        self(base_text)
        self("s_add_u32 %s, %s, %d\ns_mul_i32 %s, %s, %d\ns_add_u32 %s, %s, %s" % (en, b, 640 * stride, o, sROT, 64 * stride, o, o, b))

    @staticmethod
    def advance(o, b, en, step):
        return "s_add_u32 %s, %s, %d\ns_cmp_eq_u32 %s, %s\ns_cselect_b32 %s, %s, %s" % (o, o, step, o, en, o, b, o)

    def job_x(self, tag, s):
        pre = (lambda: True) if s < 4 else (lambda: self.ev.get(("free", tag, s - 4)))
        return Job(pre, ["buffer_load_dwordx4 v%d, %s, %s offen offset:%d lds" % (vXD[r], sX, sXO, r * 1024) for r in range(4)],
                   ["s_add_u32 m0, %s, %d" % (sREG, (s % 4) * 4096)], [self.advance(sXO, sXB, sXE, 128)] if s < 9 else [],
                   self.ev.setdefault(("dma", tag, s), []))

    def w_jobs(self, tag, wide, offf, srd, stream, stride, occ, withx, weight=1.0, lines=1):
        for s in range(10):
            if withx and s < 1:
                self.ev[("dma", tag, s)] = list(self.x0)
            elif withx:
                self.q1.append(self.job_x(tag, s))
            off = offf(s)
            prev = occ.get(off)
            occ[off] = (tag, s)
            pre = (lambda: True) if prev is None else (lambda prev=prev: self.ev.get(("free",) + prev))
            sink = self.ev.setdefault(("dma", tag, s), [])
            post = [self.advance(stream[0], stream[1], stream[2], 64 * stride)] if s < 9 else []
            ld = "buffer_load_dwordx4 v%%d, %s, %s offen offset:%%d lds" % (srd, stream[0])
            m0 = "s_add_u32 m0, %s, %%d" % sREG
            if wide:
                self.q1.append(Job(pre, [ld % (vWB[k], k * 1024) for k in range(4)], [m0 % (WOFF + off)], [], sink, weight=weight))
                self.q1.append(Job(pre, [ld % (vWB[4], 0)], [m0 % (WOFF + off + 4096)], post, sink, weight=weight))
            else:
                for k in range(lines):
                    self.q1.append(Job(pre, [ld % (vWDI[t], t * 1024 + k * 128) for t in range(2)], [m0 % (WOFF + off + k * (2048 - 128))],
                                       post if k == lines - 1 else [], sink, weight=weight))
            self.ev[("ndma", tag, s)] = (5 if wide else 2 * lines) + (4 if withx else 0)

    def p1_pass(self, tag, blocks, withx, paced, hooks=None, prev_tag=None):
        e = self
        nb = len(blocks)

        def split(f):
            s, rem = divmod(f, 4 * nb)
            return (s,) + divmod(rem, nb)

        def opened(s):
            if s == 0 and prev_tag:
                e.ev[("free", prev_tag, 9)] = True
            if withx:
                for ks in range(4):
                    e("ds_read_b128 %s, v%d offset:%d" % (R("a", (s * 4 + ks) * 4, 4), vXR[ks], (s % 4) * 4096))

        def read(f, dst):
            s, ks, b = split(f)
            return blocks[b][0](s, ks, dst)

        def mfma(f, wf):
            s, ks, b = split(f)
            acc = R("v", blocks[b][1], 16)
            xf = R("a", (s * 4 + ks) * 4, 4)
            ops = (wf, xf) if blocks[b][2] == 2 else (xf, wf)
            e("v_mfma_f32_32x32x16_bf16 %s, %s, %s, %s" % (acc, ops[0], ops[1], "0" if f < nb else acc))
        e.mfma_loop(tag, 10, 4 * nb, read, mfma, opened, paced, dict(hooks or {}), 16 if tag == "A" else 26)

    def rd_narrow(self, offf, b):
        def read(s, ks, dst):
            for t in range(2):
                i = self("ds_read_b64_tr_b16 %s, v%d offset:%d" % (R("v", dst + 2 * t, 2), vWS[ks >> 1][b & 1],
                                                                  (ks & 1) * REGION + offf(s) + (b >> 1) * 2048 + t * 512))
            return i
        return read

    def rd_wide(self, offf, b):
        def read(s, ks, dst):
            for t in range(2):
                i = self("ds_read_b64_tr_b16 %s, v%d offset:%d" % (R("v", dst + 2 * t, 2), vWW[ks >> 1], (ks & 1) * REGION + offf(s) + t * 1280 + b * 64))
            return i
        return read

    def seg320(self, stride, wmul, gap=0, regs_=vWB):
        e = self
        e("s_mul_i32 %s, %s, %d" % (sT2, sW, wmul))
        for k, r_ in enumerate(regs_):
            e("v_add_u32 v%d, %d, v0\nv_mul_u32_u24 v%d, 0xccd, v%d\nv_lshrrev_b32 v%d, 16, v%d" % (vT[0], 64 * k, vT[1], vT[0], vT[1], vT[1]))
            e("v_mul_u32_u24 v%d, %d, v%d\nv_lshl_add_u32 v%d, v%d, 4, v%d" % (r_, stride - 320 - 2 * gap, vT[1], r_, vT[0], r_))
            if gap:
                e("v_mul_u32_u24 v%d, 0x199a, v%d\nv_lshrrev_b32 v%d, 16, v%d\nv_mul_u32_u24 v%d, %d, v%d\nv_add_u32 v%d, v%d, v%d"
                  % (vT[1], vT[0], vT[1], vT[1], vT[1], gap, vT[1], r_, r_, vT[1]))
            e("v_add_u32 v%d, %s, v%d" % (r_, sT2, r_))
            if 0 < k < 4:
                e("v_subrev_u32 v%d, %d, v%d" % (r_, 1024 * k, r_))

    def wide_read_addr(self):
        e = self
        e("v_lshrrev_b32 v%d, 5, v0\nv_bfe_u32 v%d, v0, 2, 2\nv_lshl_add_u32 v%d, v%d, 3, v%d" % (vT[0], vT[1], vT[0], vT[0], vT[1]))
        e("v_mul_u32_u24 v%d, 320, v%d\nv_lshl_add_u32 v%d, v3, 5, v1\nv_add_u32 v%d, v%d, v%d" % (vT[0], vT[0], vT[1], vT[0], vT[0], vT[1]))
        e("v_add_u32 v%d, %d, v%d\nv_add_u32 v%d, %d, v%d" % (vWW[0], WOFF, vT[0], vWW[1], WOFF + 2 * REGION, vT[0]))

    def gelu(self, regs_, tmp, emit):
        for b0 in range(0, len(regs_), 8):
            ps = [(regs_[b0 + k], tmp + k) for k in range(0, min(8, len(regs_) - b0), 2)]
            for x, t in ps:
                emit("v_pk_mul_f32 %s, %s, %s" % (R("v", t, 2), R("v", x, 2), R("v", x, 2)))
            for x, t in ps:
                emit("v_pk_fma_f32 %s, %s, %s, %s op_sel:[0,1,0] op_sel_hi:[1,1,0]" % (R("v", t, 2), R("v", t, 2), sKC, sKC))
            for x, t in ps:
                emit("v_pk_mul_f32 %s, %s, %s" % (R("v", t, 2), R("v", t, 2), R("v", x, 2)))
            for x, t in ps:
                emit("v_exp_f32 v%d, v%d\nv_exp_f32 v%d, v%d" % (t, t, t + 1, t + 1))
            for x, t in ps:
                emit("v_pk_add_f32 %s, %s, 1.0 op_sel_hi:[1,0]" % (R("v", t, 2), R("v", t, 2)))
            for x, t in ps:
                emit("v_rcp_f32 v%d, v%d\nv_rcp_f32 v%d, v%d" % (t, t, t + 1, t + 1))
            for x, t in ps:
                emit("v_pk_mul_f32 %s, %s, %s" % (R("v", x, 2), R("v", t, 2), R("v", x, 2)))

    def phi(self, base, n, tmp, kreg, emit=None, mid=None):
        emit = emit or self.V
        for b0 in range(0, n, 8):
            ps = [(base + b0 + k, tmp + k) for k in range(0, 8, 2)]
            for x, t in ps:
                emit("v_pk_mul_f32 %s, %s, %s op_sel_hi:[1,0]" % (R("v", t, 2), R("v", x, 2), R("s", kreg, 2)))
            for x, t in ps:
                emit("v_exp_f32_e64 v%d, v%d clamp\nv_exp_f32_e64 v%d, v%d clamp" % (t, t, t + 1, t + 1))
            if mid:
                self(mid)
            for x, t in ps:
                emit("v_max_f32 v%d, s%d, v%d\nv_max_f32 v%d, s%d, v%d" % (x, kreg + 1, x, x + 1, kreg + 1, x + 1))
            for x, t in ps:
                emit("v_pk_add_f32 %s, %s, %s" % (R("v", x, 2), R("v", x, 2), R("v", t, 2)))

    def pack(self, src, n, dst):
        for k in range(n // 2):
            self.V("v_cvt_pk_bf16_f32 v%d, v%d, v%d" % (dst + k, src + 2 * k, src + 2 * k + 1))

    def z2_stats(self):
        e = self
        ld = self.dbg_ld
        e.gelu(list(range(Z2ACC, Z2ACC + 32)), ACCB, e.V)
        S = [ACCB + 8, ACCB + 10]
        Q = [ACCB + 12, ACCB + 14]
        for b in range(2):
            z = Z2ACC + 16 * b
            e.V("v_pk_add_f32 %s, %s, %s" % (R("v", S[b], 2), R("v", z, 2), R("v", z + 2, 2)))
            e.V("v_pk_mul_f32 %s, %s, %s" % (R("v", Q[b], 2), R("v", z, 2), R("v", z, 2)))
            for k in range(1, 8):
                if k > 1:
                    e.V("v_pk_add_f32 %s, %s, %s" % (R("v", S[b], 2), R("v", S[b], 2), R("v", z + 2 * k, 2)))
                e.V("v_pk_fma_f32 %s, %s, %s, %s" % (R("v", Q[b], 2), R("v", z + 2 * k, 2), R("v", z + 2 * k, 2), R("v", Q[b], 2)))
        e("s_cmp_eq_u32 %s, 0\ns_cselect_b32 %s, 0, 1.0" % (sJ, sT0))
        for a in (S, Q):
            e("v_add_f32 v%d, v%d, v%d\nv_add_f32 v%d, v%d, v%d" % (a[0], a[0], a[0] + 1, a[1], a[1], a[1] + 1))
            e("v_fmac_f32 v%d, %s, v%d" % (a[1], sT0, a[0]))
        e("s_lshl2_add_u32 %s, %s, %s\ns_mul_i32 %s, %s, %d" % (sT1, sI, sW, sFL, sT1, 14 * 256))
        e("s_lshl_b32 %s, %s, 8\ns_add_u32 %s, %s, %s" % (sT1, sJ, sT1, sT1, sFL))
        e("v_permlane32_swap_b32 v%d, v%d" % (S[1], Q[1]))
        e("v_add_f32 v%d, v%d, v%d" % (S[1], S[1], Q[1]))
        e.check(ld, "v_cmp_gt_u32 vcc, 32, v%d" % vT[11], site=56)
        e("buffer_store_dword v%d, v%d, %s, %s offen sc1" % (S[1], vL4, sWS, sT1))

    def z2_norm(self):
        e = self
        o = e.opt
        p = e.prog
        T = 192
        lds = ["buffer_load_dword v%d, v%d, %s, %s offen offset:%d sc1" % (T + k, vL4, sWS, sFL, k * 256) for k in range(14)]
        a = T + 48
        b = a + 5
        p += ["v_bfe_u32 v%d, v0, 1, 1" % a, "v_bfe_u32 v%d, v0, 2, 2" % (a + 1), "v_and_b32 v%d, 1, v0" % (a + 2),
              "v_lshl_or_b32 v%d, v%d, 1, v%d" % (a + 1, a + 1, a + 2), "v_lshl_or_b32 v%d, v%d, 3, v%d" % (a, a, a + 1),
              "v_lshrrev_b32 v%d, 5, v0" % (a + 1), "v_xor_b32 v%d, v%d, v%d" % (a, a, a + 1), "v_lshlrev_b32 v%d, 3, v%d" % (a, a),
              "v_and_b32 v%d, 31, v0" % (a + 2), "v_lshl_add_u32 v%d, v%d, 7, v%d" % (a, a + 2, a), "v_add_u32 v%d, %s, v%d" % (a, sREG, a)]
        p += ["v_bfe_u32 v%d, v0, 3, 1" % b, "v_lshlrev_b32 v%d, 3, v%d" % (b, b), "v_lshl_or_b32 v%d, v%d, 2, v%d" % (b, a + 1, b),
              "v_bfe_u32 v%d, v0, 2, 1" % (b + 1), "v_or_b32 v%d, v%d, v%d" % (b, b, b + 1),
              "v_bfe_u32 v%d, v0, 4, 1" % (b + 1), "v_and_b32 v%d, 3, v0" % (b + 2), "v_lshl_or_b32 v%d, v%d, 2, v%d" % (b + 1, b + 1, b + 2),
              "v_xor_b32 v%d, v%d, v%d" % (b, b, b + 1), "v_lshlrev_b32 v%d, 3, v%d" % (b, b),
              "v_bfe_u32 v%d, v0, 2, 2" % (b + 1), "v_lshl_add_u32 v%d, v%d, 3, v%d" % (b + 1, a + 1, b + 1),
              "v_lshl_add_u32 v%d, v%d, 7, v%d" % (b, b + 1, b), "v_add_u32 v%d, %s, v%d" % (b, sREG, b)]
        p += ["v_xor_b32 v%d, %d, v%d" % (b + k, (k >> 1) * 64 + (k & 1) * 16, b) for k in range(1, 4)]
        p += ["s_lshl2_add_u32 %s, %s, %s" % (sT0, sI, sW), "s_lshl_b32 %s, %s, 12" % (sT0, sT0), "s_lshl_b32 %s, %s, 18" % (sT1, sJ),
              "s_add_u32 %s, %s, %s" % (sT0, sT0, sT1), "s_add_u32 %s, %s, %d" % (sT0, sT0, Z2N),
              "s_lshl4_add_u32 %s, %s, %s" % (sT1, sJ, sI), "s_lshl2_add_u32 %s, %s, %s" % (sT1, sT1, sW), "s_lshl_b32 %s, %s, 7" % (sT1, sT1),
              "s_add_u32 %s, %s, %d" % (sT1, sT1, F_Z2N)]
        p += [("until", lambda: -1 if e.ev["f"] >= o.get("f_poll", 24) else 10 ** 9)] + lds + [e.mark("stat_ld"), ("until", lambda: e.ev["stat_ld"]), ("call", lambda: e.wait(vm=e.ev["stat_ld"]), 4)]
        p.append(("call", lambda: setattr(e, "boost", o.get("boost", 16)), 0))
        m = T + 14
        mx = ["v_max3_u32 v%d, v%d, v%d, v%d" % (m, T, T + 1, T + 2)]
        mx += ["v_max3_u32 v%d, v%d, v%d, v%d" % (m, m, T + k, T + k + 1) for k in range(3, 13, 2)]
        mx += ["v_max_u32 v%d, v%d, v%d" % (m, m, T + 13)]
        sm = ["v_add_f32 v%d, v%d, v%d" % (T + (k & 1), T + (k & 1), T + k) for k in range(2, 14)]
        p += sm
        p.append(("call", lambda: e.check("\n".join(lds), "v_cmp_eq_u32 vcc, -1, v%d" % m, "\n".join(mx + sm), site=57,
                                          fast="v_cmp_u_f32 vcc, v%d, v%d" % (T, T + 1)), 16))
        p += ["v_add_f32 v%d, v%d, v%d" % (T, T, T + 1), "v_mul_f32 v%d, %s, v%d" % (T, f32(1.0 / 864), T), "v_mov_b32 v%d, v%d" % (T + 1, T), ("delay", 1),
              "v_permlane32_swap_b32 v%d, v%d" % (T, T + 1), "v_fma_f32 v%d, -v%d, v%d, v%d" % (T + 1, T, T, T + 1),
              "v_max_f32 v%d, 0, v%d" % (T + 1, T + 1), "v_add_f32 v%d, %s, v%d" % (T + 1, f32(1e-5), T + 1), "v_rsq_f32 v%d, v%d" % (T + 2, T + 1),
              "v_xor_b32 v%d, 16, v%d" % (a + 1, a), "v_mul_f32_e64 v%d, -v%d, v%d" % (T + 3, T, T + 2)]
        P = T + 16
        for q in range(8):
            p += ["v_fma_f32 v%d, v%d, v%d, v%d" % (Z2ACC + 4 * q + k, Z2ACC + 4 * q + k, T + 2, T + 3) for k in range(4)]
            p += ["v_cvt_pk_bf16_f32 v%d, v%d, v%d" % (P + 2 * q + k, Z2ACC + 4 * q + 2 * k, Z2ACC + 4 * q + 2 * k + 1) for k in range(2)]
            r_ = a + (1 + (q + 1) % 2 if q else 0)
            if q > 1:
                p.append("v_xor_b32 v%d, %d, v%d" % (r_, q * 16, a))
            p.append("ds_write_b64 v%d, %s offset:%d" % (r_, R("v", P + 2 * q, 2), 3 * 4096))
        Fr = T + 32
        for ks in range(2):
            for blk in range(2):
                for t in range(2):
                    p.append("ds_read_b64_tr_b16 %s, v%d offset:%d" % (R("v", Fr + 8 * ks + 4 * blk + 2 * t, 2), b + 2 * blk + t, 3 * 4096 + ks * 2048 + t * 512))
        p.append(("call", lambda: setattr(e, "boost", 0), 0))
        for k in range(4):
            p.append(("delay", o.get("d_z2n", 0) if k else 2))
            p.append("buffer_store_dwordx4 %s, v%d, %s, %s offen offset:%d sc1" % (R("v", Fr + 4 * k, 4), vL16, sWS, sT0, k * 1024))
        p += [e.mark("z2n_st"), ("call", lambda: (e.ev.__setitem__("norm_done", True), e.stamp(3)), 0), ("until", lambda: e.ev["z2n_st"]),
              ("call", lambda: e.flag(e.ev["z2n_st"], sT1), 16)]

    def a_tables(self):
        e = self
        e("s_lshl2_add_u32 %s, %s, %s\ns_lshl_b32 %s, %s, 17\ns_and_b32 %s, %s, 1" % (sT0, sI2, sW, sT0, sT0, sT3, sJ2))
        e("s_lshl_b32 %s, %s, 11\ns_add_u32 %s, %s, %s" % (sT1, sT3, sT0, sT0, sT1))
        e("s_xor_b32 %s, %s, 1\ns_lshl1_add_u32 %s, %s, %s\ns_lshl_b32 %s, %s, 17" % (sT2, sJ2, sT2, sT2, sT3, sT2, sT2))
        e("s_lshl_b32 %s, %s, 12\ns_add_u32 %s, %s, %s\ns_add_u32 %s, %s, %d" % (sT1, sW, sT2, sT2, sT1, sT2, sT2, Z2N))
        e("s_lshl_b32 %s, %s, 19\ns_sub_u32 %s, %s, 0x40000" % (sROW[0], sT3, sROW[0], sROW[0]))
        e("s_lshr_b32 %s, %s, 1" % (sT3, sJ2))
        if self.opt.get("lead", 1):
            e("s_lshl_b32 %s, %s, 2\ns_lshr_b32 %s, 0x6301630, %s" % (sT3, sT3, sT3, sT3))
        if self.opt.get("rot2", 1) == 2:
            e("s_lshl1_add_u32 %s, %s, %s" % (sT3, sI2, sT3))
        for st in range(8):
            if self.opt.get("rot2", 1):
                e("s_add_u32 %s, %s, %d\ns_and_b32 %s, %s, 7" % (sT1, sT3, st, sT1, sT1))
                e("s_lshl_b32 %s, %s, 8\ns_add_u32 %s, %s, %s" % (sCH[st], sT1, sCH[st], sCH[st], sT0))
                e("s_lshl_b32 %s, %s, 14\ns_add_u32 %s, %s, %s" % (sT1, sT1, sBCH[st], sT1, sT2))
            else:
                e("s_add_u32 %s, %s, %d\ns_add_u32 %s, %s, %d" % (sCH[st], sT0, st * 256, sBCH[st], sT2, st * 16384))

    def a_jobs(self, q0, q1, r0, r1, queue):
        e = self
        for q in range(q0, q1):
            def pre(q=q):
                if q < 4:
                    return e.ev.get("xfree") and (q != 3 or e.ev.get("norm_done")) and e.ev.get("a_start", True)
                rd = e.ev.get(("ard", q - 4))
                return rd is not None and (rd[0] <= e.lg_done or e.cyc - rd[1] >= 160)
            setup = ["s_add_u32 m0, %s, %d" % (sREG, (q % 4) * 4096)]
            if q & 1:
                setup.append("s_add_u32 %s, %s, 128" % (sSO, sCH[q >> 1]))
            if q >= 4:
                setup.insert(0, lambda q=q: e.wait(lg=e.ev[("ard", q - 4)][0]))
            queue.append(Job(pre, ["buffer_load_dwordx4 v%d, %s, %s offen offset:%d lds" % (vAD[r], sWSP, sSO if q & 1 else sCH[q >> 1], r * 1024)
                                   for r in range(4)], setup, [], e.ev.setdefault(("adma", q), []),
                             lambda q=q: e.ev.__setitem__(("adma_t", q), e.cyc)))
        for q in range(r0, r1):
            def pre(q=q):
                ids = e.ev.get(("adma", q), [])
                if len(ids) < 4 or (6 <= q < 10 and not e.ev.get("norm_done")):
                    return False
                return e.lat == 0 or e.landed(max(ids))

            def emit(ks, q=q):
                e.wait(vm=max(e.ev[("adma", q)]))
                i = e("ds_read_b128 %s, v%d offset:%d" % (rr(ASLOT[q], 4, 4 * ks), vXR[ks], (q % 4) * 4096))
                if ks == 3:
                    e.ev[("ard", q)] = (i, e.cyc)
            for ks in range(4):
                e.qd.append((pre, lambda ks=ks, emit=emit: emit(ks)))

    def b_jobs(self, g0, g1):
        e = self
        for g in range(g0, g1):
            e.ev[("ndma", "P", g)] = 4
            setup = ["s_add_u32 m0, %s, %d" % (sREG, WOFF + ((g + 3) % 6) * 4096)]
            if g >= 8:
                setup.append("s_add_u32 %s, %s, %s" % (sSO, sBCH[g - 8], sROW[0]))
            pre = (lambda: True) if g < 6 else (lambda g=g: e.ev.get(("free", "P", g - 6)))
            e.q1.append(Job(pre, ["buffer_load_dwordx4 v%d, %s, %s offen offset:%d sc1 lds" % (vL16, sWS, sSO if g >= 8 else sBCH[g], k * 1024)
                                  for k in range(4)], setup, [], e.ev.setdefault(("dma", "P", g), [])))

    def z2n_poll_setup(self):
        e = self
        e("s_and_b32 %s, %s, 1\ns_andn2_b32 %s, %s, 1\ns_lshl1_add_u32 %s, %s, %s" % (sT2, sJ2, sT0, sJ2, sT0, sT0, sT2))
        e("s_lshl_b32 %s, %s, 5\ns_add_u32 %s, %s, %s\ns_lshl_b32 %s, %s, 7\ns_add_u32 %s, %s, %d" % (sT0, sT0, sT0, sT0, sW, sT0, sT0, sT0, sT0, F_Z2N))
        e("v_and_b32 v%d, 7, v0\nv_bfe_u32 v%d, v0, 3, 1\nv_lshl_add_u32 v%d, v%d, 4, v%d\nv_lshl_add_u32 v%d, v%d, 9, %s"
          % (vT[8], vT[7], vT[8], vT[7], vT[8], vT[8], vT[8], sT0))
        e("s_lshl2_add_u32 %s, %s, %s\ns_lshl_b32 %s, %s, 6" % (sT2, sI2, sW, sT2, sT2))
        e("v_and_b32 v%d, 31, v0\nv_lshl_add_u32 v%d, v%d, 1, %s" % (vT[7], vT[7], vT[7], sT2))
        self.z2n_poll = "buffer_load_dword v%d, v%d, %s, 0 offen sc1" % (vT[9], vT[8], sWS)
        self.bias_ld = "buffer_load_ushort v%d, v%d, %s, 0 offen" % (vT[10], vT[7], sBSP)

    def z2n_poll_issue(self):
        self(self.bias_ld)
        self(self.z2n_poll)

    def z2n_go(self):
        e = self
        e.check(e.z2n_poll, "v_cmp_eq_u32 vcc, -1, v%d" % vT[9], site=58)
        e.stamp(6)
        e.b_jobs(0, NB0)

    def drain_all(self):
        self.drain(lambda: not self.q1 and not self.q2 and not self.qd and not self.armed)
        self.settle()
        return self.vm_n - 1

    def p1_finish(self):
        e = self
        e.lstamp(None)
        e.stamp(5)
        e.wait(lg=e.lg_n - 1)
        names = {("P", g): max(e.ev[("dma", "P", g)]) for g in range(NB0)}
        names.update({("A", q): max(e.ev[("adma", q)]) for q in range(e.nqd - 4, e.nqd)})
        return e.join_state(names)

    def deferred_stores(self):
        out = ["buffer_store_dword v%d, v%d, %s, %s offen sc1" % (ACCB + 16 * jb, vT[7], sWS, sDEF[2 + jb]) for jb in range(2)]
        return out + ["buffer_store_dwordx4 %s, v%d, %s, %s offen offset:%d sc1" % (R("v", ACCB + 4 * k, 4), vL16, sWS, sDEF[k // 4], (k % 4) * 1024)
                      for k in range(8)]

    OFF_A = staticmethod(lambda s: 16384 + (s % 4) * 2048)
    OFF_W = staticmethod(lambda s: (s % 4) * 5120)

    def main_start(self):
        e = self
        e.w_offsets(vWDI, 3456)
        e.stream_init(sAO, sAB, sAE, "s_add_u32 %s, %s, 13\ns_lshl_b32 %s, %s, 7" % (sAB, sJ, sAB, sAB), 3456)
        e.w_jobs("A", False, e.OFF_A, sWIN, (sAO, sAB, sAE), 3456, {}, True)
        n = len(e.q1)
        e.bg_vm(force=True, maxn=e.opt.get("n0", 8))
        e.settle()
        self.n_start = n - len(e.q1)
        self.start_ev = {k: list(v) for k, v in e.ev.items() if k[0] == "dma"}
        e.late_setup()
        for _ in range(e.opt.get("shift", 0)):
            e("s_nop 0")

    def pass_a(self, queue_b):
        e = self
        e.w_jobs("A", False, e.OFF_A, sWIN, (sAO, sAB, sAE), 3456, {}, True)
        del e.q1[:self.n_start]
        for k, v in self.start_ev.items():
            e.ev[k][:] = v
        n = len(e.q1)
        e.shadow(queue_b)
        e.prog.append(("call", lambda: e.ev.__setitem__("b_ready", True), 0))
        first = e.q1[n]
        first.pre = lambda pre=first.pre: e.ev.get("b_ready") and pre()
        e.shadow(e.a_tables)
        e.shadow(e.z2n_poll_setup)
        e.stamp(0)
        e.bg_vm(force=True, maxn=e.opt.get("n1", 6))
        self.dbg_ld = "buffer_load_dword v%d, off, %s, 0 sc1" % (vT[11], sDBG)

        def upto(stage):
            return max([i + 1 for i, j in enumerate(e.q1) if j.sink is e.ev[("dma", "B", stage)]]) if stage >= 0 else \
                min([i for i, j in enumerate(e.q1) if j.sink is e.ev[("dma", "B", 0)]])
        k0, k1 = upto(e.opt.get("pre_a", 0)), upto(e.opt.get("pre_b", 2))
        e.q1, self.q_act, self.q_later = e.q1[:k0], e.q1[k0:k1], e.q1[k1:]
        e.p1_pass("A", [(e.rd_narrow(e.OFF_A, 0), Z2ACC, 2), (e.rd_narrow(e.OFF_A, 1), Z2ACC + 16, 2)], True, False,
                  {e.opt.get("f_dbg", 56): lambda: e(self.dbg_ld)})
        self.left_a = len(e.prog)
        e.prog_flush()
        e.stamp(1)

    def second_pass(self, blocks, hooks=None, early_poll=True):
        e = self
        e.pipe = e.gate = e.cyc
        e.wait_all(vm=False)
        e.ev["xfree"] = True
        e.q1 += self.q_act
        e.z2_stats()
        e.stamp(2)
        e.q1 += self.q_later
        e.a_jobs(0, e.nqd, 0, e.nqd - 4, e.q2)
        e.bg_vm(force=True, maxn=e.opt.get("n2", 2))
        e.lat = 10 ** 9
        o = e.opt
        tail = e.label("L_tail")
        e.p1_pass("B", blocks, False, True, {**(hooks or {}), 0: e.z2_norm, 40 * len(blocks) - o.get("z_early", 4): (lambda: e.hi.extend([e.bias_ld, e.z2n_poll])) if early_poll else lambda: None, 40 * len(blocks) - 60: lambda: e.touch(tail), 40 * len(blocks) - 30: lambda: e.touch("L_p2")},
                  prev_tag="A")
        e.raw(tail + ":")
        e.ev["passb"] = True
        e.prog_flush()
        e.lat = o.get("lat1", 800)
        e.stamp(4)
        e.wait_all(vm=False)
        e("s_barrier")

    def role_a(self):
        e = self

        def queue_b():
            e("s_lshl2_add_u32 %s, %s, %s" % (sG, sHALF, sJL))
            e.stream_init(sBO, sBB, sBE, "s_mul_i32 %s, %s, 160\ns_add_u32 %s, %s, 1280" % (sBB, sG, sBB, sBB), 3840)
            e.w_jobs("B", True, e.OFF_W, sWQ, (sBO, sBB, sBE), 3840, {15360: ("A", 9)}, False, 1.6)
            e.seg320(3840, 16 * 3840, 1280 - 160)
            e.wide_read_addr()
        e.pass_a(queue_b)
        e.ev["a_start"] = False
        sA, sB = [sXO, sXB], sDEF[2:]
        AD = vT[1:5]
        vOA, vON = vXD[0], vXD[1]

        def tables():
            e("s_mov_b32 s100, %s\ns_mov_b32 s101, %s" % (f32(LOG2E), f32(1e-6)))
            e("v_add_u32 v%d, %s, v%d" % (vT[0], sREG, vL16))
            e("s_add_u32 %s, %s, 2\ns_add_u32 %s, %s, 3\ns_min_u32 %s, %s, 5" % (sA[0], sW, sA[1], sW, sA[1], sA[1]))
            e("s_cmp_eq_u32 %s, 3\ns_cselect_b32 %s, 0, %s\ns_cselect_b32 %s, 1, %s" % (sW, sB[0], sW, sB[1], sW))
            for k, s_ in enumerate((sA[0], sB[0], sA[1], sB[1])):
                e("s_cmp_eq_u32 %s, 5\ns_cselect_b32 %s, 0, -1" % (s_, sT2))
                e("v_and_b32 v%d, %s, v%d\ns_lshl_b32 %s, %s, 11\nv_add_u32 v%d, %s, v%d" % (AD[k], sT2, vL16, sT2, s_, AD[k], sT2, AD[k]))
            e("v_bfe_u32 v%d, v0, 2, 1\nv_lshlrev_b32 v%d, 10, v%d\nv_and_b32 v%d, 12, v%d" % (vOA, vOA, vOA, vON, vL4))
            e("v_add3_u32 v%d, v%d, v%d, %s\nv_mov_b32 v%d, 0x3f803f80" % (vOA, vOA, vON, sREG, vON))
        e.second_pass([(e.rd_wide(e.OFF_W, b), ACCB + 16 * b, 1) for b in range(5)], {1: lambda: e.shadow(tables), e.opt.get("a_start", 70): lambda: e.ev.__setitem__("a_start", True)}, early_poll=False)
        tmp = WRING
        P = Z2ACC
        e("ds_write_b32 v%d, v%d offset:%d" % (vOA, vON, WOFF + 10240))
        n_ = 0
        for step, (b, st) in enumerate([(0, 0), (0, 1), (1, 0), (1, 1), (2, 0), (2, 1)]):
            if b == 2:
                e("s_mov_b32 exec_lo, 0xffff\ns_mov_b32 exec_hi, 0xffff")
                e.phi(ACCB + 32 + 8 * st, 8, tmp, 100, e)
                e("s_mov_b64 exec, -1")
            else:
                mid = ACCB + 48 + 8 * step
                d = P + 4 * (n_ % 8)
                n_ += 1
                e.pack(mid, 8, d)
                e.phi(ACCB + 16 * b + 8 * st, 8, tmp, 100, None, "ds_write_b128 v%d, %s offset:%d" % (vT[0], R("v", d, 4), WOFF + (6 + step) * 1024))
            if step == e.opt.get("a_poll", 0):
                e.z2n_poll_issue()
            if step == e.opt.get("a_go", 3):
                e.drain(lambda: not e.q2 and not e.armed)
                e.z2n_go()
            d = P + 4 * (n_ % 8)
            n_ += 1
            e.pack(ACCB + 16 * b + 8 * st, 8, d)
            e("ds_write_b128 v%d, %s offset:%d" % (vT[0], R("v", d, 4), WOFF + (2 * b + st) * 1024))
        e.wait_all(vm=False)
        e("s_barrier")
        RES = [ACCB, ACCB + 16]

        def reads(step):
            w_, st = divmod(step, 2)
            if step == 4:
                for k in range(4):
                    e("v_add_u32 v%d, %d, v%d" % (AD[k], 2 * REGION, AD[k]))
            for k in range(4):
                e("ds_read_b128 %s, v%d offset:%d" % (R("a", (step % 6) * 16 + 4 * k, 4), AD[k], WOFF + (w_ & 1) * REGION + st * 1024))
        reads(0); reads(1)
        side = ["s_lshl4_add_u32 %s, %s, %s\ns_mul_i32 %s, %s, 20480\ns_add_u32 %s, %s, %d" % (sAB, sG, sI, sAB, sAB, sAB, sAB, KVP - 2 * 4096),
                "s_lshl3_add_u32 %s, %s, %s\ns_mul_i32 %s, %s, 384\ns_add_u32 %s, %s, %d" % (sAE, sI, sG, sAE, sAE, sAE, sAE, ZP),
                "s_nop 0"]
        for jb in range(2):
            side += ["s_add_u32 %s, %s, %s\ns_lshl_b32 %s, %s, 12\ns_add_u32 %s, %s, %s" % (sDEF[jb], sA[jb], sB[jb], sDEF[jb], sDEF[jb], sDEF[jb], sDEF[jb], sAB),
                     "s_lshl_b32 %s, %s, 7\ns_add_u32 %s, %s, %s" % (sB[jb], sB[jb], sB[jb], sB[jb], sAE),
                     "s_cmp_eq_u32 %s, 5\ns_cselect_b32 %s, 0x%x, %s\ns_cselect_b32 %s, %s, 0x%x" % (sA[jb], sDEF[jb], OOB, sDEF[jb], sB[jb], sB[jb], OOB)]
        side[2] += "\ns_lshl4_add_u32 %s, %s, %s\ns_lshl2_add_u32 %s, %s, %s\ns_lshl2_add_u32 %s, %s, %s" % (sFL, sHALF, sI, sFL, sFL, sJL, sFL, sFL, sW)
        side[4] += "\ns_lshl_b32 %s, %s, 7\ns_add_u32 %s, %s, %d" % (sFL, sFL, sFL, sFL, F_KV)
        for step in range(8):
            for jb in range(2):
                base = (step % 6) * 16 + 8 * jb
                acc = R("v", RES[jb], 16)
                e("v_mfma_f32_32x32x16_bf16 %s, %s, %s, %s" % (acc, R("a", base, 4), R("a", base + 4, 4), "0" if step == 0 else acc))
                if jb == 0 and step + 2 < 8:
                    reads(step + 2)
                else:
                    e.tick()
                    if side:
                        e(side.pop(0))
        assert not side
        e.drain_all()

    def early_finish(self, last):
        e = self
        e.bg_vm(force=True, maxn=8)
        e.flag(last, sFL)
        for r_ in [sFL] + sDEF:
            e("s_mov_b32 %s, 0x%x" % (r_, OOB))
        e.drain(lambda: len(e.q2) <= 2)
        e.z2n_poll_issue()
        e.drain_all()
        e.z2n_go()
        e.drain_all()

    def z1_store(self, nblk, first_text, packed=False):
        e = self
        e("s_lshl2_add_u32 %s, %s, %s\ns_mul_i32 %s, %s, 28" % (sT0, sI, sW, sT0, sT0))
        e(first_text)
        e("s_add_u32 %s, %s, %s\ns_lshl_b32 %s, %s, 11\ns_add_u32 %s, %s, %d" % (sT0, sT0, sT1, sT0, sT0, sT0, sT0, Z1))
        for b in range(nblk):
            d = ACCB + 8 * b
            if not packed:
                e.pack(ACCB + 16 * b, 16, d)
            if b == 4:
                e("s_add_u32 %s, %s, 8192" % (sT0, sT0))
            for p in range(2):
                o_ = (b % 4) * 2048 + p * 1024
                last = e("buffer_store_dwordx4 %s, v%d, %s, %s offen offset:%d sc1" % (R("v", d + 4 * p, 4), vL16B if o_ >= 4096 else vL16, sWS, sT0, o_ % 4096))
        return last

    def z1_flag_addr(self):
        self("s_lshl2_add_u32 %s, %s, %s\ns_lshl3_add_u32 %s, %s, %s" % (sFL, sI, sW, sFL, sFL, sG))
        self("s_lshl_b32 %s, %s, 7\ns_add_u32 %s, %s, %d" % (sFL, sFL, sFL, sFL, F_Z1))

    def role_b(self):
        e = self

        def queue_b():
            e("s_mul_i32 %s, %s, 3\ns_add_u32 %s, %s, %s\ns_sub_u32 %s, %s, 4" % (sG, sHALF, sG, sG, sJL, sG, sG))
            e.stream_init(sBO, sBB, sBE, "s_mul_i32 %s, %s, 320" % (sBB, sG), 3456)
            e.w_jobs("B", True, e.OFF_W, sWIN, (sBO, sBB, sBE), 3456, {15360: ("A", 9)}, False, 1.2)
            e.seg320(3456, 16 * 3456)
            e.wide_read_addr()
        e.pass_a(queue_b)
        e.second_pass([(e.rd_wide(e.OFF_W, b), ACCB + 16 * b, 2) for b in range(5)])
        e.drain_all()
        last = e.z1_store(5, "s_mul_i32 %s, %s, 5\ns_add_u32 %s, %s, 1" % (sT1, sG, sT1, sT1))
        e.z1_flag_addr()
        e.z2n_go()
        e.bg_vm(force=True, maxn=8)
        e.flag(last, sFL)
        for r_ in [sFL] + sDEF:
            e("s_mov_b32 %s, 0x%x" % (r_, OOB))
        e.drain_all()

    @staticmethod
    def unit_col(U):
        c, t = divmod(U, 5)
        return (80 * c + (32 * (t >> 1) + 4 * (t & 1) if t < 4 else 64), 8 if t < 4 else 4)

    def role_l(self):
        e = self
        offf = lambda s: (s % 7) * 2048
        vGR = 18

        def queue_b():
            e("s_mov_b32 %s, 5" % sG)
            e.stream_init(sBO, sBB, sBE, "s_mov_b32 %s, 1600" % sBB, 3456)
            e("s_lshl_b32 %s, %s, 7" % (sT0, sROT))
            for t in range(2):
                e("v_add_u32 v%d, %s, v%d" % (vT[2 + t], sT0, vL16))
                if t:
                    e("v_add_u32 v%d, 0x400, v%d" % (vT[3], vT[3]))
                e("v_subrev_u32 v%d, 0x500, v%d\nv_min_u32 v%d, v%d, v%d" % (vT[1], vT[2 + t], vT[2 + t], vT[2 + t], vT[1]))
                e.q1.append(Job(lambda: True, ["buffer_load_dwordx4 v%d, %s, 0 offen lds" % (vT[2 + t], sGW)],
                                ["s_add_u32 m0, %s, %d" % (sREG, WOFF + 14336 + 1024 * t)], [], e.ev.setdefault(("dma", "B", 0), [])))
            e.w_jobs("B", False, offf, sWIN, (sBO, sBB, sBE), 3456, {}, False, 2.0)
            e.ev[("ndma", "B", 0)] += 2
            e("v_lshrrev_b32 v%d, 5, v0\nv_lshl_add_u32 v%d, v%d, 4, %s" % (vGR, vGR, vGR, sREG))

        def rd_gate(s, ks, dst):
            return e("ds_read_b128 %s, v%d offset:%d" % (R("v", dst, 4), vGR, WOFF + 14336 + s * 128 + ks * 32))
        e.pass_a(queue_b)
        e.second_pass([(e.rd_narrow(offf, 0), ACCB, 2), (e.rd_narrow(offf, 1), ACCB + 16, 2), (rd_gate, ACCB + 32, 2)], early_poll=False)
        g = ACCB + 32
        e.V("v_mul_f32 v%d, %s, v%d\nv_exp_f32 v%d, v%d\nv_add_f32 v%d, 1.0, v%d\nv_rcp_f32 v%d, v%d" % (g, f32(-LOG2E), g, g, g, g, g, g, g))
        e("s_lshl2_add_u32 %s, %s, %s\ns_lshl_b32 %s, %s, 7\ns_add_u32 %s, %s, %d" % (sT0, sI, sW, sT0, sT0, sT0, sT0, GATE))
        e("v_and_b32 v%d, 0x7c, v%d" % (vT[0], vL4))
        e("buffer_store_dword v%d, v%d, %s, %s offen sc1" % (g, vT[0], sWS, sT0))
        last = e.z1_store(2, "s_mov_b32 %s, 26" % sT1)
        e.z1_flag_addr()
        return e.early_finish(last)

    def ap_voff(self, dst):
        self.V("v_bfe_u32 v%d, v0, 4, 1\nv_mul_u32_u24 v%d, 0xc000, v%d\nv_and_b32 v%d, 15, v0" % (dst, dst, dst, vT[0]))
        self.V("v_lshl_add_u32 v%d, v%d, 4, v%d\nv_lshrrev_b32 v%d, 5, v0\nv_lshl_add_u32 v%d, v%d, 8, v%d" % (dst, vT[0], dst, vT[0], dst, vT[0], dst))

    def role_h(self):
        e = self
        e.wring = 208
        Q = 48
        full = e.opt.get("stop", 9) > 2
        SG, ra = [40, 41, 42, 43, 44], 18
        sWB, sDB = sROW[1], sROW[2]
        e("s_mov_b32 s14, %d\ns_mov_b32 s15, 0x20000" % self.sizes[12])
        e.stream_init(sAO, sAB, sAE, "s_mul_i32 %s, %s, 640" % (sAB, sHALF), 3840)
        e.w_offsets(vWDI, 3840)
        off1 = lambda s: 8192 + (s + 2) % 4 * 4096
        off2 = lambda s: s % 4 * 6144
        e.w_jobs("A", False, off1, sWQ, (sAO, sAB, sAE), 3840, {}, True, lines=2)
        e.bg_vm(force=True, maxn=4)
        e.late_setup(natural=True)
        e.wait(vm=self.clear_id)
        e("s_barrier")
        e("v_mov_b32 v244, 1\ns_lshl_b32 %s, %s, 12\ns_mov_b64 exec, 1" % (sT0, sW))
        e("buffer_atomic_add v244, off, %s, %s sc1" % (sDBG, sT0))
        e("s_mov_b64 exec, -1")
        e.bg_vm(force=True, maxn=8)
        e.seg320(1280, 320, regs_=SG)
        e("s_lshl1_add_u32 %s, %s, %s\ns_mul_i32 %s, %s, %d" % (sT3, sI, sHALF, sWB, sT3, 32 * 1280))
        e("v_lshrrev_b32 v%d, 5, v0\nv_bfe_u32 v%d, v0, 2, 3\nv_lshl_add_u32 v%d, v%d, 4, v%d" % (ra, ra + 1, ra, ra, ra + 1))
        e("v_mul_u32_u24 v%d, 320, v%d\nv_add_u32 v%d, %s, v%d\nv_and_b32 v%d, 3, v0" % (ra, ra, ra, sREG, ra, vT[0]))
        e("v_lshl_add_u32 v%d, v%d, 3, v%d\nv_lshl_add_u32 v%d, v%d, 4, v%d" % (ra + 1, vT[0], ra, ra, vT[0], ra))
        e("s_mul_i32 %s, %s, 96\ns_add_u32 %s, %s, %s\ns_mul_i32 %s, %s, 5120\ns_add_u32 %s, %s, %d" % (sDB, sW, sDB, sDB, sT3, sDB, sDB, sDB, sDB, BP + 20 * 5120))
        e("s_cmp_lt_u32 %s, 27\ns_cselect_b32 %s, %s, 0x%x" % (sT3, sDB, sDB, OOB))
        e("s_lshl_b32 %s, %s, 5\ns_add_u32 %s, %s, %s\ns_lshl_b32 %s, %s, 7\ns_add_u32 %s, %s, %d" % (sFL, sW, sFL, sFL, sT3, sFL, sFL, sFL, sFL, F_WO))
        e.stream_init(sBO, sBB, sBE, "s_add_u32 %s, %s, 256" % (sBB, sAB), 3840)
        e.w_jobs("B", False, off2, sWQ, (sBO, sBB, sBE), 3840, {6144: ("A", 6), 12288: ("A", 8), 18432: ("A", 9)}, False, lines=3)
        vAP, sPQ = 25, "s86"
        hold, e.q1 = e.q1, []
        e.ap_voff(vAP)
        e.q1 = hold
        e("s_lshl2_add_u32 %s, %s, %s\ns_mul_i32 %s, %s, %d\ns_mul_i32 %s, %s, 10240" % (sPQ, sI, sW, sPQ, sPQ, 2 * 49152, sT3, sHALF))
        e("s_add_u32 %s, %s, %s\ns_add_u32 %s, %s, %d" % (sPQ, sPQ, sT3, sPQ, sPQ, AP))

        def pq_piece(pc):
            d = Q + 4 * pc
            out = ["v_cvt_pk_bf16_f32 v%d, v%d, v%d" % (d + k, Q + 8 * pc + 2 * k, Q + 8 * pc + 2 * k + 1) for k in range(4)]
            if pc and pc % 8 == 0:
                out.append("s_add_u32 %s, %s, 4096" % (sPQ, sPQ))
            return out + ["buffer_store_dwordx4 %s, v%d, %s, %s offen offset:%d sc1" % (R("v", d, 4), vAP, sWS, sPQ, (pc // 2 % 4) * 1024 + (pc & 1) * 512)]
        e.stamp(0)
        e.bg_vm(force=True, maxn=8)
        ld0 = "buffer_load_dword v%d, off, %s, 0 sc1" % (vT[11], sDBG)
        wo_ld, wo_st = [], []

        def relayout():
            ld = "buffer_load_dwordx4 v%%d, %s, %s offen offset:%%d lds" % (sWOUT, sWB)
            for hf in range(2):
                e.q2.append(Job(lambda: True, [ld % (SG[k], k * 1024) for k in range(4)], ["s_add_u32 m0, %s, %d" % (sREG, 5120 * hf)], [], wo_ld, weight=1.2))
                e.q2.append(Job(lambda: True, [ld % (SG[4], 0)], ["s_add_u32 m0, %s, %d" % (sREG, 5120 * hf + 4096)],
                                ["s_add_u32 %s, %s, %d" % (sWB, sWB, 16 * 1280)], wo_ld, lambda: e.ev.__setitem__("wo_t", e.cyc), 1.2))
            ready = lambda: len(wo_ld) == 10 and e.landed(max(wo_ld))
            for U in range(10):
                col, step = self.unit_col(U)
                for sub in range(2):
                    def rd(U=U, sub=sub, col=col, step=step):
                        e.wait(vm=max(wo_ld))
                        e("ds_read_b64_tr_b16 %s, v%d offset:%d" % (R("a", 160 + 4 * U + 2 * sub, 2), ra if step == 8 else ra + 1, sub * 8 * 320 + col * 2))
                        e.ev["wo_rd"] = 2 * U + sub + 1
                    e.qd.append((ready, rd))
            for U in range(10):
                e.q2.append(Job(lambda U=U: e.ev.get("wo_rd", 0) >= min(20, 2 * U + 6), ["buffer_store_dwordx4 %s, v%d, %s, %s offen offset:%d sc1"
                                                   % (R("a", 160 + 4 * U, 4), vL16B if U % 5 == 4 else vL16, sWS, sDB, (U % 5 % 4) * 1024)],
                                ["s_add_u32 %s, %s, %d" % (sDB, sDB, 48 * 5120)] if U == 5 else [], [], wo_st))
            e.hi += [ld0, e.mark("ld0"), ("until", lambda: e.ev["ld0"]), ("call", lambda: e.check(ld0, "v_cmp_gt_u32 vcc, 32, v%d" % vT[11]), 16),
                     ("until", lambda: max(wo_st) if len(wo_st) == 10 else 10 ** 9), ("call", lambda: e.flag(max(wo_st), sFL), 16)]

        nsh = e.opt.get("h_sh", 64)

        def phi_shadow():
            e("s_mov_b32 s100, %s\ns_mov_b32 s101, %s" % (f32(LOG2E), f32(1e-6)))
            for g0 in range(0, nsh, 4):
                for fmt in ("v_mul_f32 v{t}, s100, v{x}", "v_exp_f32_e64 v{t}, v{t} clamp", "v_max_f32 v{x}, s101, v{x}", "v_add_f32 v{x}, v{x}, v{t}"):
                    e.prog += [fmt.format(x=Q + g0 + k, t=240 + k) for k in range(4)]
                if g0 >= nsh // 2:
                    e.prog += pq_piece((g0 - nsh // 2) // 4)
        sHM, sPF, sSF, sKF, sGF, sGA, sZP, sKV, sSC, sMB, sMF, sWO_, sCT = ["s[82:83]", "s84", "s85"] + ["s%d" % k for k in range(87, 97)]
        IMG, ZIMG, ZPITCH = 8192, REGION, 656
        vGA, vIW, vAR, vAR2, vZG, vZW, vZR, vGT = range(32, 40)
        MS, WT, vH, vOOB = [248, 249, 250], [251, 252, 253, 254], 24, 27

        def late_addresses():
            e("s_lshr_b32 %s, %s, 1\ns_lshl3_add_u32 %s, %s, %s" % (sG, sI, sG, sHALF, sG))
            e("s_and_b32 %s, %s, 1\ns_lshl2_add_u32 %s, %s, %s" % (sCT, sI, sCT, sCT, sW))
            e("s_mul_i32 %s, %s, %d\ns_mul_i32 %s, %s, 160\ns_add_u32 %s, %s, %s" % (sT0, sG, 40 * 1280, sT1, sCT, sWO_, sT0, sT1))
            e("s_lshl2_add_u32 %s, %s, %s\ns_mul_i32 %s, %s, 384\ns_add_u32 %s, %s, %d" % (sT0, sHALF, sW, sZP, sT0, sZP, sZP, ZP))
            e("s_lshl_b32 %s, %s, 13\ns_add_u32 %s, %s, %d" % (sKF, sT0, sKF, sKF, F_KV))
            e("s_lshl2_add_u32 %s, %s, %s\ns_lshl_b32 %s, %s, 7\ns_add_u32 %s, %s, %d" % (sT0, sI, sW, sGA, sT0, sGA, sGA, GATE))
            e("s_lshl_b32 %s, %s, 10\ns_add_u32 %s, %s, %d" % (sGF, sT0, sGF, sGF, F_Z1 + 5 * 128))
            e("s_lshl1_add_u32 %s, %s, %s\ns_lshl_b32 %s, %s, 11\ns_add_u32 %s, %s, %d" % (sSC, sT0, sHALF, sSC, sSC, sSC, sSC, SC))
            e("s_lshr_b32 %s, %s, 1\ns_lshl1_add_u32 %s, %s, %s\ns_and_b32 %s, %s, 1\ns_lshl1_add_u32 %s, %s, %s" % (sT0, sW, sT0, sI, sT0, sT1, sW, sT1, sHALF, sT1))
            e("s_lshl2_add_u32 %s, %s, %s\ns_lshl_b32 %s, %s, 7\ns_add_u32 %s, %s, %d" % (sSF, sT0, sT1, sSF, sSF, sSF, sSF, F_SC))
            e("s_lshl_b32 %s, %s, 5\ns_add_u32 %s, %s, %s\ns_lshl_b32 %s, %s, 7\ns_add_u32 %s, %s, %d" % (sT0, sT0, sT0, sT0, sT1, sT0, sT0, sPF, sT0, F_U + 28 * 128))
            e("s_lshr_b32 %s, %s, 1\ns_mul_i32 %s, %s, %d\ns_add_u32 %s, %s, %d" % (sKV, sG, sKV, sKV, 16 * 20480, sKV, sKV, KVP))
            e("s_mul_i32 %s, %s, %d\ns_add_u32 %s, %s, %d" % (sMB, sCT, 48 * 5120, sMB, sMB, BP))
            e("s_lshl4_add_u32 %s, %s, %s\ns_lshl_b32 %s, %s, 7\ns_add_u32 %s, %s, %d" % (sMF, sCT, sG, sMF, sMF, sMF, sMF, F_M))
            e("v_lshrrev_b32 v%d, 5, v0\nv_mov_b32 v%d, 0x%x\nv_and_b32 v%d, 0x7c, v%d" % (vH, vOOB, OOB, vGT, vL4))
            e("v_bfe_u32 v1, v0, 2, 2\nv_mul_u32_u24 v1, 160, v1\nv_add_u32 v1, %s, v1\nv_mul_u32_u24 v3, %d, v%d" % (sREG, 8 * 160, vH))
            e("v_and_b32 v4, 3, v0\nv_bfe_u32 v5, v0, 4, 1\nv_lshl_add_u32 v%d, v5, 3, v1\nv_lshl_add_u32 v%d, v4, 4, v%d" % (WT[2], WT[2], WT[2]))
            e("v_lshl_add_u32 v%d, v4, 3, v1\nv_add_u32 v%d, v%d, v3\nv_add_u32 v%d, v%d, v3" % (WT[3], WT[0], WT[2], WT[1], WT[3]))
            e("v_cmp_eq_u32 %s, 0, v5" % sHM)
            e("s_mul_i32 %s, %s, 5" % (sT0, sG))
            e("v_and_b32 v1, 15, v0\nv_lshlrev_b32 v1, 4, v1\nv_lshl_add_u32 v1, v5, 10, v1")
            for p in range(3):
                e("v_add_u32 v3, %s, v%d\nv_add_u32 v3, %d, v3\nv_lshrrev_b32 v4, 2, v3\nv_mul_u32_u24 v4, 5120, v4" % (sT0, vH, 2 * p))
                e("v_and_b32 v3, 3, v3\nv_lshl_add_u32 v3, v3, 8, v1\nv_add_u32 v%d, v3, v4" % MS[p])
            e("v_cmp_gt_u32 vcc, 32, v0\nv_cndmask_b32 v%d, v%d, v%d, vcc" % (MS[2], vOOB, MS[2]))
            e("s_mul_i32 %s, %s, 50\ns_and_b32 %s, %s, 1\ns_mul_i32 %s, %s, 40" % (sT0, sW, sT1, sG, sT1, sT1))
            e("v_add_u32 v1, %s, v0\nv_mul_u32_u24 v3, 0xccd, v1\nv_lshrrev_b32 v3, 16, v3\nv_mul_u32_u24 v4, 20, v3\nv_sub_u32 v1, v1, v4" % sT0)
            e("v_cmp_lt_u32 vcc, 4, v3\nv_cndmask_b32_e64 v4, 0, 20, vcc")
            e("v_add_u32 v1, v1, v4\nv_mul_u32_u24 v%d, 96, v1\nv_lshl_add_u32 v%d, v3, 3, v%d" % (vIW, vIW, vIW))
            e("v_add_u32 v1, %s, v1\nv_lshl_add_u32 v3, v3, 2, %s\nv_add_u32 v3, 16, v3" % (sT1, sT1))
            e("v_lshrrev_b32 v4, 5, v1\nv_lshlrev_b32 v3, 7, v3\nv_lshl_add_u32 v3, v4, 12, v3")
            e("v_and_b32 v1, 31, v1\nv_lshl_add_u32 v%d, v1, 4, v3\nv_mov_b32 v1, 3840" % vGA)
            e("v_cmp_gt_u32 vcc, 50, v0\nv_cndmask_b32 v%d, v%d, v%d, vcc\nv_cndmask_b32 v%d, v1, v%d, vcc" % (vGA, vOOB, vGA, vIW, vIW))
            e("v_and_b32 v1, 0x13, v0\nv_bfe_u32 v3, v0, 2, 1\nv_lshl_or_b32 v1, v3, 3, v1\nv_bfe_u32 v4, v0, 3, 1\nv_lshl_or_b32 v1, v4, 2, v1")
            e("v_mul_u32_u24 v%d, 96, v1\nv_lshl_add_u32 v%d, v%d, 4, v%d" % (vAR, vAR, vH, vAR))
            e("v_and_b32 v1, 7, v1\nv_mul_u32_u24 v%d, 96, v1\nv_lshl_add_u32 v%d, v%d, 4, v%d" % (vAR2, vAR2, vH, vAR2))
            e("v_lshl_or_b32 v1, v1, 1, v3\nv_mul_u32_u24 v%d, %d, v1\nv_lshl_add_u32 v%d, v%d, 4, v%d" % (vZR, ZPITCH, vZR, vH, vZR))
            e("v_and_b32 v1, 31, v0\nv_mul_u32_u24 v3, 3072, v%d\nv_lshl_add_u32 v%d, v1, 4, v3" % (vH, vZG))
            e("v_mul_u32_u24 v3, 0x3334, v1\nv_lshrrev_b32 v3, 16, v3\nv_mul_u32_u24 v3, %d, v3\nv_lshl_add_u32 v3, v1, 3, v3" % ZPITCH)
            e("s_mul_i32 %s, %s, %d\nv_lshl_add_u32 v3, v%d, 2, v3\nv_add_u32 v%d, %s, v3\nv_mov_b32 v3, %d" % (sT0, sW, 4 * ZPITCH + 160, vH, vZW, sT0, 16 * ZPITCH))
            e("v_cmp_gt_u32 vcc, 20, v1\nv_cndmask_b32 v%d, v%d, v%d, vcc\nv_cndmask_b32 v%d, v3, v%d, vcc" % (vZG, vOOB, vZG, vZW, vZW))
        e.shadow(late_addresses)
        e.pipe = e.gate = e.cyc
        e.p1_pass("A", [(e.rd_narrow(off1, b), Q + 16 * b, 2) for b in range(4)], True, True)
        e.raw("L_h2:")
        e.prog_flush()
        e.stamp(1)
        e.p1_pass("B", [(e.rd_narrow(off2, b), Q + 64 + 16 * b, 2) for b in range(6)], False, True, {0: relayout, 6: phi_shadow, 140: lambda: e.touch("L_h3"), 170: lambda: e.touch("L_h3", 8192)}, prev_tag="A")
        e.raw("L_h3:")
        e.drain_all()
        e.prog_flush()
        e.lstamp(None)
        e.stamp(4)
        e.wait_all(vm=False)
        e("s_barrier")
        for pc in range(7):
            e("v_add_u32 v1, %d, v0\nv_mul_u32_u24 v3, 0x199a, v1\nv_lshrrev_b32 v3, 16, v3" % (64 * pc))
            e("s_add_u32 m0, %s, %d" % (sREG, WOFF + pc * 1024))
            e("v_mul_u32_u24 v3, %d, v3\nv_lshl_add_u32 v1, v1, 4, v3" % (1280 - 160))
            if pc == 6:
                e("s_mov_b64 exec, 0xffff")
            wo_id = e("buffer_load_dwordx4 v1, %s, %s offen lds" % (sWO, sWO_))
        e("s_mov_b64 exec, -1")
        for k in range(4):
            e("v_mov_b32 v%d, 0" % (208 + k))
        e("s_lshl_b32 %s, %s, 10\nv_add_u32 v1, %s, v%d" % (sT0, sW, sT0, vL16))
        zero = ["ds_write_b128 v1, v[208:211] offset:%d" % o_ for o_ in (IMG, ZIMG, ZIMG + 4096, ZIMG + 8192)]
        for pc in range(nsh // 8, 20):
            e.phi(Q + 8 * pc, 8, 240, 100, None, zero.pop() if zero else None)
            pq_st = e("\n".join(pq_piece(pc)))
        if full:
            e.p3_setup()
            e.p3_poll(0)
        e.wait(vm=wo_id)
        for bb in range(3):
            for ks in range(3):
                for t in range(2):
                    e("ds_read_b64_tr_b16 %s, v%d offset:%d" % (R("a", 12 * bb + 4 * ks + 2 * t, 2), WT[2 * (ks == 2) + (bb == 2)],
                                                                WOFF + (16 * ks + 4 * t) * 160 + 64 * bb))
        e.flag(pq_st, sPF)
        if full:
            e.p3_check(0)
            e.p3_jobs(e.q2, 0, e.n3, free=True)
            e.bg_vm(force=True, maxn=e.opt.get("h_w", 0))
        wjobs, e.q2 = e.q2, []
        ldw = "buffer_load_dword v208, off, %s, %s sc1" % (sWS, sKF)
        ld1 = "buffer_load_dword v208, v%d, %s, %s offen sc1\nbuffer_load_dword v209, off, %s, %s sc1" % (vL128, sWS, sKF, sWS, sGF)
        if e.opt.get("h_two", 1):
            e(ldw)
            e.stamp(5)
            e.check(ldw, "v_cmp_eq_u32 vcc, -1, v208", site=57)
        e(ld1)
        e.check(ld1, "v_max_u32 v213, v208, v209\nv_cmp_eq_u32 vcc, -1, v213", site=58)
        e.wait_all(vm=False)
        e("s_barrier")
        e.stamp(6)
        vG, ZL, KL, DEN = vT[10], 208, Q + 80, Q + 144
        for r in range(8):
            e("buffer_load_dwordx4 %s, v%d, %s, %s offen sc1" % (R("v", ZL + 4 * r, 4), vZG, sWS, sZP))
            if r < 7:
                e("s_add_u32 %s, %s, 6144" % (sZP, sZP))
        e("buffer_load_dword v%d, v%d, %s, %s offen sc1" % (vG, vGT, sWS, sGA))
        for r in range(16):
            e.q1.append(Job(lambda: True, ["buffer_load_dwordx4 %s, v%d, %s, %s offen sc1" % (R("v", KL + 4 * r, 4), vGA, sWS, sKV)],
                            ["s_add_u32 %s, %s, 20480" % (sKV, sKV)] if r else [], weight=1.2))
        e.bg_vm(force=True, maxn=e.opt.get("h_n0", 6))
        for r in range(1, 8):
            for k in (0, 2):
                e("v_pk_add_f32 %s, %s, %s" % (R("v", ZL + k, 2), R("v", ZL + k, 2), R("v", ZL + 4 * r + k, 2)))
        e("v_permlane32_swap_b32 v%d, v%d\nv_permlane32_swap_b32 v%d, v%d" % (ZL, ZL + 2, ZL + 1, ZL + 3))
        e("v_pk_add_f32 %s, %s, %s\nv_cvt_pk_bf16_f32 v%d, v%d, v%d" % (R("v", ZL, 2), R("v", ZL, 2), R("v", ZL + 2, 2), ZL, ZL, ZL + 1))
        e("ds_write_b32 v%d, v%d offset:%d" % (vZW, ZL, ZIMG))
        e.bg_vm(force=True, maxn=2)
        e.wait_all(vm=False)
        e("s_barrier")
        e.stamp(2)
        zf = lambda ks: R("a", 36 + 4 * (ks % 8), 4)
        for ks in range(6):
            e("ds_read_b128 %s, v%d offset:%d" % (zf(ks), vZR, ZIMG + 32 * ks))
        e.pipe = e.gate = e.cyc
        for ks in range(20):
            e("v_mfma_f32_32x32x16_bf16 %s, %s, %s, %s" % (R("v", DEN, 16), zf(ks), R("v", Q + 4 * ks, 4), R("v", DEN, 16) if ks else "0"))
            if ks + 6 < 20:
                e("ds_read_b128 %s, v%d offset:%d" % (zf(ks + 6), vZR, ZIMG + 32 * (ks + 6)))
            e.bg_vm()
        e.drain_all()

        def kvsum(r0, r1):
            for r in range(r0, r1):
                for k in (0, 2):
                    e("v_pk_add_f32 %s, %s, %s" % (R("v", KL + k, 2), R("v", KL + k, 2), R("v", KL + 4 * r + k, 2)))
        kvsum(1, 7)
        for fmt in ("v_add_f32 v{0}, %s, v{0}" % f32(1e-6), "v_rcp_f32 v{0}, v{0}", "v_mul_f32 v{0}, v{0}, v%d" % vG):
            for r in range(8):
                e(fmt.format(DEN + r))
        for k in range(2):
            last = e("buffer_store_dwordx4 %s, v%d, %s, %s offen offset:%d sc1" % (R("v", DEN + 4 * k, 4), vL16, sWS, sSC, k * 1024))
        e.q2 = wjobs
        e.bg_vm(force=True, maxn=e.opt.get("h_w1", 4))
        kvsum(7, 16)
        e("v_cvt_pk_bf16_f32 v%d, v%d, v%d\nv_cvt_pk_bf16_f32 v%d, v%d, v%d" % (KL, KL, KL + 1, KL + 1, KL + 2, KL + 3))
        e("ds_write_b64 v%d, %s offset:%d" % (vIW, R("v", KL, 2), IMG))
        e.stamp(3)
        e.wait_all(vm=False)
        e("s_barrier")
        for ks in range(3):
            e("ds_read_b128 %s, v%d offset:%d" % (R("a", 40 + 4 * ks, 4), vAR, IMG + 32 * ks))
        for ks in (1, 2):
            e("ds_read_b128 %s, v%d offset:%d" % (R("a", 48 + 4 * ks, 4), vAR2, IMG + 32 * 96 + 32 * ks))
        mm = []
        for bb in range(3):
            d1, d2 = R("v", Q + 32 * bb, 16), R("v", Q + 32 * bb + 16, 16)
            mm += ["v_mfma_f32_32x32x16_bf16 %s, %s, %s, %s" % (d1, R("a", 40 + 4 * ks, 4), R("a", 12 * bb + 4 * ks, 4), d1 if ks else "0") for ks in range(3)]
            mm += ["v_mfma_f32_32x32x16_bf16 %s, %s, %s, %s" % (d2, R("a", 48 + 4 * ks, 4), R("a", 12 * bb + 4 * ks, 4), d2 if ks == 2 else "0") for ks in (1, 2)]
        for _ in range(8):
            e(mm.pop(0))
        e("s_barrier")
        e.flag(last, sSF)
        e.stamp(7)
        for bb in range(3):
            if bb == 2:
                e("s_mov_b64 exec, %s\ns_add_u32 %s, %s, 4096" % (sHM, sMB, sMB))
            for p in range(3):
                d = 208 + 4 * (3 * bb + p)
                for k in range(4):
                    if mm and k % 2 == 0:
                        e(mm.pop(0))
                    e("v_cvt_pk_bf16_f32 v%d, v%d, v%d" % (d + k, Q + 32 * bb + 8 * p + 2 * k, Q + 32 * bb + 8 * p + 2 * k + 1))
                m_last = e("buffer_store_dwordx4 %s, v%d, %s, %s offen offset:%d sc1" % (R("v", d, 4), MS[p], sWS, sMB, (bb & 1) * 2048))
        e("s_mov_b64 exec, -1")
        if full:
            p3 = e.p3_poll(3)
        e.bg_vm(force=True, maxn=8)
        e.flag(m_last, sMF)
        e.stamp(8)
        e("s_mov_b32 %s, 0x%x" % (sFL, OOB))
        if not full:
            return None
        e.drain_all()
        e.wait(vm=p3)
        return e.join_state({"last": -1})

    def phase2(self, ids):
        e = self
        o = e.opt
        e.ev = {"xfree": True, "norm_done": True, "f": -1, "n3": 0}
        nqd, nqr = e.nqd, e.nqd - 4
        for q in range(nqd):
            e.ev[("adma", q)] = [ids.get(("A", q), -1)] * 4
        for g in range(NB0):
            e.ev[("dma", "P", g)] = [ids[("P", g)]] * 4
            e.ev[("ndma", "P", g)] = 4
        e.lat = 10 ** 9
        e.wring = WRING
        e.pace = o.get("pace2", 66)
        ACC_S, ACC_O, TT, RAW = 128, Z2ACC, 80, 112
        vB = [20, 21]
        vG, vK = vT[6], vT[5]
        p = e.prog
        full = o.get("stop", 9) > 2
        e("v_add_u32 v%d, %d, v%d\nv_add_u32 v%d, %d, v%d" % (vB[0], WOFF, vL16, vB[1], WOFF + 2 * REGION, vL16))

        def opened(g):
            if g == 0:
                e.a_jobs(nqd, nqd, nqr, 16, e.q1)
                q = nqd
                for g_ in range(NB0, 16):
                    while q < 16 and q <= 2 * g_:
                        e.a_jobs(q, q + 1, 0, 0, e.q1)
                        e.q1[-1].need = ("P", 8 * q - 8)
                        q += 1
                    e.b_jobs(g_, g_ + 1)
                    e.q1[-1].need = ("P", 16 * g_ - 6)
                e.pipe = e.gate = e.cyc

        def read(f, dst):
            g, rem = divmod(f, 16)
            ks, blk = divmod(rem, 2)
            r_ = ks >> 1
            return e("ds_read_b128 %s, v%d offset:%d" % (R("v", dst, 4), vB[r_ >> 1], (r_ & 1) * REGION + ((g + 3) % 6) * 4096 + (ks & 1) * 2048 + blk * 1024))

        def mfma(f, bf):
            g, rem = divmod(f, 16)
            ks, blk = divmod(rem, 2)
            q = 2 * (g % 8) + (ks >> 2)
            qn = min(15, (f + 4) >> 3)
            if qn >= nqr and ("ard", qn) not in e.ev:
                e.lat = 0
                e.drain(lambda: ("ard", qn) in e.ev)
                e.lat = 10 ** 9
            if f == 128:
                assert e.ev.get("bias")
            acc = R("v", (ACC_S if g < 8 else ACC_O) + 16 * blk, 16)
            e("v_mfma_f32_32x32x16_bf16 %s, %s, %s, %s" % (acc, bf, rr(ASLOT[q], 4, 4 * (ks & 3)), "0" if f < 2 else acc))

        def at(f):
            return ("until", lambda: -1 if e.ev["f"] >= f else 10 ** 9)

        def lines(text):
            p.extend(text.split("\n"))

        sPXS, sPXF, sPXR = sROW[1], sROW[2], sROW[3]
        nst = 4 if o.get("px16", 1) else 8
        lines("s_mul_i32 %s, %s, 14\ns_add_u32 %s, %s, %s\ns_lshl2_add_u32 %s, %s, %s" % (sT0, sI2, sT0, sT0, sJ2, sPXR, sT0, sW))
        lines("s_xor_b32 %s, %s, 4\ns_lshl_b32 %s, %s, 13\ns_add_u32 %s, %s, %d" % (sT0, sPXR, sPXS, sT0, sPXS, sPXS, PX))
        lines("s_lshl_b32 %s, %s, 7\ns_add_u32 %s, %s, %d" % (sPXF, sT0, sPXF, sPXF, F_PX))
        lines("s_lshl2_add_u32 %s, %s, %s\ns_lshl_b32 %s, %s, 7\ns_lshl_b32 %s, %s, 10\ns_add_u32 %s, %s, %d" % (sAB, sI2, sW, sAE, sAB, sAO, sAB, sAO, sAO, F_Z1))
        lines("s_mul_i32 %s, %s, 14\ns_add_u32 %s, %s, %s\ns_lshl_b32 %s, %s, 12\ns_add_u32 %s, %s, %d" % (sAB, sAB, sAB, sAB, sJ2, sAB, sAB, sAB, sAB, Z1))
        lines("s_add_u32 %s, %s, %d\nv_min_u32 v%d, %d, v%d" % (sAE, sAE, GATE, vT[8], 5 * 128, vL128))
        if full:
            e.shadow(e.p3_setup)
        z1_ld = "buffer_load_dword v%d, v%d, %s, %s offen sc1" % (vT[9], vT[8], sWS, sAO)
        z1p = [z1_ld] + ([e.p3_ld(0)] if full else [])
        z1p += [e.mark("z1p"), ("until", lambda: e.ev["z1p"]), ("call", lambda: e.check(z1_ld, "v_cmp_eq_u32 vcc, -1, v%d" % vT[9], site=59), 16)]
        z1p.append("buffer_load_dword v%d, v%d, %s, %s offen sc1" % (vG, vT[7], sWS, sAE))
        z1p += ["buffer_load_dwordx4 %s, v%d, %s, %s offen offset:%d sc1" % (R("v", RAW + 4 * k, 4), vL16, sWS, sAB, k * 1024) for k in range(4)]
        z1p.append(e.mark("z1d"))
        if full:
            z1p.append(("call", lambda: (e.p3_check(0), e.p3_jobs(e.q2, 0, e.n3)), 16))
        p.append(("call", lambda: e.ev.__setitem__("setup", True), 0))
        p.append("v_lshlrev_b32 v%d, 16, v%d" % (vT[10], vT[10]))
        p.extend("v_mov_b32 v%d, v%d" % (ACC_O + k, vT[10]) for k in range(32))
        p += [("call", lambda: e.ev.__setitem__("bias", True), 0)]
        act = ["v_sub_f32 v%d, 1.0, v%d" % (vG, vG), "v_mov_b32 v%d, %s" % (vK, f32(GK2))]
        for g0 in range(0, 32, 4):
            xs = [(TT + g0 + k, vT[k]) for k in range(4)]
            for k in range(0, 4, 2):
                act.append("v_lshlrev_b32 v%d, 16, v%d" % (TT + g0 + k, RAW + (g0 + k) // 2))
                act.append("v_and_b32 v%d, 0xffff0000, v%d" % (TT + g0 + k + 1, RAW + (g0 + k) // 2))
            for fmt in ("v_mul_f32 v{t}, v{x}, v{x}", "v_fmaak_f32 v{t}, v%d, v{t}, %s" % (vK, f32(GK1)), "v_mul_f32 v{t}, v{t}, v{x}",
                        "v_exp_f32 v{t}, v{t}", "v_mul_f32 v{x}, v{x}, v%d" % vG, "v_add_f32 v{t}, 1.0, v{t}", "v_rcp_f32 v{t}, v{t}",
                        "v_mul_f32 v{x}, v{x}, v{t}"):
                act += [fmt.format(x=x, t=t) for x, t in xs]
        vU, vU0, sU, sUF = 24, 25, "s18", "s19"

        def out_addr():
            e.ap_voff(vU)
            e("s_cmp_eq_u32 %s, 0\ns_cselect_b32 %s, 0x%x, 0" % (sJ2, sT1, OOB))
            e("v_add_u32 v%d, %s, v%d" % (vU0, sT1, vU))
            e("s_lshl2_add_u32 %s, %s, %s\ns_mul_i32 %s, %s, %d\ns_lshl_b32 %s, %s, 11" % (sT0, sI2, sW, sT0, sT0, 2 * 49152, sT1, sJ2))
            e("s_add_u32 %s, %s, %s\ns_add_u32 %s, %s, %d" % (sT0, sT0, sT1, sU, sT0, AP + 19 * 1024))
            e("s_lshr_b32 %s, %s, 1\ns_lshl1_add_u32 %s, %s, %s\ns_lshl_b32 %s, %s, 5" % (sT0, sW, sT0, sI2, sT0, sT0, sT0))
            e("s_and_b32 %s, %s, 1\ns_lshl1_add_u32 %s, %s, %s\ns_add_u32 %s, %s, %s" % (sT1, sW, sT1, sJ2, sT1, sT0, sT0, sT1))
            e("s_lshl_b32 %s, %s, 7\ns_add_u32 %s, %s, %d" % (sT0, sT0, sUF, sT0, F_U))
        e.shadow(out_addr)
        p += [("until", lambda: e.ev.get("z1d", 10 ** 9)), ("call", lambda: e.wait(vm=e.ev["z1d"]), 4)] + act
        p.append(("until", lambda: e.ev.get("pxd", 10 ** 9)))
        if nst == 4:
            for d in range(16):
                p += ["v_lshlrev_b32 v%d, 16, v%d" % (ACC_S + 2 * d, ACC_S + 16 + d), "v_and_b32 v%d, 0xffff0000, v%d" % (ACC_S + 2 * d + 1, ACC_S + 16 + d)]

        def front(items):
            return lambda: e.hi.extend(items)
        px_ld = "buffer_load_dword v%d, off, %s, %s sc1" % (vT[9], sWS, sPXF)
        e.st_scale = 0.65
        hooks = {0: front(e.deferred_stores() + [e.mark("role"), ("call", lambda: setattr(e, "st_scale", 1.0), 0)]),
                 o.get("f_rflag", 42): front([("call", lambda: e.flag(e.ev["role"], sFL), 20)]),
                 o.get("f_boost", 150): lambda: setattr(e, "boost", o.get("boost2", 0))}
        hooks[o.get("f_z1", 80)] = front([("until", lambda: -1 if e.ev.get("setup") else 10 ** 9)] + z1p)
        step = o.get("px_step", 5)
        for k in range(nst):
            st_ = "buffer_store_dwordx4 %s, v%d, %s, %s offen offset:%d sc1" % (R("v", ACC_S + 4 * k, 4), vL16B if k >= 4 else vL16, sWS, sPXS, (k % 4) * 1024)
            pk = ["v_cvt_pk_bf16_f32 v%d, v%d, v%d" % (ACC_S + 4 * k + j, ACC_S + 8 * k + 2 * j, ACC_S + 8 * k + 2 * j + 1) for j in range(4)] if nst == 4 else []
            hooks[131 + step * k] = front(pk + [st_, e.mark("px")])
        hooks[o.get("f_pxflag", 176)] = front([("call", lambda: e.flag(e.ev["px"], sPXF), 20)])
        hooks[o.get("f_pxpoll", 208)] = front(["s_lshl_b32 %s, %s, 7" % (sPXF, sPXR), "s_add_u32 %s, %s, %d" % (sPXF, sPXF, F_PX),
                                               "s_lshl_b32 %s, %s, 13" % (sPXR, sPXR), "s_add_u32 %s, %s, %d" % (sPXR, sPXR, PX), px_ld])
        PR = ACC_S + 16 if nst == 4 else ACC_S
        hooks[o.get("f_pxload", 228)] = front(
            [("call", lambda: e.check(px_ld, "v_cmp_eq_u32 vcc, -1, v%d" % vT[9], site=61), 20)] +
            ["buffer_load_dwordx4 %s, v%d, %s, %s offen offset:%d sc1" % (R("v", PR + 4 * k, 4), vL16B if k >= 4 else vL16, sWS, sPXR, (k % 4) * 1024)
             for k in range(nst)] + [e.mark("pxd")])
        if full:
            hooks[o.get("f_p33", 240)] = front([e.p3_ld(3)])
        hooks[100] = lambda: e.touch("L_p2", 8192)
        if full:
            hooks[180] = lambda: e.touch("L_p3")
        e.mfma_loop("P", 16, 16, read, mfma, opened, True, hooks, 40)
        assert not e.q1 and not e.qd
        e.boost = 0
        e.ev["f"] = 999
        e.prog_flush()
        e.lstamp(None)
        e.stamp(7)
        self.left3 = len(e.q2)
        e.drain_all()
        for k in range(8):
            g = ACC_O + 4 * k
            src = ACC_S + 4 * k
            for o_ in (0, 2):
                e("v_pk_add_f32 %s, %s, %s" % (R("v", g + o_, 2), R("v", g + o_, 2), R("v", src + o_, 2)))
            for o_ in (0, 2):
                e("v_pk_mul_f32 %s, %s, %s" % (R("v", g + o_, 2), R("v", g + o_, 2), R("v", TT + 4 * k + o_, 2)))
            for o_ in (0, 2):
                e("v_cvt_pk_bf16_f32 v%d, v%d, v%d" % (TT + 2 * k + o_ // 2, g + o_, g + o_ + 1))
            if k & 1:
                blk, p = divmod(k >> 1, 2)
                last = e("buffer_store_dwordx4 %s, v%d, %s, %s offen offset:%d sc1" % (R("v", TT + 2 * k - 2, 4), vU if blk else vU0, sWS, sU, blk * 1024 + p * 512))
        e("s_mov_b32 %s, %s" % (sFL, sUF))
        e.stamp(8)
        if o.get("stop", 9) <= 2:
            return None
        e.wait(lg=e.lg_n - 1)
        return e.join_state({"last": last})

    POOL = ([("a", 96 + 4 * k) for k in range(35)] + [("v", 192 + 4 * k) for k in range(16)] + [("v", 160 + 4 * k) for k in range(4)]
            + [("a", 236 + 4 * k) for k in range(5)] + [("a", 4 * k) for k in range(20)])
    POOLFREE = [-1] * 16 + [128 + 8 * (k // 4) + 7 for k in range(19)] + [998] * 45
    sRU = ["s63", "s64", "s65", "s71"]
    sB3, sF3, sW3 = "s72", "s73", "s99"
    vP = [16, 17, 18, 28, 26]
    vZ = 22

    def p3_setup(self):
        e = self
        for b in range(4):
            e("s_add_u32 %s, %s, %d\ns_and_b32 %s, %s, 3\ns_lshl2_add_u32 %s, %s, %s" % (sT0, sW, b + 1, sT0, sT0, sT0, sP, sT0))
            e("s_mul_i32 %s, %s, 48\ns_mul_i32 %s, %s, 5\ns_add_u32 %s, %s, %s" % (sT0, sT0, sT1, sW, sT0, sT0, sT1))
            e("s_lshl_b32 %s, %s, 10\ns_add_u32 %s, %s, %d" % (sT0, sT0, e.sRU[b], sT0, AP))
        e("s_mul_i32 %s, %s, 48\ns_add_u32 %s, %s, %s\ns_mul_i32 %s, %s, 5120\ns_add_u32 %s, %s, %d" % (sT0, sC, sT0, sT0, sT1, sT0, sT0, e.sB3, sT0, BP))
        e("s_mul_i32 %s, %s, %d\ns_add_u32 %s, %s, %s\ns_add_u32 %s, %s, %d" % (sT0, sW, 2 * 5120, e.sW3, e.sB3, sT0, e.sW3, e.sW3, 20 * 5120))
        e("s_lshr_b32 %s, %s, 1\ns_lshl_b32 %s, %s, 12" % (sT0, sC, sT0, sT0))
        e("s_mul_i32 %s, %s, %d\ns_add_u32 %s, %s, %s" % (sT1, sW, 7 * 128, sT0, sT0, sT1))
        e("s_add_u32 %s, %s, %d\nv_min_u32 v%d, %d, v%d\nv_add_u32 v%d, %s, v%d" % (sT1, sT0, F_WO, e.vP[0], 6 * 128, vL128, e.vP[0], sT1, e.vP[0]))
        e("s_lshl2_add_u32 %s, %s, %s\ns_lshl_b32 %s, %s, 9\ns_add_u32 %s, %s, %d" % (sT0, sC, sW, sT0, sT0, sT0, sT0, F_M))
        e("v_min_u32 v%d, %d, v%d\nv_add_u32 v%d, %s, v%d" % (e.vP[1], 3 * 128, vL128, e.vP[1], sT0, e.vP[1]))
        e("s_lshl_b32 %s, %s, 12\ns_add_u32 %s, %s, %d" % (e.sF3, sP, e.sF3, e.sF3, F_U))
        e("s_lshr_b32 %s, %s, 1\ns_lshl_b32 %s, %s, 8\ns_add_u32 %s, %s, %s\ns_add_u32 %s, %s, %d" % (sT0, sW, sT0, sT0, sT0, sT0, e.sF3, sT0, sT0, 28 * 128))
        e("v_and_b32 v%d, 0x80, v%d\nv_add_u32 v%d, %s, v%d" % (e.vP[2], vL128, e.vP[3], sT0, e.vP[2]))
        e("s_lshr_b32 %s, %s, 1\ns_lshl1_add_u32 %s, %s, %s\ns_lshl_b32 %s, %s, 8\ns_add_u32 %s, %s, %d" % (sT0, sW, sT0, sP, sT0, sT0, sT0, sT0, sT0, F_SC))
        e("v_add_u32 v%d, %s, v%d" % (e.vP[4], sT0, e.vP[2]))
        e("s_mul_i32 %s, %s, 7\ns_add_u32 %s, %s, 1\ns_and_b32 %s, %s, 0xfe" % (sT0, sW, sT0, sT0, sT0, sT0))
        e("v_and_b32 v%d, 7, v0\nv_add_u32 v%d, %s, v%d\nv_min_u32 v%d, 27, v%d\nv_lshlrev_b32 v%d, 7, v%d\nv_add_u32 v%d, %s, v%d"
          % (e.vP[2], e.vP[2], sT0, e.vP[2], e.vP[2], e.vP[2], e.vP[2], e.vP[2], e.vP[2], e.sF3, e.vP[2]))
        e("s_cmp_eq_u32 %s, 3\ns_cselect_b32 %s, 0x%x, 0\nv_add_u32 v%d, %s, v%d" % (sW, sT0, OOB, e.vZ, sT0, vL16))

    def p3_ld(self, k):
        return "buffer_load_dword v19, v%d, %s, 0 offen sc1" % (self.vP[k], sWS)

    def p3_poll(self, k):
        return self(self.p3_ld(k))

    def p3_check(self, k):
        self.check(self.p3_ld(k), "v_cmp_eq_u32 vcc, -1, v19", site=(60, 62, 63, 15, 14)[k])

    def p3_jobs(self, queue, start, end, free=False):
        e = self
        for x in range(start, end):
            queue.append(Job(lambda x=x: free or e.ev["f"] >= e.POOLFREE[x],
                             ["buffer_load_dwordx4 %s, v%d, %s, %s offen offset:%d sc1" % (rr(e.POOL[x], 4), e.vZ if x >= 30 else vL16, sWS, e.sW3, x % 4 * 1024)],
                             ["s_add_u32 %s, %s, 4096" % (e.sW3, e.sW3)] if x and x % 4 == 0 else []))

    def phase3(self, ids):
        e = self
        o = e.opt
        e.ev = {"late": True}
        ACC = 80
        vW = 20
        RA = [21, 23, 27]
        PQ, MF = e.POOL[35:55], e.POOL[55:]
        UR = [("a", 80 + 4 * k) for k in range(4)] + [("v", 176 + 4 * k) for k in range(4)] + [("v", 48 + 4 * k) for k in range(8)]
        SA = [8, 9, 10, 11, 12, 13, 14, 15, 1, 3]
        vZU = 16
        e.pipe = e.gate = e.cyc + o.get("p3_debt", 400)
        e.pace = o.get("pace3", 76)
        got = {}
        ld = "buffer_load_dwordx4 %%s, v%%d, %s, %%s offen offset:%%d sc1" % sWS

        def job(name, text, setup=(), pre=lambda: True):
            e.q1.append(Job(pre, [text], setup, done=lambda: got.__setitem__(name, e.vm_n - 1)))

        def need(name, ahead=0):
            while name not in got:
                assert e.bg_vm(force=True), name
            while e.vm_n - 1 - got[name] < ahead and e.bg_vm(force=True):
                pass

        for n in range(20):
            kl, b = divmod(n, 4)
            job(("q", n), ld % (rr(PQ[n], 4), vL16B if kl >= 4 else vL16, e.sRU[b], kl % 4 * 1024))
            if n == o.get("sc_poll", 2):
                e.q1.append(Job(lambda: True, [e.p3_ld(4)]))
            if n == o.get("sc_poll", 2) + 7:
                for k in range(2):
                    job(("s", k), "buffer_load_dwordx4 v%d, %s, %s offen sc1 lds" % (4 + k, sWS, sT3),
                        ([] if k else [lambda: e.p3_check(4)]) + ["s_add_u32 m0, %s, %d" % (sREG, 1024 * k)], lambda: e.ev.get("sc_addr"))
        e.p3_jobs(e.q1, e.n3, 35, free=True)
        e.q1.insert(len(e.q1) - o.get("poll3", 3), Job(lambda: True, [e.p3_ld(2)]))
        for n in range(28):
            b, kl = divmod(n, 7)
            setup = []
            if n == 0:
                setup = [lambda: (e.stamp(9), e.p3_check(2), e.stamp(10))]
            if kl == 0:
                setup = setup + ["s_add_u32 %s, %s, %s" % (e.sRU[b], e.sRU[b], sSO)]
            job(("u", n), ld % (rr(UR[n % 16], 4), vZU if kl == 6 else vL16B if kl >= 4 else vL16, e.sRU[b], kl % 4 * 1024), setup,
                lambda n=n: e.ev.get("u_go") and (n < 12 or e.ev.get("scaled")) and e.ev.get("u_used", -1) >= n - 16)
        e.q1.insert(len(e.q1) - o.get("poll31", 8), Job(lambda: True, [e.p3_ld(1)]))
        for t in range(5):
            for kl in range(5):
                job(("m", t, kl), ld % (rr(MF[5 * t + kl], 4), vL16B if t == 4 else vL16, sCH[kl], t % 4 * 1024),
                    [lambda: e.p3_check(1)] if t + kl == 0 else [])

        e.p3_check(3)
        e.bg_vm(force=True, maxn=2)
        e.V("v_lshrrev_b32 v28, 4, v0\nv_and_b32 v24, 15, v0")
        e.V("v_lshrrev_b32 v4, 5, v0\nv_add3_u32 v4, v4, %s, 1\nv_and_b32 v5, 1, v4\nv_bfe_u32 v4, v4, 1, 1" % sW)
        e.V("v_lshlrev_b32 v25, 4, v24\nv_lshl_add_u32 v25, v5, 8, v25\nv_and_b32 v5, 1, v28\nv_lshl_add_u32 v25, v5, 9, v25")
        e.V("v_lshl_add_u32 v4, v4, 12, v25\nv_xor_b32 v5, 0x1000, v4")
        e.V("s_lshl3_add_u32 %s, %s, %s\ns_lshl_b32 %s, %s, 10\ns_add_u32 %s, %s, %d" % (sT3, sP, sW, sT3, sT3, sT3, sT3, SC))
        e.V("v_lshl_add_u32 v25, v24, 4, %s" % sREG)
        for n_, r_ in enumerate(SA):
            e.V("v_lshl_add_u32 v32, v28, 1, %d\nv_mul_u32_u24 v32, 0x3334, v32\nv_bfe_u32 v33, v32, 16, 1\nv_lshrrev_b32 v32, 17, v32" % (8 * (n_ >> 1) + (n_ & 1)))
            e.V("v_lshl_add_u32 v33, v33, 8, v25\nv_lshl_add_u32 v%d, v32, 2, v33" % r_)
        e.V("v_add_u32 v%d, %s, v%d\nv_add_u32 v%d, 0x1000, v%d" % (vW, sREG, vL16, vZU, e.vZ))
        for b in range(3):
            e.V("s_add_u32 %s, %s, %d\ns_and_b32 %s, %s, 3\ns_mul_i32 %s, %s, %d" % (sT0, sW, 3 - b, sT0, sT0, sT0, sT0, REGION))
            e.V("v_add_u32 v%d, %s, v%d" % (RA[b], sT0, vL16))
        vO, vO2 = 24, 25
        e.V("v_mul_u32_u24 v%d, 1280, v%d" % (vO, vO))
        e.V("v_lshl_add_u32 v%d, v28, 3, v%d\nv_lshl_add_u32 v%d, v28, 4, v%d" % (vO2, vO, vO, vO))
        e.V("s_lshl2_add_u32 %s, %s, %s\ns_mul_i32 %s, %s, %d\ns_mul_i32 %s, %s, 160\ns_add_u32 %s, %s, %s" % (sT2, sP, sW, sT2, sT2, 16 * 1280, sT1, sC, sT2, sT2, sT1))
        e.V("s_lshl_b32 %s, %s, 11\ns_add_u32 %s, %s, %d" % (sSO, sW, sSO, sSO, 20 * 1024))
        for kl in range(5):
            e.V("s_add_u32 %s, %s, %d" % (sCH[kl], e.sB3, 5120 * kl))
        need(("q", o.get("burst3", 6)))
        e.flag(ids["last"], sFL)
        e.ev["sc_addr"] = True
        ahead = o.get("ahead3", 8)

        def sread(kl):
            for b in range(4):
                for sub in range(2):
                    e("ds_read_b32 v%d, v%d offset:%d" % (32 + 8 * (kl & 1) + 2 * b + sub, SA[2 * kl + sub], 512 * b))
        need(("s", 1), ahead)
        e.wait(vm=got[("s", 1)])
        sread(0)
        sread(1)
        for n in range(20):
            kl, b = divmod(n, 4)
            if n == o.get("u_go", 14):
                e.ev["u_go"] = True
            need(("q", n), ahead)
            x = PQ[n][1]
            t = 64 + 4 * b
            sreg = R("v", 32 + 8 * (kl & 1) + 2 * b, 2)
            for k in range(4):
                e.V("v_lshlrev_b32 v%d, 16, v%d\nv_and_b32 v%d, 0xffff0000, v%d" % (t + k, x + k, x + k, x + k))
            for y in (x, t):
                e.V("v_pk_mul_f32 %s, %s, %s op_sel_hi:[1,0]" % (R("v", y, 2), R("v", y, 2), sreg))
                e.V("v_pk_mul_f32 %s, %s, %s op_sel:[0,1] op_sel_hi:[1,1]" % (R("v", y + 2, 2), R("v", y + 2, 2), sreg))
            for k in range(4):
                e.V("v_cvt_pk_bf16_f32 v%d, v%d, v%d" % (x + k, t + k, x + k))
            if b == 3 and kl < 3:
                sread(kl + 2)
        e.ev["scaled"] = e.ev["u_go"] = True
        for n in range(28):
            b, kl = divmod(n, 7)
            need(("u", n), ahead)
            for t in range(5):
                acc = R("v", ACC + 20 * b + 4 * t, 4)
                e("v_mfma_f32_16x16x32_bf16 %s, %s, %s, %s" % (acc, rr(e.POOL[5 * kl + t], 4), rr(UR[n % 16], 4), acc if kl else "0"))
                e.ev["u_used"] = n - (t < 4)
                e.bg_vm()
        T = [48 + 12 * t if t < 2 else 176 if t == 2 else 32 if t == 3 else 192 for t in range(5)]

        def gather(t):
            for b in range(3):
                e("ds_read_b128 %s, v%d offset:%d" % (R("v", T[t] + 4 * b, 4), RA[b], b * 5120 + t * 1024))
        wr = []
        n = 0
        for t in range(5):
            for kl in range(5):
                need(("m", t, kl), ahead)
                for b in range(4):
                    acc = R("v", ACC + 20 * b + 4 * t, 4)
                    e("v_mfma_f32_16x16x32_bf16 %s, %s, %s, %s" % (acc, rr(MF[5 * t + kl], 4), rr(PQ[4 * kl + b], 4), acc))
                    n += 1
                    if wr and wr[0][0] <= n:
                        e(wr.pop(0)[1])
                    else:
                        e.bg_vm()
                if t == 4 and kl == 3:
                    assert not wr
                    e.wait_all(vm=False)
                    e("s_barrier")
                    for t_ in range(4):
                        gather(t_)
            wr += [(n + 4 + 3 * b, "ds_write_b128 v%d, %s offset:%d" % (vW, R("v", ACC + 20 * b + 4 * t, 4), b * 5120 + t * 1024)) for b in range(3)]
        e.stamp(11)
        OWN = ACC + 60
        P = 72
        sc = o.get("outsc", "")

        def finish_tile(t):
            for b in range(3):
                for o_ in (0, 2):
                    e("v_pk_add_f32 %s, %s, %s" % (R("v", OWN + 4 * t + o_, 2), R("v", OWN + 4 * t + o_, 2), R("v", T[t] + 4 * b + o_, 2)))
            for o_ in (0, 2):
                e("v_cvt_pk_bf16_f32 v%d, v%d, v%d" % (P + (2 * t + o_ // 2) % 8, OWN + 4 * t + o_, OWN + 4 * t + o_ + 1))
            if t in (1, 3):
                e("buffer_store_dwordx4 %s, v%d, %s, %s offen offset:%d %s" % (R("v", P + 2 * t - 2, 4), vO, sOUT, sT2, 32 * (t - 1), sc))
            elif t == 4:
                e("buffer_store_dwordx2 %s, v%d, %s, %s offen offset:128 %s" % (R("v", P, 2), vO2, sOUT, sT2, sc))
        for t in range(3):
            e(wr.pop(0)[1])
            finish_tile(t)
        e.wait_all(vm=False)
        e("s_barrier")
        gather(4)
        finish_tile(3)
        finish_tile(4)

    def finish(self):
        e = self
        if e.opt.get("diag"):
            e.wait_all()
            e.stamp(12)
            e("s_lshl2_add_u32 %s, s2, %s\ns_lshl_b32 %s, %s, 8\ns_add_u32 %s, %s, %d" % (sT0, sW, sT0, sT0, sT0, sT0, DIAG))
            e("s_nop 4")
            e("buffer_store_dword v7, v%d, %s, %s offen" % (vL4, sWS, sT0))
            if e.opt.get("padto"):
                e.raw("    v_readlane_b32 s4, v7, %d\n    s_mov_b32 s5, 0\nL_pad_%d:\n    s_memrealtime s[0:1]\n    s_waitcnt lgkmcnt(0)\n    s_sub_u32 s0, s0, s4\n"
                      "    s_add_u32 s5, s5, 1\n    s_cmp_ge_u32 s5, 0x10000\n    s_cbranch_scc1 L_end\n    s_cmp_lt_u32 s0, %d\n    s_cbranch_scc1 L_pad_%d"
                      % (e.opt.get("padfrom", 13), e.nlabel, e.opt["padto"], e.nlabel))
            if e.opt.get("dbgout"):
                e("v_not_b32 v8, v7\nv_cmp_eq_u32 vcc, 13, v0\nv_cndmask_b32 v7, v7, v8, vcc")
                e("s_lshl_b32 %s, %s, 12\ns_mov_b64 exec, 0x3fff" % (sT0, sW))
                e("buffer_atomic_umax v7, v%d, %s, %s offen offset:4 sc1" % (vL4, sDBG, sT0))

    def build(self):
        e = self
        stop = e.opt.get("stop", 9)
        e.prologue()
        e("s_cmp_eq_u32 %s, 7\ns_cbranch_scc1 L_role_h" % sJL)
        snap_h = e.snapshot()
        e.main_start()
        e("s_cmp_eq_u32 %s, 13\ns_cbranch_scc1 L_role_l" % sJ)
        e("s_cmp_ge_u32 %s, 4\ns_cbranch_scc1 L_role_b" % sJL)
        snap = e.snapshot()
        main, e.L = e.L, []
        parts = {}
        states = []
        for name, fn in (("a", e.role_a), ("b", e.role_b), ("l", e.role_l)):
            e.restore(snap)
            e.ev, e.q1, e.q2, e.qd, e.prog, e.eta = {}, [], [], [], [], {}
            e.lpend = None
            e.pipe = e.gate = e.cyc
            fn()
            states.append(e.p1_finish())
            parts[name], e.L = e.L, []
        e.restore(snap_h)
        e.ev, e.q1, e.q2, e.qd, e.prog, e.eta = {}, [], [], [], [], {}
        sth = e.role_h()
        if sth is None:
            e.finish()
            e("s_endpgm")
        parts["h"], e.L = e.L, []
        ids = e.merge(states)
        e.q1, e.q2, e.qd, e.prog, e.eta = [], [], [], [], {}
        e.raw("L_p2:")
        e("v_and_b32 v%d, 0x7c, v%d" % (vT[7], vL4))
        if stop <= 1:
            e.flag(e("\n".join(e.deferred_stores())), sFL)
        else:
            st2 = e.phase2(ids)
            if st2 is not None:
                ids = e.merge([st2, sth])
                e.eta = {}
                e.raw("L_p3:")
                e.phase3(ids)
        e.finish()
        rest, e.L = e.L, []
        e.L = main + parts["a"] + rest + ["L_end:", "    s_endpgm"]
        e.L += ["L_role_b:"] + parts["b"] + ["    s_branch L_p2"]
        e.L += ["L_role_l:"] + parts["l"] + ["    s_branch L_p2"]
        e.L += ["L_role_h:"] + parts["h"]
        if sth is not None:
            e.L += ["    s_branch L_p3"]
        return e.text() + "L_code_end:\n    s_endpgm\n"


def generate(opt):
    head = open("cdna_kernels/%s.s.ref" % NAME).read().split("; Override launch")[0] if opt.get("head", 1) else ""
    k = K(opt)
    body = k.build()
    if opt.get("verbose"):
        print("fragments forced at the end of phase 2:", getattr(k, "left3", None), "setup left after pass A:", k.left_a, file=sys.stderr)
    return (head + "; @launch grid=(256,1,1) block=(256,1,1) lds=163840\n"
            '.amdgcn_target "amdgcn-amd-amdhsa--gfx950"\n.text\n.globl %s_kernel\n.p2align 8\n.type %s_kernel,@function\n%s_kernel:\n' % (NAME, NAME, NAME)
            + body +
            '.section .rodata,"a"\n.p2align 6\n.amdhsa_kernel %s_kernel\n'
            "  .amdhsa_next_free_vgpr 512\n  .amdhsa_next_free_sgpr 102\n  .amdhsa_accum_offset 256\n"
            "  .amdhsa_group_segment_fixed_size 0\n  .amdhsa_kernarg_size 96\n  .amdhsa_user_sgpr_count 2\n"
            "  .amdhsa_user_sgpr_kernarg_segment_ptr 1\n  .amdhsa_system_sgpr_workgroup_id_x 1\n.end_amdhsa_kernel\n" % NAME)


if __name__ == "__main__":
    out = sys.argv[1]
    opt = {}
    for a in sys.argv[2:]:
        k, v = a.split("=")
        opt[k] = int(v) if v.lstrip("-").isdigit() else v
    open(out, "w").write(generate(opt))
```

```python
import math
import struct
import sys

from em import Em, R, rr

NAME = "gated_mix__linear_attn_block__mixer_gmlp__prompt"

STATS = 0
F_Z2N = 0x38000
F_Z1 = 0x54000
F_KV = 0x64000
F_U = 0x74000
F_M = 0x94000
F_WO = 0x98000
F_PX = 0x9C000
F_SC = 0xB8000
GATE = 0xC0000
ZP = 0xC4000
SC = 0x100000
KVP = 0x1900000
KVS = 13312
Z2N = 0x200000
Z1 = 0x600000
AP = 0xA00000
BP = 0x1000000
PX = 0x1200000
DIAG = 0x1C00000
WS_SIZE = 0x1D00000
OOB = 0x80000000

sX, sWQ, sWO, sWIN, sWSP, sBSP, sWOUT, sGW, sOUT, sDBG, sWS, sCODE = [R("s", 8 + 4 * k, 4) for k in range(12)]
sW, sI, sJL, sHALF, sJ, sREG, sWP = ["s%d" % k for k in range(56, 63)]
sXO, sXB, sXE = "s63", "s64", "s65"
sAO, sAB, sAE = "s66", "s67", "s70"
sKC = "s[68:69]"
sBO, sBB, sBE = "s71", "s72", "s73"
sSPIN = "s74"
sT0, sT1, sT2, sT3 = "s75", "s76", "s77", "s3"
sROW = ["s78", "s79", "s80", "s81"]
sCH = ["s%d" % k for k in range(82, 90)]
sBCH = ["s%d" % k for k in range(90, 98)]
sG, sROT = "s98", "s99"
sI2, sJ2 = "s16", "s17"
sMASK = "s[100:101]"
sDEF = ["s32", "s33", "s62", "s34", "s35"]
sP, sC = "s4", "s5"
sSO = "s6"
sFL = "s7"

vLANE = "v0"
vXD = [8, 9, 10, 11]
vXR = [12, 13, 14, 15]
vWDI = [16, 17]
vWW = [18, 19]
vWS = [[20, 21], [22, 23]]
vWB = [24, 25, 26, 27, 28]
vL16, vL16B, vL4 = 29, 30, 31
vL128 = 2
vA16 = [4, 5]
vAD = [32, 33, 34, 35]
vT = list(range(36, 48))
Z2ACC = 48
ACCB = 80
WRING = 160
NR = 8
ASLOT = [("a", 160 + 16 * k) for k in range(6)] + [("v", 192 + 16 * k) for k in range(4)] + [("a", 16 * k) for k in range(6)]
REGION = 40960
WOFF = 16384

NB0 = 3
SPIN_MAX = 1 << 17


def f32(x):
    return "0x%08x" % struct.unpack("<I", struct.pack("<f", x))[0]


LOG2E = 1.4426950408889634
GK1 = -2.0 * math.sqrt(2.0 / math.pi) * LOG2E
GK2 = GK1 * 0.044715


class Job:
    def __init__(self, pre, loads, setup=(), post=(), sink=None, done=None, weight=1.0):
        self.weight = weight
        self.need = None
        self.pre, self.loads, self.setup, self.post, self.sink, self.done = pre, list(loads), list(setup), list(post), sink, done


COST = {"store": 8}


def cost(text):
    c = 0
    for ln in text.split("\n"):
        op = ln.split()[0]
        if op == "ds_write_b128":
            c += 16
        elif op == "buffer_store_dwordx4":
            c += COST["store"]
        elif op.startswith(("buffer_", "v_exp", "v_rcp", "v_rsq", "v_permlane", "ds_write_b64")):
            c += 8
        else:
            c += 4
    return c


def is_mem(item):
    return isinstance(item, str) and item.startswith(("ds_", "buffer_"))


class Hooks(dict):
    def __setitem__(self, k, v):
        while k in self:
            k += 0.001
        super().__setitem__(k, v)


class K(Em):
    def __init__(self, opt):
        super().__init__()
        self.cap = None
        self.nds = 0
        COST["store"] = opt.get("c_store", 8)
        self.opt = opt
        self.q1 = []
        self.q2 = []
        self.qd = []
        self.prog = []
        self.hi = []
        self.hold = 0
        self.armed = None
        self.post = []
        self.pipe = 0
        self.weight = 1.0
        self.gate = 0
        self.st_scale = 1.0
        self.eta = {}
        self.behind = opt.get("behind", 10)
        self.boost = 0
        self.slack = opt.get("slack", 8)
        self.pace = opt.get("pace", 66)
        self.ev = {}
        self.lpend = None
        self.wring = WRING
        self.nqd = opt.get("nqd", 10)
        self.n3 = opt.get("n3", 24)
        self.lat = opt.get("lat1", 1000)

    def __call__(self, text):
        if self.cap is None:
            return super().__call__(text)
        if "cmp" in text:
            self.cap.append(text)
        else:
            self.cap.extend(text.split("\n"))

    def shadow(self, fn, *args):
        self.cap = self.prog
        fn(*args)
        self.cap = None

    def I(self, text):
        x = self.opt.get("xp", 0)
        if "v[240:243]" not in text and " v7," not in text and (
                x >= 1 and text.startswith("buffer_store_dwordx4") or x >= 2 and text.startswith("buffer_store_dword ") and " off," in text):
            text = text.replace(sWS, sGW)
        if x >= 3 and text.startswith("buffer_load_dwordx4") and self.ev.get("late"):
            for srd in (sWSP,) + ((sWS, sWQ, sWIN, sX, sWOUT, sWO) if x >= 4 else ()):
                text = text.replace(srd, sBSP)
        r = super().I(text)
        if text.startswith("buffer_"):
            wide = "dwordx4" in text.split()[0]
            if text.startswith("buffer_load"):
                c = self.pace * self.weight if wide else 24
            else:
                c = self.opt.get("stcost", 150) * self.st_scale if wide else 40
            self.cyc = max(self.cyc, self.pipe - self.opt.get("queue", 130))
            self.pipe = max(self.pipe, self.cyc - 10 - self.opt.get("credit", 48)) + c
            self.gate = self.cyc - 10 + (24 if not wide else 60 if text.startswith("buffer_load") else self.opt.get("stgate", 90))
            lat = self.opt.get("lat_ld", 650) if text.startswith("buffer_load") else self.opt.get("lat_st", 800)
            self.eta[r] = max(self.eta.get(r - 1, 0), max(self.pipe, self.cyc) + lat)
        return r

    def wait(self, vm=None, lg=None):
        before = self.vm_done
        super().wait(vm, lg)
        if self.vm_done > before:
            self.cyc = max(self.cyc, self.eta.get(self.vm_done, 0) - 150)

    def landed(self, i):
        return i <= self.vm_done or self.cyc >= self.eta.get(i, 10 ** 9)

    def pipe_ok(self, ahead=0):
        return self.cyc + ahead + self.slack >= max(self.pipe, self.gate)

    def flush_post(self):
        c = 0
        while self.post:
            t = self.post.pop(0)
            self(t)
            c += cost(t)
        return c

    def next_job(self):
        for q in (self.q1, self.q2):
            if q and q[0].pre():
                return q
        return None

    def arm(self, q):
        j = q.pop(0)
        self.flush_post()
        for t in j.setup:
            t() if callable(t) else self(t)
        self.armed = j

    def fire(self):
        j = self.armed
        self.weight = j.weight
        i = self(j.loads.pop(0))
        self.weight = 1.0
        if j.sink is not None:
            j.sink.append(i)
        if not j.loads:
            self.post += j.post
            self.armed = None
            if j.done:
                j.done()

    def bg_vm(self, force=False, maxn=1):
        done = 0
        while done < maxn and (force or self.pipe_ok()):
            if not self.armed:
                q = self.next_job()
                if q is None:
                    break
                self.arm(q)
            self.fire()
            done += 1
        return done

    def settle(self):
        while self.armed:
            self.fire()
        self.flush_post()

    def bg_ds(self):
        if self.qd and self.qd[0][0]():
            self.qd.pop(0)[1]()
            return True
        return False

    def tick(self):
        if not self.bg_vm():
            self.bg_ds() and self.bg_ds()

    def V(self, text):
        if self.cap is not None:
            return self(text)
        for ln in text.split("\n"):
            if ln.strip():
                self(ln)
                self.tick()

    def drain(self, cond):
        guard = 0
        while not cond():
            if self.bg_ds() or self.bg_vm(force=True):
                guard = 0
                continue
            self.cyc += 200
            guard += 1
            assert guard < 100, "background queues stuck"

    def prog_step(self, left, head, force=False, only_hi=False):
        for q in (self.hi,) if only_hi else (self.hi, self.prog):
            while q:
                it = q[0]
                if isinstance(it, tuple) and it[0] == "delay":
                    if head:
                        break
                    q.pop(0)
                    self.hold = 0 if force else it[1]
                    continue
                if q is self.prog and self.hold and not force:
                    break
                if isinstance(it, tuple) and it[0] == "until":
                    if not force and not self.landed(it[1]()):
                        break
                    q.pop(0)
                    continue
                c = it[2] if isinstance(it, tuple) else cost(it)
                if c and not force:
                    if is_mem(it) != head or (c > left and not (c > 12 and left >= 12)):
                        break
                    if head and it.startswith("ds_") and self.lg_n - self.nds >= self.opt.get("dsmax", 4) + self.boost // 8:
                        break
                    if head and it.startswith("buffer_") and not (self.cyc + self.slack >= self.gate if q is self.hi
                                                                    else self.pipe_ok(0 if "x4" in it else 40)):
                        break
                q.pop(0)
                if isinstance(it, tuple):
                    it[1]()
                else:
                    self.last_id = self(it)
                left -= c
        return left

    def prog_flush(self):
        self.prog_step(0, False, force=True)
        self.hold = 0
        self.settle()

    def mark(self, name):
        return ("call", lambda: self.ev.__setitem__(name, self.last_id), 0)

    def fill_gap(self, left, paced):
        e = self
        if e.hold:
            e.hold -= 1
        if not paced:
            if e.armed:
                e.fire()
            if not e.armed and e.next_job() is not None:
                e.arm(e.next_job())
            return e.prog_step(e.opt.get("gap_a", 12), False)
        head = e.armed or (e.q1[0] if e.q1 and e.q1[0].pre() else None)
        left = e.prog_step(left, True, only_hi=True)
        if head is not None and head.need and head.need[0] == e.tag and head.need[1] - e.ev["f"] <= e.opt.get("minlead", 36):
            if e.armed and e.cyc + 40 >= e.gate:
                e.fire()
                left -= 8
            if not e.armed and e.q1 and e.q1[0].pre():
                left -= 4 * len(e.q1[0].setup)
                e.arm(e.q1)
        left += e.boost
        left = e.prog_step(left, True)
        while e.armed and left >= 8 and (not paced or e.pipe_ok()):
            e.fire()
            left -= 8
        if left == 24 and e.qd:
            left = 20
        n = 0
        while left >= 4 and n < 2 and e.lg_n - e.nds < e.opt.get("dsmax_p" if e.tag == "P" else "dsmax", 4) and e.bg_ds():
            left -= 4
            n += 1
        if e.post and left >= cost(e.post[0]):
            left -= e.flush_post()
        if not e.armed and not e.post and (not paced or e.pipe_ok(40)):
            q = e.next_job()
            if q is not None and left >= min(8, 4 * len(q[0].setup)):
                left -= 4 * len(q[0].setup)
                e.arm(q)
        return e.prog_step(left, False)

    def mfma_loop(self, tag, nstage, per, read, mfma, opened, paced, hooks, stamp0):
        e = self
        F = nstage * per
        e.tag = tag
        e.ev["late"] = True
        for j in e.q1 + ([e.armed] if e.armed else []):
            for s_ in range(nstage):
                if j.sink is e.ev.get(("dma", tag, s_)):
                    j.need = (tag, s_ * per - 6)
        rd_id = {}
        st = dict(next=0, opened=-1, last=-9)

        def open_stage(s):
            e.drain(lambda: len(e.ev[("dma", tag, s)]) == e.ev[("ndma", tag, s)])
            e.wait(vm=max(e.ev[("dma", tag, s)]), lg=e.lg_n - 1)
            e("s_barrier")
            e.lstamp(stamp0 + s)
            st["opened"] = s
            e.ev[("free", tag, s - 1)] = True
            opened(s)

        def one():
            n0 = e.lg_n
            rd_id[st["next"]] = read(st["next"], e.wring + 4 * (st["next"] % NR))
            st["next"] += 1
            return 4 * (e.lg_n - n0)

        open_stage(0)
        for _ in range(6):
            one()
        for f in range(F):
            while hooks and min(hooks) < f + 1:
                hooks.pop(min(hooks))()
            if f % 2 == 0:
                e.wait(lg=rd_id[f + 1])
            second = mfma(f, R("v", e.wring + 4 * (f % NR), 4))
            e.ev["f"] = f
            left = e.opt.get("budget_p" if tag == "P" else "budget", 24) - (4 if f % 2 else 0)
            e.nds = e.lg_n
            sync = False
            for _ in range(2):
                nx = st["next"]
                if nx < F and nx <= f + 7:
                    if nx // per <= st["opened"]:
                        left -= one() + (4 if st["last"] != f else 0)
                        st["last"] = f
                    elif f - st["last"] >= 2:
                        sync = True
            if second:
                n = e.lg_n - e.nds
                if n < 2 and not sync and e.bg_ds():
                    n += 1
                e.prog_step(e.opt.get("b16a", 8) - 4 * n, False)
                e(second)
                left = e.opt.get("b16b" if tag == "P" else "b16c", 16 if tag == "P" else 12) - (4 if f % 2 else 0)
                e.nds = e.lg_n - (9 if tag == "P" else 2)
            if sync:
                qd, e.qd = e.qd, []
                e.fill_gap(8 if second else e.opt.get("gap_sync", 12), paced)
                e.qd = qd
                open_stage(st["next"] // per)
            else:
                e.fill_gap(left, paced)
        assert not hooks

    def stamp(self, k):
        sel = self.opt.get("stamps")
        if self.opt.get("diag") and (sel is None or k == 12 or str(k) in str(sel).split(".")):
            self.lstamp(None)
            self.wait_all(vm=False)
            self.raw("    %s s[0:1]\n" % ("s_memtime" if self.opt["diag"] == 2 else "s_memrealtime") + "    s_waitcnt lgkmcnt(0)\n    v_writelane_b32 v7, s0, %d" % k)
            self.pos += 3

    def lstamp(self, k):
        if self.opt.get("diag") and self.opt.get("fine"):
            if self.lpend is not None:
                self.raw("    s_waitcnt lgkmcnt(0)\n    v_writelane_b32 v7, s0, %d" % self.lpend)
                self.lg_done = self.lg_n - 1
                self.pend = {r: p for r, p in self.pend.items() if p[0] == "vm"}
            self.lpend = k
            if k is not None:
                self.raw("    %s s[0:1]" % ("s_memtime" if self.opt["diag"] == 2 else "s_memrealtime"))

    def check(self, loads, test, pretest=None, site=None, fast=None):
        slow, back = self.label("Lslow"), self.label("Lback")
        self(fast or test)
        self("s_cbranch_vccnz " + (slow if self.opt.get("xp", 0) < 2 else back))
        self.raw(back + ":")
        c = self.cold
        c.append(slow + ":")
        c.append("    s_add_u32 %s, %s, 1\n    s_cmp_ge_u32 %s, %d\n    s_cbranch_scc1 L_end" % (sSPIN, sSPIN, sSPIN, SPIN_MAX))
        if self.opt.get("diag") and site is not None:
            c.append("    v_readlane_b32 vcc_lo, v7, %d\n    s_nop 3\n    s_add_u32 vcc_lo, vcc_lo, 1\n    v_writelane_b32 v7, vcc_lo, %d" % (site, site))
        if self.opt.get("backoff", 2):
            c.append("    s_sleep %d" % self.opt.get("backoff", 2))
        c.append("\n".join("    " + l for l in loads.split("\n")))
        c.append("    s_waitcnt vmcnt(0)")
        if pretest:
            c.append("\n".join("    " + l for l in pretest.split("\n")))
        c.append("\n".join("    " + l for l in test.split("\n")))
        c.append("    s_nop 4\n    s_cbranch_vccnz %s\n    s_branch %s" % (slow, back))

    def flag(self, after_id, soff):
        self.wait(vm=after_id)
        self("s_mov_b64 exec, 1")
        i = self("buffer_store_dword v%d, off, %s, %s sc1" % (vL4, sWS, soff))
        self("s_mov_b64 exec, -1")
        return i

    def prologue(self):
        e = self
        o = self.opt
        e("s_cmp_ge_u32 s2, 256")
        e("s_cbranch_scc1 L_end")
        order = [(8, 0), (20, 32), (48, 88), (12, 8), (44, 80), (24, 40), (16, 16), (28, 48), (32, 56), (36, 64), (40, 72)]
        for sreg, off in order:
            e.raw("    s_load_dwordx2 s[%d:%d], s[0:1], %d" % (sreg, sreg + 1, off))
        if o.get("diag"):
            e.raw("    %s s[100:101]" % ("s_memtime" if o["diag"] == 2 else "s_memrealtime"))
        e.raw("    s_getpc_b64 s[52:53]")
        e.raw("L_pc:")
        self.sizes = sizes = {8: 2621440, 12: 2457600, 16: 819200, 20: 2211840, 24: 8388608, 28: 4096, 32: 1105920, 36: 1280,
                              40: 2621440, 44: 256, 48: WS_SIZE}
        sLOC = sT1
        e("v_lshrrev_b32 v1, 6, v0\nv_and_b32 v0, 63, v0")
        e("s_lshr_b32 %s, s2, 3" % sLOC)
        e("v_readfirstlane_b32 %s, v1" % sW)
        e("s_mov_b32 s54, L_code_end-L_pc\ns_mov_b32 s55, 0x20000")
        e("s_nop 0\ns_lshl2_add_u32 %s, %s, %s\ns_lshl_b32 %s, %s, 10" % (sT2, sLOC, sW, sT2, sT2))
        e("v_and_b32 v2, 7, v0\nv_lshlrev_b32 v2, 7, v2")
        if o.get("codepf", 1):
            e("buffer_load_dword v6, v2, %s, %s offen" % (sCODE, sT2))
            self.pend.clear()
        if o.get("map84", 0):
            e("s_and_b32 %s, s2, 1\ns_bfe_u32 %s, s2, 0x10001\ns_lshr_b32 %s, %s, 3" % (sT0, sHALF, sT2, sLOC))
            e("s_lshl1_add_u32 %s, %s, %s\ns_add_u32 %s, %s, 4\ns_cmp_eq_u32 %s, 2\ns_cselect_b32 %s, %s, %s" % (sJL, sT0, sT2, sT3, sT0, sT2, sJL, sT3, sJL))
            e("s_and_b32 %s, %s, 3\ns_lshl2_add_u32 %s, %s, %s\ns_and_b32 %s, %s, 7\ns_lshr_b32 %s, %s, 2" % (sT3, sLOC, sT0, sT0, sT3, sI, sLOC, sT3, sLOC))
            e("s_cmp_eq_u32 %s, 3\ns_cselect_b32 %s, %s, %s\ns_cselect_b32 %s, %s, %s" % (sT2, sJL, sT3, sJL, sI, sT0, sI))
            if o.get("rot", 2) == 2:
                e("s_and_b32 %s, s2, 3" % sT2)
            if o.get("rot", 2):
                e("s_mul_i32 %s, %s, 5\ns_lshr_b32 %s, %s, 2\ns_mul_i32 %s, %s, 5\ns_lshr_b32 %s, %s, 1\ns_add_u32 %s, %s, %s"
                  % (sROT, sI, sROT, sROT, sT2, sT2, sT2, sT2, sROT, sROT, sT2))
            e("s_bfe_u32 %s, s2, 0x10002\ns_lshl3_add_u32 %s, %s, %s" % (sT0, sI, sT0, sI))
        else:
            e("s_and_b32 %s, s2, 1\ns_bfe_u32 %s, s2, 0x20001" % (sHALF, sT0))
            e("s_and_b32 %s, %s, 3\ns_lshl2_add_u32 %s, %s, %s\ns_lshr_b32 %s, %s, 2" % (sT2, sLOC, sI, sT0, sT2, sJL, sLOC))
            if o.get("rot", 2) == 2:
                e("s_mul_i32 %s, %s, 5\ns_add_u32 %s, %s, %s\ns_lshr_b32 %s, %s, 1" % (sT2, sT2, sT2, sT2, sT0, sT2, sT2))
                e("s_mul_i32 %s, %s, 5\ns_add_u32 %s, %s, %s" % (sROT, sHALF, sROT, sROT, sT2))
            elif o.get("rot", 2):
                e("s_mul_i32 %s, %s, 5\ns_lshr_b32 %s, %s, 1" % (sT2, sT2, sT2, sT2))
                e("s_mul_i32 %s, %s, 5\ns_lshr_b32 %s, %s, 2\ns_add_u32 %s, %s, %s" % (sROT, sJL, sROT, sROT, sROT, sROT, sT2))
        if o.get("rot", 2):
            e("s_cmp_ge_u32 %s, 10\ns_cselect_b32 %s, 10, 0\ns_sub_u32 %s, %s, %s" % (sROT, sT2, sROT, sROT, sT2))
        else:
            e("s_mov_b32 %s, 0" % sROT)
        if o.get("roth", 0):
            e("s_and_b32 %s, %s, 3\ns_mul_i32 %s, %s, 5\ns_lshr_b32 %s, %s, 2\ns_add_u32 %s, %s, %s\ns_lshr_b32 %s, %s, 1" % (sT2, sI, sT2, sT2, sT0, sI, sT2, sT2, sT0, sT2, sT2))
            e("s_cmp_ge_u32 %s, %d\ns_cselect_b32 %s, %s, %s" % (sJL, o.get("roth", 0), sROT, sT2, sROT))
        e("s_mul_i32 %s, %s, 7\ns_add_u32 %s, %s, %s" % (sJ, sHALF, sJ, sJ, sJL))
        e("s_mul_i32 %s, %s, %d\ns_brev_b32 %s, %s\ns_lshr_b32 %s, %s, 30" % (sREG, sW, REGION, sWP, sW, sWP, sWP))
        e("s_lshl2_add_u32 %s, %s, %s\ns_mul_i32 %s, %s, %d" % (sXB, sI, sW, sXB, sXB, 32 * 1280))
        e("s_mov_b32 s82, 0x76543210\ns_mov_b32 s83, 0x98\ns_lshl_b32 %s, %s, 2\ns_sub_u32 %s, 40, %s" % (sT0, sROT, sT2, sT0))
        e("s_lshl_b64 s[84:85], s[82:83], %s\ns_lshr_b64 s[82:83], s[82:83], %s\ns_or_b64 s[82:83], s[82:83], s[84:85]" % (sT2, sT0))
        if o.get("pull1", 4):
            mod = o.get("pull1", 4)
            mask = sum(15 << 4 * t for t in range(0, 9, mod))
            e("s_lshr_b32 %s, %s, %d\ns_lshl_b32 %s, %s, 2" % (sT0, sLOC, 3 if o.get("map84", 0) else 2, sT2, sT0))
            e("s_cmp_ge_u32 %s, %d\ns_cselect_b32 %s, 40, %s" % (sT0, mod, sT2, sT2))
            e("s_mov_b32 s86, 0x%x\ns_mov_b32 s87, 0x%x\ns_lshl_b64 s[86:87], s[86:87], %s\ns_and_b32 s87, s87, 15" % (mask & 0xffffffff, mask >> 32, sT2))
            e("s_lshr_b64 s[84:85], s[82:83], 4\ns_xor_b64 s[84:85], s[84:85], s[82:83]\ns_and_b64 s[84:85], s[84:85], s[86:87]")
            e("s_xor_b64 s[82:83], s[82:83], s[84:85]\ns_lshl_b64 s[84:85], s[84:85], 4\ns_xor_b64 s[82:83], s[82:83], s[84:85]")
        e("s_mov_b32 %s, s82\ns_mov_b32 %s, s83" % (sROT, sXE))
        e(e.advance(sXO, sXB, 0, 128))
        for sreg in (8, 20, 48):
            e("s_mov_b32 s%d, %d\ns_mov_b32 s%d, 0x20000" % (sreg + 2, sizes[sreg], sreg + 3))
        e("v_lshrrev_b32 v1, 3, v0\nv_and_b32 v2, 7, v0\nv_lshrrev_b32 v3, 4, v0")
        e("v_xor_b32 v4, v2, v3\nv_lshlrev_b32 v4, 4, v4\nv_xor_b32 v5, 64, v4")
        e("v_mul_u32_u24 v%d, 1280, v1" % vT[0])
        for r in range(4):
            e("v_add_u32 v%d, v%d, v%d" % (vXD[r], vT[0], 4 + (r & 1)))
            if r:
                e("v_add_u32 v%d, %d, v%d" % (vXD[r], r * (8 * 1280 - 1024), vXD[r]))
        e("v_lshlrev_b32 v%d, 4, v0" % vL16)
        e.raw("    s_waitcnt lgkmcnt(0)")
        e.pos += 1
        if o.get("wsoff"):
            e("s_add_u32 s48, s48, 0x%x\ns_addc_u32 s49, s49, 0" % (o["wsoff"] << 20))
        e("s_cmp_eq_u32 %s, 7\ns_cbranch_scc0 L_noclear" % sJL)
        for k in range(4):
            e("v_mov_b32 v%d, -1" % (240 + k))
        e("s_lshl1_add_u32 %s, %s, %s\ns_lshl2_add_u32 %s, %s, %s\ns_mul_i32 %s, %s, 6144" % (sT0, sI, sHALF, sT0, sT0, sW, sT0, sT0))
        for k in range(6):
            if k == 4:
                e("s_add_u32 %s, %s, 4096" % (sT0, sT0))
            self.clear_id = e("buffer_store_dwordx4 v[240:243], v%d, %s, %s offen offset:%d sc1" % (vL16, sWS, sT0, (k % 4) * 1024))
        e.raw("L_noclear:")
        e.q1 = [e.job_x("A", 0)]
        e.bg_vm(force=True, maxn=4)
        e.settle()
        self.x0 = list(e.ev[("dma", "A", 0)])
        e("v_and_b32 v%d, 1, v3\nv_lshlrev_b32 v%d, 2, v%d\nv_xor_b32 v%d, v2, v%d\nv_lshlrev_b32 v%d, 4, v%d"
          % (vT[1], vT[1], vT[1], vT[1], vT[1], vT[1], vT[1]))

    def w_offsets(self, stride, short):
        e = self
        e("s_lshl_b32 %s, %s, 4\nv_add_u32 v%d, %s, v1\nv_mul_u32_u24 v%d, %d, v%d" % (sT0, sWP if short else sW, vT[2], sT0, vT[2], stride, vT[2]))
        e("v_add_u32 v%d, v%d, v%d" % (vWDI[0], vT[2], vT[1]))
        if short:
            e("v_xad_u32 v%d, v%d, 16, v%d\nv_add_u32 v%d, %d, v%d" % (vWDI[1], vT[1], vT[2], vWDI[1], 8 * stride - 1024, vWDI[1]))
        else:
            e("v_add_u32 v%d, %d, v%d" % (vWDI[1], 8 * stride - 1024, vWDI[0]))

    def late_setup(self, natural=False):
        e = self
        for sreg in (12, 44, 24, 16, 28, 32, 36, 40):
            e("s_mov_b32 s%d, %d\ns_mov_b32 s%d, 0x20000" % (sreg + 2, self.sizes[sreg], sreg + 3))
        e("s_mov_b32 s68, %s\ns_mov_b32 s69, %s\ns_mov_b32 %s, 0" % (f32(GK1), f32(GK2), sSPIN))
        e("v_add_u32 v%d, 0x1000, v%d\nv_lshlrev_b32 v%d, 2, v0" % (vL16B, vL16, vL4))
        e("s_bfe_u32 %s, s2, 0x20001\ns_and_b32 %s, s2, 1" % (sT0, sT2))
        if not natural:
            e("s_bfe_u32 %s, s2, 0x20003\ns_lshl2_add_u32 %s, %s, %s" % (sT1, sI2, sT0, sT1))
            e("s_lshr_b32 %s, s2, 5\ns_lshl1_add_u32 %s, %s, %s" % (sT1, sJ2, sT1, sT2))
        if self.opt.get("map3", 1):
            e("s_lshr_b32 %s, s2, 5\ns_lshl3_add_u32 %s, %s, %s" % (sP, sP, sT0, sP))
            e("s_bfe_u32 %s, s2, 0x20003\ns_lshl2_add_u32 %s, %s, %s" % (sC, sC, sT2, sC))
        else:
            e("s_bfe_u32 %s, s2, 0x30003\ns_lshl3_add_u32 %s, %s, %s" % (sP, sP, sT0, sP))
            e("s_lshr_b32 %s, s2, 6\ns_lshl2_add_u32 %s, %s, %s" % (sC, sC, sT2, sC))
        if self.opt.get("diag"):
            e("v_mov_b32 v7, 0")
            e.raw("    s_nop 1\n    v_writelane_b32 v7, s100, 13")
        if natural:
            e("v_and_b32 v1, 31, v0\nv_lshrrev_b32 v2, 5, v0\nv_bfe_u32 v4, v0, 1, 3\nv_xor_b32 v4, v4, v2")
            e("v_lshlrev_b32 v4, 4, v4\nv_lshl_add_u32 v4, v1, 7, v4")
            for ks in range(4):
                e("v_xor_b32 v%d, %d, v4\nv_add_u32 v%d, %s, v%d" % (vXR[ks], ks * 32, vXR[ks], sREG, vXR[ks]))
            e("v_bfe_u32 v5, v0, 2, 2\nv_lshl_add_u32 v5, v2, 3, v5\nv_lshlrev_b32 v5, 7, v5\nv_add_u32 v5, %d, v5" % WOFF)
            e("v_bfe_u32 v4, v0, 3, 1\nv_lshlrev_b32 v4, 6, v4")
            e("v_and_b32 v1, 1, v0\nv_bfe_u32 v3, v0, 1, 1\nv_lshl_or_b32 v1, v1, 1, v3\nv_lshlrev_b32 v1, 3, v1\nv_bfe_u32 v3, v0, 4, 1")
            e("v_lshl_add_u32 v%d, v3, 5, v1\nv_xor_b32 v%d, v%d, v4" % (vT[0], vT[0], vT[0]))
            e("v_add_u32 v%d, v%d, v5\nv_xor_b32 v%d, 64, v%d" % (vWS[0][0], vT[0], vWS[0][1], vWS[0][0]))
            e("v_add_u32 v%d, %d, v%d\nv_add_u32 v%d, %d, v%d" % (vWS[1][0], 2 * REGION, vWS[0][0], vWS[1][1], 2 * REGION, vWS[0][1]))
        else:
            e("v_lshlrev_b32 v%d, 12, v1" % vT[0])
            for r in range(4):
                e("v_add_u32 v%d, v%d, v%d" % (vAD[r], vT[0], 4 + (r & 1)))
                if r:
                    e("v_add_u32 v%d, %d, v%d" % (vAD[r], r * (8 * 4096 - 1024), vAD[r]))
            e.a16_addr()
            e("v_bfe_u32 v12, v0, 2, 2\nv_bfe_u32 v3, v0, 4, 1\nv_lshl_add_u32 v12, v3, 3, v12")
            e("v_lshrrev_b32 v13, 5, v0\nv_mul_u32_u24 v13, %d, v13\nv_add_u32 v13, %d, v13" % (2 * REGION, WOFF))
            e("v_and_or_b32 v14, v0, 2, v3\nv_lshlrev_b32 v14, 1, v14\nv_and_or_b32 v14, v0, 1, v14\nv_lshlrev_b32 v14, 3, v14")
            e("v_bfe_u32 v1, v0, 3, 1\nv_lshl_add_u32 v1, v1, 6, v14\nv_lshl_add_u32 v1, v12, 7, v1\nv_add_u32 v%d, v1, v13" % vWS[0][0])
            for U in range(1, 4):
                e("v_xor_b32 v%d, %d, v%d" % (vWS[U >> 1][U & 1], 64 * (U >> 1) + 16 * (U & 1), vWS[0][0]))
        e("v_lshlrev_b32 v%d, 7, v0" % vL128)

    def a16_addr(self):
        e = self
        e("v_lshrrev_b32 v4, 4, v0\nv_bfe_u32 v5, v0, 1, 3\nv_xor_b32 v4, v4, v5\nv_lshlrev_b32 v4, 4, v4")
        e("v_and_b32 v5, 15, v0\nv_lshl_add_u32 v4, v5, 7, v4\nv_add_u32 v4, %s, v4\nv_xor_b32 v5, 64, v4" % sREG)

    def stream_init(self, o, b, en, base_text, stride):
        self(base_text)
        self(self.advance(o, b, 0, 64 * stride))

    @staticmethod
    def advance(o, b, slot, step):
        return "s_bfe_u32 %s, %s, 0x%x\ns_mul_i32 %s, %s, %d\ns_add_u32 %s, %s, %s" % (o, sROT if slot < 8 else sXE, 0x40000 + 4 * (slot % 8), o, o, step, o, o, b)

    def job_x(self, tag, s):
        pre = (lambda: True) if s < 4 else (lambda: self.ev.get(("free", tag, s - 4)))
        return Job(pre, ["buffer_load_dwordx4 v%d, %s, %s offen offset:%d lds" % (vXD[r], sX, sXO, r * 1024) for r in range(4)],
                   ["s_add_u32 m0, %s, %d" % (sREG, (s % 4) * 4096)], [self.advance(sXO, sXB, s + 1, 128)] if s < 9 else [],
                   self.ev.setdefault(("dma", tag, s), []))

    def w_jobs(self, tag, wide, offf, srd, stream, stride, occ, withx, weight=1.0, lines=1):
        for s in range(10):
            if withx and s < 1:
                self.ev[("dma", tag, s)] = list(self.x0)
            elif withx:
                self.q1.append(self.job_x(tag, s))
            off = offf(s)
            prev = occ.get(off)
            occ[off] = (tag, s)
            pre = (lambda: True) if prev is None else (lambda prev=prev: self.ev.get(("free",) + prev))
            sink = self.ev.setdefault(("dma", tag, s), [])
            post = [self.advance(stream[0], stream[1], s + 1, 64 * stride)] if s < 9 else []
            ld = "buffer_load_dwordx4 v%%d, %s, %s offen offset:%%d lds" % (srd, stream[0])
            m0 = "s_add_u32 m0, %s, %%d" % sREG
            if wide:
                self.q1.append(Job(pre, [ld % (vWB[k], k * 1024) for k in range(4)], [m0 % (WOFF + off)], [], sink, weight=weight))
                self.q1.append(Job(pre, [ld % (vWB[4], 0)], [m0 % (WOFF + off + 4096)], post, sink, weight=weight))
            else:
                for k in range(lines):
                    self.q1.append(Job(pre, [ld % (vWDI[t], t * 1024 + k * 128) for t in range(2)], [m0 % (WOFF + off + k * (2048 - 128))],
                                       post if k == lines - 1 else [], sink, weight=weight))
            self.ev[("ndma", tag, s)] = (5 if wide else 2 * lines) + (4 if withx else 0)

    def p1_pass(self, tag, blocks, withx, paced, hooks=None, prev_tag=None):
        e = self
        nb = len(blocks)

        def split(f):
            s, rem = divmod(f, 4 * nb)
            return (s,) + divmod(rem, nb)

        def opened(s):
            if s == 0 and prev_tag:
                e.ev[("free", prev_tag, 9)] = True
            if withx:
                for ks in range(4):
                    e("ds_read_b128 %s, v%d offset:%d" % (R("a", (s * 4 + ks) * 4, 4), vXR[ks], (s % 4) * 4096))

        def read(f, dst):
            s, ks, b = split(f)
            return blocks[b][0](s, ks, dst)

        def mfma(f, wf):
            s, ks, b = split(f)
            acc = R("v", blocks[b][1], 16)
            xf = R("a", (s * 4 + ks) * 4, 4)
            ops = (wf, xf) if blocks[b][2] == 2 else (xf, wf)
            e("v_mfma_f32_32x32x16_bf16 %s, %s, %s, %s" % (acc, ops[0], ops[1], "0" if f < nb else acc))
        e.mfma_loop(tag, 10, 4 * nb, read, mfma, opened, paced, dict(hooks or {}), 16 if tag == "A" else 26)

    def p1_short(self, tag, units, withx, paced, hooks=None, prev_tag=None):
        e = self
        nu = len(units)

        def split(f):
            s, rem = divmod(f, 2 * nu)
            return (s,) + divmod(rem, nu)

        def opened(s):
            if s == 0 and prev_tag:
                e.ev[("free", prev_tag, 9)] = True
            if withx:
                for k in range(4):
                    e("ds_read_b128 %s, v%d offset:%d" % (R("a", (s * 4 + k) * 4, 4), vA16[k >> 1], (s % 4) * 4096 + (k & 1) * 2048))

        def read(f, dst):
            s, j, u = split(f)
            return units[u][0](s, j, dst)

        def mfma(f, wf):
            s, j, u = split(f)
            mm = []
            for ru in range(2):
                acc = R("v", units[u][1][ru], 4)
                xf = R("a", (s * 4 + 2 * j + ru) * 4, 4)
                ops = (wf, xf) if units[u][2] == 2 else (xf, wf)
                mm.append("v_mfma_f32_16x16x32_bf16 %s, %s, %s, %s" % (acc, ops[0], ops[1], "0" if f < nu else acc))
            e(mm[0])
            return mm[1]
        e.mfma_loop(tag, 10, 2 * nu, read, mfma, opened, paced, dict(hooks or {}), 16 if tag == "A" else 26)

    def units(self, n, wide, offf, base, orient):
        out = []
        for U in range(n):
            def read(s, j, dst, U=U):
                for t in range(2):
                    i = self("ds_read_b64_tr_b16 %s, v%d offset:%d" % (R("v", dst + 2 * t, 2), vWW[U & 1] if wide else vWS[U >> 1][U & 1],
                                                                      j * REGION + offf(s) + (t * 1280 + (U >> 1) * 64 if wide else t * 512)))
                return i
            a = base + (16 * (U >> 1) + 4 * (U & 1) if orient == 2 else 8 * U)
            out.append((read, (a, a + (8 if orient == 2 else 4)), orient))
        return out

    def rd_narrow(self, offf, b):
        def read(s, ks, dst):
            for t in range(2):
                i = self("ds_read_b64_tr_b16 %s, v%d offset:%d" % (R("v", dst + 2 * t, 2), vWS[ks >> 1][b & 1],
                                                                  (ks & 1) * REGION + offf(s) + (b >> 1) * 2048 + t * 512))
            return i
        return read

    def seg320(self, stride, wreg, wmul, gap=0, regs_=vWB, swz=0):
        e = self
        e("s_mul_i32 %s, %s, %d" % (sT2, wreg, wmul))
        for k, r_ in enumerate(regs_):
            e("v_add_u32 v%d, %d, v0\nv_mul_u32_u24 v%d, 0xccd, v%d\nv_lshrrev_b32 v%d, 16, v%d" % (vT[0], 64 * k, vT[1], vT[0], vT[1], vT[1]))
            if swz and k == 2:
                e("v_lshrrev_b32 v%d, 5, v0\nv_mul_u32_u24 v%d, %d, v%d\nv_xor_b32 v%d, v%d, v%d" % (r_, r_, swz, r_, vT[0], vT[0], r_))
            elif swz and k > 2:
                e("v_xor_b32 v%d, %d, v%d" % (vT[0], swz, vT[0]))
            e("v_mul_u32_u24 v%d, %d, v%d\nv_lshl_add_u32 v%d, v%d, 4, v%d" % (r_, stride - 320 - 2 * gap, vT[1], r_, vT[0], r_))
            if gap:
                e("v_mul_u32_u24 v%d, 0x199a, v%d\nv_lshrrev_b32 v%d, 16, v%d\nv_mul_u32_u24 v%d, %d, v%d\nv_add_u32 v%d, v%d, v%d"
                  % (vT[1], vT[0], vT[1], vT[1], vT[1], gap, vT[1], r_, r_, vT[1]))
            e("v_add_u32 v%d, %s, v%d" % (r_, sT2, r_))
            if 0 < k < 4:
                e("v_subrev_u32 v%d, %d, v%d" % (r_, 1024 * k, r_))

    def wide_read_addr(self, contiguous):
        e = self
        if contiguous:
            e("v_and_b32 v14, 3, v0\nv_lshl_or_b32 v14, v3, 2, v14\nv_lshlrev_b32 v14, 3, v14")
        e("v_mul_u32_u24 v%d, 320, v12\nv_add3_u32 v%d, v%d, v13, v14\nv_xor_b32 v%d, %d, v%d"
          % (vWW[0], vWW[0], vWW[0], vWW[1], 32 if contiguous else 16, vWW[0]))

    def gelu(self, regs_, tmp, emit):
        for b0 in range(0, len(regs_), 8):
            ps = [(regs_[b0 + k], tmp + k) for k in range(0, min(8, len(regs_) - b0), 2)]
            for x, t in ps:
                emit("v_pk_mul_f32 %s, %s, %s" % (R("v", t, 2), R("v", x, 2), R("v", x, 2)))
            for x, t in ps:
                emit("v_pk_fma_f32 %s, %s, %s, %s op_sel:[0,1,0] op_sel_hi:[1,1,0]" % (R("v", t, 2), R("v", t, 2), sKC, sKC))
            for x, t in ps:
                emit("v_pk_mul_f32 %s, %s, %s" % (R("v", t, 2), R("v", t, 2), R("v", x, 2)))
            for x, t in ps:
                emit("v_exp_f32 v%d, v%d\nv_exp_f32 v%d, v%d" % (t, t, t + 1, t + 1))
            for x, t in ps:
                emit("v_pk_add_f32 %s, %s, 1.0 op_sel_hi:[1,0]" % (R("v", t, 2), R("v", t, 2)))
            for x, t in ps:
                emit("v_rcp_f32 v%d, v%d\nv_rcp_f32 v%d, v%d" % (t, t, t + 1, t + 1))
            for x, t in ps:
                emit("v_pk_mul_f32 %s, %s, %s" % (R("v", x, 2), R("v", t, 2), R("v", x, 2)))

    def phi(self, base, n, tmp, kreg, emit=None, mid=None):
        emit = emit or self.V
        for b0 in range(0, n, 8):
            ps = [(base + b0 + k, tmp + k) for k in range(0, 8, 2)]
            for x, t in ps:
                emit("v_pk_mul_f32 %s, %s, %s op_sel_hi:[1,0]" % (R("v", t, 2), R("v", x, 2), R("s", kreg, 2)))
            for x, t in ps:
                emit("v_exp_f32_e64 v%d, v%d clamp\nv_exp_f32_e64 v%d, v%d clamp" % (t, t, t + 1, t + 1))
            if mid:
                self(mid)
            for x, t in ps:
                emit("v_max_f32 v%d, s%d, v%d\nv_max_f32 v%d, s%d, v%d" % (x, kreg + 1, x, x + 1, kreg + 1, x + 1))
            for x, t in ps:
                emit("v_pk_add_f32 %s, %s, %s" % (R("v", x, 2), R("v", x, 2), R("v", t, 2)))

    def pack(self, src, n, dst):
        for k in range(n // 2):
            self.V("v_cvt_pk_bf16_f32 v%d, v%d, v%d" % (dst + k, src + 2 * k, src + 2 * k + 1))

    def z2_stats(self):
        e = self
        ld = self.dbg_ld
        e.gelu(list(range(Z2ACC, Z2ACC + 32)), ACCB, e.V)
        S = [ACCB + 8 + 2 * k for k in range(4)]
        Q = [ACCB + 16 + 2 * k for k in range(4)]
        for pc in range(4):
            z = Z2ACC + 8 * pc
            e.V("v_pk_add_f32 %s, %s, %s" % (R("v", S[pc], 2), R("v", z, 2), R("v", z + 2, 2)))
            e.V("v_pk_mul_f32 %s, %s, %s" % (R("v", Q[pc], 2), R("v", z, 2), R("v", z, 2)))
            for k in range(1, 4):
                if k > 1:
                    e.V("v_pk_add_f32 %s, %s, %s" % (R("v", S[pc], 2), R("v", S[pc], 2), R("v", z + 2 * k, 2)))
                e.V("v_pk_fma_f32 %s, %s, %s, %s" % (R("v", Q[pc], 2), R("v", z + 2 * k, 2), R("v", z + 2 * k, 2), R("v", Q[pc], 2)))
        e("s_cmp_eq_u32 %s, 0\ns_cselect_b32 s100, 0, 1.0" % sJ)
        for a in (S, Q):
            for ru in range(2):
                e("v_pk_fma_f32 %s, %s, s[100:101], %s op_sel_hi:[1,0,1]" % (R("v", a[ru], 2), R("v", a[ru], 2), R("v", a[2 + ru], 2)))
        for a in (S, Q):
            for ru in range(2):
                e("v_add_f32 v%d, v%d, v%d" % (a[ru], a[ru], a[ru] + 1))
        e("s_lshl2_add_u32 %s, %s, %s\ns_mul_i32 %s, %s, %d" % (sT1, sI, sW, sFL, sT1, 14 * 256))
        e("v_permlane32_swap_b32 v%d, v%d\nv_permlane32_swap_b32 v%d, v%d" % (S[0], Q[0], S[1], Q[1]))
        e("v_add_f32 v%d, v%d, v%d\nv_add_f32 v%d, v%d, v%d" % (S[0], S[0], Q[0], S[1], S[1], Q[1]))
        e("s_lshl_b32 %s, %s, 8\ns_add_u32 %s, %s, %s" % (sT1, sJ, sT1, sT1, sFL))
        e("v_permlane16_swap_b32 v%d, v%d" % (S[0], S[1]))
        e("v_add_f32 v%d, v%d, v%d" % (S[1], S[1], S[0]))
        e.check(ld, "v_cmp_gt_u32 vcc, 32, v%d" % vT[11], site=56)
        e("buffer_store_dword v%d, v%d, %s, %s offen sc1" % (S[1], vL4, sWS, sT1))

    def z2_norm(self):
        e = self
        o = e.opt
        p = e.prog
        T = 192
        lds = ["buffer_load_dword v%d, v%d, %s, %s offen offset:%d sc1" % (T + k, vL4, sWS, sFL, k * 256) for k in range(14)]
        a = T + 48
        b = a + 5
        p += ["v_bfe_u32 v%d, v0, 1, 1" % a, "v_bfe_u32 v%d, v0, 2, 2" % (a + 1), "v_and_b32 v%d, 1, v0" % (a + 2),
              "v_lshl_or_b32 v%d, v%d, 1, v%d" % (a + 1, a + 1, a + 2), "v_lshl_or_b32 v%d, v%d, 3, v%d" % (a, a, a + 1),
              "v_lshrrev_b32 v%d, 5, v0" % (a + 1), "v_lshl_or_b32 v%d, v%d, 2, v3" % (a + 1, a + 1),
              "v_xor_b32 v%d, v%d, v%d" % (a, a, a + 1), "v_lshlrev_b32 v%d, 3, v%d" % (a, a),
              "v_and_b32 v%d, 15, v0" % (a + 2), "v_lshl_add_u32 v%d, v%d, 7, v%d" % (a, a + 2, a), "v_add_u32 v%d, %s, v%d" % (a, sREG, a)]
        p += ["v_xor_b32 v%d, %d, v%d" % (a + k, (k >> 1) * 64 + (k & 1) * 16, a) for k in range(1, 4)]
        p += ["v_bfe_u32 v%d, v0, 3, 1" % b, "v_lshlrev_b32 v%d, 3, v%d" % (b, b),
              "v_bfe_u32 v%d, v0, 4, 1" % (b + 1), "v_bfe_u32 v%d, v0, 1, 1" % (b + 2), "v_xor_b32 v%d, v%d, v%d" % (b + 1, b + 1, b + 2),
              "v_lshl_or_b32 v%d, v%d, 2, v%d" % (b, b + 1, b),
              "v_lshrrev_b32 v%d, 2, v0" % (b + 1), "v_xor_b32 v%d, v0, v%d" % (b + 2, b + 1), "v_and_or_b32 v%d, v%d, 1, v%d" % (b, b + 2, b),
              "v_lshlrev_b32 v%d, 3, v%d" % (b, b),
              "v_and_b32 v%d, 3, v%d" % (b + 1, b + 1), "v_lshrrev_b32 v%d, 4, v0" % (b + 2), "v_lshl_add_u32 v%d, v%d, 3, v%d" % (b + 1, b + 2, b + 1),
              "v_lshl_add_u32 v%d, v%d, 7, v%d" % (b, b + 1, b), "v_add_u32 v%d, %s, v%d" % (b, sREG, b)]
        p += ["v_xor_b32 v%d, %d, v%d" % (b + k, (k >> 1) * 64 + (k & 1) * 16, b) for k in range(1, 4)]
        p += ["s_lshl2_add_u32 %s, %s, %s" % (sT0, sI, sW), "s_lshl_b32 %s, %s, 12" % (sT0, sT0), "s_lshl_b32 %s, %s, 18" % (sT1, sJ),
              "s_add_u32 %s, %s, %s" % (sT0, sT0, sT1), "s_add_u32 %s, %s, %d" % (sT0, sT0, Z2N),
              "s_lshl4_add_u32 %s, %s, %s" % (sT1, sJ, sI), "s_lshl2_add_u32 %s, %s, %s" % (sT1, sT1, sW), "s_lshl_b32 %s, %s, 7" % (sT1, sT1),
              "s_add_u32 %s, %s, %d" % (sT1, sT1, F_Z2N)]
        p += [("until", lambda: -1 if e.ev["f"] >= o.get("f_poll", 24) else 10 ** 9)] + lds + [e.mark("stat_ld"), ("until", lambda: e.ev["stat_ld"]), ("call", lambda: e.wait(vm=e.ev["stat_ld"]), 4)]
        p.append(("call", lambda: setattr(e, "boost", o.get("boost", 16)), 0))
        m = T + 14
        mx = ["v_max3_u32 v%d, v%d, v%d, v%d" % (m, T, T + 1, T + 2)]
        mx += ["v_max3_u32 v%d, v%d, v%d, v%d" % (m, m, T + k, T + k + 1) for k in range(3, 13, 2)]
        mx += ["v_max_u32 v%d, v%d, v%d" % (m, m, T + 13)]
        sm = ["v_add_f32 v%d, v%d, v%d" % (T + (k & 1), T + (k & 1), T + k) for k in range(2, 14)]
        p += sm
        p.append(("call", lambda: e.check("\n".join(lds), "v_cmp_eq_u32 vcc, -1, v%d" % m, "\n".join(mx + sm), site=57,
                                          fast="v_cmp_u_f32 vcc, v%d, v%d" % (T, T + 1)), 16))
        p += ["v_add_f32 v%d, v%d, v%d" % (T, T, T + 1), "v_mul_f32 v%d, %s, v%d" % (T, f32(1.0 / 864), T), "v_mov_b32 v%d, v%d" % (T + 1, T), ("delay", 1),
              "v_permlane32_swap_b32 v%d, v%d" % (T, T + 1), "v_fma_f32 v%d, -v%d, v%d, v%d" % (T + 1, T, T, T + 1),
              "v_max_f32 v%d, 0, v%d" % (T + 1, T + 1), "v_add_f32 v%d, %s, v%d" % (T + 1, f32(1e-5), T + 1), "v_rsq_f32 v%d, v%d" % (T + 2, T + 1),
              "s_nop 0", "v_mul_f32_e64 v%d, -v%d, v%d" % (T + 3, T, T + 2), "v_mov_b32 v%d, v%d" % (T + 4, T + 2), "v_mov_b32 v%d, v%d" % (T + 5, T + 3),
              "v_permlane16_swap_b32 v%d, v%d" % (T + 2, T + 4), "v_permlane16_swap_b32 v%d, v%d" % (T + 3, T + 5)]
        P = T + 16
        for q in range(8):
            ru = q >> 1 & 1
            p += ["v_fma_f32 v%d, v%d, v%d, v%d" % (Z2ACC + 4 * q + k, Z2ACC + 4 * q + k, T + 2 + 2 * ru, T + 3 + 2 * ru) for k in range(4)]
            p += ["v_cvt_pk_bf16_f32 v%d, v%d, v%d" % (P + 2 * q + k, Z2ACC + 4 * q + 2 * k, Z2ACC + 4 * q + 2 * k + 1) for k in range(2)]
            p.append("ds_write_b64 v%d, %s offset:%d" % (a + 2 * (q >> 2) + (q & 1), R("v", P + 2 * q, 2), 3 * 4096 + 2048 * ru))
        Fr = T + 32
        for U in range(4):
            for t in range(2):
                p.append("ds_read_b64_tr_b16 %s, v%d offset:%d" % (R("v", Fr + 4 * U + 2 * t, 2), b + (U ^ t), 3 * 4096 + t * 512))
        p.append(("call", lambda: setattr(e, "boost", 0), 0))
        for k in range(4):
            p.append(("delay", o.get("d_z2n", 0) if k else 2))
            p.append("buffer_store_dwordx4 %s, v%d, %s, %s offen offset:%d sc1" % (R("v", Fr + 4 * k, 4), vL16, sWS, sT0, k * 1024))
        p += [e.mark("z2n_st"), ("call", lambda: (e.ev.__setitem__("norm_done", True), e.stamp(3)), 0), ("until", lambda: e.ev["z2n_st"]),
              ("call", lambda: e.flag(e.ev["z2n_st"], sT1), 16)]

    def a_tables(self):
        e = self
        e("s_lshl2_add_u32 %s, %s, %s\ns_lshl_b32 %s, %s, 17\ns_and_b32 %s, %s, 1" % (sT0, sI2, sW, sT0, sT0, sT3, sJ2))
        e("s_lshl_b32 %s, %s, 11\ns_add_u32 %s, %s, %s" % (sT1, sT3, sT0, sT0, sT1))
        e("s_xor_b32 %s, %s, 1\ns_lshl1_add_u32 %s, %s, %s\ns_lshl_b32 %s, %s, 17" % (sT2, sJ2, sT2, sT2, sT3, sT2, sT2))
        e("s_lshl_b32 %s, %s, 12\ns_add_u32 %s, %s, %s\ns_add_u32 %s, %s, %d" % (sT1, sW, sT2, sT2, sT1, sT2, sT2, Z2N))
        e("s_lshl_b32 %s, %s, 19\ns_sub_u32 %s, %s, 0x40000" % (sROW[0], sT3, sROW[0], sROW[0]))
        e("s_lshr_b32 %s, %s, 1" % (sT3, sJ2))
        if self.opt.get("lead", 0):
            e("s_lshl_b32 %s, %s, 2\ns_lshr_b32 %s, 0x6301630, %s" % (sT3, sT3, sT3, sT3))
        if self.opt.get("rot2", 1) == 2:
            e("s_lshl1_add_u32 %s, %s, %s" % (sT3, sI2, sT3))
        L = self.opt.get("pull", 1)
        if L:
            tabs = []
            for m in range(4):
                rest, order = list(range(8)), []
                for t in range(8):
                    c = t + L if t % 4 == m and t + L in rest else rest[0]
                    rest.remove(c)
                    order.append(c)
                tabs.append(sum(c << 4 * t for t, c in enumerate(order)))
            e("s_mov_b32 %s, 0x%x\ns_and_b32 %s, %s, 3" % (sROW[1], tabs[0], sT1, sI2))
            for m in range(1, 4):
                e("s_cmp_eq_u32 %s, %d\ns_cselect_b32 %s, 0x%x, %s" % (sT1, m, sROW[1], tabs[m], sROW[1]))
        for st in range(8):
            if self.opt.get("rot2", 1):
                if L:
                    e("s_lshr_b32 %s, %s, %d\ns_add_u32 %s, %s, %s\ns_and_b32 %s, %s, 7" % (sT1, sROW[1], 4 * st, sT1, sT1, sT3, sT1, sT1))
                else:
                    e("s_add_u32 %s, %s, %d\ns_and_b32 %s, %s, 7" % (sT1, sT3, st, sT1, sT1))
                e("s_lshl_b32 %s, %s, 8\ns_add_u32 %s, %s, %s" % (sCH[st], sT1, sCH[st], sCH[st], sT0))
                e("s_lshl_b32 %s, %s, 14\ns_add_u32 %s, %s, %s" % (sT1, sT1, sBCH[st], sT1, sT2))
            else:
                e("s_add_u32 %s, %s, %d\ns_add_u32 %s, %s, %d" % (sCH[st], sT0, st * 256, sBCH[st], sT2, st * 16384))

    def a_jobs(self, q0, q1, r0, r1, queue):
        e = self
        for q in range(q0, q1):
            def pre(q=q):
                if q < 4:
                    return e.ev.get("xfree") and (q != 3 or e.ev.get("norm_done")) and e.ev.get("a_start", True)
                rd = e.ev.get(("ard", q - 4))
                return rd is not None and (rd[0] <= e.lg_done or e.cyc - rd[1] >= 160)
            setup = ["s_add_u32 m0, %s, %d" % (sREG, (q % 4) * 4096)]
            if q & 1:
                setup.append("s_add_u32 %s, %s, 128" % (sSO, sCH[q >> 1]))
            if q >= 4:
                setup.insert(0, lambda q=q: e.wait(lg=e.ev[("ard", q - 4)][0]))
            queue.append(Job(pre, ["buffer_load_dwordx4 v%d, %s, %s offen offset:%d lds" % (vAD[r], sWSP, sSO if q & 1 else sCH[q >> 1], r * 1024)
                                   for r in range(4)], setup, [], e.ev.setdefault(("adma", q), []),
                             lambda q=q: e.ev.__setitem__(("adma_t", q), e.cyc)))
        for q in range(r0, r1):
            def pre(q=q):
                ids = e.ev.get(("adma", q), [])
                if len(ids) < 4 or (6 <= q < 10 and not e.ev.get("norm_done")):
                    return False
                return e.lat == 0 or e.landed(max(ids))

            def emit(ks, q=q):
                e.wait(vm=max(e.ev[("adma", q)]))
                i = e("ds_read_b128 %s, v%d offset:%d" % (rr(ASLOT[q], 4, 4 * ks), vA16[ks >> 1], (q % 4) * 4096 + (ks & 1) * 2048))
                if ks == 3:
                    e.ev[("ard", q)] = (i, e.cyc)
            for ks in range(4):
                e.qd.append((pre, lambda ks=ks, emit=emit: emit(ks)))

    def b_jobs(self, g0, g1):
        e = self
        for g in range(g0, g1):
            e.ev[("ndma", "P", g)] = 4
            setup = ["s_add_u32 m0, %s, %d" % (sREG, WOFF + ((g + 3) % 6) * 4096)]
            if g >= 8:
                setup.append("s_add_u32 %s, %s, %s" % (sSO, sBCH[g - 8], sROW[0]))
            pre = (lambda: True) if g < 6 else (lambda g=g: e.ev.get(("free", "P", g - 6)))
            e.q1.append(Job(pre, ["buffer_load_dwordx4 v%d, %s, %s offen offset:%d sc1 lds" % (vL16, sWS, sSO if g >= 8 else sBCH[g], k * 1024)
                                  for k in range(4)], setup, [], e.ev.setdefault(("dma", "P", g), [])))

    def z2n_poll_setup(self):
        e = self
        e("s_and_b32 %s, %s, 1\ns_andn2_b32 %s, %s, 1\ns_lshl1_add_u32 %s, %s, %s" % (sT2, sJ2, sT0, sJ2, sT0, sT0, sT2))
        e("s_lshl_b32 %s, %s, 5\ns_add_u32 %s, %s, %s\ns_lshl_b32 %s, %s, 7\ns_add_u32 %s, %s, %d" % (sT0, sT0, sT0, sT0, sW, sT0, sT0, sT0, sT0, F_Z2N))
        e("v_and_b32 v%d, 7, v0\nv_bfe_u32 v%d, v0, 3, 1\nv_lshl_add_u32 v%d, v%d, 4, v%d\nv_lshl_add_u32 v%d, v%d, 9, %s"
          % (vT[8], vT[7], vT[8], vT[7], vT[8], vT[8], vT[8], sT0))
        e("s_lshl2_add_u32 %s, %s, %s\ns_lshl_b32 %s, %s, 6" % (sT2, sI2, sW, sT2, sT2))
        e("v_and_b32 v%d, 15, v0\nv_lshl_add_u32 v%d, v%d, 1, %s" % (vT[7], vT[7], vT[7], sT2))
        self.z2n_poll = "buffer_load_dword v%d, v%d, %s, 0 offen sc1" % (vT[9], vT[8], sWS)
        self.bias_ld = ["buffer_load_ushort v%d, v%d, %s, 0 offen offset:%d" % (vT[10 + ru], vT[7], sBSP, 32 * ru) for ru in range(2)]

    def z2n_poll_issue(self):
        self("\n".join(self.bias_ld))
        self(self.z2n_poll)

    def z2n_go(self):
        e = self
        e.check(e.z2n_poll, "v_cmp_eq_u32 vcc, -1, v%d" % vT[9], site=58)
        e.stamp(6)
        e.b_jobs(0, NB0)

    def drain_all(self):
        self.drain(lambda: not self.q1 and not self.q2 and not self.qd and not self.armed)
        self.settle()
        return self.vm_n - 1

    def p1_finish(self):
        e = self
        e.lstamp(None)
        e.stamp(5)
        e.wait(lg=e.lg_n - 1)
        names = {("P", g): max(e.ev[("dma", "P", g)]) for g in range(NB0)}
        names.update({("A", q): max(e.ev[("adma", q)]) for q in range(e.nqd - 4, e.nqd)})
        return e.join_state(names)

    def deferred_stores(self):
        out = ["buffer_store_dword v%d, v%d, %s, %s offen sc1" % (ACCB + 16 + 4 * h_, vT[7], sWS, sDEF[3 + h_]) for h_ in range(2)]
        return out + ["buffer_store_dwordx4 %s, v%d, %s, %s offen offset:%d sc1" % (R("v", ACCB + 4 * k, 4), vL16, sWS, sDEF[max(0, k - 1)], (k & 1) * 1024)
                      for k in range(4)]

    OFF_A = staticmethod(lambda s: 16384 + (s % 4) * 2048)
    OFF_W = staticmethod(lambda s: (s % 4) * 5120)

    def main_start(self):
        e = self
        e.w_offsets(3456, True)
        e.stream_init(sAO, sAB, sAE, "s_add_u32 %s, %s, 13\ns_lshl_b32 %s, %s, 7" % (sAB, sJ, sAB, sAB), 3456)
        e.w_jobs("A", False, e.OFF_A, sWIN, (sAO, sAB, sAE), 3456, {}, True)
        n = len(e.q1)
        e.bg_vm(force=True, maxn=e.opt.get("n0", 8))
        e.settle()
        self.n_start = n - len(e.q1)
        self.start_ev = {k: list(v) for k, v in e.ev.items() if k[0] == "dma"}
        e.late_setup()
        for _ in range(e.opt.get("shift", 0)):
            e("s_nop 0")

    def pass_a(self, queue_b):
        e = self
        e.w_jobs("A", False, e.OFF_A, sWIN, (sAO, sAB, sAE), 3456, {}, True)
        del e.q1[:self.n_start]
        for k, v in self.start_ev.items():
            e.ev[k][:] = v
        n = len(e.q1)
        e.shadow(queue_b)
        e.prog.append(("call", lambda: e.ev.__setitem__("b_ready", True), 0))
        first = e.q1[n]
        first.pre = lambda pre=first.pre: e.ev.get("b_ready") and pre()
        e.shadow(e.a_tables)
        e.shadow(e.z2n_poll_setup)
        e.stamp(0)
        e.bg_vm(force=True, maxn=e.opt.get("n1", 4))
        self.dbg_ld = "buffer_load_dword v%d, off, %s, 0 sc1" % (vT[11], sDBG)

        def upto(stage):
            return max([i + 1 for i, j in enumerate(e.q1) if j.sink is e.ev[("dma", "B", stage)]]) if stage >= 0 else \
                min([i for i, j in enumerate(e.q1) if j.sink is e.ev[("dma", "B", 0)]])
        k0, k1 = upto(e.opt.get("pre_a", 0)), upto(e.opt.get("pre_b", 1))
        e.q1, self.q_act, self.q_later = e.q1[:k0], e.q1[k0:k1], e.q1[k1:]
        e.p1_short("A", e.units(4, False, e.OFF_A, Z2ACC, 2), True, False,
                  {e.opt.get("f_dbg", 56): lambda: e(self.dbg_ld)})
        self.left_a = len(e.prog)
        e.prog_flush()
        e.stamp(1)

    def second_pass(self, blocks, hooks=None, early_poll=True):
        e = self
        e.pipe = e.gate = e.cyc
        e.wait_all(vm=False)
        e.ev["xfree"] = True
        e.q1 += self.q_act
        e.z2_stats()
        e.stamp(2)
        e.q1 += self.q_later
        e.a_jobs(0, e.nqd, 0, e.nqd - 4, e.q2)
        e.bg_vm(force=True, maxn=e.opt.get("n2", 2))
        e.lat = 10 ** 9
        o = e.opt
        tail = e.label("L_tail")
        e.p1_short("B", blocks, False, True, {**(hooks or {}), 0: e.z2_norm, 20 * len(blocks) - o.get("z_early", 4): (lambda: e.hi.extend(e.bias_ld + [e.z2n_poll])) if early_poll else lambda: None,},
                  prev_tag="A")
        e.raw(tail + ":")
        e.ev["passb"] = True
        e.prog_flush()
        e.lat = o.get("lat1", 800)
        e.stamp(4)
        e.wait_all(vm=False)
        e("s_barrier")

    def role_a(self):
        e = self

        def queue_b():
            e("s_lshl2_add_u32 %s, %s, %s" % (sG, sHALF, sJL))
            e.stream_init(sBO, sBB, sBE, "s_mul_i32 %s, %s, 160\ns_add_u32 %s, %s, 1280" % (sBB, sG, sBB, sBB), 3840)
            e.w_jobs("B", True, e.OFF_W, sWQ, (sBO, sBB, sBE), 3840, {15360: ("A", 9)}, False, 1.6)
            e.seg320(3840, sWP, 16 * 3840, 1280 - 160, swz=2)
            e.wide_read_addr(True)
        e.pass_a(queue_b)
        e.ev["a_start"] = False
        AD, ONES = vT[1:5], vXD[0]

        def tables():
            e("s_mov_b32 s100, %s\ns_mov_b32 s101, %s" % (f32(LOG2E), f32(1e-6)))
            e("v_add_u32 v%d, %s, v%d" % (vT[0], sREG, vL16))
            e("s_lshl4_add_u32 %s, %s, %s\ns_mul_i32 %s, %s, %d\ns_add_u32 %s, %s, %d" % (sAB, sG, sI, sAB, sAB, KVS, sAB, sAB, KVP))
            e("s_lshl3_add_u32 %s, %s, %s\ns_mul_i32 %s, %s, 640\ns_add_u32 %s, %s, %d" % (sAE, sI, sG, sAE, sAE, sAE, sAE, ZP))
            for h_, (k3, dv, v3) in enumerate(((0, 0, 0), (4, 2, 3))):
                e("s_add_u32 %s, %s, 1\ns_add_u32 %s, %s, %d" % (sXO, sW, sXB, sW, dv))
                e("s_cmp_eq_u32 %s, 3\ns_cselect_b32 %s, %d, %s\ns_cselect_b32 %s, %d, %s" % (sW, sXO, k3, sXO, sXB, v3, sXB))
                e("s_lshl1_add_u32 %s, %s, %s\ns_lshl_b32 %s, %s, 10\ns_add_u32 %s, %s, %s" % (sT2, sXO, sXB, sT2, sT2, sDEF[h_], sT2, sAB))
                e("s_lshl_b32 %s, %s, 7\ns_add_u32 %s, %s, %s" % (sT2, sXO, sDEF[3 + h_], sT2, sAE))
                e("s_lshl_b32 %s, %s, 10\nv_add_u32 v%d, %s, v%d" % (sT2, sXO, AD[2 * h_], sT2, vL16))
                e("s_lshl_b32 %s, %s, 10\nv_add_u32 v%d, %s, v%d" % (sT2, sXB, AD[2 * h_ + 1], sT2, vL16))
            e("s_cmp_eq_u32 %s, 3\ns_cselect_b32 %s, %s, 0x%x\ns_cselect_b32 %s, %s, 0x%x" % (sW, sDEF[2], sDEF[1], OOB, sDEF[4], sDEF[4], OOB))
            for k in range(4):
                e("v_mov_b32 v%d, 0x3f803f80" % (ONES + k))
            e("s_lshl4_add_u32 %s, %s, %s\ns_lshl2_add_u32 %s, %s, %s\ns_lshl2_add_u32 %s, %s, %s" % (sFL, sHALF, sI, sFL, sFL, sJL, sFL, sFL, sW))
            e("s_lshl_b32 %s, %s, 7\ns_add_u32 %s, %s, %d" % (sFL, sFL, sFL, sFL, F_KV))
        e.second_pass(e.units(10, True, e.OFF_W, ACCB, 1),
                      {1: lambda: e.shadow(tables), e.opt.get("a_start", 2): lambda: e.ev.__setitem__("a_start", True)}, early_poll=False)
        wr = lambda U, d: "ds_write_b128 v%d, %s offset:%d" % (vT[0], R("v", d, 4), WOFF + U * 1024)
        for U in range(5):
            d = Z2ACC + 8 * (U % 4)
            e.pack(ACCB + 40 + 8 * U, 8, d)
            e.phi(ACCB + 8 * U, 8, WRING, 100, None, wr(5 + U, d))
            if U == e.opt.get("a_poll", 0):
                e.z2n_poll_issue()
            if U == e.opt.get("a_go", 3):
                e.drain(lambda: not e.q2 and not e.armed)
                e.z2n_go()
            e.pack(ACCB + 8 * U, 8, d + 4)
            e(wr(U, d + 4))
        e.wait_all(vm=False)
        e("s_barrier")

        def reads(w_):
            if w_ == 2:
                for k in range(4):
                    e("v_add_u32 v%d, %d, v%d" % (AD[k], 2 * REGION, AD[k]))
            return ["ds_read_b128 %s, v%d offset:%d" % (R("a", 24 * w_ + 12 * h_ + 4 * k, 4), AD[2 * h_ + (k > 0)], WOFF + (w_ & 1) * REGION + (k + 4) * 1024 * (k > 0))
                    for h_ in range(2) for k in range(3)]
        e("\n".join(reads(0) + reads(1)))
        for w_ in range(4):
            rd = reads(w_ + 2) if w_ < 2 else []
            for h_ in range(2):
                fr = 24 * w_ + 12 * h_
                for acc, a_ in ((16 + 4 * h_, R("v", ONES, 4)), (8 * h_, R("a", fr + 4, 4)), (8 * h_ + 4, R("a", fr + 8, 4))):
                    acc = R("v", ACCB + acc, 4)
                    e("v_mfma_f32_16x16x32_bf16 %s, %s, %s, %s" % (acc, a_, R("a", fr, 4), acc if w_ else "0"))
                    if rd:
                        e(rd.pop(0))
                e.tick()
        e.drain_all()

    def early_finish(self, last):
        e = self
        e.bg_vm(force=True, maxn=8)
        e.flag(last, sFL)
        for r_ in [sFL] + sDEF:
            e("s_mov_b32 %s, 0x%x" % (r_, OOB))
        e.drain(lambda: len(e.q2) <= 2)
        e.z2n_poll_issue()
        e.drain_all()
        e.z2n_go()
        e.drain_all()

    def z1_store(self, nblk, first_text, packed=False):
        e = self
        e("s_lshl2_add_u32 %s, %s, %s\ns_mul_i32 %s, %s, 28" % (sT0, sI, sW, sT0, sT0))
        e(first_text)
        e("s_add_u32 %s, %s, %s\ns_lshl_b32 %s, %s, 11\ns_add_u32 %s, %s, %d" % (sT0, sT0, sT1, sT0, sT0, sT0, sT0, Z1))
        for b in range(nblk):
            d = ACCB + 8 * b
            if not packed:
                e.pack(ACCB + 16 * b, 16, d)
            if b == 4:
                e("s_add_u32 %s, %s, 8192" % (sT0, sT0))
            for p in range(2):
                o_ = (b % 4) * 2048 + p * 1024
                last = e("buffer_store_dwordx4 %s, v%d, %s, %s offen offset:%d sc1" % (R("v", d + 4 * p, 4), vL16B if o_ >= 4096 else vL16, sWS, sT0, o_ % 4096))
        return last

    def z1_flag_addr(self):
        self("s_lshl2_add_u32 %s, %s, %s\ns_lshl3_add_u32 %s, %s, %s" % (sFL, sI, sW, sFL, sFL, sG))
        self("s_lshl_b32 %s, %s, 7\ns_add_u32 %s, %s, %d" % (sFL, sFL, sFL, sFL, F_Z1))

    def role_b(self):
        e = self

        def queue_b():
            e("s_mul_i32 %s, %s, 3\ns_add_u32 %s, %s, %s\ns_sub_u32 %s, %s, 4" % (sG, sHALF, sG, sG, sJL, sG, sG))
            e.stream_init(sBO, sBB, sBE, "s_mul_i32 %s, %s, 320" % (sBB, sG), 3456)
            e.w_jobs("B", True, e.OFF_W, sWIN, (sBO, sBB, sBE), 3456, {15360: ("A", 9)}, False, 1.2)
            e.seg320(3456, sWP, 16 * 3456, swz=1)
            e.wide_read_addr(False)
        e.pass_a(queue_b)
        e.second_pass(e.units(10, True, e.OFF_W, ACCB, 2))
        e.drain_all()
        last = e.z1_store(5, "s_mul_i32 %s, %s, 5\ns_add_u32 %s, %s, 1" % (sT1, sG, sT1, sT1))
        e.z1_flag_addr()
        e.z2n_go()
        e.bg_vm(force=True, maxn=8)
        e.flag(last, sFL)
        for r_ in [sFL] + sDEF:
            e("s_mov_b32 %s, 0x%x" % (r_, OOB))
        e.drain_all()

    @staticmethod
    def unit_col(U):
        c, t = divmod(U, 5)
        return (80 * c + (32 * (t >> 1) + 4 * (t & 1) if t < 4 else 64), 8 if t < 4 else 4)

    def role_l(self):
        e = self
        offf = lambda s: (s % 7) * 2048
        vGR = 18

        def queue_b():
            e("s_mov_b32 %s, 5" % sG)
            e.stream_init(sBO, sBB, sBE, "s_mov_b32 %s, 1600" % sBB, 3456)
            e("v_lshrrev_b32 v%d, 3, v0\nv_lshlrev_b32 v%d, 2, v%d\nv_and_b32 v%d, 0x70, v%d" % (vT[0], vT[0], vT[0], vT[1], vL16))
            for t in range(2):
                e("v_bfe_u32 v%d, %s, v%d, 4\nv_lshl_add_u32 v%d, v%d, 7, v%d" % (vT[2 + t], (sROT, sXE)[t], vT[0], vT[2 + t], vT[2 + t], vT[1]))
                e.q1.append(Job(lambda: True, ["buffer_load_dwordx4 v%d, %s, 0 offen lds" % (vT[2 + t], sGW)],
                                ["s_add_u32 m0, %s, %d" % (sREG, WOFF + 14336 + 1024 * t)], [], e.ev.setdefault(("dma", "B", 0), [])))
            e.w_jobs("B", False, offf, sWIN, (sBO, sBB, sBE), 3456, {}, False, 2.0)
            e.ev[("ndma", "B", 0)] += 2
            e("v_lshrrev_b32 v%d, 4, v0\nv_lshl_add_u32 v%d, v%d, 4, %s" % (vGR, vGR, vGR, sREG))

        def rd_gate(s, ks, dst):
            return e("ds_read_b128 %s, v%d offset:%d" % (R("v", dst, 4), vGR, WOFF + 14336 + s * 128 + ks * 64))
        e.pass_a(queue_b)
        g = ACCB + 32
        e.second_pass(e.units(4, False, offf, ACCB, 2) + [(rd_gate, (g, g + 4), 2)], early_poll=False)
        e("v_cmp_eq_u32 vcc, 1, v3\nv_cndmask_b32 v%d, v%d, v%d, vcc" % (g, g, g + 4))
        e.V("v_mul_f32 v%d, %s, v%d\nv_exp_f32 v%d, v%d\nv_add_f32 v%d, 1.0, v%d\nv_rcp_f32 v%d, v%d" % (g, f32(-LOG2E), g, g, g, g, g, g, g))
        e("s_lshl2_add_u32 %s, %s, %s\ns_lshl_b32 %s, %s, 7\ns_add_u32 %s, %s, %d" % (sT0, sI, sW, sT0, sT0, sT0, sT0, GATE))
        e("v_and_b32 v%d, 0x7c, v%d" % (vT[0], vL4))
        e("buffer_store_dword v%d, v%d, %s, %s offen sc1" % (g, vT[0], sWS, sT0))
        last = e.z1_store(2, "s_mov_b32 %s, 26" % sT1)
        e.z1_flag_addr()
        return e.early_finish(last)

    def ap_voff(self, dst):
        self.V("v_bfe_u32 v%d, v0, 4, 1\nv_mul_u32_u24 v%d, 0xc000, v%d\nv_and_b32 v%d, 15, v0" % (dst, dst, dst, vT[0]))
        self.V("v_lshl_add_u32 v%d, v%d, 4, v%d\nv_lshrrev_b32 v%d, 5, v0\nv_lshl_add_u32 v%d, v%d, 8, v%d" % (dst, vT[0], dst, vT[0], dst, vT[0], dst))

    def role_h(self):
        e = self
        e.wring = 208
        Q = 48
        full = e.opt.get("stop", 9) > 2
        SG, ra = [40, 41, 42, 43, 44], 18
        sWB, sDB = sROW[1], sROW[2]
        e("s_mov_b32 s14, %d\ns_mov_b32 s15, 0x20000" % self.sizes[12])
        e.stream_init(sAO, sAB, sAE, "s_mul_i32 %s, %s, 640" % (sAB, sHALF), 3840)
        e.w_offsets(3840, False)
        off1 = lambda s: 8192 + (s + 2) % 4 * 4096
        off2 = lambda s: s % 4 * 6144
        e.w_jobs("A", False, off1, sWQ, (sAO, sAB, sAE), 3840, {}, True, lines=2)
        e.bg_vm(force=True, maxn=4)
        e.late_setup(natural=True)
        e.wait(vm=self.clear_id)
        e("s_barrier")
        e("v_mov_b32 v244, 1\ns_lshl_b32 %s, %s, 12\ns_mov_b64 exec, 1" % (sT0, sW))
        e("buffer_atomic_add v244, off, %s, %s sc1" % (sDBG, sT0))
        e("s_mov_b64 exec, -1")
        e.bg_vm(force=True, maxn=8)
        e.seg320(1280, sW, 320, regs_=SG)
        e("s_lshl1_add_u32 %s, %s, %s\ns_mul_i32 %s, %s, %d" % (sT3, sI, sHALF, sWB, sT3, 32 * 1280))
        e("v_lshrrev_b32 v%d, 5, v0\nv_bfe_u32 v%d, v0, 2, 3\nv_lshl_add_u32 v%d, v%d, 4, v%d" % (ra, ra + 1, ra, ra, ra + 1))
        e("v_mul_u32_u24 v%d, 320, v%d\nv_add_u32 v%d, %s, v%d\nv_and_b32 v%d, 3, v0" % (ra, ra, ra, sREG, ra, vT[0]))
        e("v_lshl_add_u32 v%d, v%d, 3, v%d\nv_lshl_add_u32 v%d, v%d, 4, v%d" % (ra + 1, vT[0], ra, ra, vT[0], ra))
        e("s_mul_i32 %s, %s, 96\ns_add_u32 %s, %s, %s\ns_mul_i32 %s, %s, 5120\ns_add_u32 %s, %s, %d" % (sDB, sW, sDB, sDB, sT3, sDB, sDB, sDB, sDB, BP + 20 * 5120))
        e("s_cmp_lt_u32 %s, 27\ns_cselect_b32 %s, %s, 0x%x" % (sT3, sDB, sDB, OOB))
        e("s_lshl_b32 %s, %s, 5\ns_add_u32 %s, %s, %s\ns_lshl_b32 %s, %s, 7\ns_add_u32 %s, %s, %d" % (sFL, sW, sFL, sFL, sT3, sFL, sFL, sFL, sFL, F_WO))
        e.stream_init(sBO, sBB, sBE, "s_add_u32 %s, %s, 256" % (sBB, sAB), 3840)
        e.w_jobs("B", False, off2, sWQ, (sBO, sBB, sBE), 3840, {6144: ("A", 6), 12288: ("A", 8), 18432: ("A", 9)}, False, lines=3)
        vAP, sPQ = 25, "s86"
        hold, e.q1 = e.q1, []
        e.ap_voff(vAP)
        e.q1 = hold
        e("s_lshl2_add_u32 %s, %s, %s\ns_mul_i32 %s, %s, %d\ns_mul_i32 %s, %s, 10240" % (sPQ, sI, sW, sPQ, sPQ, 2 * 49152, sT3, sHALF))
        e("s_add_u32 %s, %s, %s\ns_add_u32 %s, %s, %d" % (sPQ, sPQ, sT3, sPQ, sPQ, AP))

        def pq_piece(pc):
            d = Q + 4 * pc
            out = ["v_cvt_pk_bf16_f32 v%d, v%d, v%d" % (d + k, Q + 8 * pc + 2 * k, Q + 8 * pc + 2 * k + 1) for k in range(4)]
            if pc and pc % 8 == 0:
                out.append("s_add_u32 %s, %s, 4096" % (sPQ, sPQ))
            return out + ["buffer_store_dwordx4 %s, v%d, %s, %s offen offset:%d sc1" % (R("v", d, 4), vAP, sWS, sPQ, (pc // 2 % 4) * 1024 + (pc & 1) * 512)]
        e.stamp(0)
        e.bg_vm(force=True, maxn=8)
        ld0 = "buffer_load_dword v%d, off, %s, 0 sc1" % (vT[11], sDBG)
        wo_ld, wo_st = [], []
        WF = 220
        assert e.n3 <= 31

        def relayout():
            ld = "buffer_load_dwordx4 v%%d, %s, %s offen offset:%%d lds" % (sWOUT, sWB)
            first = []
            for hf in range(2):
                first.append(Job(lambda: True, [ld % (SG[k], k * 1024) for k in range(4)], ["s_add_u32 m0, %s, %d" % (sREG, 5120 * hf)], [], wo_ld, weight=1.2))
                first.append(Job(lambda: True, [ld % (SG[4], 0)], ["s_add_u32 m0, %s, %d" % (sREG, 5120 * hf + 4096)],
                                ["s_add_u32 %s, %s, %d" % (sWB, sWB, 16 * 1280)], wo_ld, lambda: e.ev.__setitem__("wo_t", e.cyc), 1.2))
            if e.opt.get("h_cl", 1):
                e.q1[0:0] = first
            else:
                e.q2 += first
            ready = lambda: len(wo_ld) == 10 and (max(wo_ld) <= e.vm_done or e.cyc >= e.eta[max(wo_ld)] + e.opt.get("h_cold", 600))
            for U in range(10):
                col, step = self.unit_col(U)
                for sub in range(2):
                    def rd(U=U, sub=sub, col=col, step=step):
                        e.wait(vm=max(wo_ld))
                        e.ev["wo_rid"] = e("ds_read_b64_tr_b16 %s, v%d offset:%d" % (R("a", 160 + 4 * U + 2 * sub, 2), ra if step == 8 else ra + 1, sub * 8 * 320 + col * 2))
                        e.ev["wo_rd"] = 2 * U + sub + 1
                    e.qd.append((ready, rd))
            for U in range(10):
                e.q2.append(Job(lambda U=U: e.ev.get("wo_rd", 0) >= min(20, 2 * U + 6), ["buffer_store_dwordx4 %s, v%d, %s, %s offen offset:%d sc1"
                                                   % (R("a", 160 + 4 * U, 4), vL16B if U % 5 == 4 else vL16, sWS, sDB, (U % 5 % 4) * 1024)],
                                ["s_add_u32 %s, %s, %d" % (sDB, sDB, 48 * 5120)] if U == 5 else [], [], wo_st))
            e.hi += [ld0, e.mark("ld0"), ("until", lambda: e.ev["ld0"]), ("call", lambda: e.check(ld0, "v_cmp_gt_u32 vcc, 32, v%d" % vT[11]), 16),
                     ("until", lambda: -1 if len(wo_ld) == 10 else 10 ** 9)]
            for k in range(5):
                e.hi += ["v_add_u32 v1, %d, v0" % (64 * k), "v_mul_u32_u24 v3, 0x199a, v1", "v_lshrrev_b32 v3, 16, v3",
                         "v_mul_u32_u24 v3, %d, v3" % (1280 - 160), "v_lshl_add_u32 v%d, v%d, 4, v3" % (SG[k], 1 if k == 4 else 0)]
            w2 = []
            ld2 = "buffer_load_dwordx4 v%%d, %s, %s offen offset:%%d lds" % (sWO, sWO_)

            def second():
                e.wait(lg=e.ev["wo_rid"])
                e.q1[0:0] = [Job(lambda: True, [ld2 % (SG[k], k * 1024) for k in range(4)], ["s_mov_b32 m0, %s" % sREG], [], w2, weight=1.6),
                             Job(lambda: True, [ld2 % (SG[4], 0)], ["s_add_u32 m0, %s, 4096" % sREG], ["s_add_u32 %s, %s, %d" % (sWO_, sWO_, 32 * 1280)], w2, weight=1.6),
                             Job(lambda: True, [ld2 % (SG[k], k * 1024) for k in range(2)], ["s_add_u32 m0, %s, 5120" % sREG], [], w2, weight=1.6)]
                ok = lambda: len(w2) == 7 and (max(w2) <= e.vm_done or e.cyc >= e.eta[max(w2)] + e.opt.get("h_cold", 600))
                for bb in range(3):
                    for ks in range(3):
                        for t in range(2):
                            e.qd.append((ok, lambda bb=bb, ks=ks, t=t: (e.wait(vm=max(w2)), e(
                                "ds_read_b64_tr_b16 %s, v%d offset:%d" % (R("a", WF + 12 * bb + 4 * ks + 2 * t, 2), WT[2 * (ks == 2) + (bb == 2)],
                                                                          (16 * ks + 4 * t) * 160 + 64 * bb)))))
            e.hi += [("until", lambda: -1 if e.ev.get("wo_rd") == 20 and e.ev["f"] >= e.opt.get("h_wo", 0) else 10 ** 9),
                     ("call", lambda: (e.drain(lambda: e.ev.get("wo_rd") == 20), second()), 4),
                     ("until", lambda: max(wo_st) if len(wo_st) == 10 else 10 ** 9),
                     ("call", lambda: (e.drain(lambda: len(wo_st) == 10), e.flag(max(wo_st), sFL)), 16)]

        nsh = e.opt.get("h_sh", 48)

        def phi_shadow():
            e("s_mov_b32 s100, %s\ns_mov_b32 s101, %s" % (f32(LOG2E), f32(1e-6)))
            for g0 in range(0, nsh, 4):
                for fmt in ("v_mul_f32 v{t}, s100, v{x}", "v_exp_f32_e64 v{t}, v{t} clamp", "v_max_f32 v{x}, s101, v{x}", "v_add_f32 v{x}, v{x}, v{t}"):
                    e.prog += [fmt.format(x=Q + g0 + k, t=240 + k) for k in range(4)]
                if g0 >= nsh // 2:
                    e.prog += pq_piece((g0 - nsh // 2) // 4)
        sHM, sPF, sSF, sKF, sGF, sGA, sZP, sKV, sSC, sMB, sMF, sWO_, sCT = ["s[82:83]", "s84", "s85"] + ["s%d" % k for k in range(87, 97)]
        IMG, ZIMG, ZPITCH = 8192, REGION, 656
        vGA, vIW, vAR, vAR2, vZG, vZW, vZR, vGT = range(32, 40)
        MS, WT, vH, vOOB = [248, 249, 250], [251, 252, 253, 254], 24, 27

        def late_addresses():
            e("s_lshr_b32 %s, %s, 1\ns_lshl3_add_u32 %s, %s, %s" % (sG, sI, sG, sHALF, sG))
            e("s_and_b32 %s, %s, 1\ns_lshl2_add_u32 %s, %s, %s" % (sCT, sI, sCT, sCT, sW))
            e("s_mul_i32 %s, %s, %d\ns_mul_i32 %s, %s, 160\ns_add_u32 %s, %s, %s" % (sT0, sG, 40 * 1280, sT1, sCT, sWO_, sT0, sT1))
            e("s_lshl2_add_u32 %s, %s, %s\ns_mul_i32 %s, %s, 640\ns_add_u32 %s, %s, %d" % (sT0, sHALF, sW, sZP, sT0, sZP, sZP, ZP))
            e("s_lshl_b32 %s, %s, 13\ns_add_u32 %s, %s, %d" % (sKF, sT0, sKF, sKF, F_KV))
            e("s_lshl2_add_u32 %s, %s, %s\ns_lshl_b32 %s, %s, 7\ns_add_u32 %s, %s, %d" % (sT0, sI, sW, sGA, sT0, sGA, sGA, GATE))
            e("s_lshl_b32 %s, %s, 10\ns_add_u32 %s, %s, %d" % (sGF, sT0, sGF, sGF, F_Z1 + 5 * 128))
            e("s_lshl1_add_u32 %s, %s, %s\ns_lshl_b32 %s, %s, 11\ns_add_u32 %s, %s, %d" % (sSC, sT0, sHALF, sSC, sSC, sSC, sSC, SC))
            e("s_lshr_b32 %s, %s, 1\ns_lshl1_add_u32 %s, %s, %s\ns_and_b32 %s, %s, 1\ns_lshl1_add_u32 %s, %s, %s" % (sT0, sW, sT0, sI, sT0, sT1, sW, sT1, sHALF, sT1))
            e("s_lshl2_add_u32 %s, %s, %s\ns_lshl_b32 %s, %s, 7\ns_add_u32 %s, %s, %d" % (sSF, sT0, sT1, sSF, sSF, sSF, sSF, F_SC))
            e("s_lshl_b32 %s, %s, 5\ns_add_u32 %s, %s, %s\ns_lshl_b32 %s, %s, 7\ns_add_u32 %s, %s, %d" % (sT0, sT0, sT0, sT0, sT1, sT0, sT0, sPF, sT0, F_U + 28 * 128))
            e("s_lshr_b32 %s, %s, 1\ns_mul_i32 %s, %s, %d\ns_add_u32 %s, %s, %d" % (sKV, sG, sKV, sKV, 16 * KVS, sKV, sKV, KVP))
            e("s_mul_i32 %s, %s, %d\ns_add_u32 %s, %s, %d" % (sMB, sCT, 48 * 5120, sMB, sMB, BP))
            e("s_lshl4_add_u32 %s, %s, %s\ns_lshl_b32 %s, %s, 7\ns_add_u32 %s, %s, %d" % (sMF, sCT, sG, sMF, sMF, sMF, sMF, F_M))
            e("v_lshrrev_b32 v%d, 5, v0\nv_mov_b32 v%d, 0x%x\nv_and_b32 v%d, 0x7c, v%d" % (vH, vOOB, OOB, vGT, vL4))
            e("v_bfe_u32 v1, v0, 2, 2\nv_mul_u32_u24 v1, 160, v1\nv_add_u32 v1, %s, v1\nv_mul_u32_u24 v3, %d, v%d" % (sREG, 8 * 160, vH))
            e("v_and_b32 v4, 3, v0\nv_bfe_u32 v5, v0, 4, 1\nv_lshl_add_u32 v%d, v5, 3, v1\nv_lshl_add_u32 v%d, v4, 4, v%d" % (WT[2], WT[2], WT[2]))
            e("v_lshl_add_u32 v%d, v4, 3, v1\nv_add_u32 v%d, v%d, v3\nv_add_u32 v%d, v%d, v3" % (WT[3], WT[0], WT[2], WT[1], WT[3]))
            e("v_cmp_eq_u32 %s, 0, v5" % sHM)
            e("s_mul_i32 %s, %s, 5" % (sT0, sG))
            e("v_and_b32 v1, 15, v0\nv_lshlrev_b32 v1, 4, v1\nv_lshl_add_u32 v1, v5, 10, v1")
            for p in range(3):
                e("v_add_u32 v3, %s, v%d\nv_add_u32 v3, %d, v3\nv_lshrrev_b32 v4, 2, v3\nv_mul_u32_u24 v4, 5120, v4" % (sT0, vH, 2 * p))
                e("v_and_b32 v3, 3, v3\nv_lshl_add_u32 v3, v3, 8, v1\nv_add_u32 v%d, v3, v4" % MS[p])
            e("v_cmp_gt_u32 vcc, 32, v0\nv_cndmask_b32 v%d, v%d, v%d, vcc" % (MS[2], vOOB, MS[2]))
            e("s_mul_i32 %s, %s, 50\ns_and_b32 %s, %s, 1\ns_mul_i32 %s, %s, 40" % (sT0, sW, sT1, sG, sT1, sT1))
            e("v_add_u32 v1, %s, v0\nv_mul_u32_u24 v3, 0xccd, v1\nv_lshrrev_b32 v3, 16, v3\nv_mul_u32_u24 v4, 20, v3\nv_sub_u32 v1, v1, v4" % sT0)
            e("v_cmp_lt_u32 vcc, 4, v3\nv_cndmask_b32_e64 v4, 0, 20, vcc")
            e("v_add_u32 v1, v1, v4\nv_mul_u32_u24 v%d, 96, v1\nv_lshl_add_u32 v%d, v3, 3, v%d" % (vIW, vIW, vIW))
            e("v_add_u32 v1, %s, v1\nv_lshl_add_u32 v3, v3, 2, %s" % (sT1, sT1))
            e("v_lshrrev_b32 v4, 4, v1\nv_lshlrev_b32 v3, 6, v3\nv_lshl_add_u32 v3, v4, 11, v3")
            e("v_and_b32 v1, 15, v1\nv_lshl_add_u32 v%d, v1, 4, v3\nv_mov_b32 v1, 3840" % vGA)
            e("v_cmp_gt_u32 vcc, 50, v0\nv_cndmask_b32 v%d, v%d, v%d, vcc\nv_cndmask_b32 v%d, v1, v%d, vcc" % (vGA, vOOB, vGA, vIW, vIW))
            e("v_and_b32 v1, 0x13, v0\nv_bfe_u32 v3, v0, 2, 1\nv_lshl_or_b32 v1, v3, 3, v1\nv_bfe_u32 v4, v0, 3, 1\nv_lshl_or_b32 v1, v4, 2, v1")
            e("v_mul_u32_u24 v%d, 96, v1\nv_lshl_add_u32 v%d, v%d, 4, v%d" % (vAR, vAR, vH, vAR))
            e("v_and_b32 v1, 7, v1\nv_mul_u32_u24 v%d, 96, v1\nv_lshl_add_u32 v%d, v%d, 4, v%d" % (vAR2, vAR2, vH, vAR2))
            e("v_lshl_or_b32 v1, v1, 1, v3\nv_mul_u32_u24 v%d, %d, v1\nv_lshl_add_u32 v%d, v%d, 4, v%d" % (vZR, ZPITCH, vZR, vH, vZR))
            e("v_and_b32 v1, 31, v0\nv_mul_u32_u24 v3, 5120, v%d\nv_lshl_add_u32 v3, v1, 4, v3\nv_lshrrev_b32 v4, 2, v1\nv_lshl_add_u32 v%d, v4, 6, v3" % (vH, vZG))
            e("v_mul_u32_u24 v3, 0x3334, v1\nv_lshrrev_b32 v3, 16, v3\nv_mul_u32_u24 v3, %d, v3\nv_lshl_add_u32 v3, v1, 3, v3" % ZPITCH)
            e("s_mul_i32 %s, %s, %d\nv_lshl_add_u32 v3, v%d, 2, v3\nv_add_u32 v%d, %s, v3\nv_mov_b32 v3, %d" % (sT0, sW, 4 * ZPITCH + 160, vH, vZW, sT0, 16 * ZPITCH))
            e("v_cmp_gt_u32 vcc, 20, v1\nv_cndmask_b32 v%d, v%d, v%d, vcc\nv_cndmask_b32 v%d, v3, v%d, vcc" % (vZG, vOOB, vZG, vZW, vZW))
        e.shadow(late_addresses)
        e.pipe = e.gate = e.cyc
        e.p1_pass("A", [(e.rd_narrow(off1, b), Q + 16 * b, 2) for b in range(4)], True, True)
        e.raw("L_h2:")
        e.prog_flush()
        e.stamp(1)
        e.p1_pass("B", [(e.rd_narrow(off2, b), Q + 64 + 16 * b, 2) for b in range(6)], False, True, {e.opt.get("h_rl", 0): relayout, 7: phi_shadow,}, prev_tag="A")
        e.raw("L_h3:")
        e.prog_flush()
        e.drain_all()
        e.lstamp(None)
        e.stamp(4)
        e.wait_all(vm=False)
        e("s_barrier")
        for k in range(4):
            e("v_mov_b32 v%d, 0" % (208 + k))
        e("s_lshl_b32 %s, %s, 10\nv_add_u32 v1, %s, v%d" % (sT0, sW, sT0, vL16))
        zero = ["ds_write_b128 v1, v[208:211] offset:%d" % o_ for o_ in (IMG, ZIMG, ZIMG + 4096, ZIMG + 8192)]
        for pc in range(nsh // 8, 20):
            e.phi(Q + 8 * pc, 8, 240, 100, None, zero.pop() if zero else None)
            pq_st = e("\n".join(pq_piece(pc)))
        if full:
            e.p3_setup()
            e.p3_poll(0)
        e.flag(pq_st, sPF)
        if full:
            e.p3_check(0)
            e.p3_jobs(e.q2, 0, e.n3, free=True)
            e.bg_vm(force=True, maxn=e.opt.get("h_w", 24))
        wjobs, e.q2 = e.q2, []
        ldw = "buffer_load_dword v208, off, %s, %s sc1" % (sWS, sKF)
        ld1 = "buffer_load_dword v208, v%d, %s, %s offen sc1\nbuffer_load_dword v209, off, %s, %s sc1" % (vL128, sWS, sKF, sWS, sGF)
        if e.opt.get("h_two", 1):
            e(ldw)
            e.stamp(5)
            e.check(ldw, "v_cmp_eq_u32 vcc, -1, v208", site=57)
        e(ld1)
        e.check(ld1, "v_max_u32 v213, v208, v209\nv_cmp_eq_u32 vcc, -1, v213", site=58)
        e.wait_all(vm=False)
        e("s_barrier")
        e.stamp(6)
        vG, ZL, KL, DEN = vT[10], 208, Q + 80, Q + 144
        for r in range(8):
            e("buffer_load_dwordx4 %s, v%d, %s, %s offen sc1" % (R("v", ZL + 4 * r, 4), vZG, sWS, sZP))
            if r < 7:
                e("s_add_u32 %s, %s, 10240" % (sZP, sZP))
        e("buffer_load_dword v%d, v%d, %s, %s offen sc1" % (vG, vGT, sWS, sGA))
        for r in range(16):
            e.q1.append(Job(lambda: True, ["buffer_load_dwordx4 %s, v%d, %s, %s offen sc1" % (R("v", KL + 4 * r, 4), vGA, sWS, sKV)],
                            ["s_add_u32 %s, %s, %d" % (sKV, sKV, KVS)] if r else [], weight=1.2))
        e.bg_vm(force=True, maxn=e.opt.get("h_n0", 8))
        for r in range(1, 8):
            for k in (0, 2):
                e("v_pk_add_f32 %s, %s, %s" % (R("v", ZL + k, 2), R("v", ZL + k, 2), R("v", ZL + 4 * r + k, 2)))
        e("v_permlane32_swap_b32 v%d, v%d\nv_permlane32_swap_b32 v%d, v%d" % (ZL, ZL + 2, ZL + 1, ZL + 3))
        e("v_pk_add_f32 %s, %s, %s\nv_cvt_pk_bf16_f32 v%d, v%d, v%d" % (R("v", ZL, 2), R("v", ZL, 2), R("v", ZL + 2, 2), ZL, ZL, ZL + 1))
        e("ds_write_b32 v%d, v%d offset:%d" % (vZW, ZL, ZIMG))
        e.bg_vm(force=True, maxn=2)
        e.wait_all(vm=False)
        e("s_barrier")
        e.stamp(2)
        zf = lambda ks: R("a", 36 + 4 * (ks % 8), 4)
        for ks in range(6):
            e("ds_read_b128 %s, v%d offset:%d" % (zf(ks), vZR, ZIMG + 32 * ks))
        e.pipe = e.gate = e.cyc
        for ks in range(20):
            e("v_mfma_f32_32x32x16_bf16 %s, %s, %s, %s" % (R("v", DEN, 16), zf(ks), R("v", Q + 4 * ks, 4), R("v", DEN, 16) if ks else "0"))
            if ks + 6 < 20:
                e("ds_read_b128 %s, v%d offset:%d" % (zf(ks + 6), vZR, ZIMG + 32 * (ks + 6)))
            e.bg_vm()
        e.drain_all()

        def kvsum(r0, r1):
            for r in range(r0, r1):
                for k in (0, 2):
                    e("v_pk_add_f32 %s, %s, %s" % (R("v", KL + k, 2), R("v", KL + k, 2), R("v", KL + 4 * r + k, 2)))
        kvsum(1, 7)
        for fmt in ("v_add_f32 v{0}, %s, v{0}" % f32(1e-6), "v_rcp_f32 v{0}, v{0}", "v_mul_f32 v{0}, v{0}, v%d" % vG):
            for r in range(8):
                e(fmt.format(DEN + r))
        for k in range(2):
            last = e("buffer_store_dwordx4 %s, v%d, %s, %s offen offset:%d sc1" % (R("v", DEN + 4 * k, 4), vL16, sWS, sSC, k * 1024))
        e.q2 = wjobs
        e.bg_vm(force=True, maxn=e.opt.get("h_w1", 4))
        kvsum(7, 16)
        e("v_cvt_pk_bf16_f32 v%d, v%d, v%d\nv_cvt_pk_bf16_f32 v%d, v%d, v%d" % (KL, KL, KL + 1, KL + 1, KL + 2, KL + 3))
        e("ds_write_b64 v%d, %s offset:%d" % (vIW, R("v", KL, 2), IMG))
        e.stamp(3)
        e.wait_all(vm=False)
        e("s_barrier")
        for ks in range(3):
            e("ds_read_b128 %s, v%d offset:%d" % (R("a", 40 + 4 * ks, 4), vAR, IMG + 32 * ks))
        for ks in (1, 2):
            e("ds_read_b128 %s, v%d offset:%d" % (R("a", 48 + 4 * ks, 4), vAR2, IMG + 32 * 96 + 32 * ks))
        mm = []
        for bb in range(3):
            d1, d2 = R("v", Q + 32 * bb, 16), R("v", Q + 32 * bb + 16, 16)
            mm += ["v_mfma_f32_32x32x16_bf16 %s, %s, %s, %s" % (d1, R("a", 40 + 4 * ks, 4), R("a", WF + 12 * bb + 4 * ks, 4), d1 if ks else "0") for ks in range(3)]
            mm += ["v_mfma_f32_32x32x16_bf16 %s, %s, %s, %s" % (d2, R("a", 48 + 4 * ks, 4), R("a", WF + 12 * bb + 4 * ks, 4), d2 if ks == 2 else "0") for ks in (1, 2)]
        for _ in range(8):
            e(mm.pop(0))
        e("s_barrier")
        e.flag(last, sSF)
        e.stamp(7)
        for bb in range(3):
            if bb == 2:
                e("s_mov_b64 exec, %s\ns_add_u32 %s, %s, 4096" % (sHM, sMB, sMB))
            for p in range(3):
                d = 208 + 4 * (3 * bb + p)
                for k in range(4):
                    if mm and k % 2 == 0:
                        e(mm.pop(0))
                    e("v_cvt_pk_bf16_f32 v%d, v%d, v%d" % (d + k, Q + 32 * bb + 8 * p + 2 * k, Q + 32 * bb + 8 * p + 2 * k + 1))
                m_last = e("buffer_store_dwordx4 %s, v%d, %s, %s offen offset:%d sc1" % (R("v", d, 4), MS[p], sWS, sMB, (bb & 1) * 2048))
        e("s_mov_b64 exec, -1")
        if full:
            p3 = e.p3_poll(3)
        e.bg_vm(force=True, maxn=8)
        e.flag(m_last, sMF)
        e.stamp(8)
        e("s_mov_b32 %s, 0x%x" % (sFL, OOB))
        if not full:
            return None
        e.drain_all()
        e.wait(vm=p3)
        return e.join_state({"last": -1})

    def phase2(self, ids):
        e = self
        o = e.opt
        e.ev = {"xfree": True, "norm_done": True, "f": -1, "n3": 0}
        nqd, nqr = e.nqd, e.nqd - 4
        for q in range(nqd):
            e.ev[("adma", q)] = [ids.get(("A", q), -1)] * 4
        for g in range(NB0):
            e.ev[("dma", "P", g)] = [ids[("P", g)]] * 4
            e.ev[("ndma", "P", g)] = 4
        e.lat = 10 ** 9
        e.wring = WRING
        e.pace = o.get("pace2", 66)
        ACC_S, ACC_O, TT, RAW = 128, Z2ACC, 80, 112
        vB = [20, 21]
        vG, vK, vGA = [vT[6], vT[4]], vT[5], 24
        p = e.prog
        full = o.get("stop", 9) > 2
        e("v_add_u32 v%d, %d, v%d\nv_add_u32 v%d, %d, v%d" % (vB[0], WOFF, vL16, vB[1], WOFF + 2 * REGION, vL16))

        def opened(g):
            if g == 0:
                e.a_jobs(nqd, nqd, nqr, 16, e.q1)
                q = nqd
                for g_ in range(NB0, 16):
                    while q < 16 and q <= 2 * g_:
                        e.a_jobs(q, q + 1, 0, 0, e.q1)
                        e.q1[-1].need = ("P", 8 * q - 8)
                        q += 1
                    e.b_jobs(g_, g_ + 1)
                    e.q1[-1].need = ("P", 16 * g_ - 6)
                e.pipe = e.gate = e.cyc

        def read(f, dst):
            g, rem = divmod(f, 16)
            ks, blk = divmod(rem, 2)
            r_ = ks >> 1
            return e("ds_read_b128 %s, v%d offset:%d" % (R("v", dst, 4), vB[r_ >> 1], (r_ & 1) * REGION + ((g + 3) % 6) * 4096 + (ks & 1) * 2048 + blk * 1024))

        def mfma(f, bf):
            g, rem = divmod(f, 16)
            ks, blk = divmod(rem, 2)
            q = 2 * (g % 8) + (ks >> 2)
            qn = min(15, (f + 4) >> 3)
            if qn >= nqr and ("ard", qn) not in e.ev:
                e.lat = 0
                e.drain(lambda: ("ard", qn) in e.ev)
                e.lat = 10 ** 9
            if f == 128:
                assert e.ev.get("bias")
            k32, U = divmod(rem, 4)
            mm = []
            for ru in range(2):
                acc = R("v", (ACC_S if g < 8 else ACC_O) + 16 * (U >> 1) + 8 * ru + 4 * (U & 1), 4)
                mm.append("v_mfma_f32_16x16x32_bf16 %s, %s, %s, %s" % (acc, bf, rr(ASLOT[q], 4, 8 * (k32 & 1) + 4 * ru), "0" if f < 4 else acc))
            e(mm[0])
            return mm[1]

        def at(f):
            return ("until", lambda: -1 if e.ev["f"] >= f else 10 ** 9)

        def lines(text):
            p.extend(text.split("\n"))

        sPXS, sPXF, sPXR = sROW[1], sROW[2], sROW[3]
        nst = 4 if o.get("px16", 1) else 8
        lines("s_mul_i32 %s, %s, 14\ns_add_u32 %s, %s, %s\ns_lshl2_add_u32 %s, %s, %s" % (sT0, sI2, sT0, sT0, sJ2, sPXR, sT0, sW))
        lines("s_xor_b32 %s, %s, 4\ns_lshl_b32 %s, %s, 13\ns_add_u32 %s, %s, %d" % (sT0, sPXR, sPXS, sT0, sPXS, sPXS, PX))
        lines("s_lshl_b32 %s, %s, 7\ns_add_u32 %s, %s, %d" % (sPXF, sT0, sPXF, sPXF, F_PX))
        lines("s_lshl2_add_u32 %s, %s, %s\ns_lshl_b32 %s, %s, 7\ns_lshl_b32 %s, %s, 10\ns_add_u32 %s, %s, %d" % (sAB, sI2, sW, sAE, sAB, sAO, sAB, sAO, sAO, F_Z1))
        lines("s_mul_i32 %s, %s, 14\ns_add_u32 %s, %s, %s\ns_lshl_b32 %s, %s, 12\ns_add_u32 %s, %s, %d" % (sAB, sAB, sAB, sAB, sJ2, sAB, sAB, sAB, sAB, Z1))
        lines("s_add_u32 %s, %s, %d\nv_min_u32 v%d, %d, v%d" % (sAE, sAE, GATE, vT[8], 5 * 128, vL128))
        lines("v_and_b32 v%d, 60, v%d" % (vGA, vL4))
        p.append("s_cmp_eq_u32 %s, 0\ns_cselect_b32 %s, 0x%x, %s" % (sJ2, sJ, OOB, sAB))
        if full:
            e.shadow(e.p3_setup)
        z1_ld = "buffer_load_dword v%d, v%d, %s, %s offen sc1" % (vT[9], vT[8], sWS, sAO)
        z1p = [z1_ld] + ([e.p3_ld(0)] if full else [])
        z1p += [e.mark("z1p"), ("until", lambda: e.ev["z1p"]), ("call", lambda: e.check(z1_ld, "v_cmp_eq_u32 vcc, -1, v%d" % vT[9], site=59), 16)]
        z1p += ["buffer_load_dword v%d, v%d, %s, %s offen offset:%d sc1" % (vG[ru], vGA, sWS, sAE, 64 * ru) for ru in range(2)]
        z1p += ["buffer_load_dwordx4 %s, v%d, %s, %s offen offset:%d sc1" % (R("v", RAW + 4 * k, 4), vL16, sWS, sAB if k >> 1 else sJ, k * 1024) for k in range(4)]
        z1p.append(e.mark("z1d"))
        if full:
            z1p.append(("call", lambda: (e.p3_check(0), e.p3_jobs(e.q2, 0, e.n3)), 16))
        p.append(("call", lambda: e.ev.__setitem__("setup", True), 0))
        p.extend("v_lshlrev_b32 v%d, 16, v%d" % (ACC_O + k, vT[10 + (k >> 3 & 1)]) for k in range(32))
        p += [("call", lambda: e.ev.__setitem__("bias", True), 0)]
        act = ["v_sub_f32 v%d, 1.0, v%d" % (g_, g_) for g_ in vG] + ["v_mov_b32 v%d, %s" % (vK, f32(GK2))]
        for g0 in range(0, 32, 4):
            xs = [(TT + g0 + k, vT[k]) for k in range(4)]
            for k in range(0, 4, 2):
                act.append("v_lshlrev_b32 v%d, 16, v%d" % (TT + g0 + k, RAW + (g0 + k) // 2))
                act.append("v_and_b32 v%d, 0xffff0000, v%d" % (TT + g0 + k + 1, RAW + (g0 + k) // 2))
            for fmt in ("v_mul_f32 v{t}, v{x}, v{x}", "v_fmaak_f32 v{t}, v%d, v{t}, %s" % (vK, f32(GK1)), "v_mul_f32 v{t}, v{t}, v{x}",
                        "v_exp_f32 v{t}, v{t}", "v_mul_f32 v{x}, v{x}, v%d" % vG[g0 >> 3 & 1], "v_add_f32 v{t}, 1.0, v{t}", "v_rcp_f32 v{t}, v{t}",
                        "v_mul_f32 v{x}, v{x}, v{t}"):
                act += [fmt.format(x=x, t=t) for x, t in xs]
        vU, vU0, sU, sUF = vL16, 25, ["s18", sG], "s19"

        def out_addr():
            e("s_cmp_eq_u32 %s, 0\ns_cselect_b32 %s, 0x%x, 0" % (sJ2, sT1, OOB))
            e("v_add_u32 v%d, %s, v%d" % (vU0, sT1, vU))
            e("s_lshl2_add_u32 %s, %s, %s\ns_mul_i32 %s, %s, %d\ns_lshl_b32 %s, %s, 11" % (sT0, sI2, sW, sT0, sT0, 2 * 49152, sT1, sJ2))
            e("s_add_u32 %s, %s, %s\ns_add_u32 %s, %s, %d\ns_add_u32 %s, %s, 49152" % (sT0, sT0, sT1, sU[0], sT0, AP + 19 * 1024, sU[1], sU[0]))
            e("s_lshr_b32 %s, %s, 1\ns_lshl1_add_u32 %s, %s, %s\ns_lshl_b32 %s, %s, 5" % (sT0, sW, sT0, sI2, sT0, sT0, sT0))
            e("s_and_b32 %s, %s, 1\ns_lshl1_add_u32 %s, %s, %s\ns_add_u32 %s, %s, %s" % (sT1, sW, sT1, sJ2, sT1, sT0, sT0, sT1))
            e("s_lshl_b32 %s, %s, 7\ns_add_u32 %s, %s, %d" % (sT0, sT0, sUF, sT0, F_U))
        e.shadow(out_addr)
        p += [("until", lambda: e.ev.get("z1d", 10 ** 9)), ("call", lambda: e.wait(vm=e.ev["z1d"]), 4)] + act
        p.append(("until", lambda: e.ev.get("pxd", 10 ** 9)))
        if nst == 4:
            for d in range(16):
                p += ["v_lshlrev_b32 v%d, 16, v%d" % (ACC_S + 2 * d, ACC_S + 16 + d), "v_and_b32 v%d, 0xffff0000, v%d" % (ACC_S + 2 * d + 1, ACC_S + 16 + d)]

        def front(items):
            return lambda: e.hi.extend(items)
        px_ld = "buffer_load_dword v%d, off, %s, %s sc1" % (vT[9], sWS, sPXF)
        e.st_scale = 0.85
        hooks = Hooks()
        hooks[0] = front(e.deferred_stores() + [e.mark("role"), ("call", lambda: setattr(e, "st_scale", 1.0), 0)])
        hooks[o.get("f_rflag", 36)] = front([("call", lambda: e.flag(e.ev["role"], sFL), 20)])
        hooks[o.get("f_boost", 150)] = lambda: setattr(e, "boost", o.get("boost2", 0))
        hooks[o.get("f_z1", 80)] = front([("until", lambda: -1 if e.ev.get("setup") else 10 ** 9)] + z1p)
        step = o.get("px_step", 5)
        for k in range(nst):
            st_ = "buffer_store_dwordx4 %s, v%d, %s, %s offen offset:%d sc1" % (R("v", ACC_S + 4 * k, 4), vL16B if k >= 4 else vL16, sWS, sPXS, (k % 4) * 1024)
            pk = ["v_cvt_pk_bf16_f32 v%d, v%d, v%d" % (ACC_S + 4 * k + j, ACC_S + 8 * k + 2 * j, ACC_S + 8 * k + 2 * j + 1) for j in range(4)] if nst == 4 else []
            hooks[131 + step * k] = front(pk + [st_, e.mark("px")])
        hooks[o.get("f_pxflag", 176)] = front([("call", lambda: e.flag(e.ev["px"], sPXF), 20)])
        hooks[o.get("f_pxpoll", 208)] = front(["s_lshl_b32 %s, %s, 7" % (sPXF, sPXR), "s_add_u32 %s, %s, %d" % (sPXF, sPXF, F_PX),
                                               "s_lshl_b32 %s, %s, 13" % (sPXR, sPXR), "s_add_u32 %s, %s, %d" % (sPXR, sPXR, PX), px_ld])
        PR = ACC_S + 16 if nst == 4 else ACC_S
        hooks[o.get("f_pxload", 228)] = front(
            [("call", lambda: e.check(px_ld, "v_cmp_eq_u32 vcc, -1, v%d" % vT[9], site=61), 20)] +
            ["buffer_load_dwordx4 %s, v%d, %s, %s offen offset:%d sc1" % (R("v", PR + 4 * k, 4), vL16B if k >= 4 else vL16, sWS, sPXR, (k % 4) * 1024)
             for k in range(nst)] + [e.mark("pxd")])
        if full:
            hooks[o.get("f_p33", 240)] = front([e.p3_ld(3)])
        e.mfma_loop("P", 16, 16, read, mfma, opened, True, hooks, 40)
        assert not e.q1 and not e.qd
        e.boost = 0
        e.ev["f"] = 999
        e.prog_flush()
        e.lstamp(None)
        e.stamp(7)
        self.left3 = len(e.q2)
        e.drain_all()
        for k in range(8):
            g = ACC_O + 4 * k
            src = ACC_S + 4 * k
            for o_ in (0, 2):
                e("v_pk_add_f32 %s, %s, %s" % (R("v", g + o_, 2), R("v", g + o_, 2), R("v", src + o_, 2)))
            for o_ in (0, 2):
                e("v_pk_mul_f32 %s, %s, %s" % (R("v", g + o_, 2), R("v", g + o_, 2), R("v", TT + 4 * k + o_, 2)))
            for o_ in (0, 2):
                e("v_cvt_pk_bf16_f32 v%d, v%d, v%d" % (TT + 2 * k + o_ // 2, g + o_, g + o_ + 1))
            if k & 1:
                blk, p = divmod(k >> 1, 2)
                last = e("buffer_store_dwordx4 %s, v%d, %s, %s offen offset:%d sc1" % (R("v", TT + 2 * k - 2, 4), vU if blk else vU0, sWS, sU[p], blk * 1024))
        e("s_mov_b32 %s, %s" % (sFL, sUF))
        e.stamp(8)
        if o.get("stop", 9) <= 2:
            return None
        e.wait(lg=e.lg_n - 1)
        return e.join_state({"last": last})

    POOL = ([("a", 96 + 4 * k) for k in range(35)] + [("v", 192 + 4 * k) for k in range(16)] + [("v", 160 + 4 * k) for k in range(4)]
            + [("a", 236 + 4 * k) for k in range(5)] + [("a", 4 * k) for k in range(20)])
    POOLFREE = [-1] * 16 + [128 + 8 * (k // 4) + 7 for k in range(19)] + [998] * 45
    sRU = ["s63", "s64", "s65", "s71"]
    sB3, sF3, sW3 = "s72", "s73", "s99"
    vP = [16, 17, 18, 28, 26]
    vZ = 22

    def p3_setup(self):
        e = self
        for b in range(4):
            e("s_add_u32 %s, %s, %d\ns_and_b32 %s, %s, 3\ns_lshl2_add_u32 %s, %s, %s" % (sT0, sW, b + 1, sT0, sT0, sT0, sP, sT0))
            e("s_mul_i32 %s, %s, 48\ns_mul_i32 %s, %s, 5\ns_add_u32 %s, %s, %s" % (sT0, sT0, sT1, sW, sT0, sT0, sT1))
            e("s_lshl_b32 %s, %s, 10\ns_add_u32 %s, %s, %d" % (sT0, sT0, e.sRU[b], sT0, AP))
        e("s_mul_i32 %s, %s, 48\ns_add_u32 %s, %s, %s\ns_mul_i32 %s, %s, 5120\ns_add_u32 %s, %s, %d" % (sT0, sC, sT0, sT0, sT1, sT0, sT0, e.sB3, sT0, BP))
        e("s_mul_i32 %s, %s, %d\ns_add_u32 %s, %s, %s\ns_add_u32 %s, %s, %d" % (sT0, sW, 2 * 5120, e.sW3, e.sB3, sT0, e.sW3, e.sW3, 20 * 5120))
        e("s_lshr_b32 %s, %s, 1\ns_lshl_b32 %s, %s, 12" % (sT0, sC, sT0, sT0))
        e("s_mul_i32 %s, %s, %d\ns_add_u32 %s, %s, %s" % (sT1, sW, 7 * 128, sT0, sT0, sT1))
        e("s_add_u32 %s, %s, %d\nv_min_u32 v%d, %d, v%d\nv_add_u32 v%d, %s, v%d" % (sT1, sT0, F_WO, e.vP[0], 6 * 128, vL128, e.vP[0], sT1, e.vP[0]))
        e("s_lshl2_add_u32 %s, %s, %s\ns_lshl_b32 %s, %s, 9\ns_add_u32 %s, %s, %d" % (sT0, sC, sW, sT0, sT0, sT0, sT0, F_M))
        e("v_min_u32 v%d, %d, v%d\nv_add_u32 v%d, %s, v%d" % (e.vP[1], 3 * 128, vL128, e.vP[1], sT0, e.vP[1]))
        e("s_lshl_b32 %s, %s, 12\ns_add_u32 %s, %s, %d" % (e.sF3, sP, e.sF3, e.sF3, F_U))
        e("s_lshr_b32 %s, %s, 1\ns_lshl_b32 %s, %s, 8\ns_add_u32 %s, %s, %s\ns_add_u32 %s, %s, %d" % (sT0, sW, sT0, sT0, sT0, sT0, e.sF3, sT0, sT0, 28 * 128))
        e("v_and_b32 v%d, 0x80, v%d\nv_add_u32 v%d, %s, v%d" % (e.vP[2], vL128, e.vP[3], sT0, e.vP[2]))
        e("s_lshr_b32 %s, %s, 1\ns_lshl1_add_u32 %s, %s, %s\ns_lshl_b32 %s, %s, 8\ns_add_u32 %s, %s, %d" % (sT0, sW, sT0, sP, sT0, sT0, sT0, sT0, sT0, F_SC))
        e("v_add_u32 v%d, %s, v%d" % (e.vP[4], sT0, e.vP[2]))
        e("s_mul_i32 %s, %s, 7\ns_add_u32 %s, %s, 1\ns_and_b32 %s, %s, 0xfe" % (sT0, sW, sT0, sT0, sT0, sT0))
        e("v_and_b32 v%d, 7, v0\nv_add_u32 v%d, %s, v%d\nv_min_u32 v%d, 27, v%d\nv_lshlrev_b32 v%d, 7, v%d\nv_add_u32 v%d, %s, v%d"
          % (e.vP[2], e.vP[2], sT0, e.vP[2], e.vP[2], e.vP[2], e.vP[2], e.vP[2], e.vP[2], e.sF3, e.vP[2]))
        e("s_cmp_eq_u32 %s, 3\ns_cselect_b32 %s, 0x%x, 0\nv_add_u32 v%d, %s, v%d" % (sW, sT0, OOB, e.vZ, sT0, vL16))

    def p3_ld(self, k):
        return "buffer_load_dword v19, v%d, %s, 0 offen sc1" % (self.vP[k], sWS)

    def p3_poll(self, k):
        return self(self.p3_ld(k))

    def p3_check(self, k):
        self.check(self.p3_ld(k), "v_cmp_eq_u32 vcc, -1, v19", site=(60, 62, 63, 15, 14)[k])

    def p3_jobs(self, queue, start, end, free=False):
        e = self
        for x in range(start, end):
            queue.append(Job(lambda x=x: free or e.ev["f"] >= e.POOLFREE[x],
                             ["buffer_load_dwordx4 %s, v%d, %s, %s offen offset:%d sc1" % (rr(e.POOL[x], 4), e.vZ if x >= 30 else vL16, sWS, e.sW3, x % 4 * 1024)],
                             ["s_add_u32 %s, %s, 4096" % (e.sW3, e.sW3)] if x and x % 4 == 0 else []))

    def phase3(self, ids):
        e = self
        o = e.opt
        e.ev = {"late": True}
        ACC = 80
        vW = 20
        RA = [21, 23, 27]
        PQ, MF = e.POOL[35:55], e.POOL[55:]
        UR = [("a", 80 + 4 * k) for k in range(4)] + [("v", 176 + 4 * k) for k in range(4)] + [("v", 48 + 4 * k) for k in range(8)]
        SA = [8, 9, 10, 11, 12, 13, 14, 15, 1, 3]
        vZU = 16
        e.pipe = e.gate = e.cyc + o.get("p3_debt", 400)
        e.pace = o.get("pace3", 76)
        got = {}
        ld = "buffer_load_dwordx4 %%s, v%%d, %s, %%s offen offset:%%d sc1" % sWS

        def job(name, text, setup=(), pre=lambda: True):
            e.q1.append(Job(pre, [text], setup, done=lambda: got.__setitem__(name, e.vm_n - 1)))

        def need(name, ahead=0):
            while name not in got:
                assert e.bg_vm(force=True), name
            while e.vm_n - 1 - got[name] < ahead and e.bg_vm(force=True):
                pass

        def qjob(n):
            kl, b = divmod(n, 4)
            job(("q", n), ld % (rr(PQ[n], 4), vL16B if kl >= 4 else vL16, e.sRU[b], kl % 4 * 1024))
        nq0, nm0 = o.get("nq0", 12), o.get("nm0", 16)
        for n in range(nm0):
            qjob(n)
            if n == nq0 - 8:
                e.q1.append(Job(lambda: True, [e.p3_ld(4)]))
            if n == nq0 - 1:
                for k in range(2):
                    job(("s", k), "buffer_load_dwordx4 v%d, %s, %s offen sc1 lds" % (4 + k, sWS, sT3),
                        ([] if k else [lambda: (e.p3_check(4), e.p3_poll(1))]) + ["s_add_u32 m0, %s, %d" % (sREG, 1024 * k)], lambda: e.ev.get("sc_addr"))
        wj = []
        e.p3_jobs(wj, e.n3, 35, free=True)
        e.q1 += wj[:o.get("nw0", 3)]
        for kl in range(5):
            for t in range(5):
                job(("m", kl, t), ld % (rr(MF[5 * kl + t], 4), vL16B if t == 4 else vL16, sCH[kl], t % 4 * 1024),
                    [lambda: (e.p3_check(1), e.stamp(9))] if t + kl == 0 else [])
            for n in range(max(nm0, 4 * (kl + 3)), min(20, max(nm0, 4 * (kl + 4)))):
                qjob(n)
        e.q1 += wj[o.get("nw0", 3):]
        e.q1.insert(len(e.q1) - o.get("poll3", 6), Job(lambda: True, [e.p3_ld(2)]))
        for n in range(28):
            b, kl = divmod(n, 7)
            setup = []
            if n == 0:
                setup = [lambda: (e.p3_check(2), e.stamp(10))]
            if kl == 0:
                setup = setup + ["s_add_u32 %s, %s, %s" % (e.sRU[b], e.sRU[b], sSO)]
            job(("u", n), ld % (rr(UR[n % 16], 4), vZU if kl == 6 else vL16B if kl >= 4 else vL16, e.sRU[b], kl % 4 * 1024), setup,
                lambda n=n: (n < 12 or e.ev.get("scaled")) and e.ev.get("u_used", -1) >= n - 16)

        e.p3_check(3)
        e.bg_vm(force=True, maxn=2)
        e.V("v_lshrrev_b32 v28, 4, v0\nv_and_b32 v24, 15, v0")
        e.V("v_lshrrev_b32 v4, 5, v0\nv_add3_u32 v4, v4, %s, 1\nv_and_b32 v5, 1, v4\nv_bfe_u32 v4, v4, 1, 1" % sW)
        e.V("v_lshlrev_b32 v25, 4, v24\nv_lshl_add_u32 v25, v5, 8, v25\nv_and_b32 v5, 1, v28\nv_lshl_add_u32 v25, v5, 9, v25")
        e.V("v_lshl_add_u32 v4, v4, 12, v25\nv_xor_b32 v5, 0x1000, v4")
        e.V("s_lshl3_add_u32 %s, %s, %s\ns_lshl_b32 %s, %s, 10\ns_add_u32 %s, %s, %d" % (sT3, sP, sW, sT3, sT3, sT3, sT3, SC))
        e.V("v_lshl_add_u32 v25, v24, 4, %s" % sREG)
        for n_, r_ in enumerate(SA):
            e.V("v_lshl_add_u32 v32, v28, 1, %d\nv_mul_u32_u24 v32, 0x3334, v32\nv_bfe_u32 v33, v32, 16, 1\nv_lshrrev_b32 v32, 17, v32" % (8 * (n_ >> 1) + (n_ & 1)))
            e.V("v_lshl_add_u32 v33, v33, 8, v25\nv_lshl_add_u32 v%d, v32, 2, v33" % r_)
        e.V("v_add_u32 v%d, %s, v%d\nv_add_u32 v%d, 0x1000, v%d" % (vW, sREG, vL16, vZU, e.vZ))
        for b in range(3):
            e.V("s_add_u32 %s, %s, %d\ns_and_b32 %s, %s, 3\ns_mul_i32 %s, %s, %d" % (sT0, sW, 3 - b, sT0, sT0, sT0, sT0, REGION))
            e.V("v_add_u32 v%d, %s, v%d" % (RA[b], sT0, vL16))
        vO, vO2 = 24, 25
        e.V("v_mul_u32_u24 v%d, 1280, v%d" % (vO, vO))
        e.V("v_lshl_add_u32 v%d, v28, 3, v%d\nv_lshl_add_u32 v%d, v28, 4, v%d" % (vO2, vO, vO, vO))
        e.V("s_lshl2_add_u32 %s, %s, %s\ns_mul_i32 %s, %s, %d\ns_mul_i32 %s, %s, 160\ns_add_u32 %s, %s, %s" % (sT2, sP, sW, sT2, sT2, 16 * 1280, sT1, sC, sT2, sT2, sT1))
        e.V("s_lshl_b32 %s, %s, 11\ns_add_u32 %s, %s, %d" % (sSO, sW, sSO, sSO, 20 * 1024))
        for kl in range(5):
            e.V("s_add_u32 %s, %s, %d" % (sCH[kl], e.sB3, 5120 * kl))
        need(("q", o.get("burst3", 6)))
        e.flag(ids["last"], sFL)
        e.ev["sc_addr"] = True
        ahead = o.get("ahead3", 8)

        def sread(kl):
            for b in range(4):
                for sub in range(2):
                    e("ds_read_b32 v%d, v%d offset:%d" % (32 + 8 * (kl & 1) + 2 * b + sub, SA[2 * kl + sub], 512 * b))
        need(("s", 1), o.get("aheads", 6))
        e.wait(vm=got[("s", 1)])
        sread(0)
        sread(1)

        def scale(kl):
            for b in range(4):
                n = 4 * kl + b
                need(("q", n))
                x = PQ[n][1]
                t = 64 + 4 * b
                sreg = R("v", 32 + 8 * (kl & 1) + 2 * b, 2)
                for k in range(4):
                    e.V("v_lshlrev_b32 v%d, 16, v%d\nv_and_b32 v%d, 0xffff0000, v%d" % (t + k, x + k, x + k, x + k))
                for y in (x, t):
                    e.V("v_pk_mul_f32 %s, %s, %s op_sel_hi:[1,0]" % (R("v", y, 2), R("v", y, 2), sreg))
                    e.V("v_pk_mul_f32 %s, %s, %s op_sel:[0,1] op_sel_hi:[1,1]" % (R("v", y + 2, 2), R("v", y + 2, 2), sreg))
                for k in range(4):
                    e.V("v_cvt_pk_bf16_f32 v%d, v%d, v%d" % (x + k, t + k, x + k))
            if kl < 3:
                sread(kl + 2)
        ns = o.get("ns0", 3)
        for kl in range(ns):
            scale(kl)
        for kl in range(5):
            need(("m", kl, 4), o.get("aheadm", 4))
            e.wait(vm=got[("m", kl, 2)])
            for t in range(5):
                if t == 3:
                    e.wait(vm=got[("m", kl, 4)])
                for b in range(4):
                    acc = R("v", ACC + 20 * b + 4 * t, 4)
                    e("v_mfma_f32_16x16x32_bf16 %s, %s, %s, %s" % (acc, rr(MF[5 * kl + t], 4), rr(PQ[4 * kl + b], 4), acc if kl else "0"))
                    e.bg_vm()
            if kl + ns < 5:
                scale(kl + ns)
            e.ev["scaled"] = kl + ns >= 4
        T = [192 + 12 * t for t in range(5)]

        def gather(bs):
            return ["ds_read_b128 %s, v%d offset:%d" % (R("v", T[t] + 4 * b, 4), RA[b], b * 5120 + t * 1024) for t in range(5) for b in bs]
        wr = []
        m = 0
        for n in range(28):
            b, kl = divmod(n, 7)
            need(("u", n), ahead)
            if n == 21 + o.get("bar3", 5):
                assert not wr
                e.wait_all(vm=False)
                e("s_barrier")
                wr = [(0, x) for x in gather(range(3))]
            for t in range(5):
                acc = R("v", ACC + 20 * b + 4 * t, 4)
                e("v_mfma_f32_16x16x32_bf16 %s, %s, %s, %s" % (acc, rr(e.POOL[5 * kl + t], 4), rr(UR[n % 16], 4), acc))
                e.ev["u_used"] = n - (t < 4)
                m += 1
                if wr and wr[0][0] <= m:
                    e(wr.pop(0)[1])
                else:
                    e.bg_vm()
            if kl == 6 and b < 3:
                wr += [(m + 4 + 4 * t, "ds_write_b128 v%d, %s offset:%d" % (vW, R("v", ACC + 20 * b + 4 * t, 4), b * 5120 + t * 1024)) for t in range(5)]
        while wr:
            e(wr.pop(0)[1])
        e.stamp(11)
        OWN = ACC + 60
        P = 32
        sc = o.get("outsc", "")

        def finish_tile(t):
            for b in range(3):
                for o_ in (0, 2):
                    e("v_pk_add_f32 %s, %s, %s" % (R("v", OWN + 4 * t + o_, 2), R("v", OWN + 4 * t + o_, 2), R("v", T[t] + 4 * b + o_, 2)))
            for o_ in (0, 2):
                e("v_cvt_pk_bf16_f32 v%d, v%d, v%d" % (P + (2 * t + o_ // 2) % 8, OWN + 4 * t + o_, OWN + 4 * t + o_ + 1))
            if t in (1, 3):
                e("buffer_store_dwordx4 %s, v%d, %s, %s offen offset:%d %s" % (R("v", P + 2 * t - 2, 4), vO, sOUT, sT2, 32 * (t - 1), sc))
            elif t == 4:
                e("buffer_store_dwordx2 %s, v%d, %s, %s offen offset:128 %s" % (R("v", P, 2), vO2, sOUT, sT2, sc))
        for t in range(5):
            finish_tile(t)

    def finish(self):
        e = self
        if e.opt.get("diag"):
            e.wait_all()
            e.stamp(12)
            e("s_lshl2_add_u32 %s, s2, %s\ns_lshl_b32 %s, %s, 8\ns_add_u32 %s, %s, %d" % (sT0, sW, sT0, sT0, sT0, sT0, DIAG))
            e("s_nop 4")
            e("buffer_store_dword v7, v%d, %s, %s offen" % (vL4, sWS, sT0))
            if e.opt.get("padto"):
                e.raw("    v_readlane_b32 s4, v7, %d\n    s_mov_b32 s5, 0\nL_pad_%d:\n    s_memrealtime s[0:1]\n    s_waitcnt lgkmcnt(0)\n    s_sub_u32 s0, s0, s4\n"
                      "    s_add_u32 s5, s5, 1\n    s_cmp_ge_u32 s5, 0x10000\n    s_cbranch_scc1 L_end\n    s_cmp_lt_u32 s0, %d\n    s_cbranch_scc1 L_pad_%d"
                      % (e.opt.get("padfrom", 13), e.nlabel, e.opt["padto"], e.nlabel))
            if e.opt.get("dbgout"):
                e("v_not_b32 v8, v7\nv_cmp_eq_u32 vcc, 13, v0\nv_cndmask_b32 v7, v7, v8, vcc")
                e("s_lshl_b32 %s, %s, 12\ns_mov_b64 exec, 0x3fff" % (sT0, sW))
                e("buffer_atomic_umax v7, v%d, %s, %s offen offset:4 sc1" % (vL4, sDBG, sT0))

    def build(self):
        e = self
        stop = e.opt.get("stop", 9)
        e.prologue()
        e("s_cmp_eq_u32 %s, 7\ns_cbranch_scc1 L_role_h" % sJL)
        snap_h = e.snapshot()
        e.main_start()
        e("s_cmp_eq_u32 %s, 13\ns_cbranch_scc1 L_role_l" % sJ)
        e("s_cmp_ge_u32 %s, 4\ns_cbranch_scc1 L_role_b" % sJL)
        snap = e.snapshot()
        main, e.L = e.L, []
        parts = {}
        states = []
        for name, fn in (("a", e.role_a), ("b", e.role_b), ("l", e.role_l)):
            e.restore(snap)
            e.ev, e.q1, e.q2, e.qd, e.prog, e.eta = {}, [], [], [], [], {}
            e.lpend = None
            e.pipe = e.gate = e.cyc
            fn()
            states.append(e.p1_finish())
            parts[name], e.L = e.L, []
        e.restore(snap_h)
        e.ev, e.q1, e.q2, e.qd, e.prog, e.eta = {}, [], [], [], [], {}
        sth = e.role_h()
        if sth is None:
            e.finish()
            e("s_endpgm")
        parts["h"], e.L = e.L, []
        ids = e.merge(states)
        e.q1, e.q2, e.qd, e.prog, e.eta = [], [], [], [], {}
        e.raw("L_p2:")
        e("v_and_b32 v%d, 0x7c, v%d" % (vT[7], vL4))
        if stop <= 1:
            e.flag(e("\n".join(e.deferred_stores())), sFL)
        else:
            st2 = e.phase2(ids)
            if st2 is not None:
                ids = e.merge([st2, sth])
                e.eta = {}
                e.raw("L_p3:")
                e.phase3(ids)
        e.finish()
        rest, e.L = e.L, []
        e.L = main + parts["a"] + rest + ["L_end:", "    s_endpgm"]
        e.L += ["L_role_b:"] + parts["b"] + ["    s_branch L_p2"]
        e.L += ["L_role_l:"] + parts["l"] + ["    s_branch L_p2"]
        e.L += ["L_role_h:"] + parts["h"]
        if sth is not None:
            e.L += ["    s_branch L_p3"]
        return e.text() + "L_code_end:\n    s_endpgm\n"


def generate(opt):
    head = open("cdna_kernels/%s.s.ref" % NAME).read().split("; Override launch")[0] if opt.get("head", 1) else ""
    k = K(opt)
    body = k.build()
    if opt.get("verbose"):
        print("fragments forced at the end of phase 2:", getattr(k, "left3", None), "setup left after pass A:", k.left_a, file=sys.stderr)
    return (head + "; @launch grid=(256,1,1) block=(256,1,1) lds=163840\n"
            '.amdgcn_target "amdgcn-amd-amdhsa--gfx950"\n.text\n.globl %s_kernel\n.p2align 8\n.type %s_kernel,@function\n%s_kernel:\n' % (NAME, NAME, NAME)
            + body +
            '.section .rodata,"a"\n.p2align 6\n.amdhsa_kernel %s_kernel\n'
            "  .amdhsa_next_free_vgpr 512\n  .amdhsa_next_free_sgpr 102\n  .amdhsa_accum_offset 256\n"
            "  .amdhsa_group_segment_fixed_size 0\n  .amdhsa_kernarg_size 96\n  .amdhsa_user_sgpr_count 2\n"
            "  .amdhsa_user_sgpr_kernarg_segment_ptr 1\n  .amdhsa_system_sgpr_workgroup_id_x 1\n.end_amdhsa_kernel\n" % NAME)


if __name__ == "__main__":
    out = sys.argv[1]
    opt = {}
    for a in sys.argv[2:]:
        k, v = a.split("=")
        opt[k] = int(v) if v.lstrip("-").isdigit() else v
    open(out, "w").write(generate(opt))
```
